```python
import torch

def _softmax(x, axis=-1):
    return torch.softmax(x, dim=axis)
def _gelu(x):
    return torch.nn.functional.gelu(x, approximate="tanh")
def _silu(x):
    return torch.nn.functional.silu(x)
def _sigmoid(x):
    return torch.sigmoid(x)
def _layernorm(x, axis=-1, eps=1e-5):
    m = x.mean(dim=axis, keepdim=True)
    v = x.var(dim=axis, keepdim=True, unbiased=False)
    return (x - m) / torch.sqrt(v + eps)
def _scatter_add(tgt, idx, src, axis=0):
    return tgt.clone().index_add_(axis, idx, src)
def _segment_sum(src, seg, n):
    out = torch.zeros((n,) + src.shape[1:], dtype=src.dtype)
    return out.index_add_(0, seg, src)
def _pad(x, pw):
    flat = tuple(v for pair in reversed(pw) for v in pair)
    return torch.nn.functional.pad(x, flat)

kernel_name = 'standalone__cheap_equivariant_egnn__graph'

def setup_inputs():

    _w = (lambda a: (lambda t: t.to(torch.bfloat16) if t.is_floating_point() else t)(torch.as_tensor(a)))
    N, deg, D, De = 10000, 64, 64, max(16, 1)
    E = N * deg
    return {
        "h": _w((lambda *s: torch.randn(*s, dtype=torch.bfloat16) * 0.1)(N, D)),
        "pos": _w((lambda *s: torch.randn(*s, dtype=torch.bfloat16) * 0.8)(N, 3)),
        "e_attr": _w((lambda *s: torch.randn(*s, dtype=torch.bfloat16) * 0.8)(E, De)),
        "src": _w((lambda lo, hi, *s: torch.randint(lo, hi, s))(0, N, E).to(torch.int64)),
        "dst": _w((lambda lo, hi, *s: torch.randint(lo, hi, s))(0, N, E).to(torch.int64)),
        "w_e": _w(0.1 * (lambda *s: torch.randn(*s, dtype=torch.bfloat16) * 0.8)(2 * D + 1 + De, D)),
        "w_x": _w(0.1 * (lambda *s: torch.randn(*s, dtype=torch.bfloat16) * 0.1)(D, 1)),
        "w_h": _w(0.1 * (lambda *s: torch.randn(*s, dtype=torch.bfloat16) * 0.1)(2 * D, D)),
    }

def reference(h, pos, e_attr, src, dst, w_e, w_x, w_h):
    N, D = h.shape[0], h.shape[1]
    diff = pos[dst] - pos[src]
    dist2 = torch.sum(diff * diff, axis=-1, keepdims=True)
    e_in = torch.concatenate([h[dst], h[src], dist2, e_attr], axis=-1)
    m_ij = _silu(e_in @ w_e)
    coord_scale = m_ij @ w_x
    pos_new = pos + _segment_sum(diff * coord_scale, dst, N)
    m_i = _segment_sum(m_ij, dst, N)
    h_new = h + _silu(torch.concatenate([h, m_i], axis=-1) @ w_h)
    return h_new, pos_new
```

```python
import sys
def kd(name, vgpr, sgpr=96):
    acc = (vgpr + 3) // 4 * 4
    return f""".amdhsa_kernel {name}
  .amdhsa_next_free_vgpr {vgpr}
  .amdhsa_next_free_sgpr {sgpr}
  .amdhsa_accum_offset {acc}
  .amdhsa_group_segment_fixed_size 0
  .amdhsa_kernarg_size 88
  .amdhsa_user_sgpr_count 2
  .amdhsa_user_sgpr_kernarg_segment_ptr 1
  .amdhsa_system_sgpr_workgroup_id_x 1
  .amdhsa_float_denorm_mode_32 3
.end_amdhsa_kernel
"""
def head(name):
    return f".globl {name}\n.p2align 8\n.type {name},@function\n{name}:\n"
def srd(A, d, b, n):
    A(f"s_mov_b32 s{d}, s{b}"); A(f"s_mov_b32 s{d+1}, s{b+1}"); A(f"s_mov_b32 s{d+2}, {n}"); A(f"s_mov_b32 s{d+3}, 0x20000")
def fmt(o): return "\n".join(x if x.endswith(":") else "    " + x for x in o) + "\n"

def k_zero():
    o = []; A = o.append
    A("s_load_dwordx2 s[4:5], s[0:1], 80"); A("s_waitcnt lgkmcnt(0)")
    srd(A, 8, 4, 2720000)
    A("s_lshl_b32 s3, s2, 12"); A("v_lshlrev_b32 v1, 4, v0"); A("v_add_u32 v1, s3, v1")
    for i in range(4): A(f"v_mov_b32 v{4+i}, 0")
    A("buffer_store_dwordx4 v[4:7], v1, s[8:11], 0 offen"); A("s_endpgm")
    return fmt(o)

def silu(A, x, t):
    A(f"v_mul_f32 v{t}, 0xbfb8aa3b, v{x}"); A(f"v_exp_f32 v{t}, v{t}"); A("s_nop 0")
    A(f"v_add_f32 v{t}, 1.0, v{t}"); A(f"v_rcp_f32 v{t}, v{t}"); A("s_nop 0"); A(f"v_mul_f32 v{x}, v{x}, v{t}")

def k_edge():
    o = []; A = o.append
    A("s_cmp_ge_u32 s2, 2000"); A("s_cbranch_scc1 L_e_done")
    A("v_lshrrev_b32 v1, 6, v0"); A("s_nop 0"); A("v_readfirstlane_b32 s3, v1")
    A("s_load_dwordx4 s[4:7], s[0:1], 0")
    A("s_load_dwordx4 s[8:11], s[0:1], 16")
    A("s_load_dwordx4 s[12:15], s[0:1], 32")
    A("s_load_dwordx2 s[92:93], s[0:1], 48")
    A("s_load_dwordx2 s[94:95], s[0:1], 80")
    A("s_lshl_b32 s2, s2, 2"); A("s_add_u32 s2, s2, s3"); A("s_mul_i32 s2, s2, 80")
    A("v_and_b32 v0, 63, v0"); A("v_lshlrev_b32 v1, 1, v0")
    A("s_waitcnt lgkmcnt(0)")
    for k in range(145):
        if k % 16 == 0 and k: A("v_add_u32 v1, 2048, v1")
        A(f"global_load_ushort v{16+k}, v1, s[14:15] offset:{(k%16)*128}")
    A("v_lshlrev_b32 v1, 1, v0"); A("global_load_ushort v15, v1, s[92:93]")
    A("s_waitcnt vmcnt(0)")
    for k in range(-1, 145): A(f"v_lshlrev_b32 v{16+k}, 16, v{16+k}")
    A("s_add_u32 s3, s2, 80")
    A("v_lshlrev_b32 v2, 2, v0")
    A("L_e_loop:")
    A("s_lshl_b32 s14, s2, 2")
    A("s_load_dword s92, s[10:11], s14"); A("s_load_dword s93, s[12:13], s14")
    A("s_lshl_b32 s14, s2, 5"); A("s_load_dwordx8 s[80:87], s[8:9], s14")
    A("s_waitcnt lgkmcnt(0)")
    A("s_lshl_b32 s14, s93, 7"); A("s_load_dwordx16 s[16:31], s[4:5], s14"); A("s_add_u32 s14, s14, 64"); A("s_load_dwordx16 s[32:47], s[4:5], s14")
    A("s_lshl_b32 s15, s92, 7"); A("s_load_dwordx16 s[48:63], s[4:5], s15"); A("s_add_u32 s15, s15, 64"); A("s_load_dwordx16 s[64:79], s[4:5], s15")
    A("s_mul_i32 s14, s93, 6"); A("s_and_b32 s14, s14, -4"); A("s_load_dwordx2 s[88:89], s[6:7], s14")
    A("s_mul_i32 s15, s92, 6"); A("s_and_b32 s15, s15, -4"); A("s_load_dwordx2 s[90:91], s[6:7], s15")
    A("s_waitcnt lgkmcnt(0)")
    A("s_and_b32 s14, s93, 1"); A("s_lshl_b32 s14, s14, 4"); A("s_lshr_b64 s[88:89], s[88:89], s14")
    A("s_and_b32 s14, s92, 1"); A("s_lshl_b32 s14, s14, 4"); A("s_lshr_b64 s[90:91], s[90:91], s14")
    for c, (r, hi) in enumerate(((0, 0), (0, 1), (1, 0))):
        for b, d in ((88, 14), (90, 15)):
            A(f"s_and_b32 s{d}, s{b+r}, 0xffff0000" if hi else f"s_lshl_b32 s{d}, s{b+r}, 16")
        A(f"v_mov_b32 v{4+c}, s14"); A(f"v_subrev_f32 v{4+c}, s15, v{4+c}")
        A(f"v_cvt_pk_bf16_f32 v{4+c}, v{4+c}, v{4+c}"); A(f"v_lshlrev_b32 v{4+c}, 16, v{4+c}")
    A("v_mul_f32 v7, v4, v4"); A("v_fmac_f32 v7, v5, v5"); A("v_fmac_f32 v7, v6, v6")
    A("v_cvt_pk_bf16_f32 v7, v7, v7"); A("v_lshlrev_b32 v7, 16, v7")
    A(f"v_mul_f32 v8, v7, v{16+128}")
    for j in range(72):
        k = 2 * j if j < 64 else 129 + 2 * (j - 64)
        A(f"s_lshl_b32 s14, s{16+j}, 16"); A(f"v_fmac_f32 v8, s14, v{16+k}")
        A(f"s_and_b32 s15, s{16+j}, 0xffff0000"); A(f"v_fmac_f32 v8, s15, v{16+k+1}")
    silu(A, 8, 9)
    A("v_cvt_pk_bf16_f32 v8, v8, v8"); A("v_lshlrev_b32 v8, 16, v8")
    A("s_mul_i32 s14, s93, 272"); A("v_add_u32 v10, s14, v2")
    A("global_atomic_add_f32 v10, v8, s[94:95]")
    A("v_mul_f32 v9, v8, v15"); A("s_nop 1")
    for d in ("row_shr:1", "row_shr:2", "row_shr:4", "row_shr:8"):
        A(f"v_add_f32_dpp v9, v9, v9 {d} row_mask:0xf bank_mask:0xf bound_ctrl:1"); A("s_nop 1")
    A("v_add_f32_dpp v9, v9, v9 row_bcast:15 row_mask:0xa bank_mask:0xf"); A("s_nop 1")
    A("v_add_f32_dpp v9, v9, v9 row_bcast:31 row_mask:0xc bank_mask:0xf"); A("s_nop 1")
    A("v_readlane_b32 s15, v9, 63")
    A("v_cmp_eq_u32 vcc, 1, v0"); A("s_nop 1"); A("v_cndmask_b32 v4, v4, v5, vcc")
    A("v_cmp_eq_u32 vcc, 2, v0"); A("s_nop 1"); A("v_cndmask_b32 v4, v4, v6, vcc")
    A("v_mul_f32 v11, s15, v4")
    A("s_mov_b64 exec, 7")
    A("global_atomic_add_f32 v10, v11, s[94:95] offset:256")
    A("s_mov_b64 exec, -1")
    A("s_waitcnt vmcnt(0)")
    A("s_add_u32 s2, s2, 1"); A("s_cmp_lt_u32 s2, s3"); A("s_cbranch_scc1 L_e_loop")
    A("L_e_done:"); A("s_endpgm")
    return fmt(o)

def k_node():
    o = []; A = o.append
    A("s_cmp_ge_u32 s2, 500"); A("s_cbranch_scc1 L_n_done")
    A("v_lshrrev_b32 v1, 6, v0"); A("s_nop 0"); A("v_readfirstlane_b32 s3, v1")
    A("s_load_dwordx4 s[4:7], s[0:1], 0")
    A("s_load_dwordx4 s[8:11], s[0:1], 56")
    A("s_load_dwordx2 s[12:13], s[0:1], 80")
    A("s_lshl_b32 s2, s2, 2"); A("s_add_u32 s2, s2, s3"); A("s_mul_i32 s2, s2, 5")
    A("v_and_b32 v0, 63, v0"); A("v_lshlrev_b32 v1, 1, v0")
    A("s_waitcnt lgkmcnt(0)")
    for k in range(128):
        if k % 16 == 0 and k: A("v_add_u32 v1, 2048, v1")
        A(f"global_load_ushort v{16+k}, v1, s[8:9] offset:{(k%16)*128}")
    A("s_waitcnt vmcnt(0)")
    for k in range(128): A(f"v_lshlrev_b32 v{16+k}, 16, v{16+k}")
    A("s_add_u32 s3, s2, 5")
    A("v_lshlrev_b32 v1, 1, v0"); A("v_lshlrev_b32 v2, 2, v0")
    A("L_n_loop:")
    A("s_lshl_b32 s14, s2, 7"); A("v_add_u32 v3, s14, v1"); A("global_load_ushort v4, v3, s[4:5]")
    A("s_load_dwordx16 s[16:31], s[4:5], s14"); A("s_add_u32 s14, s14, 64"); A("s_load_dwordx16 s[32:47], s[4:5], s14")
    A("s_waitcnt lgkmcnt(0)")
    A("v_mov_b32 v8, 0")
    for j in range(32):
        A(f"s_lshl_b32 s14, s{16+j}, 16"); A(f"v_fmac_f32 v8, s14, v{16+2*j}")
        A(f"s_and_b32 s15, s{16+j}, 0xffff0000"); A(f"v_fmac_f32 v8, s15, v{16+2*j+1}")
    A("s_mul_i32 s14, s2, 272")
    for q in range(4):
        A(f"s_load_dwordx16 s[{16+16*q}:{31+16*q}], s[12:13], s14"); A("s_add_u32 s14, s14, 64")
    A("s_mul_i32 s14, s2, 272"); A("v_add_u32 v5, s14, v2")
    A("s_mul_i32 s14, s2, 6"); A("v_add_u32 v6, s14, v1")
    A("s_mov_b64 exec, 7")
    A("global_load_dword v7, v5, s[12:13] offset:256"); A("global_load_ushort v10, v6, s[6:7]")
    A("s_mov_b64 exec, -1")
    A("s_waitcnt lgkmcnt(0)")
    for j in range(64):
        A(f"s_bfe_u32 s14, s{16+j}, 0x10010"); A(f"s_add_u32 s14, s14, 0x7fff"); A(f"s_add_u32 s14, s14, s{16+j}"); A("s_and_b32 s14, s14, 0xffff0000")
        A(f"v_fmac_f32 v8, s14, v{16+64+j}")
    silu(A, 8, 9)
    A("s_waitcnt vmcnt(0)")
    A("v_lshlrev_b32 v4, 16, v4"); A("v_add_f32 v8, v8, v4"); A("v_cvt_pk_bf16_f32 v8, v8, v8")
    A("global_store_short v3, v8, s[10:11]")
    A("s_mov_b64 exec, 7")
    A("v_lshlrev_b32 v10, 16, v10"); A("v_add_f32 v10, v10, v7"); A("v_cvt_pk_bf16_f32 v10, v10, v10")
    A("v_add_u32 v6, 1280000, v6")
    A("global_store_short v6, v10, s[10:11]")
    A("s_mov_b64 exec, -1")
    A("s_waitcnt vmcnt(0)")
    A("s_add_u32 s2, s2, 1"); A("s_cmp_lt_u32 s2, s3"); A("s_cbranch_scc1 L_n_loop")
    A("L_n_done:"); A("s_endpgm")
    return fmt(o)

def assemble(kernels, launches):
    s = ""
    for (k, g, b, l) in launches: s += f"; @launch kernel={k} grid=({g},1,1) block=({b},1,1) lds={l}\n"
    s += '.amdgcn_target "amdgcn-amd-amdhsa--gfx950"\n.text\n'
    for (n, body, v) in kernels: s += head(n) + body
    s += '.section .rodata,"a"\n'
    for (n, body, v) in kernels: s += ".p2align 6\n" + kd(n, v)
    return s
if __name__ == "__main__":
    ks = [("zero_kernel", k_zero(), 16), ("edge_kernel", k_edge(), 168), ("node_kernel", k_node(), 168)]
    ls = [("zero_kernel", 665, 256, 0), ("edge_kernel", 2000, 256, 0), ("node_kernel", 500, 256, 0)]
    open(sys.argv[1], "w").write(assemble(ks, ls))
```

```python
from naive import *
TS = 200 << 20
def k_probe(nload, lflags, sflags, do_store, wsoff=16 << 20, srcslot=16, srcbytes=20480000, srcoff=0):
    o = []; A = o.append
    A("s_memrealtime s[40:41]")
    A("s_cmp_ge_u32 s2, 256"); A("s_cbranch_scc1 L_p_done")
    A(f"s_load_dwordx2 s[4:5], s[0:1], {srcslot}"); A("s_load_dwordx2 s[6:7], s[0:1], 80")
    A("s_waitcnt lgkmcnt(0)")
    A(f"s_add_u32 s4, s4, {srcoff}"); A("s_addc_u32 s5, s5, 0")
    srd(A, 12, 4, srcbytes)
    A(f"s_add_u32 s8, s6, {wsoff}"); A("s_addc_u32 s9, s7, 0")
    srd(A, 16, 8, 32 << 20)
    A(f"s_mul_i32 s3, s2, {max(nload,1)*16384}")
    A("v_lshlrev_b32 v1, 4, v0"); A("v_add_u32 v1, s3, v1")
    for i in range(nload): A(f"s_mov_b32 s{20+i}, {i*16384}")
    for i in range(nload): A(f"buffer_load_dwordx4 v[{4+4*i}:{7+4*i}], v1, s[12:15], s{20+i} offen {lflags}")
    for i in range(nload):
        if do_store:
            A(f"s_waitcnt vmcnt({nload-1})")
            A(f"buffer_store_dwordx4 v[{4+4*i}:{7+4*i}], v1, s[16:19], s{20+i} offen {sflags}")
    A("s_waitcnt vmcnt(0)")
    A("v_mov_b32 v2, s40"); A("s_lshl_b32 s3, s2, 2"); A(f"s_add_u32 s3, s3, {TS}"); A("v_mov_b32 v3, s3")
    A("s_mov_b64 exec, 1")
    A("global_store_dword v3, v2, s[6:7]")
    A("L_p_done:"); A("s_endpgm")
    return fmt(o)
def k_amp(f):
    o = []; A = o.append
    A("s_memrealtime s[40:41]")
    A("s_cmp_ge_u32 s2, 1"); A("s_cbranch_scc1 L_a_done")
    A("s_load_dwordx2 s[6:7], s[0:1], 80"); A("s_waitcnt lgkmcnt(0)")
    A(f"v_lshlrev_b32 v1, 4, v0"); A(f"v_add_u32 v1, {TS}, v1")
    A("global_load_dwordx4 v[4:7], v1, s[6:7]"); A("s_waitcnt vmcnt(0)")
    for i in range(4): A(f"v_sub_u32 v{4+i}, s40, v{4+i}")
    A("v_max_u32 v4, v4, v5"); A("v_max_u32 v6, v6, v7"); A("v_max_u32 v4, v4, v6")
    A("s_mov_b32 s10, 0")
    for l in range(64):
        A(f"v_readlane_b32 s11, v4, {l}"); A("s_nop 0"); A("s_max_u32 s10, s10, s11")
    A("s_min_u32 s10, s10, 5000")
    A(f"s_mul_i32 s10, s10, {f}")
    A("L_a_spin:")
    A("s_memrealtime s[42:43]"); A("s_waitcnt lgkmcnt(0)"); A("s_sub_u32 s11, s42, s40"); A("s_cmp_lt_u32 s11, s10"); A("s_cbranch_scc1 L_a_spin")
    A("L_a_done:"); A("s_endpgm")
    return fmt(o)
V = {
 "p0": (0, "", "", 0), "p1": (5, "", "", 0), "p2": (5, "nt", "", 0), "p3": (5, "nt", "sc1", 1), "p4": (5, "", "", 1), "p5": (1, "", "", 1),
 "p6": (2, "", "", 1), "p7": (2, "nt", "sc1", 1), "p8": (5, "", "", 0, 16 << 20, 80, 32 << 20, 0), "p9": (5, "", "", 0, 16 << 20, 80, 32 << 20, 220 << 20),
 "p10": (5, "nt", "sc1", 1, 210 << 20), "p11": (5, "nt", "nt", 1),
}
for n, a in V.items():
    ks = [("probe_kernel", k_probe(*a), 64), ("amp_kernel", k_amp(100), 16), ("zero_kernel", k_zero(), 16), ("edge_kernel", k_edge(), 168), ("node_kernel", k_node(), 168)]
    ls = [("probe_kernel", 256, 1024, 0), ("amp_kernel", 1, 64, 0), ("zero_kernel", 665, 256, 0), ("edge_kernel", 2000, 256, 0), ("node_kernel", 500, 256, 0)]
    open(f"gen/{n}.s", "w").write(assemble(ks, ls))
```

```python
class Regs:
    def __init__(self, prefix, start, limit):
        self.p, self.n, self.limit, self.names = prefix, start, limit, {}
    def alloc(self, name, cnt=1, align=1):
        self.n = (self.n + align - 1) // align * align
        self.names[name] = (self.n, cnt); b = self.n; self.n += cnt
        assert self.n <= self.limit, f"out of {self.p} regs at {name}"
        return R(self.p, b, cnt)
class R:
    def __init__(self, p, b, cnt=1): self.p, self.b, self.cnt = p, b, cnt
    def __getitem__(self, i):
        if isinstance(i, slice):
            a = i.start or 0; e = i.stop if i.stop is not None else self.cnt
            assert 0 <= a < e <= self.cnt, (a, e, self.cnt)
            return R(self.p, self.b + a, e - a)
        assert 0 <= i < self.cnt, (i, self.cnt)
        return R(self.p, self.b + i, 1)
    def __str__(self): return f"{self.p}{self.b}" if self.cnt == 1 else f"{self.p}[{self.b}:{self.b+self.cnt-1}]"
    __repr__ = __str__
    def __format__(self, spec): return str(self)
class Asm:
    def __init__(self): self.o = []
    def __call__(self, s):
        for l in s.strip("\n").split("\n"):
            l = l.strip()
            if l: self.o.append(l)
    def text(self): return "\n".join(x if x.endswith(":") or x.startswith(".") else "    " + x for x in self.o) + "\n"
def kd(name, vgpr, sgpr=96, acc=None):
    if acc is None: acc = (vgpr + 3) // 4 * 4
    return f""".amdhsa_kernel {name}
  .amdhsa_next_free_vgpr {vgpr}
  .amdhsa_next_free_sgpr {sgpr}
  .amdhsa_accum_offset {acc}
  .amdhsa_group_segment_fixed_size 0
  .amdhsa_kernarg_size 88
  .amdhsa_user_sgpr_count 2
  .amdhsa_user_sgpr_kernarg_segment_ptr 1
  .amdhsa_system_sgpr_workgroup_id_x 1
  .amdhsa_float_denorm_mode_32 3
.end_amdhsa_kernel
"""
def head(name): return f".globl {name}\n.p2align 8\n.type {name},@function\n{name}:\n"
def srd(A, d, b, n, stride=0):
    A(f"s_mov_b32 {d[0]}, {b[0]}")
    if stride:
        A(f"s_and_b32 {d[1]}, {b[1]}, 0xffff"); A(f"s_or_b32 {d[1]}, {d[1]}, {stride << 16:#x}")
    else: A(f"s_mov_b32 {d[1]}, {b[1]}")
    A(f"s_mov_b32 {d[2]}, {n}"); A(f"s_mov_b32 {d[3]}, 0x20000")
HEADER = """; EGNN layer (gfx950).  Kernarg: h@0 pos@8 e_attr@16 src@24 dst@32 w_e@40 w_x@48 w_h@56 out@64 debug@72 ws@80
"""
def assemble(kernels, launches, single=False):
    s = HEADER
    for (k, g, b, l) in launches:
        s += f"; @launch grid=({g},1,1) block=({b},1,1) lds={l}\n" if single else f"; @launch kernel={k} grid=({g},1,1) block=({b},1,1) lds={l}\n"
    s += '.amdgcn_target "amdgcn-amd-amdhsa--gfx950"\n.text\n'
    for (n, body, v) in kernels: s += head(n) + body
    s += '.section .rodata,"a"\n'
    for (n, body, v) in kernels: s += ".p2align 6\n" + kd(n, v)
    return s
```

```python
import sys, struct
from lib import *
N, E = 10000, 640000
NB, CH = 250, 2560
CAP = 416
f2u = lambda x: struct.unpack("<I", struct.pack("<f", x))[0]
NLOG2E = 0xbfb8aa3b
NLN2 = 0xbf317218

def k_bin():
    A = Asm()
    A(f"""
    s_cmp_ge_u32 s2, {NB}
    s_cbranch_scc1 L_bin_done
    s_load_dwordx4 s[4:7], s[0:1], 24
    s_load_dwordx2 s[8:9], s[0:1], 80
    s_mul_i32 s3, s2, {CH*4}
    v_lshl_add_u32 v1, v0, 4, s3
    s_add_u32 s3, s3, 8192
    v_lshl_add_u32 v2, v0, 2, s3
    v_mov_b32 v4, 0
    v_mov_b32 v5, 0
    v_mov_b32 v6, 0
    v_mov_b32 v7, 0
    v_lshlrev_b32 v3, 4, v0
    s_waitcnt lgkmcnt(0)
    global_load_dwordx4 v[8:11], v1, s[6:7]
    global_load_dword v12, v2, s[6:7]
    global_load_dwordx4 v[16:19], v1, s[4:5]
    global_load_dword v20, v2, s[4:5]
    v_lshlrev_b32 v2, 2, v0
    ds_write_b32 v2, v4
    """)
    for i in range(4): A(f"ds_write_b128 v3, v[4:7] offset:{1024 + 8192*i}")
    srd(A, R("s", 12, 4), R("s", 8, 2), NB * NB * 128)
    A("v_lshlrev_b32 v24, 8, v0")
    for i in range(1, 4): A(f"v_add_u32 v{24+i}, {64*i}, v24")
    A(f"v_lshlrev_b32 v28, 6, v0"); A(f"v_add_u32 v28, {2048*64}, v28")
    A("v_mov_b32 v21, 4")
    A("s_waitcnt lgkmcnt(0)"); A("s_barrier"); A("s_waitcnt vmcnt(2)")
    for i in range(5):
        A(f"v_mul_u32_u24 v{30+i}, 52429, v{8+i}"); A(f"v_lshrrev_b32 v{30+i}, 18, v{30+i}")
        A(f"v_lshrrev_b32 v{36+i}, 1, v{30+i}"); A(f"v_and_b32 v{36+i}, -4, v{36+i}")
        A(f"ds_add_rtn_u32 v{42+i}, v{36+i}, v21")
        A(f"v_mad_u32_u24 v{30+i}, v{30+i}, 3, v{8+i}"); A(f"v_add_u32 v{30+i}, 1, v{30+i}")
        A(f"v_and_or_b32 v{30+i}, v{30+i}, 63, v{24+i}")
    A("s_waitcnt vmcnt(0)")
    for i in range(5): A(f"v_lshl_or_b32 v{30+i}, v{16+i}, 18, v{30+i}")
    A("s_movk_i32 s16, 128")
    for i in range(5):
        A(f"s_waitcnt lgkmcnt({4-i if i < 1 else 4})" if False else f"s_waitcnt lgkmcnt(0)" if i == 0 else "")
        A(f"v_cmp_gt_u32 s[{20+2*i}:{21+2*i}], s16, v{42+i}")
        A(f"v_lshl_add_u32 v{42+i}, v{36+i}, 5, v{42+i}")
    for i in range(5):
        A(f"s_mov_b64 exec, s[{20+2*i}:{21+2*i}]"); A(f"ds_write_b32 v{42+i}, v{30+i} offset:1024")
    A("s_mov_b64 exec, -1")
    A(f"""
    v_lshrrev_b32 v1, 3, v0
    v_lshlrev_b32 v2, 2, v1
    v_mul_u32_u24 v1, {NB*128}, v1
    v_and_b32 v4, 7, v0
    v_lshl_add_u32 v1, v4, 4, v1
    s_lshl_b32 s3, s2, 7
    v_add_u32 v1, s3, v1
    s_waitcnt lgkmcnt(0)
    s_barrier
    """)
    for i in range(4):
        A(f"ds_read_b128 v[{8+4*i}:{11+4*i}], v3 offset:{1024 + 8192*i}"); A(f"ds_read_b32 v{24+i}, v2 offset:{256*i}")
    for i in range(4):
        A(f"s_waitcnt lgkmcnt({6-2*i})")
        A(f"v_cmp_lt_u32 s[20:21], s16, v{24+i}")
        A(f"v_add_u32 v{28+i}, {i*64*NB*128}, v1")
        A("s_nop 0")
        A(f"v_cndmask_b32 v{8+4*i}, v{8+4*i}, -1, s[20:21]")
        A(f"buffer_store_dwordx4 v[{8+4*i}:{11+4*i}], v{28+i}, s[12:15], 0 offen")
    A("L_bin_done:"); A("s_endpgm")
    return A.text()

CNT, FLAG, LUT, WX = 0, 64, 128, 256
POS = 512
WE = POS + 60032
WH = WE + 18560
STG = WH + 16384
LIST = STG + 8 * 5120
LDS_MAIN = LIST + 8 * CAP * 8
assert STG % 128 == 0 and LDS_MAIN <= 163840

def k_main(dbg=False):
    A = Asm()
    S = Regs("s", 26, 96); V = Regs("v", 1, 256)
    pH, pPos, pE, pSrc, pDst, pWe, pWx, pWh, pOut, pDbg, pWs = [R("s", 4 + 2 * i, 2) for i in range(11)]
    sW = S.alloc("wave"); sN0 = S.alloc("node0")
    SH = S.alloc("SH", 4, 4); SE = S.alloc("SE", 4, 4); SX = S.alloc("SX", 4, 4); SY = S.alloc("SY", 4, 4); SO = S.alloc("SO", 4, 4)
    sM = S.alloc("masks", 16, 2); sHi = S.alloc("himask", 2, 2); sT = S.alloc("tmp", 4, 2)
    sStg = S.alloc("stg"); sLb = S.alloc("listbase"); sCnt = S.alloc("cnt"); sNt = S.alloc("nt"); sTi = S.alloc("ti")
    sSlow = S.alloc("slow"); sScan = S.alloc("scan"); sPd = S.alloc("pd"); sC = S.alloc("c"); sOv = S.alloc("ov", 2, 2)
    vL = V.alloc("lane"); vHalf = V.alloc("half"); vT1 = V.alloc("t1")
    W2 = V.alloc("W2", 32, 4); W4 = V.alloc("W4", 8, 4); BX = V.alloc("BX", 8, 4)
    ACC = V.alloc("ACC", 32, 4); Y = V.alloc("Y", 32, 4); TM = V.alloc("TM", 32, 4)
    H = V.alloc("H", 16, 4); EA = V.alloc("EA", 4, 4); X = V.alloc("X", 4, 4); A2 = V.alloc("A2", 8, 4); PK = V.alloc("PK", 8, 4)
    IX = V.alloc("IX", 10, 2); HRD = V.alloc("HRD", 4); ERD = V.alloc("ERD")
    vAh = V.alloc("Ah"); vAe = V.alloc("Ae"); vAn = V.alloc("An"); vTrow = V.alloc("Trow"); vTtr = V.alloc("Ttr")
    EN = V.alloc("EN", 2, 2); D = V.alloc("D", 2, 2); HALF = V.alloc("HALFC", 2, 2); ZERO = V.alloc("ZERO", 2, 2)
    vAt = V.alloc("At"); PS = V.alloc("PS", 3); PD = V.alloc("PD", 3); DT = V.alloc("DT", 4)
    ZH = V.alloc("ZH", 6); HR = V.alloc("HR", 6); WD = V.alloc("WD", 2); vWb = V.alloc("Wb")
    nv = V.n
    mf = "v_mfma_f32_32x32x16_bf16"
    A(f"""
    s_cmp_ge_u32 s2, {NB}
    s_cbranch_scc1 L_main_done
    s_load_dwordx16 s[4:19], s[0:1], 0
    s_load_dwordx4 s[20:23], s[0:1], 64
    s_load_dwordx2 s[24:25], s[0:1], 80
    v_lshrrev_b32 {vT1}, 6, v0
    v_and_b32 {vL}, 63, v0
    v_readfirstlane_b32 {sW}, {vT1}
    v_lshrrev_b32 {vHalf}, 5, {vL}
    """)
    RP = Y[0:8]; RS = Y[8:16]; vRo = Y[16]; vRq = Y[17]; vCB = Y[18]; vCS = Y[19]; v8 = Y[20]
    WA = Y[24:28]; WB = Y[28]
    A(f"""
    v_lshrrev_b32 {vCB}, 3, v0
    v_and_b32 {vT1}, 7, v0
    v_lshlrev_b32 {vRo}, 7, {vCB}
    v_lshl_add_u32 {vRo}, {vT1}, 3, {vRo}
    v_mul_u32_u24 {vCB}, {CH*64}, {vCB}
    v_lshrrev_b32 {vCS}, 2, v0
    v_and_b32 {vT1}, 3, v0
    v_lshlrev_b32 {vRq}, 7, {vCS}
    v_lshl_add_u32 {vRq}, {vT1}, 4, {vRq}
    v_mul_u32_u24 {vCS}, {CH*64}, {vCS}
    s_mul_i32 {sT[0]}, s2, {NB*128}
    s_mul_i32 {sN0}, s2, 40
    s_mul_i32 {sT[1]}, {sW}, 5
    s_add_u32 {sN0}, {sN0}, {sT[1]}
    s_waitcnt lgkmcnt(0)
    s_add_u32 {SX[0]}, {pWs[0]}, {sT[0]}
    s_addc_u32 {SX[1]}, {pWs[1]}, 0
    s_mov_b32 {SX[2]}, {NB*128}
    s_mov_b32 {SX[3]}, 0x20000
    """)
    for q in range(4):
        A(f"buffer_load_dwordx2 {RP[2*q:2*q+2]}, {vRo}, {SX}, 0 offen")
        if q < 3: A(f"v_add_u32 {vRo}, 8192, {vRo}")
    A(f"buffer_load_dwordx4 {RS[0:4]}, {vRq}, {SX}, 0 offen offset:64")
    A(f"v_add_u32 {vRq}, 16384, {vRq}")
    A(f"buffer_load_dwordx4 {RS[4:8]}, {vRq}, {SX}, 0 offen offset:64")
    nvm = 6
    A(f"""
    v_lshlrev_b32 {vRo}, 4, v0
    v_lshlrev_b32 {vRq}, 2, v0
    v_add_u32 {vT1}, 8192, {vRo}
    global_load_dwordx4 {WA}, {vT1}, {pWe}
    v_add_u32 {vT1}, {129*128}, {vRq}
    global_load_dword {WB}, {vT1}, {pWe}
    """)
    srd(A, SH, pH, N, 128); srd(A, SE, pE, E, 32); srd(A, SO, pOut, N * 134)
    c31 = TM[0];
    A(f"""
    v_and_b32 {c31}, 31, {vL}
    v_and_b32 {TM[2]}, 3, {vL}
    v_bfe_u32 {TM[1]}, {vL}, 3, 2
    v_lshl_add_u32 {TM[2]}, {TM[1]}, 2, {TM[2]}
    v_add_u32 {TM[2]}, {sN0}, {TM[2]}
    v_lshlrev_b32 {TM[3]}, 4, {vHalf}
    s_mov_b32 {sT[0]}, 0xffff
    s_mov_b32 {sT[1]}, 0xffff
    s_mov_b64 exec, {sT[0:2]}
    """)
    for s in range(4): A(f"buffer_load_dwordx4 {H[4*s:4*s+4]}, {TM[2:4]}, {SH}, 0 idxen offen offset:{32*s}")
    A("s_mov_b64 exec, -1")
    A(f"""
    v_add_u32 {TM[4]}, {sN0}, {vHalf}
    v_lshlrev_b32 {TM[5]}, 1, {c31}
    """)
    for j in range(3):
        for n in range(2): A(f"buffer_load_ushort {HR[2*j+n]}, {TM[4:6]}, {SH}, 0 idxen offen offset:{64*n}")
        if j < 2: A(f"v_add_u32 {TM[4]}, 2, {TM[4]}")
    A(f"v_add_u32 {TM[6]}, {128*128}, {TM[5]}")
    for n in range(2): A(f"global_load_ushort {WD[n]}, {TM[6]}, {pWe} offset:{64*n}")
    A(f"v_lshlrev_b32 {TM[7]}, 1, {vL}"); A(f"global_load_ushort {vWb}, {TM[7]}, {pWx}")
    nreg = 2 + 4 + 6 + 2 + 1
    vD = TM[8]
    A(f"s_lshl_b32 {sT[0]}, {sW}, 10")
    A(f"v_lshlrev_b32 {vD}, 4, v0")
    srd(A, SY, pWe, 8192)
    A(f"s_add_u32 m0, {sT[0]}, {WE}"); A("s_nop 0"); A(f"buffer_load_dwordx4 {vD}, {SY}, 0 offen lds")
    srd(A, SX, pWh, 16384)
    for k in range(2):
        A(f"s_add_u32 m0, {sT[0]}, {WH + 8192*k}"); A(f"s_movk_i32 {sT[1]}, {8192*k}"); A(f"buffer_load_dwordx4 {vD}, {SX}, {sT[1]} offen lds")
    srd(A, SY, pPos, N * 6)
    for k in range(7):
        A(f"s_add_u32 m0, {sT[0]}, {POS + 8192*k}"); A(f"s_mov_b32 {sT[1]}, {8192*k}"); A(f"buffer_load_dwordx4 {vD}, {SY}, {sT[1]} offen lds")
    A(f"""
    v_add_u32 {vD}, {8192*7}, {vD}
    s_add_u32 m0, {sT[0]}, {POS + 8192*7}
    v_cmp_gt_u32 vcc, 60032, {vD}
    s_and_saveexec_b64 {sT[2:4]}, vcc
    s_cbranch_execz L_pos_tail
    buffer_load_dwordx4 {vD}, {SY}, 0 offen lds
    L_pos_tail:
    s_mov_b64 exec, -1
    """)
    ndma = 10
    A(f"""
    s_cmp_lg_u32 {sW}, 0
    s_cbranch_scc1 L_init_done
    v_lshrrev_b32 {TM[9]}, 1, {vL}
    v_mul_u32_u24 {TM[9]}, {CAP*8}, {TM[9]}
    v_add_u32 {TM[9]}, {LIST}, {TM[9]}
    v_cmp_gt_u32 {sT[2:4]}, 16, {vL}
    v_mov_b32 {TM[10]}, 0
    v_mov_b32 {TM[11]}, 0x3f80
    v_mov_b32 {TM[12]}, 0x3f800000
    v_cndmask_b32 {TM[9]}, {TM[10]}, {TM[9]}, {sT[2:4]}
    """)
    lo = sum(1 << (32 + (k + 1) * 4 + (k >> 1)) for k in range(5) if k % 2 == 0)
    hi = sum(1 << (32 + (k + 1) * 4 + (k >> 1)) for k in range(5) if k % 2 == 1)
    A(f"""
    s_mov_b32 {sT[2]}, 0
    s_mov_b32 {sT[3]}, {lo >> 32:#x}
    v_cndmask_b32 {TM[9]}, {TM[9]}, {TM[11]}, {sT[2:4]}
    s_mov_b32 {sT[3]}, {hi >> 32:#x}
    v_cndmask_b32 {TM[9]}, {TM[9]}, {TM[12]}, {sT[2:4]}
    v_lshlrev_b32 {TM[10]}, 2, {vL}
    ds_write_b32 {TM[10]}, {TM[9]}
    L_init_done:
    """)
    p = TM[9]; f = TM[10]; t2 = TM[11]
    A(f"""
    s_mul_i32 {sStg}, {sW}, 5120
    s_add_u32 {sStg}, {sStg}, {STG}
    s_mul_i32 {sLb}, {sW}, {CAP*8}
    s_add_u32 {sLb}, {sLb}, {LIST}
    s_mov_b32 {sHi[0]}, 0
    s_mov_b32 {sHi[1]}, -1
    s_mov_b32 {sC}, {NLOG2E:#x}
    s_mul_i32 {sPd}, {sN0}, 6
    s_sub_u32 {sPd}, {sPd}, 6
    s_mov_b32 {sT[0]}, 0x73261540
    v_and_b32 {t2}, 28, {vL}
    v_lshrrev_b32 {p}, {t2}, {sT[0]}
    v_and_b32 {p}, 7, {p}
    v_and_b32 {t2}, 3, {vL}
    v_lshl_add_u32 {p}, {p}, 2, {t2}
    v_bfe_u32 {f}, {p}, 1, 3
    v_xor_b32 {f}, {f}, {vHalf}
    v_lshlrev_b32 {f}, 4, {f}
    v_lshl_add_u32 {f}, {p}, 7, {f}
    v_add_u32 {HRD[0]}, {sStg}, {f}
    v_xor_b32 {HRD[1]}, 32, {HRD[0]}
    v_xor_b32 {HRD[2]}, 64, {HRD[0]}
    v_xor_b32 {HRD[3]}, 0x60, {HRD[0]}
    v_bfe_u32 {f}, {p}, 3, 1
    v_xor_b32 {f}, {f}, {vHalf}
    v_lshlrev_b32 {f}, 4, {f}
    v_lshl_add_u32 {f}, {p}, 5, {f}
    v_add_u32 {ERD}, {sStg}, {f}
    v_lshlrev_b32 {DT[2]}, 3, {p}
    v_lshrrev_b32 {f}, 4, {vL}
    v_and_b32 {t2}, 7, {vL}
    v_xor_b32 {f}, {f}, {t2}
    v_lshlrev_b32 {IX[1]}, 4, {f}
    v_xor_b32 {IX[3]}, 64, {IX[1]}
    v_mov_b32 {IX[5]}, {IX[1]}
    v_mov_b32 {IX[7]}, {IX[3]}
    v_bfe_u32 {f}, {vL}, 4, 1
    v_and_b32 {t2}, 1, {vL}
    v_xor_b32 {f}, {f}, {t2}
    v_lshlrev_b32 {IX[9]}, 4, {f}
    v_and_b32 {DT[0]}, 56, {vL}
    v_add_u32 {DT[0]}, 4, {DT[0]}
    v_lshrrev_b32 {t2}, 1, {vL}
    v_lshlrev_b32 {DT[1]}, 3, {t2}
    s_lshl_b32 {sT[0]}, {sW}, 11
    s_add_u32 {sT[0]}, {sT[0]}, {WE}
    s_sub_u32 {sT[1]}, {sT[0]}, 8
    v_lshl_add_u32 {vTrow}, {c31}, 6, {sT[1]}
    v_lshlrev_b32 {f}, 8, {vHalf}
    v_bfe_u32 {t2}, {vL}, 2, 2
    v_lshl_add_u32 {f}, {t2}, 6, {f}
    v_bfe_u32 {t2}, {vL}, 4, 1
    v_lshl_add_u32 {f}, {t2}, 5, {f}
    v_and_b32 {t2}, 3, {vL}
    v_lshl_add_u32 {f}, {t2}, 3, {f}
    v_add_u32 {vTtr}, {sT[0]}, {f}
    v_mov_b32 {HALF[0]}, 0x3f003f00
    v_mov_b32 {HALF[1]}, 0x3f003f00
    v_mov_b32 {ZERO[0]}, 0
    v_mov_b32 {ZERO[1]}, 0
    v_mov_b32 {v8}, 8
    """)
    for i in range(3): A(f"v_mov_b32 {PS[i]}, 0"); A(f"v_mov_b32 {PD[i]}, 0")
    for i in range(32): A(f"v_mov_b32 {ACC[i]}, 0")
    LO = V.alloc("LO", 3); nv = V.n
    for i in range(3): A(f"v_mov_b32 {LO[i]}, {DT[i]}")
    A("s_waitcnt lgkmcnt(0)"); A("s_barrier")
    TW = TM[16:32]
    A(f"s_mov_b64 {sOv}, 0")
    def sparse(regs, cb, wait):
        A(f"s_waitcnt vmcnt({wait})")
        n = regs.cnt
        A(f"v_cmp_eq_u32 vcc, -1, {regs[0]}")
        for i in range(n):
            A(f"v_cmp_ne_u32 {sM[2*i:2*i+2]}, 0, {regs[i]}")
            A(f"v_and_b32 {TW[8+i]}, 0x38, {regs[i]}")
        A(f"s_or_b64 {sOv}, {sOv}, vcc")
        for i in range(n):
            A(f"s_mov_b64 exec, {sM[2*i:2*i+2]}"); A(f"ds_add_rtn_u32 {TW[12+i]}, {TW[8+i]}, {v8}")
        A("s_mov_b64 exec, -1")
        for i in range(n):
            A(f"v_and_b32 {TW[2*i]}, 0x3ffff, {regs[i]}"); A(f"v_add_u32 {TW[2*i]}, {TW[2*i]}, {cb}"); A(f"v_lshrrev_b32 {TW[2*i+1]}, 18, {regs[i]}")
        A("s_waitcnt lgkmcnt(0)")
        for i in range(n):
            A(f"s_mov_b64 exec, {sM[2*i:2*i+2]}"); A(f"ds_write_b64 {TW[12+i]}, {TW[2*i:2*i+2]}")
        A("s_mov_b64 exec, -1")
    rest = nreg + ndma
    for q in range(4):
        sparse(RP[2*q:2*q+2], vCB, rest + 5 - q)
        if q < 3: A(f"v_add_u32 {vCB}, {64*CH*64}, {vCB}")
    sparse(RS[0:4], vCS, rest + 1); A(f"v_add_u32 {vCS}, {128*CH*64}, {vCS}")
    sparse(RS[4:8], vCS, rest)
    A(f"""
    s_cmp_eq_u64 {sOv}, 0
    s_cbranch_scc1 L_noflag
    v_mov_b32 {TW[0]}, {FLAG}
    ds_write_b32 {TW[0]}, {v8}
    L_noflag:
    s_waitcnt lgkmcnt(0)
    s_barrier
    v_and_b32 {TW[0]}, 15, {vL}
    v_lshlrev_b32 {TW[1]}, 3, {TW[0]}
    ds_read_b32 {TW[2]}, {TW[1]}
    v_mul_u32_u24 {TW[3]}, {CAP*8}, {TW[0]}
    v_add_u32 {TW[3]}, {LIST + CAP*8}, {TW[3]}
    v_cmp_gt_u32 {sT[2:4]}, 8, {TW[0]}
    s_mov_b32 {sSlow}, 0
    s_mov_b32 {sScan}, 0
    v_cndmask_b32 {TW[3]}, 0, {TW[3]}, {sT[2:4]}
    s_waitcnt lgkmcnt(0)
    v_cmp_gt_u32 vcc, {TW[2]}, {TW[3]}
    v_readlane_b32 {sCnt}, {TW[2]}, {sW}
    s_and_b32 {sT[0]}, vcc_lo, 0x1ff
    s_sub_u32 {sCnt}, {sCnt}, {sLb}
    s_lshr_b32 {sCnt}, {sCnt}, 3
    s_cmp_eq_u32 {sT[0]}, 0
    s_cselect_b32 {sCnt}, {sCnt}, 0
    s_cselect_b32 {sSlow}, 0, 1
    """)
    def round_start():
        A(f"""
        s_add_u32 {sNt}, {sCnt}, 31
        s_lshr_b32 {sNt}, {sNt}, 5
        s_lshl_b32 {sT[0]}, {sNt}, 5
        s_sub_u32 {sT[0]}, {sT[0]}, {sCnt}
        s_lshl_b32 {sT[1]}, {sCnt}, 3
        s_add_u32 {sT[1]}, {sT[1]}, {sLb}
        v_lshl_add_u32 {DT[0]}, {vL}, 3, {sT[1]}
        v_mov_b32 {EN[0]}, 0xffffffc6
        v_mov_b32 {EN[1]}, {N}
        s_bfm_b64 exec, {sT[0]}, 0
        ds_write_b64 {DT[0]}, {EN}
        s_mov_b64 exec, -1
        v_add_u32 {vAh}, {sLb}, {LO[0]}
        v_add_u32 {vAe}, {sLb}, {LO[1]}
        v_add_u32 {vAn}, {sLb}, {LO[2]}
        s_mov_b32 {sTi}, 0
        """)
    def read_idx():
        for i in range(4): A(f"ds_read_b32 {IX[2*i]}, {vAh} offset:{64*i}")
        A(f"ds_read_b32 {IX[8]}, {vAe}")
        A(f"v_add_u32 {vAh}, 256, {vAh}"); A(f"v_add_u32 {vAe}, 256, {vAe}")
    def issue_dma():
        A(f"v_lshrrev_b32 {IX[8]}, 6, {IX[8]}")
        A(f"s_add_u32 m0, {sStg}, 4096"); A("s_nop 0"); A(f"buffer_load_dwordx4 {IX[8:10]}, {SE}, 0 idxen offen lds")
        for i in range(4):
            A(f"s_add_u32 m0, {sStg}, {1024*i}"); A("s_nop 0"); A(f"buffer_load_dwordx4 {IX[2*i:2*i+2]}, {SH}, 0 idxen offen lds")
    def derive_a():
        return f"""
        v_mul_u32_u24 {DT[0]}, 6, {EN[1]}
        v_and_b32 {DT[1]}, 7, {EN[0]}
        ds_read_u16_d16_hi {PS[0]}, {DT[0]} offset:{POS}
        ds_read_u16_d16_hi {PS[1]}, {DT[0]} offset:{POS+2}
        ds_read_u16_d16_hi {PS[2]}, {DT[0]} offset:{POS+4}
        v_mad_u32_u24 {DT[2]}, {DT[1]}, 6, {sPd}
        v_lshlrev_b32 {DT[3]}, 4, {DT[1]}
        ds_read_u16_d16_hi {PD[0]}, {DT[2]} offset:{POS}
        ds_read_u16_d16_hi {PD[1]}, {DT[2]} offset:{POS+2}
        ds_read_u16_d16_hi {PD[2]}, {DT[2]} offset:{POS+4}
        v_lshl_add_u32 {vAt}, {DT[1]}, 3, {vTrow}
        """
    def derive_x(): return f"ds_read_b96 {X[0:3]}, {DT[3]} offset:{LUT}"
    def derive_b():
        return f"""
        v_sub_f32 {DT[0]}, {PD[0]}, {PS[0]}
        v_sub_f32 {DT[1]}, {PD[1]}, {PS[1]}
        v_sub_f32 {DT[2]}, {PD[2]}, {PS[2]}
        v_cvt_pk_bf16_f32 {D[0]}, {DT[0]}, {DT[1]}
        v_cvt_pk_bf16_f32 {D[1]}, {DT[2]}, 1.0
        v_lshlrev_b32 {DT[0]}, 16, {D[0]}
        v_and_b32 {DT[1]}, 0xffff0000, {D[0]}
        v_lshlrev_b32 {DT[2]}, 16, {D[1]}
        v_mul_f32 {DT[0]}, {DT[0]}, {DT[0]}
        v_fmac_f32 {DT[0]}, {DT[1]}, {DT[1]}
        v_fmac_f32 {DT[0]}, {DT[2]}, {DT[2]}
        v_cvt_pk_bf16_f32 {X[3]}, 0, {DT[0]}
        """
    def read_entry():
        A(f"ds_read_b64 {EN}, {vAn}"); A(f"v_add_u32 {vAn}, 256, {vAn}")
    round_start()
    read_idx()
    A(f"s_cmp_eq_u32 {sNt}, 0"); A("s_waitcnt lgkmcnt(0)"); A("s_cbranch_scc1 L_nodma0")
    issue_dma()
    A("s_waitcnt vmcnt(5)")
    A("s_branch L_dma0done")
    A("L_nodma0:"); A("s_waitcnt vmcnt(0)"); A("L_dma0done:")
    read_idx()
    def scale(r, t):
        A(f"v_lshlrev_b32 {t[0]}, 16, {r}"); A(f"v_and_b32 {t[1]}, 0xffff0000, {r}")
        A(f"v_mul_f32 {t[0]}, {sC}, {t[0]}"); A(f"v_mul_f32 {t[1]}, {sC}, {t[1]}"); A(f"v_cvt_pk_bf16_f32 {r}, {t[0]}, {t[1]}")
    for i in range(4): scale(WA[i], TM[0:2])
    scale(WB, TM[0:2])
    A(f"""
    v_lshlrev_b32 {TM[2]}, 4, v0
    v_add_u32 {TM[2]}, {WE + 8192}, {TM[2]}
    ds_write_b128 {TM[2]}, {WA}
    v_lshlrev_b32 {TM[3]}, 2, v0
    v_add_u32 {TM[3]}, {WE + 16384}, {TM[3]}
    ds_write_b32 {TM[3]}, {WB}
    v_lshlrev_b32 {vWb}, 16, {vWb}
    v_mul_f32 {vWb}, {NLN2:#x}, {vWb}
    v_lshlrev_b32 {TM[4]}, 2, {vL}
    ds_write_b32 {TM[4]}, {vWb} offset:{WX}
    """)
    A(f"""
    v_bfe_u32 {TM[5]}, {vL}, 2, 2
    v_lshlrev_b32 {TM[5]}, 7, {TM[5]}
    v_bfe_u32 {TM[6]}, {vL}, 4, 1
    v_lshl_add_u32 {TM[5]}, {TM[6]}, 5, {TM[5]}
    v_and_b32 {TM[6]}, 3, {vL}
    v_lshl_add_u32 {TM[5]}, {TM[6]}, 3, {TM[5]}
    v_lshl_add_u32 {vWb}, {vHalf}, 9, {TM[5]}
    v_add_u32 {vWb}, {WH + 8192}, {vWb}
    v_lshl_add_u32 {TM[5]}, {vHalf}, 10, {TM[5]}
    v_add_u32 {vT1}, {WE}, {TM[5]}
    s_waitcnt lgkmcnt(0)
    s_barrier
    """)
    def frag(dst, base, s, n):
        for half in range(2): A(f"ds_read_b64_tr_b16 {dst[2*half:2*half+2]}, {vT1} offset:{base + (16*s + 4*half)*128 + 64*n}")
    for n in range(2):
        for s in range(4): frag(W2[16*n+4*s:16*n+4*s+4], 0, s, n)
        A("s_waitcnt lgkmcnt(0)")
        for s in range(4): A(f"{mf} {Y[16*n:16*n+16]}, {H[4*s:4*s+4]}, {W2[16*n+4*s:16*n+4*s+4]}, {Y[16*n:16*n+16] if s else 0}")
    for n in range(2):
        for s in range(4): frag(W2[16*n+4*s:16*n+4*s+4], WH - WE, s, n)
        A("s_waitcnt lgkmcnt(0)")
        for s in range(4): A(f"{mf} {TM[16*n:16*n+16]}, {H[4*s:4*s+4]}, {W2[16*n+4*s:16*n+4*s+4]}, {TM[16*n:16*n+16] if s else 0}")
    for n in range(2):
        for s in range(4): frag(W2[16*n+4*s:16*n+4*s+4], 8192, s, n)
        frag(W4[4*n:4*n+4], 16384, 0, n)
        A("s_waitcnt lgkmcnt(0)")
    read_entry()
    for n in range(2):
        a = Y[16*n:16*n+16]; B = BX[4*n:4*n+4]
        A(f"v_lshlrev_b32 {a[5]}, 16, {WD[n]}")
        for i in range(6): A(f"v_mul_f32 {a[i]}, {sC}, {a[i]}")
        A(f"v_cvt_pk_bf16_f32 {B[0]}, {a[0]}, {a[1]}"); A(f"v_cvt_pk_bf16_f32 {B[1]}, {a[2]}, {a[3]}")
        A(f"v_cvt_pk_bf16_f32 {B[2]}, {a[4]}, 0"); A(f"v_cvt_pk_bf16_f32 {B[3]}, 0, {a[5]}")
        for i, (r, hi_) in enumerate(((0, 0), (0, 1), (1, 0), (1, 1), (2, 0), (3, 1))):
            A(f"v_and_b32 {a[8+i]}, 0xffff0000, {B[r]}" if hi_ else f"v_lshlrev_b32 {a[8+i]}, 16, {B[r]}")
            A(f"v_sub_f32 {a[i]}, {a[i]}, {a[8+i]}")
        A(f"v_cvt_pk_bf16_f32 {a[8]}, {a[0]}, {a[1]}"); A(f"v_cvt_pk_bf16_f32 {a[9]}, {a[2]}, {a[3]}")
        A(f"v_cvt_pk_bf16_f32 {a[10]}, {a[4]}, 0"); A(f"v_cvt_pk_bf16_f32 {a[11]}, 0, {a[5]}")
        for i in range(4): A(f"v_cndmask_b32 {B[i]}, {B[i]}, {a[8+i]}, {sHi}")
    for n in range(2):
        for j in range(3):
            A(f"v_cndmask_b32 {ZH[2*j+n]}, {TM[16*n+2*j]}, {TM[16*n+2*j+1]}, {sHi}")
            A(f"v_lshlrev_b32 {HR[2*j+n]}, 16, {HR[2*j+n]}")
    A(f"""
    s_barrier
    s_lshl_b32 {sT[0]}, {sW}, 11
    s_add_u32 {sT[0]}, {sT[0]}, {WE}
    v_lshl_add_u32 {DT[0]}, {vL}, 3, {sT[0]}
    """)
    for i in range(4): A(f"ds_write_b64 {DT[0]}, {ZERO} offset:{512*i}")
    A("s_branch L_enter")
    A("L_round:")
    round_start()
    read_idx()
    A(f"s_cmp_eq_u32 {sNt}, 0"); A("s_waitcnt lgkmcnt(0)"); A("s_cbranch_scc1 L_round_end")
    issue_dma()
    read_idx()
    read_entry()
    A("L_enter:")
    A(f"s_cmp_eq_u32 {sNt}, 0"); A("s_waitcnt lgkmcnt(0)"); A("s_cbranch_scc1 L_round_end")
    A(derive_a()); A(derive_x()); A("s_waitcnt lgkmcnt(0)"); A(derive_b())
    A(".p2align 6")
    A("L_tile:")
    A("s_waitcnt vmcnt(0)")
    for s in range(4): A(f"ds_read_b128 {H[4*s:4*s+4]}, {HRD[s]}")
    A(f"ds_read_b128 {EA}, {ERD} offset:4096")
    A(f"ds_write_b64 {vAt}, {D}")
    for i in range(4): A(f"ds_read_b64_tr_b16 {A2[2*i:2*i+2]}, {vTtr} offset:{512*i}")
    A(f"ds_write_b64 {vAt}, {ZERO}")
    read_entry()
    A(f"s_add_u32 {sTi}, {sTi}, 1")
    A(f"{mf} {Y[0:16]}, {X}, {BX[0:4]}, 0")
    A(f"{mf} {Y[16:32]}, {X}, {BX[4:8]}, 0")
    A(f"s_cmp_ge_u32 {sTi}, {sNt}")
    A("s_waitcnt lgkmcnt(7)")
    A("s_cbranch_scc1 L_skipdma")
    issue_dma()
    A("L_skipdma:")
    A(f"{mf} {Y[0:16]}, {EA}, {W4[0:4]}, {Y[0:16]}")
    read_idx()
    A(f"{mf} {Y[0:16]}, {H[0:4]}, {W2[0:4]}, {Y[0:16]}")
    A("s_waitcnt lgkmcnt(5)")
    da = [l.strip() for l in derive_a().strip().split("\n")]
    A("\n".join(da[:5]))
    A(f"{mf} {Y[0:16]}, {H[4:8]}, {W2[4:8]}, {Y[0:16]}")
    A("\n".join(da[5:]))
    A(derive_x())
    A(f"{mf} {Y[0:16]}, {H[8:12]}, {W2[8:12]}, {Y[0:16]}")
    A(f"{mf} {Y[0:16]}, {H[12:16]}, {W2[12:16]}, {Y[0:16]}")
    A(f"{mf} {Y[16:32]}, {EA}, {W4[4:8]}, {Y[16:32]}")
    A("s_waitcnt lgkmcnt(0)")
    A(derive_b())
    for i in range(16):
        if i % 4 == 0:
            s = i // 4
            A(f"{mf} {Y[16:32]}, {H[4*s:4*s+4]}, {W2[16+4*s:20+4*s]}, {Y[16:32]}")
        A(f"v_exp_f32 {TM[i]}, {Y[i]}")
    one = lambda r: f"v_mfma_f32_16x16x4_4b_bf16 {r}, {HALF}, {HALF}, {r}"
    A("s_nop 1"); A(one(TM[0:16])); A("s_nop 4")
    for i in range(16): A(f"v_exp_f32 {TM[16+i]}, {Y[16+i]}")
    A("s_nop 1"); A(one(TM[16:32]))
    for n in range(2):
        for i in range(16): A(f"v_rcp_f32 {TM[16*n+i]}, {TM[16*n+i]}")
        for i in range(16): A(f"v_mul_f32 {TM[16*n+i]}, {Y[16*n+i]}, {TM[16*n+i]}")
        for i in range(8): A(f"v_cvt_pk_bf16_f32 {PK[i]}, {TM[16*n+2*i]}, {TM[16*n+2*i+1]}")
        A("s_nop 1")
        for u in range(2): A(f"{mf} {ACC[16*n:16*n+16]}, {PK[4*u:4*u+4]}, {A2[4*u:4*u+4]}, {ACC[16*n:16*n+16]}")
    A(f"s_cmp_lt_u32 {sTi}, {sNt}")
    A("s_cbranch_scc1 L_tile")
    A("L_round_end:")
    A(f"s_cmp_eq_u32 {sSlow}, 0"); A("s_cbranch_scc1 L_epi")
    A(f"s_cmp_ge_u32 {sScan}, {E}"); A("s_cbranch_scc1 L_epi")
    A("s_waitcnt lgkmcnt(0)")
    A(f"s_mov_b32 {sCnt}, 0")
    A("L_scan:")
    Dd = H[0:4]; Ss = H[4:8]
    A(f"""
    s_lshl_b32 {sT[0]}, {sScan}, 2
    v_lshl_add_u32 {DT[0]}, {vL}, 4, {sT[0]}
    global_load_dwordx4 {Dd}, {DT[0]}, {pDst}
    global_load_dwordx4 {Ss}, {DT[0]}, {pSrc}
    v_lshlrev_b32 {DT[0]}, 4, {DT[0]}
    s_waitcnt vmcnt(0)
    """)
    for i in range(4):
        A(f"""
        v_subrev_u32 {DT[1]}, {sN0}, {Dd[i]}
        v_cmp_gt_u32 vcc, 5, {DT[1]}
        v_add3_u32 {EN[0]}, {DT[0]}, {DT[1]}, 1
        v_mov_b32 {EN[1]}, {Ss[i]}
        v_mbcnt_lo_u32_b32 {DT[2]}, vcc_lo, 0
        v_mbcnt_hi_u32_b32 {DT[2]}, vcc_hi, {DT[2]}
        v_add_u32 {DT[2]}, {sCnt}, {DT[2]}
        v_lshl_add_u32 {DT[2]}, {DT[2]}, 3, {sLb}
        s_bcnt1_i32_b64 {sT[0]}, vcc
        s_add_u32 {sCnt}, {sCnt}, {sT[0]}
        s_mov_b64 exec, vcc
        ds_write_b64 {DT[2]}, {EN}
        s_mov_b64 exec, -1
        v_add_u32 {DT[0]}, 64, {DT[0]}
        """)
    A(f"""
    s_add_u32 {sScan}, {sScan}, 256
    s_cmp_ge_u32 {sScan}, {E}
    s_cbranch_scc1 L_round
    s_cmp_le_u32 {sCnt}, {CAP - 256}
    s_cbranch_scc1 L_scan
    s_branch L_round
    """)
    A("L_epi:")
    A("s_waitcnt lgkmcnt(0)")
    for n2 in range(2):
        for st in range(4):
            for hf in range(2):
                A(f"ds_read_b64_tr_b16 {W2[16*n2+4*st+2*hf:16*n2+4*st+2*hf+2]}, {vWb} offset:{(16*st + 8*hf)*128 + 64*n2}")
        if n2 == 0: A(f"v_lshlrev_b32 {DT[0]}, 4, {vHalf}"); A("s_waitcnt lgkmcnt(6)")
    for i in range(16): A(f"v_cvt_pk_bf16_f32 {Y[i]}, {ACC[2*i]}, {ACC[2*i+1]}")
    A("s_waitcnt lgkmcnt(0)")
    WXR = [H[0:4], H[4:8], H[8:12], H[12:16], EA, X, A2[0:4], A2[4:8]]
    for i in range(8): A(f"ds_read_b128 {WXR[i]}, {DT[0]} offset:{WX + 32*i}")
    A(f"""
    v_lshrrev_b32 {DT[1]}, 2, {vL}
    v_and_b32 {DT[2]}, 3, {vL}
    v_add_u32 {DT[1]}, {sN0}, {DT[1]}
    v_mul_u32_u24 {DT[1]}, 6, {DT[1]}
    v_lshl_add_u32 {DT[1]}, {DT[2]}, 1, {DT[1]}
    ds_read_u16_d16_hi {PS[0]}, {DT[1]} offset:{POS}
    """)
    for n2 in range(2):
        for st in range(4): A(f"{mf} {TM[16*n2:16*n2+16]}, {Y[4*st:4*st+4]}, {W2[16*n2+4*st:16*n2+4*st+4]}, {TM[16*n2:16*n2+16] if st else 0}")
    A("s_waitcnt lgkmcnt(0)")
    A(f"v_mul_f32 {DT[2]}, {ACC[0]}, {WXR[0][0]}")
    for i in range(1, 32): A(f"v_fmac_f32 {DT[2]}, {ACC[i]}, {WXR[i//4][i%4]}")
    A(f"""
    v_mov_b32 {DT[3]}, {DT[2]}
    v_add_u32 {DT[1]}, {N*128}, {DT[1]}
    s_nop 0
    v_permlane32_swap_b32 {DT[2]}, {DT[3]}
    v_add_f32 {DT[2]}, {DT[2]}, {DT[3]}
    v_add_f32 {DT[2]}, {DT[2]}, {PS[0]}
    v_cvt_pk_bf16_f32 {DT[2]}, {DT[2]}, {DT[2]}
    s_mov_b64 exec, 0x77777
    buffer_store_short {DT[2]}, {DT[1]}, {SO}, 0 offen
    s_mov_b64 exec, -1
    v_add_u32 {DT[0]}, {sN0}, {vHalf}
    v_lshlrev_b32 {DT[0]}, 7, {DT[0]}
    v_and_b32 {DT[1]}, 31, {vL}
    v_lshl_add_u32 {DT[0]}, {DT[1]}, 1, {DT[0]}
    s_mov_b32 {sT[0]}, {NLN2:#x}
    """)
    for j in range(3):
        for n in range(2):
            z = ZH[2*j+n]; t = Y[16+2*j+n]
            A(f"v_fmac_f32 {z}, {sT[0]}, {TM[16*n+4*j+3]}")
            A(f"v_mul_f32 {t}, {sC}, {z}"); A(f"v_exp_f32 {t}, {t}")
    for i in range(6): A(f"v_add_f32 {Y[16+i]}, 1.0, {Y[16+i]}"); A(f"v_rcp_f32 {Y[16+i]}, {Y[16+i]}")
    A("s_nop 0")
    for i in range(6): A(f"v_fmac_f32 {HR[i]}, {ZH[i]}, {Y[16+i]}"); A(f"v_cvt_pk_bf16_f32 {HR[i]}, {HR[i]}, {HR[i]}")
    for j in range(3):
        if j == 2: A("s_mov_b32 exec_hi, 0")
        for n in range(2): A(f"buffer_store_short {HR[2*j+n]}, {DT[0]}, {SO}, 0 offen offset:{256*j + 64*n}")
    A("L_main_done:"); A("s_endpgm")
    print("main vgprs", nv, "sgprs", S.n, "lds", LDS_MAIN, file=sys.stderr)
    return A.text()

if __name__ == "__main__":
    ks = [("bin_kernel", k_bin(), 48), ("main_kernel", k_main(), 256)]
    ls = [("bin_kernel", NB, 512, 33792), ("main_kernel", NB, 512, LDS_MAIN)]
    open(sys.argv[1], "w").write(assemble(ks, ls))
```

```python
import sys
from lib import *
def k_amp(i, F, nw=2000):
    A = Asm()
    A("""
    s_memrealtime s[40:41]
    s_cmp_ge_u32 s2, 1
    s_cbranch_scc1 L_a_done
    s_load_dwordx2 s[6:7], s[0:1], 80
    s_waitcnt lgkmcnt(0)
    v_lshlrev_b32 v1, 7, v0
    """)
    A(f"v_add_u32 v1, {200<<20}, v1")
    A("v_mov_b32 v4, 0"); A("v_mov_b32 v5, -1")
    for k in range(nw // 50):
        A("s_mov_b64 exec, -1"); A("s_bfm_b64 exec, 50, 0")
        A("global_load_dword v2, v1, s[6:7]"); A(f"global_load_dword v3, v1, s[6:7] offset:{4*max(i,0)}"); A("s_waitcnt vmcnt(0)")
        A("v_sub_u32 v2, s40, v2"); A("v_sub_u32 v3, s40, v3"); A("v_max_u32 v4, v4, v2"); A("v_min_u32 v5, v5, v3"); A(f"v_add_u32 v1, {50*128}, v1")
    A("s_mov_b64 exec, -1"); A("s_mov_b32 s10, 0"); A("s_mov_b32 s12, -1")
    for l in range(50):
        A(f"v_readlane_b32 s11, v4, {l}"); A(f"v_readlane_b32 s13, v5, {l}"); A("s_max_u32 s10, s10, s11"); A("s_min_u32 s12, s12, s13")
    if i >= 0: A("s_sub_u32 s10, s10, s12")
    A(f"""
    s_min_u32 s10, s10, 10000
    s_mul_i32 s10, s10, {F}
    L_a_spin:
    s_memrealtime s[42:43]
    s_waitcnt lgkmcnt(0)
    s_sub_u32 s11, s42, s40
    s_cmp_lt_u32 s11, s10
    s_cbranch_scc1 L_a_spin
    L_a_done:
    s_endpgm
    """)
    return A.text()
def add_amp(src, i, F=50):
    lines = src.split("\n")
    last = max(k for k, l in enumerate(lines) if l.startswith("; @launch"))
    lines.insert(last + 1, "; @launch kernel=amp_kernel grid=(1,1,1) block=(64,1,1) lds=0")
    s = "\n".join(lines)
    s = s.replace('.section .rodata,"a"\n', head("amp_kernel") + k_amp(i, F) + '.section .rodata,"a"\n.p2align 6\n' + kd("amp_kernel", 16), 1)
    return s
if __name__ == "__main__":
    src = open(sys.argv[1]).read()
    for i in sys.argv[2:]:
        open(sys.argv[1][:-2] + f"_a{i}.s", "w").write(add_amp(src, int(i)))
```

```python
import sys, struct
from lib import *
N, E = 10000, 640000
NB, CH = 250, 2560
CAP = 416
f2u = lambda x: struct.unpack("<I", struct.pack("<f", x))[0]
NLOG2E = 0xbfb8aa3b
NLN2 = 0xbf317218

STAMP = False
def stamp(A, i):
    if STAMP: A(f"s_memrealtime s[{82+2*(i%7)}:{83+2*(i%7)}]")
def stamp_out(A, first, n, wsp, wave_v):
    if not STAMP: return
    A("s_mov_b64 exec, -1"); A("s_waitcnt lgkmcnt(0)")
    A(f"v_lshrrev_b32 v1, 6, v0"); A(f"s_lshl_b32 s3, s2, 3"); A("v_add_u32 v1, s3, v1"); A("v_lshlrev_b32 v1, 7, v1"); A(f"v_add_u32 v1, {200<<20}, v1")
    for i in range(n):
        A(f"v_mov_b32 v2, s{82+2*((first+i)%7)}"); A(f"global_store_dword v1, v2, {wsp} offset:{4*(first+i)}")
def k_bin():
    A = Asm()
    stamp(A, 0)
    A(f"""
    s_cmp_ge_u32 s2, {NB}
    s_cbranch_scc1 L_bin_done
    s_load_dwordx4 s[4:7], s[0:1], 24
    s_load_dwordx2 s[8:9], s[0:1], 80
    s_mul_i32 s3, s2, {CH*4}
    v_lshl_add_u32 v1, v0, 4, s3
    s_add_u32 s3, s3, 8192
    v_lshl_add_u32 v2, v0, 2, s3
    v_mov_b32 v4, 0
    v_mov_b32 v5, 0
    v_mov_b32 v6, 0
    v_mov_b32 v7, 0
    v_lshlrev_b32 v3, 4, v0
    s_waitcnt lgkmcnt(0)
    global_load_dwordx4 v[8:11], v1, s[6:7]
    global_load_dword v12, v2, s[6:7]
    global_load_dwordx4 v[16:19], v1, s[4:5]
    global_load_dword v20, v2, s[4:5]
    v_lshlrev_b32 v2, 2, v0
    ds_write_b32 v2, v4
    """)
    for i in range(4): A(f"ds_write_b128 v3, v[4:7] offset:{1024 + 8192*i}")
    srd(A, R("s", 12, 4), R("s", 8, 2), NB * NB * 128)
    A("v_lshlrev_b32 v24, 8, v0")
    for i in range(1, 4): A(f"v_add_u32 v{24+i}, {64*i}, v24")
    A(f"v_lshlrev_b32 v28, 6, v0"); A(f"v_add_u32 v28, {2048*64}, v28")
    A("v_mov_b32 v21, 4")
    A("s_waitcnt lgkmcnt(0)"); A("s_barrier"); A("s_waitcnt vmcnt(2)"); stamp(A, 1)
    for i in range(5):
        A(f"v_mul_u32_u24 v{30+i}, 52429, v{8+i}"); A(f"v_lshrrev_b32 v{30+i}, 18, v{30+i}")
        A(f"v_lshrrev_b32 v{36+i}, 1, v{30+i}"); A(f"v_and_b32 v{36+i}, -4, v{36+i}")
        A(f"ds_add_rtn_u32 v{42+i}, v{36+i}, v21")
        A(f"v_mad_u32_u24 v{30+i}, v{30+i}, 3, v{8+i}"); A(f"v_add_u32 v{30+i}, 1, v{30+i}")
        A(f"v_and_or_b32 v{30+i}, v{30+i}, 63, v{24+i}")
    A("s_waitcnt vmcnt(0)")
    for i in range(5): A(f"v_lshl_or_b32 v{30+i}, v{16+i}, 18, v{30+i}")
    A("s_movk_i32 s16, 128")
    for i in range(5):
        A(f"s_waitcnt lgkmcnt({4-i if i < 1 else 4})" if False else f"s_waitcnt lgkmcnt(0)" if i == 0 else "")
        A(f"v_cmp_gt_u32 s[{20+2*i}:{21+2*i}], s16, v{42+i}")
        A(f"v_lshl_add_u32 v{42+i}, v{36+i}, 5, v{42+i}")
    for i in range(5):
        A(f"s_mov_b64 exec, s[{20+2*i}:{21+2*i}]"); A(f"ds_write_b32 v{42+i}, v{30+i} offset:1024")
    A("s_mov_b64 exec, -1")
    A(f"""
    v_lshrrev_b32 v1, 3, v0
    v_lshlrev_b32 v2, 2, v1
    v_mul_u32_u24 v1, {NB*128}, v1
    v_and_b32 v4, 7, v0
    v_lshl_add_u32 v1, v4, 4, v1
    s_lshl_b32 s3, s2, 7
    v_add_u32 v1, s3, v1
    s_waitcnt lgkmcnt(0)
    s_barrier
    """)
    stamp(A, 2)
    if STAMP: A("s_waitcnt lgkmcnt(0)")
    for i in range(4):
        A(f"ds_read_b128 v[{8+4*i}:{11+4*i}], v3 offset:{1024 + 8192*i}"); A(f"ds_read_b32 v{24+i}, v2 offset:{256*i}")
    for i in range(4):
        A(f"s_waitcnt lgkmcnt({6-2*i})")
        A(f"v_cmp_lt_u32 s[20:21], s16, v{24+i}")
        A(f"v_add_u32 v{28+i}, {i*64*NB*128}, v1")
        A("s_nop 0")
        A(f"v_cndmask_b32 v{8+4*i}, v{8+4*i}, -1, s[20:21]")
        A(f"buffer_store_dwordx4 v[{8+4*i}:{11+4*i}], v{28+i}, s[12:15], 0 offen")
    if STAMP: A("s_waitcnt vmcnt(0)")
    stamp(A, 3); stamp_out(A, 0, 4, "s[8:9]", None)
    A("L_bin_done:"); A("s_endpgm")
    return A.text()

CNT, FLAG, LUT, WX = 0, 64, 128, 256
POS = 512
WE = POS + 60032
WH = WE + 18560
STG = WH + 16384
LIST = STG + 8 * 5120
LDS_MAIN = LIST + 8 * CAP * 8
assert STG % 128 == 0 and LDS_MAIN <= 163840

def k_main(dbg=False):
    A = Asm()
    S = Regs("s", 26, 96); V = Regs("v", 1, 256)
    pH, pPos, pE, pSrc, pDst, pWe, pWx, pWh, pOut, pDbg, pWs = [R("s", 4 + 2 * i, 2) for i in range(11)]
    sW = S.alloc("wave"); sN0 = S.alloc("node0")
    SH = S.alloc("SH", 4, 4); SE = S.alloc("SE", 4, 4); SX = S.alloc("SX", 4, 4); SY = S.alloc("SY", 4, 4); SO = S.alloc("SO", 4, 4)
    sM = S.alloc("masks", 16, 2); sHi = S.alloc("himask", 2, 2); sT = S.alloc("tmp", 4, 2)
    sStg = S.alloc("stg"); sLb = S.alloc("listbase"); sCnt = S.alloc("cnt"); sNt = S.alloc("nt"); sTi = S.alloc("ti")
    sSlow = S.alloc("slow"); sScan = S.alloc("scan"); sPd = S.alloc("pd"); sC = S.alloc("c"); sOv = S.alloc("ov", 2, 2)
    vL = V.alloc("lane"); vHalf = V.alloc("half"); vT1 = V.alloc("t1")
    W2 = V.alloc("W2", 32, 4); W4 = V.alloc("W4", 8, 4); BX = V.alloc("BX", 8, 4)
    ACC = V.alloc("ACC", 32, 4); Y = V.alloc("Y", 32, 4); TM = V.alloc("TM", 32, 4)
    H = V.alloc("H", 16, 4); EA = V.alloc("EA", 4, 4); X = V.alloc("X", 4, 4); A2 = V.alloc("A2", 8, 4); PK = V.alloc("PK", 8, 4)
    IX = V.alloc("IX", 10, 2); HRD = V.alloc("HRD", 4); ERD = V.alloc("ERD")
    vAh = V.alloc("Ah"); vAe = V.alloc("Ae"); vAn = V.alloc("An"); vTrow = V.alloc("Trow"); vTtr = V.alloc("Ttr")
    EN = V.alloc("EN", 2, 2); D = V.alloc("D", 2, 2); HALF = V.alloc("HALFC", 2, 2); ZERO = V.alloc("ZERO", 2, 2)
    vAt = V.alloc("At"); PS = V.alloc("PS", 3); PD = V.alloc("PD", 3); DT = V.alloc("DT", 4)
    ZH = V.alloc("ZH", 6); HR = V.alloc("HR", 6); WD = V.alloc("WD", 2); vWb = V.alloc("Wb")
    nv = V.n
    mf = "v_mfma_f32_32x32x16_bf16"
    stamp(A, 4)
    A(f"""
    s_cmp_ge_u32 s2, {NB}
    s_cbranch_scc1 L_main_done
    s_load_dwordx16 s[4:19], s[0:1], 0
    s_load_dwordx4 s[20:23], s[0:1], 64
    s_load_dwordx2 s[24:25], s[0:1], 80
    v_lshrrev_b32 {vT1}, 6, v0
    v_and_b32 {vL}, 63, v0
    v_readfirstlane_b32 {sW}, {vT1}
    v_lshrrev_b32 {vHalf}, 5, {vL}
    """)
    RP = Y[0:8]; RS = Y[8:16]; vRo = Y[16]; vRq = Y[17]; vCB = Y[18]; vCS = Y[19]; v8 = Y[20]
    WA = Y[24:28]; WB = Y[28]
    A(f"""
    v_lshrrev_b32 {vCB}, 3, v0
    v_and_b32 {vT1}, 7, v0
    v_lshlrev_b32 {vRo}, 7, {vCB}
    v_lshl_add_u32 {vRo}, {vT1}, 3, {vRo}
    v_mul_u32_u24 {vCB}, {CH*64}, {vCB}
    v_lshrrev_b32 {vCS}, 2, v0
    v_and_b32 {vT1}, 3, v0
    v_lshlrev_b32 {vRq}, 7, {vCS}
    v_lshl_add_u32 {vRq}, {vT1}, 4, {vRq}
    v_mul_u32_u24 {vCS}, {CH*64}, {vCS}
    s_mul_i32 {sT[0]}, s2, {NB*128}
    s_mul_i32 {sN0}, s2, 40
    s_mul_i32 {sT[1]}, {sW}, 5
    s_add_u32 {sN0}, {sN0}, {sT[1]}
    s_waitcnt lgkmcnt(0)
    s_add_u32 {SX[0]}, {pWs[0]}, {sT[0]}
    s_addc_u32 {SX[1]}, {pWs[1]}, 0
    s_mov_b32 {SX[2]}, {NB*128}
    s_mov_b32 {SX[3]}, 0x20000
    """)
    for q in range(4):
        A(f"buffer_load_dwordx2 {RP[2*q:2*q+2]}, {vRo}, {SX}, 0 offen")
        if q < 3: A(f"v_add_u32 {vRo}, 8192, {vRo}")
    A(f"buffer_load_dwordx4 {RS[0:4]}, {vRq}, {SX}, 0 offen offset:64")
    A(f"v_add_u32 {vRq}, 16384, {vRq}")
    A(f"buffer_load_dwordx4 {RS[4:8]}, {vRq}, {SX}, 0 offen offset:64")
    nvm = 6
    A(f"""
    v_lshlrev_b32 {vRo}, 4, v0
    v_lshlrev_b32 {vRq}, 2, v0
    v_add_u32 {vT1}, 8192, {vRo}
    global_load_dwordx4 {WA}, {vT1}, {pWe}
    v_add_u32 {vT1}, {129*128}, {vRq}
    global_load_dword {WB}, {vT1}, {pWe}
    """)
    srd(A, SH, pH, N, 128); srd(A, SE, pE, E, 32); srd(A, SO, pOut, N * 134)
    c31 = TM[0];
    A(f"""
    v_and_b32 {c31}, 31, {vL}
    v_and_b32 {TM[2]}, 3, {vL}
    v_bfe_u32 {TM[1]}, {vL}, 3, 2
    v_lshl_add_u32 {TM[2]}, {TM[1]}, 2, {TM[2]}
    v_add_u32 {TM[2]}, {sN0}, {TM[2]}
    v_lshlrev_b32 {TM[3]}, 4, {vHalf}
    s_mov_b32 {sT[0]}, 0xffff
    s_mov_b32 {sT[1]}, 0xffff
    s_mov_b64 exec, {sT[0:2]}
    """)
    for s in range(4): A(f"buffer_load_dwordx4 {H[4*s:4*s+4]}, {TM[2:4]}, {SH}, 0 idxen offen offset:{32*s}")
    A("s_mov_b64 exec, -1")
    A(f"""
    v_add_u32 {TM[4]}, {sN0}, {vHalf}
    v_lshlrev_b32 {TM[5]}, 1, {c31}
    """)
    for j in range(3):
        for n in range(2): A(f"buffer_load_ushort {HR[2*j+n]}, {TM[4:6]}, {SH}, 0 idxen offen offset:{64*n}")
        if j < 2: A(f"v_add_u32 {TM[4]}, 2, {TM[4]}")
    A(f"v_add_u32 {TM[6]}, {128*128}, {TM[5]}")
    for n in range(2): A(f"global_load_ushort {WD[n]}, {TM[6]}, {pWe} offset:{64*n}")
    A(f"v_lshlrev_b32 {TM[7]}, 1, {vL}"); A(f"global_load_ushort {vWb}, {TM[7]}, {pWx}")
    nreg = 2 + 4 + 6 + 2 + 1
    vD = TM[8]
    A(f"s_lshl_b32 {sT[0]}, {sW}, 10")
    A(f"v_lshlrev_b32 {vD}, 4, v0")
    srd(A, SY, pWe, 8192)
    A(f"s_add_u32 m0, {sT[0]}, {WE}"); A("s_nop 0"); A(f"buffer_load_dwordx4 {vD}, {SY}, 0 offen lds")
    srd(A, SX, pWh, 16384)
    for k in range(2):
        A(f"s_add_u32 m0, {sT[0]}, {WH + 8192*k}"); A(f"s_movk_i32 {sT[1]}, {8192*k}"); A(f"buffer_load_dwordx4 {vD}, {SX}, {sT[1]} offen lds")
    srd(A, SY, pPos, N * 6)
    for k in range(7):
        A(f"s_add_u32 m0, {sT[0]}, {POS + 8192*k}"); A(f"s_mov_b32 {sT[1]}, {8192*k}"); A(f"buffer_load_dwordx4 {vD}, {SY}, {sT[1]} offen lds")
    A(f"""
    v_add_u32 {vD}, {8192*7}, {vD}
    s_add_u32 m0, {sT[0]}, {POS + 8192*7}
    v_cmp_gt_u32 vcc, 60032, {vD}
    s_and_saveexec_b64 {sT[2:4]}, vcc
    s_cbranch_execz L_pos_tail
    buffer_load_dwordx4 {vD}, {SY}, 0 offen lds
    L_pos_tail:
    s_mov_b64 exec, -1
    """)
    ndma = 10
    A(f"""
    s_cmp_lg_u32 {sW}, 0
    s_cbranch_scc1 L_init_done
    v_lshrrev_b32 {TM[9]}, 1, {vL}
    v_mul_u32_u24 {TM[9]}, {CAP*8}, {TM[9]}
    v_add_u32 {TM[9]}, {LIST}, {TM[9]}
    v_cmp_gt_u32 {sT[2:4]}, 16, {vL}
    v_mov_b32 {TM[10]}, 0
    v_mov_b32 {TM[11]}, 0x3f80
    v_mov_b32 {TM[12]}, 0x3f800000
    v_cndmask_b32 {TM[9]}, {TM[10]}, {TM[9]}, {sT[2:4]}
    """)
    lo = sum(1 << (32 + (k + 1) * 4 + (k >> 1)) for k in range(5) if k % 2 == 0)
    hi = sum(1 << (32 + (k + 1) * 4 + (k >> 1)) for k in range(5) if k % 2 == 1)
    A(f"""
    s_mov_b32 {sT[2]}, 0
    s_mov_b32 {sT[3]}, {lo >> 32:#x}
    v_cndmask_b32 {TM[9]}, {TM[9]}, {TM[11]}, {sT[2:4]}
    s_mov_b32 {sT[3]}, {hi >> 32:#x}
    v_cndmask_b32 {TM[9]}, {TM[9]}, {TM[12]}, {sT[2:4]}
    v_lshlrev_b32 {TM[10]}, 2, {vL}
    ds_write_b32 {TM[10]}, {TM[9]}
    L_init_done:
    """)
    p = TM[9]; f = TM[10]; t2 = TM[11]
    A(f"""
    s_mul_i32 {sStg}, {sW}, 5120
    s_add_u32 {sStg}, {sStg}, {STG}
    s_mul_i32 {sLb}, {sW}, {CAP*8}
    s_add_u32 {sLb}, {sLb}, {LIST}
    s_mov_b32 {sHi[0]}, 0
    s_mov_b32 {sHi[1]}, -1
    s_mov_b32 {sC}, {NLOG2E:#x}
    s_mul_i32 {sPd}, {sN0}, 6
    s_sub_u32 {sPd}, {sPd}, 6
    s_mov_b32 {sT[0]}, 0x73261540
    v_and_b32 {t2}, 28, {vL}
    v_lshrrev_b32 {p}, {t2}, {sT[0]}
    v_and_b32 {p}, 7, {p}
    v_and_b32 {t2}, 3, {vL}
    v_lshl_add_u32 {p}, {p}, 2, {t2}
    v_bfe_u32 {f}, {p}, 1, 3
    v_xor_b32 {f}, {f}, {vHalf}
    v_lshlrev_b32 {f}, 4, {f}
    v_lshl_add_u32 {f}, {p}, 7, {f}
    v_add_u32 {HRD[0]}, {sStg}, {f}
    v_xor_b32 {HRD[1]}, 32, {HRD[0]}
    v_xor_b32 {HRD[2]}, 64, {HRD[0]}
    v_xor_b32 {HRD[3]}, 0x60, {HRD[0]}
    v_bfe_u32 {f}, {p}, 3, 1
    v_xor_b32 {f}, {f}, {vHalf}
    v_lshlrev_b32 {f}, 4, {f}
    v_lshl_add_u32 {f}, {p}, 5, {f}
    v_add_u32 {ERD}, {sStg}, {f}
    v_lshlrev_b32 {DT[2]}, 3, {p}
    v_lshrrev_b32 {f}, 4, {vL}
    v_and_b32 {t2}, 7, {vL}
    v_xor_b32 {f}, {f}, {t2}
    v_lshlrev_b32 {IX[1]}, 4, {f}
    v_xor_b32 {IX[3]}, 64, {IX[1]}
    v_mov_b32 {IX[5]}, {IX[1]}
    v_mov_b32 {IX[7]}, {IX[3]}
    v_bfe_u32 {f}, {vL}, 4, 1
    v_and_b32 {t2}, 1, {vL}
    v_xor_b32 {f}, {f}, {t2}
    v_lshlrev_b32 {IX[9]}, 4, {f}
    v_and_b32 {DT[0]}, 56, {vL}
    v_add_u32 {DT[0]}, 4, {DT[0]}
    v_lshrrev_b32 {t2}, 1, {vL}
    v_lshlrev_b32 {DT[1]}, 3, {t2}
    s_lshl_b32 {sT[0]}, {sW}, 11
    s_add_u32 {sT[0]}, {sT[0]}, {WE}
    s_sub_u32 {sT[1]}, {sT[0]}, 8
    v_lshl_add_u32 {vTrow}, {c31}, 6, {sT[1]}
    v_lshlrev_b32 {f}, 8, {vHalf}
    v_bfe_u32 {t2}, {vL}, 2, 2
    v_lshl_add_u32 {f}, {t2}, 6, {f}
    v_bfe_u32 {t2}, {vL}, 4, 1
    v_lshl_add_u32 {f}, {t2}, 5, {f}
    v_and_b32 {t2}, 3, {vL}
    v_lshl_add_u32 {f}, {t2}, 3, {f}
    v_add_u32 {vTtr}, {sT[0]}, {f}
    v_mov_b32 {HALF[0]}, 0x3f003f00
    v_mov_b32 {HALF[1]}, 0x3f003f00
    v_mov_b32 {ZERO[0]}, 0
    v_mov_b32 {ZERO[1]}, 0
    v_mov_b32 {v8}, 8
    """)
    for i in range(3): A(f"v_mov_b32 {PS[i]}, 0"); A(f"v_mov_b32 {PD[i]}, 0")
    for i in range(32): A(f"v_mov_b32 {ACC[i]}, 0")
    LO = V.alloc("LO", 3); nv = V.n
    for i in range(3): A(f"v_mov_b32 {LO[i]}, {DT[i]}")
    A("s_waitcnt lgkmcnt(0)"); A("s_barrier")
    TW = TM[16:32]
    A(f"s_mov_b64 {sOv}, 0")
    def sparse(regs, cb, wait):
        A(f"s_waitcnt vmcnt({wait})")
        n = regs.cnt
        A(f"v_cmp_eq_u32 vcc, -1, {regs[0]}")
        for i in range(n):
            A(f"v_cmp_ne_u32 {sM[2*i:2*i+2]}, 0, {regs[i]}")
            A(f"v_and_b32 {TW[8+i]}, 0x38, {regs[i]}")
        A(f"s_or_b64 {sOv}, {sOv}, vcc")
        for i in range(n):
            A(f"s_mov_b64 exec, {sM[2*i:2*i+2]}"); A(f"ds_add_rtn_u32 {TW[12+i]}, {TW[8+i]}, {v8}")
        A("s_mov_b64 exec, -1")
        for i in range(n):
            A(f"v_and_b32 {TW[2*i]}, 0x3ffff, {regs[i]}"); A(f"v_add_u32 {TW[2*i]}, {TW[2*i]}, {cb}"); A(f"v_lshrrev_b32 {TW[2*i+1]}, 18, {regs[i]}")
        A("s_waitcnt lgkmcnt(0)")
        for i in range(n):
            A(f"s_mov_b64 exec, {sM[2*i:2*i+2]}"); A(f"ds_write_b64 {TW[12+i]}, {TW[2*i:2*i+2]}")
        A("s_mov_b64 exec, -1")
    rest = nreg + ndma
    if STAMP: A(f"s_waitcnt vmcnt({rest+5})"); stamp(A, 5)
    for q in range(4):
        sparse(RP[2*q:2*q+2], vCB, rest + 5 - q)
        if q < 3: A(f"v_add_u32 {vCB}, {64*CH*64}, {vCB}")
    sparse(RS[0:4], vCS, rest + 1); A(f"v_add_u32 {vCS}, {128*CH*64}, {vCS}")
    sparse(RS[4:8], vCS, rest)
    A(f"""
    s_cmp_eq_u64 {sOv}, 0
    s_cbranch_scc1 L_noflag
    v_mov_b32 {TW[0]}, {FLAG}
    ds_write_b32 {TW[0]}, {v8}
    L_noflag:
    s_waitcnt lgkmcnt(0)
    s_barrier
    v_and_b32 {TW[0]}, 15, {vL}
    v_lshlrev_b32 {TW[1]}, 3, {TW[0]}
    ds_read_b32 {TW[2]}, {TW[1]}
    v_mul_u32_u24 {TW[3]}, {CAP*8}, {TW[0]}
    v_add_u32 {TW[3]}, {LIST + CAP*8}, {TW[3]}
    v_cmp_gt_u32 {sT[2:4]}, 8, {TW[0]}
    s_mov_b32 {sSlow}, 0
    s_mov_b32 {sScan}, 0
    v_cndmask_b32 {TW[3]}, 0, {TW[3]}, {sT[2:4]}
    s_waitcnt lgkmcnt(0)
    v_cmp_gt_u32 vcc, {TW[2]}, {TW[3]}
    v_readlane_b32 {sCnt}, {TW[2]}, {sW}
    s_and_b32 {sT[0]}, vcc_lo, 0x1ff
    s_sub_u32 {sCnt}, {sCnt}, {sLb}
    s_lshr_b32 {sCnt}, {sCnt}, 3
    s_cmp_eq_u32 {sT[0]}, 0
    s_cselect_b32 {sCnt}, {sCnt}, 0
    s_cselect_b32 {sSlow}, 0, 1
    """)
    def round_start():
        A(f"""
        s_add_u32 {sNt}, {sCnt}, 31
        s_lshr_b32 {sNt}, {sNt}, 5
        s_lshl_b32 {sT[0]}, {sNt}, 5
        s_sub_u32 {sT[0]}, {sT[0]}, {sCnt}
        s_lshl_b32 {sT[1]}, {sCnt}, 3
        s_add_u32 {sT[1]}, {sT[1]}, {sLb}
        v_lshl_add_u32 {DT[0]}, {vL}, 3, {sT[1]}
        v_mov_b32 {EN[0]}, 0xffffffc6
        v_mov_b32 {EN[1]}, {N}
        s_bfm_b64 exec, {sT[0]}, 0
        ds_write_b64 {DT[0]}, {EN}
        s_mov_b64 exec, -1
        v_add_u32 {vAh}, {sLb}, {LO[0]}
        v_add_u32 {vAe}, {sLb}, {LO[1]}
        v_add_u32 {vAn}, {sLb}, {LO[2]}
        s_mov_b32 {sTi}, 0
        """)
    def read_idx():
        for i in range(4): A(f"ds_read_b32 {IX[2*i]}, {vAh} offset:{64*i}")
        A(f"ds_read_b32 {IX[8]}, {vAe}")
        A(f"v_add_u32 {vAh}, 256, {vAh}"); A(f"v_add_u32 {vAe}, 256, {vAe}")
    def issue_dma():
        A(f"v_lshrrev_b32 {IX[8]}, 6, {IX[8]}")
        A(f"s_add_u32 m0, {sStg}, 4096"); A("s_nop 0"); A(f"buffer_load_dwordx4 {IX[8:10]}, {SE}, 0 idxen offen lds")
        for i in range(4):
            A(f"s_add_u32 m0, {sStg}, {1024*i}"); A("s_nop 0"); A(f"buffer_load_dwordx4 {IX[2*i:2*i+2]}, {SH}, 0 idxen offen lds")
    def derive_a():
        return f"""
        v_mul_u32_u24 {DT[0]}, 6, {EN[1]}
        v_and_b32 {DT[1]}, 7, {EN[0]}
        ds_read_u16_d16_hi {PS[0]}, {DT[0]} offset:{POS}
        ds_read_u16_d16_hi {PS[1]}, {DT[0]} offset:{POS+2}
        ds_read_u16_d16_hi {PS[2]}, {DT[0]} offset:{POS+4}
        v_mad_u32_u24 {DT[2]}, {DT[1]}, 6, {sPd}
        v_lshlrev_b32 {DT[3]}, 4, {DT[1]}
        ds_read_u16_d16_hi {PD[0]}, {DT[2]} offset:{POS}
        ds_read_u16_d16_hi {PD[1]}, {DT[2]} offset:{POS+2}
        ds_read_u16_d16_hi {PD[2]}, {DT[2]} offset:{POS+4}
        v_lshl_add_u32 {vAt}, {DT[1]}, 3, {vTrow}
        """
    def derive_x(): return f"ds_read_b96 {X[0:3]}, {DT[3]} offset:{LUT}"
    def derive_b():
        return f"""
        v_sub_f32 {DT[0]}, {PD[0]}, {PS[0]}
        v_sub_f32 {DT[1]}, {PD[1]}, {PS[1]}
        v_sub_f32 {DT[2]}, {PD[2]}, {PS[2]}
        v_cvt_pk_bf16_f32 {D[0]}, {DT[0]}, {DT[1]}
        v_cvt_pk_bf16_f32 {D[1]}, {DT[2]}, 1.0
        v_lshlrev_b32 {DT[0]}, 16, {D[0]}
        v_and_b32 {DT[1]}, 0xffff0000, {D[0]}
        v_lshlrev_b32 {DT[2]}, 16, {D[1]}
        v_mul_f32 {DT[0]}, {DT[0]}, {DT[0]}
        v_fmac_f32 {DT[0]}, {DT[1]}, {DT[1]}
        v_fmac_f32 {DT[0]}, {DT[2]}, {DT[2]}
        v_cvt_pk_bf16_f32 {X[3]}, 0, {DT[0]}
        """
    def read_entry():
        A(f"ds_read_b64 {EN}, {vAn}"); A(f"v_add_u32 {vAn}, 256, {vAn}")
    stamp(A, 6)
    round_start()
    read_idx()
    A(f"s_cmp_eq_u32 {sNt}, 0"); A("s_waitcnt lgkmcnt(0)"); A("s_cbranch_scc1 L_nodma0")
    issue_dma()
    A("s_waitcnt vmcnt(5)")
    A("s_branch L_dma0done")
    A("L_nodma0:"); A("s_waitcnt vmcnt(0)"); A("L_dma0done:"); stamp(A, 7)
    read_idx()
    def scale(r, t):
        A(f"v_lshlrev_b32 {t[0]}, 16, {r}"); A(f"v_and_b32 {t[1]}, 0xffff0000, {r}")
        A(f"v_mul_f32 {t[0]}, {sC}, {t[0]}"); A(f"v_mul_f32 {t[1]}, {sC}, {t[1]}"); A(f"v_cvt_pk_bf16_f32 {r}, {t[0]}, {t[1]}")
    for i in range(4): scale(WA[i], TM[0:2])
    scale(WB, TM[0:2])
    A(f"""
    v_lshlrev_b32 {TM[2]}, 4, v0
    v_add_u32 {TM[2]}, {WE + 8192}, {TM[2]}
    ds_write_b128 {TM[2]}, {WA}
    v_lshlrev_b32 {TM[3]}, 2, v0
    v_add_u32 {TM[3]}, {WE + 16384}, {TM[3]}
    ds_write_b32 {TM[3]}, {WB}
    v_lshlrev_b32 {vWb}, 16, {vWb}
    v_mul_f32 {vWb}, {NLN2:#x}, {vWb}
    v_lshlrev_b32 {TM[4]}, 2, {vL}
    ds_write_b32 {TM[4]}, {vWb} offset:{WX}
    """)
    A(f"""
    v_bfe_u32 {TM[5]}, {vL}, 2, 2
    v_lshlrev_b32 {TM[5]}, 7, {TM[5]}
    v_bfe_u32 {TM[6]}, {vL}, 4, 1
    v_lshl_add_u32 {TM[5]}, {TM[6]}, 5, {TM[5]}
    v_and_b32 {TM[6]}, 3, {vL}
    v_lshl_add_u32 {TM[5]}, {TM[6]}, 3, {TM[5]}
    v_lshl_add_u32 {vWb}, {vHalf}, 9, {TM[5]}
    v_add_u32 {vWb}, {WH + 8192}, {vWb}
    v_lshl_add_u32 {TM[5]}, {vHalf}, 10, {TM[5]}
    v_add_u32 {vT1}, {WE}, {TM[5]}
    s_waitcnt lgkmcnt(0)
    s_barrier
    """)
    def frag(dst, base, s, n):
        for half in range(2): A(f"ds_read_b64_tr_b16 {dst[2*half:2*half+2]}, {vT1} offset:{base + (16*s + 4*half)*128 + 64*n}")
    for n in range(2):
        for s in range(4): frag(W2[16*n+4*s:16*n+4*s+4], 0, s, n)
        A("s_waitcnt lgkmcnt(0)")
        for s in range(4): A(f"{mf} {Y[16*n:16*n+16]}, {H[4*s:4*s+4]}, {W2[16*n+4*s:16*n+4*s+4]}, {Y[16*n:16*n+16] if s else 0}")
    for n in range(2):
        for s in range(4): frag(W2[16*n+4*s:16*n+4*s+4], WH - WE, s, n)
        A("s_waitcnt lgkmcnt(0)")
        for s in range(4): A(f"{mf} {TM[16*n:16*n+16]}, {H[4*s:4*s+4]}, {W2[16*n+4*s:16*n+4*s+4]}, {TM[16*n:16*n+16] if s else 0}")
    for n in range(2):
        for s in range(4): frag(W2[16*n+4*s:16*n+4*s+4], 8192, s, n)
        frag(W4[4*n:4*n+4], 16384, 0, n)
        A("s_waitcnt lgkmcnt(0)")
    read_entry()
    for n in range(2):
        a = Y[16*n:16*n+16]; B = BX[4*n:4*n+4]
        A(f"v_lshlrev_b32 {a[5]}, 16, {WD[n]}")
        for i in range(6): A(f"v_mul_f32 {a[i]}, {sC}, {a[i]}")
        A(f"v_cvt_pk_bf16_f32 {B[0]}, {a[0]}, {a[1]}"); A(f"v_cvt_pk_bf16_f32 {B[1]}, {a[2]}, {a[3]}")
        A(f"v_cvt_pk_bf16_f32 {B[2]}, {a[4]}, 0"); A(f"v_cvt_pk_bf16_f32 {B[3]}, 0, {a[5]}")
        for i, (r, hi_) in enumerate(((0, 0), (0, 1), (1, 0), (1, 1), (2, 0), (3, 1))):
            A(f"v_and_b32 {a[8+i]}, 0xffff0000, {B[r]}" if hi_ else f"v_lshlrev_b32 {a[8+i]}, 16, {B[r]}")
            A(f"v_sub_f32 {a[i]}, {a[i]}, {a[8+i]}")
        A(f"v_cvt_pk_bf16_f32 {a[8]}, {a[0]}, {a[1]}"); A(f"v_cvt_pk_bf16_f32 {a[9]}, {a[2]}, {a[3]}")
        A(f"v_cvt_pk_bf16_f32 {a[10]}, {a[4]}, 0"); A(f"v_cvt_pk_bf16_f32 {a[11]}, 0, {a[5]}")
        for i in range(4): A(f"v_cndmask_b32 {B[i]}, {B[i]}, {a[8+i]}, {sHi}")
    for n in range(2):
        for j in range(3):
            A(f"v_cndmask_b32 {ZH[2*j+n]}, {TM[16*n+2*j]}, {TM[16*n+2*j+1]}, {sHi}")
            A(f"v_lshlrev_b32 {HR[2*j+n]}, 16, {HR[2*j+n]}")
    A(f"""
    s_barrier
    s_lshl_b32 {sT[0]}, {sW}, 11
    s_add_u32 {sT[0]}, {sT[0]}, {WE}
    v_lshl_add_u32 {DT[0]}, {vL}, 3, {sT[0]}
    """)
    for i in range(4): A(f"ds_write_b64 {DT[0]}, {ZERO} offset:{512*i}")
    A("s_branch L_enter")
    A("L_round:")
    round_start()
    read_idx()
    A(f"s_cmp_eq_u32 {sNt}, 0"); A("s_waitcnt lgkmcnt(0)"); A("s_cbranch_scc1 L_round_end")
    issue_dma()
    read_idx()
    read_entry()
    A("L_enter:")
    A(f"s_cmp_eq_u32 {sNt}, 0"); A("s_waitcnt lgkmcnt(0)"); A("s_cbranch_scc1 L_round_end")
    A(derive_a()); A(derive_x()); stamp(A, 8); A("s_waitcnt lgkmcnt(0)"); A(derive_b())
    A(".p2align 6")
    A("L_tile:")
    A("s_waitcnt vmcnt(0)")
    for s in range(4): A(f"ds_read_b128 {H[4*s:4*s+4]}, {HRD[s]}")
    A(f"ds_read_b128 {EA}, {ERD} offset:4096")
    A(f"ds_write_b64 {vAt}, {D}")
    for i in range(4): A(f"ds_read_b64_tr_b16 {A2[2*i:2*i+2]}, {vTtr} offset:{512*i}")
    A(f"ds_write_b64 {vAt}, {ZERO}")
    read_entry()
    A(f"s_add_u32 {sTi}, {sTi}, 1")
    A(f"{mf} {Y[0:16]}, {X}, {BX[0:4]}, 0")
    A(f"{mf} {Y[16:32]}, {X}, {BX[4:8]}, 0")
    A(f"s_cmp_ge_u32 {sTi}, {sNt}")
    A("s_waitcnt lgkmcnt(7)")
    A("s_cbranch_scc1 L_skipdma")
    issue_dma()
    A("L_skipdma:")
    A(f"{mf} {Y[0:16]}, {EA}, {W4[0:4]}, {Y[0:16]}")
    read_idx()
    A(f"{mf} {Y[0:16]}, {H[0:4]}, {W2[0:4]}, {Y[0:16]}")
    A("s_waitcnt lgkmcnt(5)")
    da = [l.strip() for l in derive_a().strip().split("\n")]
    A("\n".join(da[:5]))
    A(f"{mf} {Y[0:16]}, {H[4:8]}, {W2[4:8]}, {Y[0:16]}")
    A("\n".join(da[5:]))
    A(derive_x())
    A(f"{mf} {Y[0:16]}, {H[8:12]}, {W2[8:12]}, {Y[0:16]}")
    A(f"{mf} {Y[0:16]}, {H[12:16]}, {W2[12:16]}, {Y[0:16]}")
    A(f"{mf} {Y[16:32]}, {EA}, {W4[4:8]}, {Y[16:32]}")
    A("s_waitcnt lgkmcnt(0)")
    A(derive_b())
    for i in range(16):
        if i % 4 == 0:
            s = i // 4
            A(f"{mf} {Y[16:32]}, {H[4*s:4*s+4]}, {W2[16+4*s:20+4*s]}, {Y[16:32]}")
        A(f"v_exp_f32 {TM[i]}, {Y[i]}")
    one = lambda r: f"v_mfma_f32_16x16x4_4b_bf16 {r}, {HALF}, {HALF}, {r}"
    A("s_nop 1"); A(one(TM[0:16])); A("s_nop 4")
    for i in range(16): A(f"v_exp_f32 {TM[16+i]}, {Y[16+i]}")
    A("s_nop 1"); A(one(TM[16:32]))
    for n in range(2):
        for i in range(16): A(f"v_rcp_f32 {TM[16*n+i]}, {TM[16*n+i]}")
        for i in range(16): A(f"v_mul_f32 {TM[16*n+i]}, {Y[16*n+i]}, {TM[16*n+i]}")
        for i in range(8): A(f"v_cvt_pk_bf16_f32 {PK[i]}, {TM[16*n+2*i]}, {TM[16*n+2*i+1]}")
        A("s_nop 1")
        for u in range(2): A(f"{mf} {ACC[16*n:16*n+16]}, {PK[4*u:4*u+4]}, {A2[4*u:4*u+4]}, {ACC[16*n:16*n+16]}")
    A(f"s_cmp_lt_u32 {sTi}, {sNt}")
    A("s_cbranch_scc1 L_tile")
    A("L_round_end:")
    A(f"s_cmp_eq_u32 {sSlow}, 0"); A("s_cbranch_scc1 L_epi")
    A(f"s_cmp_ge_u32 {sScan}, {E}"); A("s_cbranch_scc1 L_epi")
    A("s_waitcnt lgkmcnt(0)")
    A(f"s_mov_b32 {sCnt}, 0")
    A("L_scan:")
    Dd = H[0:4]; Ss = H[4:8]
    A(f"""
    s_lshl_b32 {sT[0]}, {sScan}, 2
    v_lshl_add_u32 {DT[0]}, {vL}, 4, {sT[0]}
    global_load_dwordx4 {Dd}, {DT[0]}, {pDst}
    global_load_dwordx4 {Ss}, {DT[0]}, {pSrc}
    v_lshlrev_b32 {DT[0]}, 4, {DT[0]}
    s_waitcnt vmcnt(0)
    """)
    for i in range(4):
        A(f"""
        v_subrev_u32 {DT[1]}, {sN0}, {Dd[i]}
        v_cmp_gt_u32 vcc, 5, {DT[1]}
        v_add3_u32 {EN[0]}, {DT[0]}, {DT[1]}, 1
        v_mov_b32 {EN[1]}, {Ss[i]}
        v_mbcnt_lo_u32_b32 {DT[2]}, vcc_lo, 0
        v_mbcnt_hi_u32_b32 {DT[2]}, vcc_hi, {DT[2]}
        v_add_u32 {DT[2]}, {sCnt}, {DT[2]}
        v_lshl_add_u32 {DT[2]}, {DT[2]}, 3, {sLb}
        s_bcnt1_i32_b64 {sT[0]}, vcc
        s_add_u32 {sCnt}, {sCnt}, {sT[0]}
        s_mov_b64 exec, vcc
        ds_write_b64 {DT[2]}, {EN}
        s_mov_b64 exec, -1
        v_add_u32 {DT[0]}, 64, {DT[0]}
        """)
    A(f"""
    s_add_u32 {sScan}, {sScan}, 256
    s_cmp_ge_u32 {sScan}, {E}
    s_cbranch_scc1 L_round
    s_cmp_le_u32 {sCnt}, {CAP - 256}
    s_cbranch_scc1 L_scan
    s_branch L_round
    """)
    A("L_epi:")
    stamp(A, 9)
    A("s_waitcnt lgkmcnt(0)")
    for n2 in range(2):
        for st in range(4):
            for hf in range(2):
                A(f"ds_read_b64_tr_b16 {W2[16*n2+4*st+2*hf:16*n2+4*st+2*hf+2]}, {vWb} offset:{(16*st + 8*hf)*128 + 64*n2}")
        if n2 == 0: A(f"v_lshlrev_b32 {DT[0]}, 4, {vHalf}"); A("s_waitcnt lgkmcnt(6)")
    for i in range(16): A(f"v_cvt_pk_bf16_f32 {Y[i]}, {ACC[2*i]}, {ACC[2*i+1]}")
    A("s_waitcnt lgkmcnt(0)")
    WXR = [H[0:4], H[4:8], H[8:12], H[12:16], EA, X, A2[0:4], A2[4:8]]
    for i in range(8): A(f"ds_read_b128 {WXR[i]}, {DT[0]} offset:{WX + 32*i}")
    A(f"""
    v_lshrrev_b32 {DT[1]}, 2, {vL}
    v_and_b32 {DT[2]}, 3, {vL}
    v_add_u32 {DT[1]}, {sN0}, {DT[1]}
    v_mul_u32_u24 {DT[1]}, 6, {DT[1]}
    v_lshl_add_u32 {DT[1]}, {DT[2]}, 1, {DT[1]}
    ds_read_u16_d16_hi {PS[0]}, {DT[1]} offset:{POS}
    """)
    for n2 in range(2):
        for st in range(4): A(f"{mf} {TM[16*n2:16*n2+16]}, {Y[4*st:4*st+4]}, {W2[16*n2+4*st:16*n2+4*st+4]}, {TM[16*n2:16*n2+16] if st else 0}")
    A("s_waitcnt lgkmcnt(0)")
    A(f"v_mul_f32 {DT[2]}, {ACC[0]}, {WXR[0][0]}")
    for i in range(1, 32): A(f"v_fmac_f32 {DT[2]}, {ACC[i]}, {WXR[i//4][i%4]}")
    A(f"""
    v_mov_b32 {DT[3]}, {DT[2]}
    v_add_u32 {DT[1]}, {N*128}, {DT[1]}
    s_nop 0
    v_permlane32_swap_b32 {DT[2]}, {DT[3]}
    v_add_f32 {DT[2]}, {DT[2]}, {DT[3]}
    v_add_f32 {DT[2]}, {DT[2]}, {PS[0]}
    v_cvt_pk_bf16_f32 {DT[2]}, {DT[2]}, {DT[2]}
    s_mov_b64 exec, 0x77777
    buffer_store_short {DT[2]}, {DT[1]}, {SO}, 0 offen
    s_mov_b64 exec, -1
    v_add_u32 {DT[0]}, {sN0}, {vHalf}
    v_lshlrev_b32 {DT[0]}, 7, {DT[0]}
    v_and_b32 {DT[1]}, 31, {vL}
    v_lshl_add_u32 {DT[0]}, {DT[1]}, 1, {DT[0]}
    s_mov_b32 {sT[0]}, {NLN2:#x}
    """)
    for j in range(3):
        for n in range(2):
            z = ZH[2*j+n]; t = Y[16+2*j+n]
            A(f"v_fmac_f32 {z}, {sT[0]}, {TM[16*n+4*j+3]}")
            A(f"v_mul_f32 {t}, {sC}, {z}"); A(f"v_exp_f32 {t}, {t}")
    for i in range(6): A(f"v_add_f32 {Y[16+i]}, 1.0, {Y[16+i]}"); A(f"v_rcp_f32 {Y[16+i]}, {Y[16+i]}")
    A("s_nop 0")
    for i in range(6): A(f"v_fmac_f32 {HR[i]}, {ZH[i]}, {Y[16+i]}"); A(f"v_cvt_pk_bf16_f32 {HR[i]}, {HR[i]}, {HR[i]}")
    for j in range(3):
        if j == 2: A("s_mov_b32 exec_hi, 0")
        for n in range(2): A(f"buffer_store_short {HR[2*j+n]}, {DT[0]}, {SO}, 0 offen offset:{256*j + 64*n}")
    if STAMP: A("s_waitcnt vmcnt(0)")
    stamp(A, 10); stamp_out(A, 4, 7, pWs, None)
    A("L_main_done:"); A("s_endpgm")
    print("main vgprs", nv, "sgprs", S.n, "lds", LDS_MAIN, file=sys.stderr)
    return A.text()

if __name__ == "__main__":
    STAMP = "stamp" in sys.argv
    ks = [("bin_kernel", k_bin(), 48), ("main_kernel", k_main(), 256)]
    ls = [("bin_kernel", NB, 512, 33792), ("main_kernel", NB, 512, LDS_MAIN)]
    open(sys.argv[1], "w").write(assemble(ks, ls))
```

```python
import v1
from lib import *
body = v1.k_main()
body = body.replace("s_cbranch_scc1 L_noflag", "s_nop 0")
body = "    s_memrealtime s[90:91]\n" + body
body = body.replace("L_main_done:", """    s_waitcnt vmcnt(0)
L_spin:
    s_memrealtime s[92:93]
    s_waitcnt lgkmcnt(0)
    s_sub_u32 s94, s92, s90
    s_cmp_lt_u32 s94, 200000
    s_cbranch_scc1 L_spin
L_main_done:""")
KN = "standalone__cheap_equivariant_egnn__graph_kernel"
open("o1.s", "w").write(assemble([(KN, body, 256)], [(KN, 250, 512, v1.LDS_MAIN)], single=True))
open("o2.s", "w").write(assemble([("main_kernel", body, 256)], [("main_kernel", 250, 512, v1.LDS_MAIN)]))
triv = "    s_endpgm\n"
open("o3.s", "w").write(assemble([("t_kernel", triv, 8), ("main_kernel", body, 256)], [("t_kernel", 250, 512, 0), ("main_kernel", 250, 512, v1.LDS_MAIN)]))
open("o4.s", "w").write(assemble([("t_kernel", triv, 8), ("main_kernel", body, 256)], [("t_kernel", 250, 512, 0), ("t_kernel", 250, 512, 0), ("t_kernel", 250, 512, 0), ("main_kernel", 250, 512, v1.LDS_MAIN)]))
```

```python
import sys, struct
from lib import *
N, E = 10000, 640000
NB, CH = 256, 2500
CAP = 416
NLOG2E = 0xbfb8aa3b
NLN2 = 0xbf317218
SEC = NB * NB * 64
EPO = 2 * SEC
TIMEOUT = 20000
INV0 = 0xffffffc6
CNT, FLAG, LUT, WX = 0, 64, 128, 256
POS = 512
WE = POS + 60032
WH = WE + 18560
STG = WH + 16384
LIST = STG + 8 * 5120
LDS_MAIN = LIST + 8 * CAP * 8
BST = STG
BCN = STG + 32768
HO = STG + 34816
assert STG % 128 == 0 and WE % 128 == 0 and WH % 128 == 0 and LDS_MAIN <= 163840
OPT = set()
def stamp(A, i):
    if "stamp" in OPT: A(f"s_memrealtime s[100:101]"); A("s_waitcnt lgkmcnt(0)"); A(f"v_writelane_b32 v255, s100, {i}")
def stamp_out(A, wsp):
    if "stamp" not in OPT: return
    A("s_mov_b64 exec, -1")
    A(f"v_lshrrev_b32 v1, 6, v0"); A(f"s_lshl_b32 s3, s2, 3"); A("v_add_u32 v1, s3, v1"); A("v_lshlrev_b32 v1, 7, v1"); A(f"v_add_u32 v1, {200<<20}, v1")
    A("v_and_b32 v2, 63, v0"); A("v_lshl_add_u32 v1, v2, 2, v1"); A("s_mov_b32 exec_hi, 0"); A(f"global_store_dword v1, v255, {wsp}")
def lines(s): return [l.strip() for l in s.strip().split("\n") if l.strip()]

def k_main():
    A = Asm()
    S = Regs("s", 26, 98); V = Regs("v", 1, 255)
    pH, pPos, pE, pSrc, pDst, pWe, pWx, pWh, pOut, pDbg, pWs = [R("s", 4 + 2 * i, 2) for i in range(11)]
    sW = S.alloc("wave"); sN0 = S.alloc("node0")
    SH = S.alloc("SH", 4, 4); SE = S.alloc("SE", 4, 4); SX = S.alloc("SX", 4, 4); SY = S.alloc("SY", 4, 4); SZ = S.alloc("SZ", 4, 4); SO = S.alloc("SO", 4, 4)
    sM = S.alloc("masks", 12, 2); sHi = S.alloc("himask", 2, 2); sT = S.alloc("tmp", 4, 2); sOv = S.alloc("ov", 2, 2)
    sS2 = S.alloc("secmask", 8, 2)
    sStg = S.alloc("stg"); sLb = S.alloc("listbase"); sCnt = S.alloc("cnt"); sNt = S.alloc("nt"); sTi = S.alloc("ti")
    sSlow = S.alloc("slow"); sScan = S.alloc("scan"); sPd = S.alloc("pd"); sC = S.alloc("c"); sNn = S.alloc("nn")
    sNon = S.alloc("nonce"); sTo = S.alloc("to"); sEarly = S.alloc("early"); sW10 = S.alloc("w10"); sNb = S.alloc("nb0")
    vL = V.alloc("lane"); vHalf = V.alloc("half"); vT1 = V.alloc("t1")
    W2 = V.alloc("W2", 32, 4); W4 = V.alloc("W4", 8, 4); BX = V.alloc("BX", 8, 4)
    ACC = V.alloc("ACC", 32, 4); Y = V.alloc("Y", 32, 4); TM = V.alloc("TM", 32, 4)
    H = V.alloc("H", 16, 4); EA = V.alloc("EA", 4, 4); X = V.alloc("X", 4, 4); A2 = V.alloc("A2", 8, 4); PK = V.alloc("PK", 8, 4)
    IX = V.alloc("IX", 10, 2); HRD = V.alloc("HRD", 4); ERD = V.alloc("ERD")
    vAh = V.alloc("Ah"); vAe = V.alloc("Ae"); vAn = V.alloc("An"); vTrow = V.alloc("Trow"); vTtr = V.alloc("Ttr")
    EN = V.alloc("EN", 2, 2); D = V.alloc("D", 2, 2); HALF = V.alloc("HALFC", 2, 2); ZERO = V.alloc("ZERO", 2, 2)
    vAt = V.alloc("At"); PS = V.alloc("PS", 3); PD = V.alloc("PD", 3); DT = V.alloc("DT", 4); vSl = V.alloc("Sl"); vAl = V.alloc("Al")
    ZH = V.alloc("ZH", 6); HR = V.alloc("HR", 6); vWb = V.alloc("Wb"); LO = V.alloc("LO", 3)
    vJ = V.alloc("junk"); vDs = V.alloc("Ds")
    nv = V.n
    mf = "v_mfma_f32_32x32x16_bf16"
    dpp = "row_mask:0xf bank_mask:0xf"
    prio = lambda p: A(f"s_setprio {p}") if "noprio" not in OPT else None
    DS = Y[0:5]; SR = Y[8:13]; RC = Y[16:21]; B4 = Y[21:26]; RT = Y[26:31]; LE = TM[24:29]; Z4 = TM[16:20]; v4 = TM[20]
    m5 = sM[10:12]
    if "stamp" in OPT: A("v_mov_b32 v255, 0")
    stamp(A, 0)
    A(f"""
    s_cmp_ge_u32 s2, {NB}
    s_cbranch_scc1 L_done
    s_load_dwordx16 s[4:19], s[0:1], 0
    s_load_dwordx4 s[20:23], s[0:1], 64
    s_load_dwordx2 s[24:25], s[0:1], 80
    s_setprio 1
    s_mul_i32 s3, s2, {CH*4}
    v_lshl_add_u32 {TM[0]}, v0, 4, s3
    s_add_u32 s3, s3, 8192
    v_lshl_add_u32 {TM[1]}, v0, 2, s3
    v_lshrrev_b32 {vT1}, 6, v0
    v_and_b32 {vL}, 63, v0
    v_readfirstlane_b32 {sW}, {vT1}
    v_cmp_gt_u32 vcc, {CH - 2048}, v0
    v_lshrrev_b32 {vHalf}, 5, {vL}
    s_mul_i32 {sT[0]}, s2, 5000
    s_add_u32 {sNb}, {sT[0]}, 127
    s_lshr_b32 {sNb}, {sNb}, 7
    s_mov_b64 {m5}, vcc
    s_lshl_b32 {sW10}, {sW}, 10
    s_mov_b32 {sT[1]}, {EPO}
    s_waitcnt lgkmcnt(0)
    global_load_dwordx4 {DS[0:4]}, {TM[0]}, {pDst}
    s_mov_b64 exec, {m5}
    global_load_dword {DS[4]}, {TM[1]}, {pDst}
    s_mov_b64 exec, -1
    s_load_dword {sNon}, {pWs}, {sT[1]}
    s_cmp_lt_u32 {sW}, 5
    s_cbranch_scc1 L_share_done
    s_lshr_b32 {sT[0]}, s2, 3
    """)
    srd(A, SY, pPos, N * 6)
    A(f"s_mov_b32 {sT[2]}, 15")
    for w, (ptr, size, cnt) in ((6, (pWe, 145 * 128, 5)), (7, (pWh, 16384, 4))):
        A(f"""
        s_cmp_eq_u32 {sW}, {w}
        s_cselect_b64 {SY[0:2]}, {ptr}, {SY[0:2]}
        s_cselect_b32 {SY[2]}, {size}, {SY[2]}
        s_cselect_b32 {sT[2]}, {cnt}, {sT[2]}
        """)
    A(f"""
    s_mul_i32 {sT[0]}, {sT[0]}, {sT[2]}
    v_add_lshl_u32 {TM[5]}, {vL}, {sT[0]}, 7
    s_bfm_b64 exec, {sT[2]}, 0
    buffer_load_dword {vJ}, {TM[5]}, {SY}, 0 offen
    s_mov_b64 exec, -1
    L_share_done:
    """)
    for i in range(4): A(f"v_mov_b32 {Z4[i]}, 0")
    A(f"v_lshlrev_b32 {TM[3]}, 4, v0"); A(f"v_add_u32 {TM[3]}, {BST}, {TM[3]}")
    for i in range(4): A(f"ds_write_b128 {TM[3]}, {Z4} offset:{8192*i}")
    A(f"v_lshlrev_b32 {TM[4]}, 2, v0"); A(f"v_add_u32 {TM[4]}, {BCN}, {TM[4]}"); A(f"ds_write_b32 {TM[4]}, {Z4[0]}")
    A(f"""
    global_load_dwordx4 {SR[0:4]}, {TM[0]}, {pSrc}
    s_mov_b64 exec, {m5}
    global_load_dword {SR[4]}, {TM[1]}, {pSrc}
    s_mov_b64 exec, -1
    """)
    lo = sum(1 << ((k + 1) * 4 + (k >> 1)) for k in range(5) if k % 2 == 0)
    hi = sum(1 << ((k + 1) * 4 + (k >> 1)) for k in range(5) if k % 2 == 1)
    A(f"""
    s_mul_i32 {sLb}, {sW}, {CAP*8}
    s_add_u32 {sLb}, {sLb}, {LIST}
    v_mov_b32 {EN[0]}, {INV0:#x}
    v_mov_b32 {EN[1]}, {N}
    v_lshl_add_u32 {TM[6]}, {vL}, 3, {sLb}
    ds_write_b64 {TM[6]}, {EN}
    s_cmp_lg_u32 {sW}, 0
    s_cbranch_scc1 L_init_done
    v_lshrrev_b32 {TM[9]}, 1, {vL}
    v_mul_u32_u24 {TM[9]}, {CAP*8}, {TM[9]}
    v_add_u32 {TM[9]}, {LIST}, {TM[9]}
    v_mov_b32 {TM[11]}, 0x3f80
    v_mov_b32 {TM[12]}, 0x3f800000
    s_mov_b64 {sT[2:4]}, 0xffff
    v_cndmask_b32 {TM[9]}, 0, {TM[9]}, {sT[2:4]}
    s_mov_b32 {sT[2]}, 0
    s_mov_b32 {sT[3]}, {lo:#x}
    v_cndmask_b32 {TM[9]}, {TM[9]}, {TM[11]}, {sT[2:4]}
    s_mov_b32 {sT[3]}, {hi:#x}
    v_cndmask_b32 {TM[9]}, {TM[9]}, {TM[12]}, {sT[2:4]}
    v_lshlrev_b32 {TM[10]}, 2, {vL}
    ds_write_b32 {TM[10]}, {TM[9]}
    L_init_done:
    """)
    c31 = TM[8]; p = TM[9]; f = TM[10]; t2 = TM[11]
    srd(A, SH, pH, N, 128); srd(A, SE, pE, E, 32); srd(A, SO, pOut, N * 134); srd(A, SX, pWs, 2 * SEC)
    srd(A, SY, pWe, 145 * 128); srd(A, SZ, pWh, 16384)
    A(f"""
    s_lshl_b32 {sT[0]}, s2, 3
    s_add_u32 {sT[0]}, {sT[0]}, {sW}
    s_mul_i32 {sT[0]}, {sT[0]}, 625
    s_add_u32 {sN0}, {sT[0]}, 127
    s_lshr_b32 {sN0}, {sN0}, 7
    s_add_u32 {sNn}, {sT[0]}, {625 + 127}
    s_lshr_b32 {sNn}, {sNn}, 7
    s_sub_u32 {sNn}, {sNn}, {sN0}
    s_mul_i32 {sStg}, {sW}, 5120
    s_add_u32 {sStg}, {sStg}, {STG}
    s_mov_b32 {sHi[0]}, 0
    s_mov_b32 {sHi[1]}, -1
    s_mov_b32 {sC}, {NLOG2E:#x}
    s_mul_i32 {sPd}, {sN0}, 6
    s_sub_u32 {sPd}, {sPd}, 6
    s_mov_b32 {sTo}, 0
    s_mov_b32 {sScan}, 0
    s_mov_b32 {sEarly}, 0
    s_mov_b64 {sOv}, 0
    v_and_b32 {c31}, 31, {vL}
    v_bfe_u32 {f}, {vL}, 1, 3
    v_xor_b32 {f}, {f}, {vHalf}
    v_lshlrev_b32 {f}, 4, {f}
    v_lshl_add_u32 {f}, {c31}, 7, {f}
    v_add_u32 {HRD[0]}, {sStg}, {f}
    v_xor_b32 {HRD[1]}, 32, {HRD[0]}
    v_xor_b32 {HRD[2]}, 64, {HRD[0]}
    v_xor_b32 {HRD[3]}, 0x60, {HRD[0]}
    v_bfe_u32 {f}, {vL}, 3, 1
    v_xor_b32 {f}, {f}, {vHalf}
    v_lshlrev_b32 {f}, 4, {f}
    v_lshl_add_u32 {f}, {c31}, 5, {f}
    v_add_u32 {ERD}, {sStg}, {f}
    v_lshlrev_b32 {LO[2]}, 3, {c31}
    v_lshrrev_b32 {f}, 4, {vL}
    v_and_b32 {t2}, 7, {vL}
    v_xor_b32 {f}, {f}, {t2}
    v_lshlrev_b32 {IX[1]}, 4, {f}
    v_xor_b32 {IX[3]}, 64, {IX[1]}
    v_mov_b32 {IX[5]}, {IX[1]}
    v_mov_b32 {IX[7]}, {IX[3]}
    v_bfe_u32 {p}, {vL}, 4, 1
    v_and_b32 {t2}, 1, {vL}
    v_xor_b32 {f}, {p}, {t2}
    v_lshlrev_b32 {IX[9]}, 4, {f}
    v_lshlrev_b32 {f}, 6, {p}
    v_lshlrev_b32 {vDs}, 4, v0
    v_xor_b32 {vDs}, {vDs}, {f}
    v_and_b32 {LO[0]}, 56, {vL}
    v_add_u32 {LO[0]}, 4, {LO[0]}
    v_lshrrev_b32 {t2}, 1, {vL}
    v_lshlrev_b32 {LO[1]}, 3, {t2}
    s_lshl_b32 {sT[0]}, {sW}, 11
    s_add_u32 {sT[0]}, {sT[0]}, {WE}
    s_sub_u32 {sT[1]}, {sT[0]}, 8
    v_lshl_add_u32 {vTrow}, {c31}, 6, {sT[1]}
    v_lshlrev_b32 {f}, 5, {p}
    v_and_b32 {t2}, 3, {vL}
    v_lshl_add_u32 {f}, {t2}, 3, {f}
    v_bfe_u32 {t2}, {vL}, 2, 2
    v_lshl_add_u32 {p}, {t2}, 6, {f}
    v_lshl_add_u32 {p}, {vHalf}, 8, {p}
    v_add_u32 {vTtr}, {sT[0]}, {p}
    v_lshl_add_u32 {f}, {t2}, 7, {f}
    v_bfe_u32 {t2}, {vL}, 3, 1
    v_lshl_add_u32 {f}, {t2}, 6, {f}
    v_lshl_add_u32 {vWb}, {vHalf}, 9, {f}
    v_add_u32 {vWb}, {WH + 8192}, {vWb}
    v_lshl_add_u32 {f}, {vHalf}, 10, {f}
    v_add_u32 {vT1}, {WE}, {f}
    v_mov_b32 {HALF[0]}, 0x3f003f00
    v_mov_b32 {HALF[1]}, 0x3f003f00
    v_mov_b32 {ZERO[0]}, 0
    v_mov_b32 {ZERO[1]}, 0
    v_mov_b32 {v4}, 4
    v_lshlrev_b32 {LE[0]}, 8, v0
    v_lshlrev_b32 {LE[4]}, 6, v0
    v_add_u32 {LE[4]}, {2048*64}, {LE[4]}
    s_movk_i32 {sT[0]}, 625
    s_movk_i32 {sT[1]}, 120
    s_mov_b32 {sT[2]}, {BCN}
    s_movk_i32 {sT[3]}, 8192
    """)
    for i in range(1, 4): A(f"v_add_u32 {LE[i]}, {64*i}, {LE[0]}")
    for i in range(3): A(f"v_mov_b32 {PS[i]}, 0"); A(f"v_mov_b32 {PD[i]}, 0")
    A("s_waitcnt lgkmcnt(0)"); A("s_barrier")
    A(f"s_and_b32 {sNon}, {sNon}, -8"); A(f"s_or_b32 {sNon}, {sNon}, 1")
    A("s_waitcnt vmcnt(2)")
    stamp(A, 1)
    WA = PK[0:4]; WB = PK[4:8]
    tab = [f"buffer_load_dwordx4 {WA}, {vDs}, {SY}, {sT[3]} offen",
           f"s_add_u32 m0, {sW10}, {WE}\ns_nop 0\nbuffer_load_dwordx4 {vDs}, {SY}, 0 offen lds",
           f"s_add_u32 m0, {sW10}, {WH}\ns_nop 0\nbuffer_load_dwordx4 {vDs}, {SZ}, 0 offen lds",
           f"s_add_u32 m0, {sW10}, {WH + 8192}\ns_nop 0\nbuffer_load_dwordx4 {vDs}, {SZ}, {sT[3]} offen lds"]
    for i in range(5):
        if i == 4: A(f"s_mov_b64 exec, {m5}")
        A(f"""
        v_mul_u32_u24 {RC[i]}, 429497, {DS[i]}
        v_lshrrev_b32 {B4[i]}, 24, {RC[i]}
        v_lshl_add_u32 {RT[i]}, {B4[i]}, 2, {sT[2]}
        ds_add_rtn_u32 {RT[i]}, {RT[i]}, {v4}
        """)
    A("s_mov_b64 exec, -1")
    A(f"s_mov_b32 {sT[2]}, {BST + 4}")
    for i in range(5):
        A(f"""
        v_lshrrev_b32 {RC[i]}, 21, {RC[i]}
        v_mad_u32_u24 {DT[0]}, {RC[i]}, {sT[0]}, -1
        v_lshl_add_u32 {RC[i]}, {RC[i]}, 3, {DS[i]}
        v_ashrrev_i32 {DT[0]}, 7, {DT[0]}
        v_sub_u32 {RC[i]}, {RC[i]}, {DT[0]}
        v_and_or_b32 {RC[i]}, {RC[i]}, 63, {LE[i]}
        v_lshl_add_u32 {B4[i]}, {B4[i]}, 7, {sT[2]}
        """)
    def tables():
        A(f"""
        s_cmp_ge_u32 {sW}, 6
        s_cbranch_scc1 L_o6
        s_cmp_eq_u32 {sW}, 5
        s_cbranch_scc1 L_o5
        v_lshrrev_b32 {TM[14]}, 3, v0
        v_add_u32 {TM[14]}, {sNb}, {TM[14]}
        v_and_b32 {TM[15]}, 7, v0
        v_lshlrev_b32 {TM[15]}, 4, {TM[15]}
        s_add_u32 m0, {sW10}, {HO}
        s_nop 0
        buffer_load_dwordx4 {TM[14:16]}, {SH}, 0 idxen offen lds
        s_branch L_odone
        L_o5:
        v_lshlrev_b32 {TM[13]}, 1, {vL}
        global_load_ushort {WB[0]}, {TM[13]}, {pWx}
        v_lshlrev_b32 {TM[13]}, 2, {vL}
        s_mov_b32 m0, {WE + 18432}
        s_mov_b32 {sT[2]}, 16384
        s_mov_b32 exec_hi, 0
        buffer_load_dword {TM[13]}, {SY}, {sT[2]} offen lds
        s_mov_b64 exec, -1
        s_branch L_odone
        L_o6:
        s_mov_b32 {sT[2]}, {129*128 - 6144}
        buffer_load_dwordx4 {WB}, {vDs}, {SY}, {sT[2]} offen
        L_odone:
        """)
        for t in tab: A(t)
    if "tab0" in OPT: tables()
    A("s_waitcnt lgkmcnt(0)")
    for i in range(5):
        A(f"v_cmp_gt_u32 {sM[2*i:2*i+2]}, {sT[1]}, {RT[i]}")
        A(f"v_add_u32 {RT[i]}, {RT[i]}, {B4[i]}")
    A(f"s_and_b64 {sM[8:10]}, {sM[8:10]}, {m5}")
    A(f"s_waitcnt vmcnt({5 if 'tab0' in OPT else 0})")
    for i in range(5):
        A(f"s_mov_b64 exec, {sM[2*i:2*i+2]}"); A(f"v_lshl_or_b32 {RC[i]}, {SR[i]}, 18, {RC[i]}"); A(f"ds_write_b32 {RT[i]}, {RC[i]}")
    A("s_mov_b64 exec, -1")
    if "tab0" not in OPT: tables()
    aL = TM[0]; aC = TM[1]; aG = TM[2]; PR = [Y[0:4], Y[4:8]]; SC = [Y[8:12], Y[12:16]]; CN = Y[16:18]; XR = Y[20:24]; ST = Y[24:26]
    A(f"""
    v_lshrrev_b32 {aC}, 2, v0
    v_and_b32 {TM[3]}, 3, v0
    v_lshlrev_b32 {TM[3]}, 4, {TM[3]}
    v_lshl_add_u32 {aL}, {aC}, 7, {TM[3]}
    v_add_u32 {aL}, {BST}, {aL}
    v_lshl_add_u32 {aG}, {aC}, 14, {TM[3]}
    s_lshl_b32 {sT[2]}, s2, 6
    v_add_u32 {aG}, {sT[2]}, {aG}
    v_lshlrev_b32 {aC}, 2, {aC}
    v_add_u32 {aC}, {BCN}, {aC}
    v_add_u32 {TM[4]}, {128*16384}, {aG}
    s_mov_b32 {sM[0]}, 0x11111111
    s_mov_b32 {sM[1]}, 0x11111111
    s_mov_b32 {sM[2]}, 0x88888888
    s_mov_b32 {sM[3]}, 0x88888888
    s_mov_b32 {sT[2]}, {SEC}
    s_waitcnt lgkmcnt(0)
    s_barrier
    """)
    stamp(A, 2)
    for i in range(2): A(f"ds_read_b128 {PR[i]}, {aL} offset:{16384*i}"); A(f"ds_read_b32 {CN[i]}, {aC} offset:{512*i}")
    for i in range(2): A(f"ds_read_b128 {SC[i]}, {aL} offset:{16384*i + 64}")
    def xor4(x, r):
        A(f"v_bitop3_b32 {x}, {r[0]}, {r[1]}, {r[2]} bitop3:0x96"); A(f"v_xor_b32 {x}, {x}, {r[3]}")
    A("s_waitcnt lgkmcnt(2)")
    for i in range(2): xor4(XR[i], PR[i])
    for i in range(2):
        A(f"v_cmp_lt_u32 {sM[4+2*i:6+2*i]}, 60, {CN[i]}"); A(f"v_cmp_lt_u32 {sM[8+2*i:10+2*i]}, {sT[1]}, {CN[i]}")
    for i in range(2): A(f"v_xor_b32_dpp {XR[i]}, {XR[i]}, {XR[i]} quad_perm:[1,0,3,2] {dpp}")
    for i in range(2): A(f"v_cndmask_b32 {ST[i]}, 0, 2, {sM[4+2*i:6+2*i]}")
    for i in range(2): A(f"v_xor_b32_dpp {XR[i]}, {XR[i]}, {XR[i]} quad_perm:[2,3,0,1] {dpp}")
    for i in range(2): A(f"v_cndmask_b32 {ST[i]}, {ST[i]}, 4, {sM[8+2*i:10+2*i]}")
    for i in range(2):
        A(f"v_bitop3_b32 {XR[i]}, {XR[i]}, {ST[i]}, {sNon} bitop3:0x96")
        A(f"v_cndmask_b32 {PR[i][0]}, {PR[i][0]}, {XR[i]}, {sM[0:2]}")
        A(f"buffer_store_dwordx4 {PR[i]}, {aG if i == 0 else TM[4]}, {SX}, 0 offen sc1")
    A("s_waitcnt lgkmcnt(0)")
    for i in range(2): xor4(XR[2+i], SC[i])
    A("s_nop 0")
    for i in range(2): A(f"v_xor_b32_dpp {XR[2+i]}, {XR[2+i]}, {XR[2+i]} quad_perm:[1,0,3,2] {dpp}")
    A("s_nop 0")
    for i in range(2): A(f"v_xor_b32_dpp {XR[2+i]}, {XR[2+i]}, {XR[2+i]} quad_perm:[2,3,0,1] {dpp}")
    for i in range(2):
        A(f"v_xor_b32 {XR[2+i]}, {sNon}, {XR[2+i]}")
        A(f"v_cndmask_b32 {SC[i][3]}, {SC[i][3]}, {XR[2+i]}, {sM[2:4]}")
    for i in range(2):
        A(f"v_cndmask_b32 {TM[5+i]}, -2.0, {aG if i == 0 else TM[4]}, {sM[4+2*i:6+2*i]}")
        A(f"buffer_store_dwordx4 {SC[i]}, {TM[5+i]}, {SX}, {sT[2]} offen sc1")
    stamp(A, 3)
    vD = vAl
    A(f"v_lshlrev_b32 {vD}, 4, v0")
    srd(A, SZ, pPos, N * 6)
    RP = A2; RS = [EA[0:2], EA[2:4], X[0:2], X[2:4]]; vRo = vAt
    A(f"s_lshl_b32 {sT[0]}, s2, 14"); A(f"v_lshl_add_u32 {vRo}, v0, 3, {sT[0]}")
    A(f"s_movk_i32 {sS2[0]}, 4096"); A(f"s_movk_i32 {sS2[1]}, 8192"); A(f"s_movk_i32 {sS2[2]}, 12288")
    def poll():
        for q in range(4): A(f"buffer_load_dwordx2 {RP[2*q:2*q+2]}, {vRo}, {SX}, {sS2[q-1] if q else 0} offen sc1")
    def posdma(k):
        if k < 7:
            A(f"s_add_u32 m0, {sW10}, {POS + 8192*k}"); A(f"s_mov_b32 {sT[1]}, {8192*k}"); A(f"buffer_load_dwordx4 {vD}, {SZ}, {sT[1]} offen lds")
        else:
            A(f"""
            v_add_u32 {vSl}, {8192*7}, {vD}
            s_add_u32 m0, {sW10}, {POS + 8192*7}
            v_cmp_gt_u32 vcc, 60032, {vSl}
            s_and_saveexec_b64 {sT[2:4]}, vcc
            s_cbranch_execz L_ptail
            buffer_load_dwordx4 {vSl}, {SZ}, 0 offen lds
            L_ptail:
            s_mov_b64 exec, -1
            """)
    hp = 0
    A(f"""
    s_sub_u32 {sT[0]}, {sN0}, {sNb}
    s_lshl_b32 {sT[0]}, {sT[0]}, 7
    s_add_u32 {sT[0]}, {sT[0]}, {HO}
    v_and_b32 {DT[0]}, 3, {vL}
    v_bfe_u32 {DT[1]}, {vL}, 3, 1
    v_lshl_add_u32 {DT[0]}, {DT[1]}, 2, {DT[0]}
    v_lshlrev_b32 {DT[0]}, 7, {DT[0]}
    v_lshl_add_u32 {DT[0]}, {vHalf}, 4, {DT[0]}
    v_add_u32 {DT[0]}, {sT[0]}, {DT[0]}
    v_lshlrev_b32 {DT[2]}, 1, {c31}
    v_lshl_add_u32 {DT[1]}, {vHalf}, 7, {DT[2]}
    v_add_u32 {DT[1]}, {sT[0]}, {DT[1]}
    v_add_u32 {DT[2]}, {WE + 18432}, {DT[2]}
    v_xor_b32 {DT[3]}, 64, {vT1}
    v_add_u32 {TM[12]}, {WE + 8192}, {vD}
    s_waitcnt vmcnt(4)
    """)
    stamp(A, 4)
    def scale(r, t):
        A(f"v_lshlrev_b32 {t[0]}, 16, {r}"); A(f"v_and_b32 {t[1]}, 0xffff0000, {r}")
        A(f"v_mul_f32 {t[0]}, {NLOG2E:#x}, {t[0]}"); A(f"v_mul_f32 {t[1]}, {NLOG2E:#x}, {t[1]}"); A(f"v_cvt_pk_bf16_f32 {r}, {t[0]}, {t[1]}")
    for i in range(4): scale(WA[i], TM[10:12])
    A(f"ds_write_b128 {TM[12]}, {WA}")
    A(f"s_cmp_lt_u32 {sW}, 6"); A("s_cbranch_scc1 L_now4")
    for i in range(4): scale(WB[i], TM[10:12])
    A(f"ds_write_b128 {TM[12]}, {WB} offset:{8192 - 6144}")
    A(f"""
    L_now4:
    s_cmp_lg_u32 {sW}, 5
    s_cbranch_scc1 L_nowx
    v_lshlrev_b32 {WB[0]}, 16, {WB[0]}
    v_lshlrev_b32 {TM[10]}, 2, {vL}
    ds_write_b32 {TM[10]}, {WB[0]} offset:{WX}
    L_nowx:
    s_setprio 0
    s_waitcnt lgkmcnt(0)
    s_barrier
    """)
    stamp(A, 5)
    WD = D
    def frag(dst, base, s, n):
        for half in range(2): A(f"ds_read_b64_tr_b16 {dst[2*half:2*half+2]}, {DT[3] if n else vT1} offset:{base + (16*s + 4*half)*128}")
    def frags(dst, base, n):
        for s in range(4): frag(dst[16*n+4*s:16*n+4*s+4], base, s, n)
    def mm(dst, B, n):
        return [f"{mf} {dst}, {H[4*s:4*s+4]}, {B[16*n+4*s:16*n+4*s+4]}, {dst if s else 0}" for s in range(4)]
    def bxcode(n):
        o = []; a = Y[16*n:16*n+16]; B = BX[4*n:4*n+4]
        o.append(f"v_lshlrev_b32 {a[5]}, 16, {WD[n]}")
        for i in range(6): o.append(f"v_mul_f32 {a[i]}, {NLOG2E:#x}, {a[i]}")
        o += [f"v_cvt_pk_bf16_f32 {B[0]}, {a[0]}, {a[1]}", f"v_cvt_pk_bf16_f32 {B[1]}, {a[2]}, {a[3]}", f"v_cvt_pk_bf16_f32 {B[2]}, {a[4]}, 0", f"v_cvt_pk_bf16_f32 {B[3]}, 0, {a[5]}"]
        for i, (r, hi_) in enumerate(((0, 0), (0, 1), (1, 0), (1, 1), (2, 0), (3, 1))):
            o.append(f"v_and_b32 {a[8+i]}, 0xffff0000, {B[r]}" if hi_ else f"v_lshlrev_b32 {a[8+i]}, 16, {B[r]}")
            o.append(f"v_sub_f32 {a[i]}, {a[i]}, {a[8+i]}")
        o += [f"v_cvt_pk_bf16_f32 {a[8]}, {a[0]}, {a[1]}", f"v_cvt_pk_bf16_f32 {a[9]}, {a[2]}, {a[3]}", f"v_cvt_pk_bf16_f32 {a[10]}, {a[4]}, 0", f"v_cvt_pk_bf16_f32 {a[11]}, 0, {a[5]}"]
        for i in range(4): o.append(f"v_cndmask_b32 {B[i]}, {B[i]}, {a[8+i]}, {sHi}")
        return o
    pollat = int([o for o in OPT if o.startswith("poll")][0][4:]) if any(o.startswith("poll") for o in OPT) else 8
    state = {"k": 0}
    def vm():
        k = state["k"]; state["k"] += 1
        if k == pollat: poll()
        if k < 8: posdma(7 - k)
    for s in range(4): A(f"ds_read_b128 {H[4*s:4*s+4]}, {DT[0]} offset:{32*s}")
    frags(ACC, 0, 0); vm()
    A("s_waitcnt lgkmcnt(5)"); frags(ACC, 0, 1)
    for n in range(2): A(f"ds_read_u16 {WD[n]}, {DT[2]} offset:{64*n}")
    vm()
    A("s_waitcnt lgkmcnt(7)"); frags(W2, WH - WE, 0)
    A("\n".join(mm(Y[0:16], ACC, 0))); vm()
    A("s_waitcnt lgkmcnt(7)"); frags(W2, WH - WE, 1)
    A("\n".join(mm(Y[16:32], ACC, 1))); vm()
    A("s_waitcnt lgkmcnt(8)")
    for j in range(3):
        for n in range(2): A(f"ds_read_u16 {HR[2*j+n]}, {DT[1]} offset:{256*j + 64*n}")
    for n in range(2):
        m = mm(TM[16*n:16*n+16], W2, n); b = bxcode(n)
        if n: A("s_waitcnt lgkmcnt(0)"); frags(W2, 8192, 0); frag(W4[0:4], 16384, 0, 0)
        for i in range(4):
            A(m[i]); A("\n".join(b[8*i:8*i+8]))
            if i % 2: vm()
    A("s_waitcnt lgkmcnt(4)"); frags(W2, 8192, 1); frag(W4[4:8], 16384, 0, 1)
    vm()
    for i in range(32): A(f"v_mov_b32 {ACC[i]}, 0")
    for n in range(2):
        for j in range(3):
            A(f"v_cndmask_b32 {ZH[2*j+n]}, {TM[16*n+2*j]}, {TM[16*n+2*j+1]}, {sHi}")
            A(f"v_lshlrev_b32 {HR[2*j+n]}, 16, {HR[2*j+n]}")
    vm()
    stamp(A, 6)
    XQ = Y[0:4]; vCB = Y[4]; v8 = Y[5]
    A(f"""
    v_lshrrev_b32 {vCB}, 3, v0
    v_mul_u32_u24 {vCB}, {CH*64}, {vCB}
    v_mov_b32 {v8}, 8
    s_waitcnt vmcnt({hp})
    L_poll:
    """)
    def xor8(regs):
        n = len(regs)
        for q in range(n): A(f"v_xor_b32 {XQ[q]}, {regs[q][0]}, {regs[q][1]}")
        for c in ("quad_perm:[1,0,3,2]", "quad_perm:[2,3,0,1]", "row_half_mirror"):
            for q in range(n): A(f"v_xor_b32_dpp {XQ[q]}, {XQ[q]}, {XQ[q]} {c} {dpp}")
        for q in range(n): A(f"v_xor_b32 {XQ[q]}, {sNon}, {XQ[q]}")
    xor8([RP[2*q:2*q+2] for q in range(4)])
    A(f"""
    v_or3_b32 {Y[6]}, {XQ[0]}, {XQ[1]}, {XQ[2]}
    v_or_b32 {Y[6]}, {Y[6]}, {XQ[3]}
    v_and_b32 {Y[7]}, -7, {Y[6]}
    v_cmp_ne_u32 vcc, 0, {Y[7]}
    s_add_u32 {sTo}, {sTo}, 1
    s_cbranch_vccz L_got
    s_cmp_gt_u32 {sTo}, {TIMEOUT}
    s_cbranch_scc1 L_timeout
    """)
    poll()
    A(f"""
    s_waitcnt vmcnt(0)
    s_branch L_poll
    L_timeout:
    s_mov_b64 {sOv}, -1
    L_got:
    s_mov_b32 {sT[2]}, 0x01010101
    s_mov_b32 {sT[3]}, 0x01010101
    """)
    stamp(A, 7)
    PW = Y[8:20]; PA = Y[20:26]
    def sp_atomics(items):
        for i, (r, cb) in enumerate(items):
            A(f"v_cmp_ne_u32 {sM[2*i:2*i+2]}, 0, {r}")
            A(f"v_and_b32 {PA[i]}, 0x38, {r}")
        for i in range(len(items)):
            A(f"s_mov_b64 exec, {sM[2*i:2*i+2]}"); A(f"ds_add_rtn_u32 {PA[i]}, {PA[i]}, {v8}")
        A("s_mov_b64 exec, -1")
    def sp_words(items, W):
        for i, (r, cb) in enumerate(items):
            if cb and (i == 0 or items[i-1][1] != cb): A(f"v_add_u32 {Y[7]}, {cb}, {vCB}")
            A(f"v_and_b32 {W[2*i]}, 0x3ffff, {r}"); A(f"v_lshrrev_b32 {W[2*i+1]}, 18, {r}"); A(f"v_add_u32 {W[2*i]}, {W[2*i]}, {Y[7] if cb else vCB}")
    def sp_writes(items):
        n = len(items)
        for i in range(n):
            A(f"s_waitcnt lgkmcnt({n-1})")
            A(f"s_mov_b64 exec, {sM[2*i:2*i+2]}"); A(f"ds_write_b64 {PA[i]}, {PW[2*i:2*i+2]}")
        A("s_mov_b64 exec, -1")
    def secloads(tag):
        for q in range(4):
            A(f"""
            s_mov_b64 exec, {sS2[2*q:2*q+2]}
            s_cbranch_execz L_{tag}{q}
            s_movk_i32 {sT[0]}, {4096*q}
            buffer_load_dwordx2 {RS[q]}, {vRo}, {SX}, {sT[0]} offen sc1
            L_{tag}{q}:
            """)
        A("s_mov_b64 exec, -1")
    def read_idx():
        for i in range(4): A(f"ds_read_b32 {IX[2*i]}, {vAh} offset:{64*i}")
        A(f"ds_read_b32 {IX[8]}, {vAe}")
    adv_idx = [f"v_add_u32 {vAh}, 256, {vAh}", f"v_add_u32 {vAe}, 256, {vAe}"]
    shift_e = f"v_lshrrev_b32 {IX[8]}, 6, {IX[8]}"
    def issue_dma(e=True, h=True):
        if e: A(f"s_add_u32 m0, {sStg}, 4096"); A("s_nop 0"); A(f"buffer_load_dwordx4 {IX[8:10]}, {SE}, 0 idxen offen lds")
        for i in range(4 if h else 0):
            A(f"s_add_u32 m0, {sStg}, {1024*i}"); A("s_nop 0"); A(f"buffer_load_dwordx4 {IX[2*i:2*i+2]}, {SH}, 0 idxen offen lds")
    it0 = [(RP[0], 0), (RP[1], 0)]
    A(f"v_cndmask_b32 {RP[0]}, {RP[0]}, 0, {sT[2:4]}")
    sp_atomics(it0); sp_words(it0, PW)
    A(f"""
    v_and_b32 {Y[7]}, 4, {Y[6]}
    v_cmp_ne_u32 vcc, 0, {Y[7]}
    v_add_u32 {vRo}, {SEC}, {vRo}
    v_add_u32 {vAh}, {sLb}, {LO[0]}
    v_add_u32 {vAe}, {sLb}, {LO[1]}
    s_or_b64 {sOv}, {sOv}, vcc
    """)
    for q in range(4):
        A(f"v_cmp_eq_u32 {sS2[2*q:2*q+2]}, 2, {XQ[q]}")
        if q: A(f"v_cndmask_b32 {RP[2*q]}, {RP[2*q]}, 0, {sT[2:4]}")
    sp_writes(it0)
    secloads("sl")
    A("s_waitcnt lgkmcnt(0)"); A("s_barrier")
    read_idx()
    it1 = [(RP[2*q+i], 64*q*CH*64) for q in range(1, 4) for i in range(2)]
    sp_atomics(it1)
    A(f"""
    s_waitcnt lgkmcnt(6)
    v_max3_u32 {Y[6]}, {IX[0]}, {IX[2]}, {IX[4]}
    {shift_e}
    v_max_u32 {Y[6]}, {Y[6]}, {IX[6]}
    v_cmp_le_u32 vcc, {E}, {IX[8]}
    s_mov_b64 {sT[2:4]}, vcc
    v_cmp_le_u32 vcc, {N}, {Y[6]}
    s_or_b64 vcc, vcc, {sT[2:4]}
    s_cbranch_vccnz L_noearly
    """)
    issue_dma(h=False)
    A(f"s_mov_b32 {sEarly}, 1")
    A("L_noearly:")
    stamp(A, 8)
    sp_words(it1, PW); sp_writes(it1)
    def early_h(tag):
        A(f"s_cmp_eq_u32 {sEarly}, 0"); A(f"s_cbranch_scc1 L_{tag}"); issue_dma(e=False); A(f"L_{tag}:")
    hlate = "hlate" in OPT
    if not hlate: early_h("eh")
    A(f"s_lshl_b32 {sT[0]}, {sW}, 11"); A(f"s_add_u32 {sT[0]}, {sT[0]}, {WE}"); A(f"v_lshl_add_u32 {DT[0]}, {vL}, 3, {sT[0]}")
    for i in range(4): A(f"ds_write_b64 {DT[0]}, {ZERO} offset:{512*i}")
    A(f"""
    s_or_b64 {sT[2:4]}, {sS2[0:2]}, {sS2[2:4]}
    s_or_b64 {sT[2:4]}, {sT[2:4]}, {sS2[4:6]}
    s_or_b64 {sT[2:4]}, {sT[2:4]}, {sS2[6:8]}
    s_cbranch_scc0 L_secdone
    s_cmp_eq_u32 {sEarly}, 0
    s_cbranch_scc1 L_w0
    s_waitcnt vmcnt({1 if hlate else 5})
    s_branch L_w1
    L_w0:
    s_waitcnt vmcnt(0)
    L_w1:
    """)
    xor8(RS)
    for q in range(4): A(f"v_cndmask_b32 {XQ[q]}, 0, {XQ[q]}, {sS2[2*q:2*q+2]}")
    A(f"""
    v_or3_b32 {Y[6]}, {XQ[0]}, {XQ[1]}, {XQ[2]}
    v_or_b32 {Y[6]}, {Y[6]}, {XQ[3]}
    v_cmp_ne_u32 vcc, 0, {Y[6]}
    s_add_u32 {sTo}, {sTo}, 1
    s_cbranch_vccz L_sgot
    s_cmp_gt_u32 {sTo}, {TIMEOUT}
    s_cbranch_scc1 L_stimeout
    """)
    secloads("rl")
    A(f"""
    s_branch L_w0
    L_stimeout:
    s_mov_b64 {sOv}, -1
    L_sgot:
    s_mov_b32 {sM[0]}, 0x80808080
    s_mov_b32 {sM[1]}, 0x80808080
    """)
    SW = TM[0:16]; SA = TM[16:24]
    for q in range(4):
        A(f"s_andn2_b64 {sT[2:4]}, {sS2[2*q:2*q+2]}, {sM[0:2]}"); A(f"s_cbranch_scc0 L_sa{q}")
        A(f"v_cndmask_b32 {RS[q][0]}, 0, {RS[q][0]}, {sS2[2*q:2*q+2]}")
        A(f"v_cndmask_b32 {RS[q][1]}, 0, {RS[q][1]}, {sT[2:4]}")
        for i in range(2):
            A(f"v_and_b32 {SA[2*q+i]}, 0x38, {RS[q][i]}"); A(f"v_cmpx_ne_u32 vcc, 0, {RS[q][i]}")
            A(f"ds_add_rtn_u32 {SA[2*q+i]}, {SA[2*q+i]}, {v8}"); A("s_mov_b64 exec, -1")
        sp_words([(RS[q][i], 64*q*CH*64) for i in range(2)], SW[4*q:4*q+4])
        A(f"L_sa{q}:")
    A("s_waitcnt lgkmcnt(0)")
    for q in range(4):
        A(f"s_cmp_eq_u64 {sS2[2*q:2*q+2]}, 0"); A(f"s_cbranch_scc1 L_sb{q}")
        for i in range(2):
            A(f"v_cmpx_ne_u32 vcc, 0, {RS[q][i]}"); A(f"ds_write_b64 {SA[2*q+i]}, {SW[4*q+2*i:4*q+2*i+2]}"); A("s_mov_b64 exec, -1")
        A(f"L_sb{q}:")
    TW = TM[24:32]
    A(f"""
    L_secdone:
    s_cmp_eq_u64 {sOv}, 0
    s_cbranch_scc1 L_noflag
    v_mov_b32 {TW[0]}, {FLAG}
    ds_write_b32 {TW[0]}, {v8}
    L_noflag:
    v_and_b32 {TW[0]}, 15, {vL}
    v_lshlrev_b32 {TW[1]}, 3, {TW[0]}
    v_mul_u32_u24 {TW[3]}, {CAP*8}, {TW[0]}
    v_add_u32 {TW[3]}, {LIST + CAP*8}, {TW[3]}
    s_mov_b64 {sT[2:4]}, 0xff
    v_cndmask_b32 {TW[3]}, 0, {TW[3]}, {sT[2:4]}
    s_waitcnt lgkmcnt(0)
    s_barrier
    ds_read_b32 {TW[2]}, {TW[1]}
    """)
    if hlate: early_h("eh")
    A(f"""
    s_waitcnt lgkmcnt(0)
    v_cmp_gt_u32 vcc, {TW[2]}, {TW[3]}
    v_readlane_b32 {sCnt}, {TW[2]}, {sW}
    s_and_b32 {sSlow}, vcc_lo, 0x1ff
    s_sub_u32 {sCnt}, {sCnt}, {sLb}
    s_lshr_b32 {sCnt}, {sCnt}, 3
    s_cmp_eq_u32 {sSlow}, 0
    s_cselect_b32 {sCnt}, {sCnt}, 0
    s_cselect_b32 {sEarly}, {sEarly}, 0
    s_cselect_b32 {sT[0]}, s2, 0
    s_or_b32 {sT[0]}, {sT[0]}, {sW}
    s_cbranch_scc1 L_round
    v_mov_b32 {TW[0]}, {EPO}
    s_mov_b64 exec, 1
    global_atomic_add {TW[0]}, {v8}, {pWs}
    s_mov_b64 exec, -1
    """)
    mk_at = f"v_lshl_add_u32 {vAt}, {vSl}, 3, {vTrow}"
    derive_a = lines(f"""
        v_mul_u32_u24 {DT[0]}, 6, {EN[1]}
        v_and_b32 {vSl}, 7, {EN[0]}
        v_mad_u32_u24 {DT[1]}, {vSl}, 6, {sPd}
        v_lshlrev_b32 {vAl}, 4, {vSl}
        """)
    def pos_reads():
        for i in range(3): A(f"ds_read_u16_d16_hi {PS[i]}, {DT[0]} offset:{POS+2*i}")
        for i in range(3): A(f"ds_read_u16_d16_hi {PD[i]}, {DT[1]} offset:{POS+2*i}")
    lut_read = f"ds_read_b96 {X[0:3]}, {vAl} offset:{LUT}"
    derive_b = lines(f"""
        v_sub_f32 {DT[0]}, {PD[0]}, {PS[0]}
        v_sub_f32 {DT[1]}, {PD[1]}, {PS[1]}
        v_sub_f32 {DT[2]}, {PD[2]}, {PS[2]}
        v_cvt_pk_bf16_f32 {D[0]}, {DT[0]}, {DT[1]}
        v_cvt_pk_bf16_f32 {D[1]}, {DT[2]}, 1.0
        v_lshlrev_b32 {DT[0]}, 16, {D[0]}
        v_and_b32 {DT[1]}, 0xffff0000, {D[0]}
        v_lshlrev_b32 {DT[2]}, 16, {D[1]}
        v_mul_f32 {DT[0]}, {DT[0]}, {DT[0]}
        v_fmac_f32 {DT[0]}, {DT[1]}, {DT[1]}
        v_fmac_f32 {DT[0]}, {DT[2]}, {DT[2]}
        v_cvt_pk_bf16_f32 {X[3]}, 0, {DT[0]}
        """)
    read_entry = f"ds_read_b64 {EN}, {vAn}"; adv_n = f"v_add_u32 {vAn}, 256, {vAn}"
    def read_he():
        for s in range(4): A(f"ds_read_b128 {H[4*s:4*s+4]}, {HRD[s]}")
        A(f"ds_read_b128 {EA}, {ERD} offset:4096")
    def m1(n):
        y = Y[16*n:16*n+16]
        ops = [(X, BX[4*n:4*n+4]), (EA, W4[4*n:4*n+4])] + [(H[4*s:4*s+4], W2[16*n+4*s:16*n+4*s+4]) for s in range(4)]
        return [f"{mf} {y}, {a}, {b}, {y if i else 0}" for i, (a, b) in enumerate(ops)]
    A("L_round:")
    stamp(A, 9)
    A(f"""
    s_add_u32 {sNt}, {sCnt}, 31
    s_lshr_b32 {sNt}, {sNt}, 5
    s_cbranch_scc0 L_round_end
    s_lshl_b32 {sT[0]}, {sNt}, 5
    s_sub_u32 {sT[0]}, {sT[0]}, {sCnt}
    s_lshl_b32 {sT[1]}, {sCnt}, 3
    s_add_u32 {sT[1]}, {sT[1]}, {sLb}
    v_lshl_add_u32 {DT[0]}, {vL}, 3, {sT[1]}
    v_mov_b32 {EN[0]}, {INV0:#x}
    v_mov_b32 {EN[1]}, {N}
    s_bfm_b64 exec, {sT[0]}, 0
    ds_write_b64 {DT[0]}, {EN}
    s_mov_b64 exec, -1
    v_add_u32 {vAn}, {sLb}, {LO[2]}
    v_add_u32 {vAh}, {sLb}, {LO[0]}
    v_add_u32 {vAe}, {sLb}, {LO[1]}
    {read_entry}
    {adv_n}
    s_cmp_lg_u32 {sEarly}, 0
    s_cbranch_scc1 L_have0
    """)
    read_idx(); A("s_waitcnt lgkmcnt(0)"); A(shift_e); issue_dma()
    A("L_have0:")
    A("\n".join(adv_idx)); read_idx(); A("\n".join(adv_idx))
    A(f"s_mov_b32 {sTi}, 2"); A(f"s_mov_b32 {sEarly}, 0")
    A("s_waitcnt lgkmcnt(5)")
    A("\n".join(derive_a)); pos_reads(); A(lut_read); A(read_entry); A(adv_n); A(mk_at)
    for i in range(8): A(f"v_mov_b32 {A2[i]}, 0"); A(f"v_mov_b32 {Y[24+i]}, 0")
    for i in range(16): A(f"v_mov_b32 {TM[16+i]}, 0")
    A("s_waitcnt lgkmcnt(0)")
    A("\n".join(derive_b)); A(f"ds_write_b64 {vAt}, {D}")
    A("\n".join(derive_a)); pos_reads(); A(shift_e)
    stamp(A, 10)
    A("s_waitcnt vmcnt(0)")
    read_he()
    A(f"s_cmp_lt_u32 {sNt}, 2"); A("s_waitcnt lgkmcnt(0)")
    A("\n".join(m1(0)[:2]))
    A("s_cbranch_scc1 L_nd1")
    issue_dma()
    A("L_nd1:")
    read_idx(); A("\n".join(m1(0)[2:])); A("s_waitcnt lgkmcnt(0)"); A("s_nop 1")
    def acc(reg):
        if "loop" in OPT:
            A("s_memtime s[100:101]"); A("s_waitcnt lgkmcnt(0)"); A(f"s_sub_u32 s99, s100, s98"); A("s_mov_b32 s98, s100"); A(f"s_add_u32 {reg}, {reg}, s99")
    if "loop" in OPT:
        for r in (16, 17, 18, 19, 22): A(f"s_mov_b32 s{r}, 0")
        A("s_memtime s[98:99]"); A("s_waitcnt lgkmcnt(0)")
    one = lambda r: f"v_mfma_f32_16x16x4_4b_bf16 {r}, {HALF}, {HALF}, {r}"
    def finish(o, part):
        t = TM[16*o:16*o+16]; y = Y[16*o:16*o+16]
        if part == "mul0": return [f"v_mul_f32 {t[i]}, {y[i]}, {t[i]}" for i in range(8)]
        if part == "mul1": return [f"v_mul_f32 {t[i]}, {y[i]}, {t[i]}" for i in range(8, 16)]
        if part == "cvt": return [f"v_cvt_pk_bf16_f32 {PK[i]}, {t[2*i]}, {t[2*i+1]}" for i in range(8)]
        if part == "m2": return [f"{mf} {ACC[16*o:16*o+16]}, {PK[4*u:4*u+4]}, {A2[4*u:4*u+4]}, {ACC[16*o:16*o+16]}" for u in range(2)]
    def phase(n, f1, f2):
        o = 1 - n; t = TM[16*n:16*n+16]; y = Y[16*n:16*n+16]
        prio(0)
        A("\n".join(finish(o, "mul1")))
        prio(1)
        a = m1(o)
        for i in range(16):
            if i % 3 == 0: A(a[i // 3])
            A(f"v_exp_f32 {t[i]}, {y[i]}")
        A("\n".join(f1)); A(one(t)); A("\n".join(finish(o, "cvt")))
        m2 = finish(o, "m2")
        A(m2[0]); A("\n".join(f2))
        for i in range(16):
            if i == 2: A(m2[1])
            A(f"v_rcp_f32 {t[i]}, {t[i]}")
        A("\n".join(finish(n, "mul0")))
        prio(2)
    A(".p2align 6")
    A("L_tile:")
    phase(0, derive_b[:9], derive_b[9:] + [shift_e])
    acc("s16")
    for i in range(4): A(f"ds_read_b64_tr_b16 {A2[2*i:2*i+2]}, {vTtr} offset:{512*i}")
    A(f"ds_write_b64 {vAt}, {ZERO}"); A(read_entry); A(lut_read)
    A("s_waitcnt vmcnt(0)")
    acc("s17")
    read_he()
    A(f"s_cmp_ge_u32 {sTi}, {sNt}")
    A("s_waitcnt lgkmcnt(0)")
    A("s_cbranch_scc1 L_skipdma")
    issue_dma()
    A("L_skipdma:")
    acc("s18")
    phase(1, [mk_at] + derive_a, adv_idx + [adv_n])
    acc("s19")
    A(f"s_cmp_gt_u32 {sTi}, {sNt}")
    A("s_cbranch_scc1 L_drain")
    A(f"ds_write_b64 {vAt}, {D}")
    pos_reads(); read_idx()
    A(f"s_add_u32 {sTi}, {sTi}, 1")
    A("s_waitcnt lgkmcnt(0)")
    acc("s22")
    A("s_branch L_tile")
    A("L_drain:")
    A("\n".join(finish(1, "mul1") + finish(1, "cvt") + ["s_nop 1"] + finish(1, "m2")))
    A("L_round_end:")
    A(f"s_cmp_eq_u32 {sSlow}, 0"); A("s_cbranch_scc1 L_epi")
    A(f"s_cmp_ge_u32 {sScan}, {E}"); A("s_cbranch_scc1 L_epi")
    A(f"s_mov_b32 {sCnt}, 0")
    A("L_scan:")
    Dd = H[0:4]; Ss = H[4:8]
    A(f"""
    s_lshl_b32 {sT[0]}, {sScan}, 2
    v_lshl_add_u32 {DT[0]}, {vL}, 4, {sT[0]}
    global_load_dwordx4 {Dd}, {DT[0]}, {pDst}
    global_load_dwordx4 {Ss}, {DT[0]}, {pSrc}
    v_lshlrev_b32 {DT[0]}, 4, {DT[0]}
    s_waitcnt vmcnt(0)
    """)
    for i in range(4):
        A(f"""
        v_subrev_u32 {DT[1]}, {sN0}, {Dd[i]}
        v_cmp_gt_u32 vcc, {sNn}, {DT[1]}
        v_add3_u32 {EN[0]}, {DT[0]}, {DT[1]}, 1
        v_mov_b32 {EN[1]}, {Ss[i]}
        v_mbcnt_lo_u32_b32 {DT[2]}, vcc_lo, 0
        v_mbcnt_hi_u32_b32 {DT[2]}, vcc_hi, {DT[2]}
        v_add_u32 {DT[2]}, {sCnt}, {DT[2]}
        v_lshl_add_u32 {DT[2]}, {DT[2]}, 3, {sLb}
        s_bcnt1_i32_b64 {sT[0]}, vcc
        s_add_u32 {sCnt}, {sCnt}, {sT[0]}
        s_mov_b64 exec, vcc
        ds_write_b64 {DT[2]}, {EN}
        s_mov_b64 exec, -1
        v_add_u32 {DT[0]}, 64, {DT[0]}
        """)
    A(f"""
    s_add_u32 {sScan}, {sScan}, 256
    s_cmp_ge_u32 {sScan}, {E}
    s_cbranch_scc1 L_round
    s_cmp_le_u32 {sCnt}, {CAP - 256}
    s_cbranch_scc1 L_scan
    s_branch L_round
    """)
    A("L_epi:")
    stamp(A, 11)
    A(f"s_mov_b32 {sT[0]}, {NLN2:#x}"); A(f"s_mov_b32 {sT[1]}, {NLN2:#x}")
    A(f"v_xor_b32 {DT[3]}, 64, {vWb}")
    for n2 in range(2):
        for st in range(4):
            for hf in range(2):
                A(f"ds_read_b64_tr_b16 {W2[16*n2+4*st+2*hf:16*n2+4*st+2*hf+2]}, {DT[3] if n2 else vWb} offset:{(16*st + 8*hf)*128}")
        if n2 == 0: A(f"v_lshlrev_b32 {DT[0]}, 4, {vHalf}"); A("s_waitcnt lgkmcnt(6)")
    for i in range(16):
        A(f"v_pk_mul_f32 {ACC[2*i:2*i+2]}, {ACC[2*i:2*i+2]}, {sT[0:2]}")
        A(f"v_cvt_pk_bf16_f32 {Y[i]}, {ACC[2*i]}, {ACC[2*i+1]}")
    A("s_waitcnt lgkmcnt(0)")
    WXR = [H[0:4], H[4:8], H[8:12], H[12:16], EA, X, A2[0:4], A2[4:8]]
    for i in range(8): A(f"ds_read_b128 {WXR[i]}, {DT[0]} offset:{WX + 32*i}")
    A(f"""
    v_lshrrev_b32 {DT[1]}, 2, {vL}
    v_and_b32 {DT[2]}, 3, {vL}
    v_add_u32 {DT[1]}, {sN0}, {DT[1]}
    v_mul_u32_u24 {DT[1]}, 6, {DT[1]}
    v_lshl_add_u32 {DT[1]}, {DT[2]}, 1, {DT[1]}
    ds_read_u16_d16_hi {PS[0]}, {DT[1]} offset:{POS}
    """)
    for n2 in range(2):
        for st in range(4): A(f"{mf} {TM[16*n2:16*n2+16]}, {Y[4*st:4*st+4]}, {W2[16*n2+4*st:16*n2+4*st+4]}, {TM[16*n2:16*n2+16] if st else 0}")
    A("s_waitcnt lgkmcnt(0)")
    A(f"v_mul_f32 {DT[2]}, {ACC[0]}, {WXR[0][0]}")
    for i in range(1, 32): A(f"v_fmac_f32 {DT[2]}, {ACC[i]}, {WXR[i//4][i%4]}")
    A(f"""
    v_mov_b32 {DT[3]}, {DT[2]}
    v_add_u32 {DT[1]}, {N*128}, {DT[1]}
    s_cmp_eq_u32 {sNn}, 5
    v_permlane32_swap_b32 {DT[2]}, {DT[3]}
    s_mov_b32 {sT[2]}, 0x7777
    s_cselect_b32 {sT[2]}, 0x77777, {sT[2]}
    s_mov_b32 {sT[3]}, 0
    v_add_f32 {DT[2]}, {DT[2]}, {DT[3]}
    v_add_f32 {DT[2]}, {DT[2]}, {PS[0]}
    v_cvt_pk_bf16_f32 {DT[2]}, {DT[2]}, {DT[2]}
    s_mov_b64 exec, {sT[2:4]}
    buffer_store_short {DT[2]}, {DT[1]}, {SO}, 0 offen
    s_mov_b64 exec, -1
    v_add_u32 {DT[0]}, {sN0}, {vHalf}
    v_lshlrev_b32 {DT[0]}, 7, {DT[0]}
    v_and_b32 {DT[1]}, 31, {vL}
    v_lshl_add_u32 {DT[0]}, {DT[1]}, 1, {DT[0]}
    """)
    for j in range(3):
        for n in range(2):
            z = ZH[2*j+n]; t = Y[16+2*j+n]
            A(f"v_add_f32 {z}, {z}, {TM[16*n+4*j+3]}")
            A(f"v_mul_f32 {t}, {sC}, {z}"); A(f"v_exp_f32 {t}, {t}")
    for i in range(6): A(f"v_add_f32 {Y[16+i]}, 1.0, {Y[16+i]}"); A(f"v_rcp_f32 {Y[16+i]}, {Y[16+i]}")
    A("s_nop 0")
    for i in range(6): A(f"v_fmac_f32 {HR[i]}, {ZH[i]}, {Y[16+i]}"); A(f"v_cvt_pk_bf16_f32 {HR[i]}, {HR[i]}, {HR[i]}")
    for j in range(3):
        if j == 2: A("s_cbranch_scc0 L_fin"); A("s_mov_b32 exec_hi, 0")
        for n in range(2): A(f"buffer_store_short {HR[2*j+n]}, {DT[0]}, {SO}, 0 offen offset:{256*j + 64*n}")
    A("L_fin:")
    if "stamp" in OPT:
        A("s_waitcnt vmcnt(0)"); A(f"v_writelane_b32 v255, {sTo}, 14"); A(f"v_writelane_b32 v255, {sNt}, 15")
        if "loop" in OPT:
            for i, r in enumerate((16, 17, 18, 19, 22)): A(f"v_writelane_b32 v255, s{r}, {16+i}")
    stamp(A, 12); stamp_out(A, pWs)
    A("L_done:"); A("s_endpgm")
    print("vgprs", nv, "sgprs", S.n, "lds", LDS_MAIN, file=sys.stderr)
    return A.text()

if __name__ == "__main__":
    OPT.update(sys.argv[2:])
    KN = "standalone__cheap_equivariant_egnn__graph_kernel"
    s = assemble([(KN, k_main(), 256)], [(KN, NB, 512, LDS_MAIN)], single=True).replace("next_free_sgpr 96", "next_free_sgpr 102")
    open(sys.argv[1], "w").write(s)
```

```python
import sys, struct
from lib import *
N, E = 10000, 640000
NB, CH = 256, 2500
CAP = 416
NLOG2E = 0xbfb8aa3b
NLN2 = 0xbf317218
SEC = NB * NB * 64
EPO = 2 * SEC
BTO = 16 << 20
TIMEOUT = 20000
INV0 = 0xffffffc6
CNT, FLAG, LUT, WX = 0, 64, 128, 256
POS = 512
WE = POS + 60032
WH = WE + 18560
STG = WH + 16384
LIST = STG + 8 * 5120
LDS_MAIN = LIST + 8 * CAP * 8
BST = STG
BCN = STG + 32768
TB = STG
HO = STG + 34816
assert STG % 128 == 0 and WE % 128 == 0 and WH % 128 == 0 and LDS_MAIN <= 163840
OPT = set()
geto = lambda name, d: int([o for o in OPT if o.startswith(name)][0][len(name):]) if any(o.startswith(name) for o in OPT) else d
PEND = []
def stamp(A, i):
    if "stamp" not in OPT: return
    k = len(PEND)
    if k >= 2: A(f"v_writelane_b32 v255, s{96+2*((k-2)%3)}, {PEND[k-2]}")
    A(f"s_memrealtime s[{96+2*(k%3)}:{97+2*(k%3)}]"); PEND.append(i)
def stamp_out(A, wsp):
    if "stamp" not in OPT: return
    A("s_waitcnt lgkmcnt(0)")
    k = len(PEND)
    for u in (k - 2, k - 1): A(f"v_writelane_b32 v255, s{96+2*(u%3)}, {PEND[u]}")
    A("s_mov_b64 exec, -1")
    A(f"v_lshrrev_b32 v1, 6, v0"); A(f"s_lshl_b32 s3, s2, 3"); A("v_add_u32 v1, s3, v1"); A("v_lshlrev_b32 v1, 7, v1"); A(f"v_add_u32 v1, {200<<20}, v1")
    A("v_and_b32 v2, 63, v0"); A("v_lshl_add_u32 v1, v2, 2, v1"); A("s_mov_b32 exec_hi, 0"); A(f"global_store_dword v1, v255, {wsp}")
def lines(s): return [l.strip() for l in s.strip().split("\n") if l.strip()]

def k_main():
    A = Asm()
    S = Regs("s", 26, 96); V = Regs("v", 1, 255)
    pH, pPos, pE, pSrc, pDst, pWe, pWx, pWh, pOut, pDbg, pWs = [R("s", 4 + 2 * i, 2) for i in range(11)]
    sW = S.alloc("wave"); sN0 = S.alloc("node0")
    SH = S.alloc("SH", 4, 4); SE = S.alloc("SE", 4, 4); SX = S.alloc("SX", 4, 4); SY = S.alloc("SY", 4, 4); SZ = S.alloc("SZ", 4, 4)
    sM = S.alloc("masks", 16, 2); sT = S.alloc("tmp", 4, 2); sS2 = S.alloc("secmask", 8, 2); sNq = S.alloc("nq", 4)
    sStg = S.alloc("stg"); sLb = S.alloc("listbase"); sCnt = S.alloc("cnt"); sNt = S.alloc("nt"); sTi = S.alloc("ti")
    sSlow = S.alloc("slow"); sScan = S.alloc("scan"); sPd = S.alloc("pd"); sNn = S.alloc("nn")
    sNon = S.alloc("nonce"); sK = S.alloc("K"); sTo = S.alloc("to"); sEarly = S.alloc("early"); sW10 = S.alloc("w10"); sNb = S.alloc("nb0")
    sOv = S.alloc("ov"); sEm = pDbg[0]; sEx = pDbg[1]
    vL = V.alloc("lane"); vHalf = V.alloc("half"); vT1 = V.alloc("t1")
    W2 = V.alloc("W2", 32, 4); W4 = V.alloc("W4", 8, 4); BX = V.alloc("BX", 8, 4)
    ACC = V.alloc("ACC", 32, 4); Y = V.alloc("Y", 32, 4); TM = V.alloc("TM", 32, 4)
    H = V.alloc("H", 16, 4); EA = V.alloc("EA", 4, 4); X = V.alloc("X", 4, 4); A2 = V.alloc("A2", 8, 4); PK = V.alloc("PK", 8, 4)
    IX = V.alloc("IX", 10, 2); HRD = V.alloc("HRD", 4); ERD = V.alloc("ERD")
    vAh = V.alloc("Ah"); vAe = V.alloc("Ae"); vAn = V.alloc("An"); vTrow = V.alloc("Trow"); vTtr = V.alloc("Ttr")
    ZB = V.alloc("ZB", 16, 4); ZERO = ZB[0:2]; D = ZB[2:4]; PS = ZB[4:7]; PD = ZB[7:10]; HR = ZB[10:16]
    EN = V.alloc("EN", 2, 2); HALF = V.alloc("HALFC", 2, 2); INV = V.alloc("INV", 2, 2)
    vAt = V.alloc("At"); DT = V.alloc("DT", 4); vSl = V.alloc("Sl"); vAl = V.alloc("Al")
    ZH = V.alloc("ZH", 6); vWb = V.alloc("Wb"); LO = V.alloc("LO", 3)
    vJ = V.alloc("junk"); vCB = V.alloc("CB", 4); v8 = V.alloc("v8")
    nv = V.n
    mf = "v_mfma_f32_32x32x16_bf16"
    dpp = "row_mask:0xf bank_mask:0xf"
    prio = lambda p: A(f"s_setprio {p}") if "noprio" not in OPT else None
    zero16 = lambda r, z: f"v_mfma_f32_16x16x4_4b_bf16 {r}, {z}, {z}, 0"
    EXA = R("v", EA.b, 16)
    assert X.b == EA.b + 4 and A2.b == EA.b + 8
    DS = Y[0:5]; SR = Y[8:13]; RC = Y[16:21]; B4 = Y[21:26]; RT = Y[26:31]
    LE = H[0:5]; Z4 = H[8:12]; v4 = H[12]; c31 = H[13]
    aD4 = TM[0]; aD1 = TM[1]; aL = TM[2]; aC = TM[3]; aG = TM[4:6]; aS = TM[6:8]; vDs = TM[8]; vD = TM[9]; aWs = TM[10]
    aHj = TM[11]; aFj = TM[12]; aWj = TM[13]; aA = TM[14]; aZ = TM[15]; aHR = TM[16:19]; aWD = TM[19]; vT2 = TM[20]; aTz = TM[21]; aCn = TM[22]; vLim = TM[23]
    t0, t1, t2, t3 = DT[0], DT[1], DT[2], DT[3]
    RP = A2; RS = [EA[0:2], EA[2:4], X[0:2], X[2:4]]; vRo = vAt
    m5 = sM[10:12]
    if "stamp" in OPT: A("v_mov_b32 v255, 0")
    stamp(A, 0)
    A(f"""
    s_cmp_ge_u32 s2, {NB}
    s_cbranch_scc1 L_done
    s_load_dwordx16 s[4:19], s[0:1], 0
    s_load_dwordx4 s[20:23], s[0:1], 64
    s_load_dwordx2 s[24:25], s[0:1], 80
    s_setprio 1
    s_mul_i32 s3, s2, {CH*4}
    v_lshl_add_u32 {aD4}, v0, 4, s3
    s_add_u32 s3, s3, 8192
    v_lshl_add_u32 {aD1}, v0, 2, s3
    v_lshrrev_b32 {vT1}, 6, v0
    v_and_b32 {vL}, 63, v0
    v_readfirstlane_b32 {sW}, {vT1}
    v_cmp_gt_u32 vcc, {CH - 2048}, v0
    v_lshrrev_b32 {vHalf}, 5, {vL}
    s_mul_i32 {sT[0]}, s2, 5000
    s_add_u32 {sNb}, {sT[0]}, 127
    s_lshr_b32 {sNb}, {sNb}, 7
    s_mov_b64 {m5}, vcc
    s_lshl_b32 {sW10}, {sW}, 10
    s_mov_b32 {sT[1]}, {EPO}
    v_mov_b32 {Z4[0]}, 0
    v_mov_b32 {Z4[1]}, 0
    v_mov_b32 {Z4[2]}, 0
    v_mov_b32 {Z4[3]}, 0
    v_lshlrev_b32 {vD}, 4, v0
    v_add_u32 {t0}, {BST}, {vD}
    v_lshlrev_b32 {t1}, 2, v0
    v_add_u32 {t1}, {BCN}, {t1}
    v_lshrrev_b32 {EN[0]}, 3, v0
    v_mul_u32_u24 {vCB[0]}, {CH*64}, {EN[0]}
    v_add_u32 {EN[0]}, {sNb}, {EN[0]}
    v_and_b32 {EN[1]}, 0x70, {vD}
    v_and_b32 {c31}, 31, {vL}
    s_mul_i32 {sLb}, {sW}, {CAP*8}
    s_add_u32 {sLb}, {sLb}, {LIST}
    v_and_b32 {t3}, 16, {vL}
    v_lshlrev_b32 {t2}, 2, {t3}
    v_xor_b32 {vDs}, {vD}, {t2}
    s_add_u32 m0, {sW10}, {WE + 8192}
    s_movk_i32 {sT[3]}, 8192
    s_mov_b32 {SY[2]}, {145*128}
    s_mov_b32 {SY[3]}, 0x20000
    s_mov_b32 {SH[2]}, {N}
    s_mov_b32 {SH[3]}, 0x20000
    s_mul_i32 {sT[2]}, {sW}, 1040
    s_waitcnt lgkmcnt(0)
    s_mov_b64 {SY[0:2]}, {pWe}
    s_mov_b32 {SH[0]}, {pH[0]}
    buffer_load_dwordx4 {vDs}, {SY}, {sT[3]} offen lds
    s_add_u32 m0, {sT[2]}, {HO}
    s_and_b32 {SH[1]}, {pH[1]}, 0xffff
    s_or_b32 {SH[1]}, {SH[1]}, 0x800000
    s_load_dword {sNon}, {pWs}, {sT[1]}
    s_cmp_ge_u32 {sW}, 5
    s_cbranch_scc1 L_share
    buffer_load_dwordx4 {EN}, {SH}, 0 idxen offen lds
    s_branch L_share_done
    L_share:
    s_lshr_b32 {sT[0]}, s2, 3
    """)
    srd(A, SY, pPos, N * 6)
    A(f"s_mov_b32 {sT[2]}, 15")
    for w, (ptr, size, cnt) in ((6, (pWe, 145 * 128, 5)), (7, (pWh, 16384, 4))):
        A(f"""
        s_cmp_eq_u32 {sW}, {w}
        s_cselect_b64 {SY[0:2]}, {ptr}, {SY[0:2]}
        s_cselect_b32 {SY[2]}, {size}, {SY[2]}
        s_cselect_b32 {sT[2]}, {cnt}, {sT[2]}
        """)
    A(f"""
    s_mul_i32 {sT[0]}, {sT[0]}, {sT[2]}
    v_add_lshl_u32 {t2}, {vL}, {sT[0]}, 7
    s_bfm_b64 exec, {sT[2]}, 0
    buffer_load_dword {vJ}, {t2}, {SY}, 0 offen
    s_mov_b64 exec, -1
    L_share_done:
    """)
    for i in range(4): A(f"ds_write_b128 {t0}, {Z4} offset:{8192*i}")
    A(f"ds_write_b32 {t1}, {Z4[0]}")
    def ld(R_, p_):
        A(f"""
        global_load_dwordx4 {R_[0:4]}, {aD4}, {p_}
        s_mov_b64 exec, {m5}
        global_load_dword {R_[4]}, {aD1}, {p_}
        s_mov_b64 exec, -1
        """)
    dpos = geto("dpos", 1); spos = geto("spos", 3)
    def slot(k):
        if dpos == k: ld(DS, pDst)
        if spos == k: ld(SR, pSrc)
    slot(0)
    A(zero16(ZB, Z4[0:2])); A(zero16(EXA, Z4[0:2]))
    A(f"""
    s_add_u32 {SH[0]}, {pWs[0]}, {BTO}
    s_addc_u32 {SH[1]}, {pWs[1]}, 0
    s_and_b32 {SH[1]}, {SH[1]}, 0xffff
    s_or_b32 {SH[1]}, {SH[1]}, 0x800000
    """)
    lo = sum(1 << ((k + 1) * 4 + (k >> 1)) for k in range(5) if k % 2 == 0)
    hi = sum(1 << ((k + 1) * 4 + (k >> 1)) for k in range(5) if k % 2 == 1)
    A(f"""
    v_mov_b32 {INV[0]}, {INV0:#x}
    v_mov_b32 {INV[1]}, {N}
    v_lshl_add_u32 {t0}, {vL}, 3, {sLb}
    ds_write_b64 {t0}, {INV}
    s_cmp_lg_u32 {sW}, 0
    s_cbranch_scc1 L_init_done
    v_lshrrev_b32 {t0}, 1, {vL}
    v_mul_u32_u24 {t0}, {CAP*8}, {t0}
    v_add_u32 {t0}, {LIST}, {t0}
    v_mov_b32 {t1}, 0x3f80
    s_mov_b64 {sT[2:4]}, 0xffff
    v_cndmask_b32 {t0}, 0, {t0}, {sT[2:4]}
    s_mov_b32 {sT[2]}, 0
    s_mov_b32 {sT[3]}, {lo:#x}
    v_cndmask_b32 {t0}, {t0}, {t1}, {sT[2:4]}
    s_mov_b32 {sT[3]}, {hi:#x}
    v_cndmask_b32 {t0}, {t0}, 1.0, {sT[2:4]}
    v_lshlrev_b32 {t1}, 2, {vL}
    ds_write_b32 {t1}, {t0}
    L_init_done:
    """)
    slot(1)
    srd(A, SX, pWs, 2 * SEC); srd(A, SY, pWe, 145 * 128); srd(A, SZ, pWh, 16384)
    A(f"""
    s_lshl_b32 {sT[0]}, s2, 3
    s_add_u32 {sT[0]}, {sT[0]}, {sW}
    s_mul_i32 {sT[0]}, {sT[0]}, 625
    s_add_u32 {sN0}, {sT[0]}, 127
    s_lshr_b32 {sN0}, {sN0}, 7
    s_add_u32 {sNn}, {sT[0]}, {625 + 127}
    s_lshr_b32 {sNn}, {sNn}, 7
    s_sub_u32 {sNn}, {sNn}, {sN0}
    v_mov_b32 {v4}, 4
    v_lshlrev_b32 {LE[0]}, 8, v0
    v_add_u32 {LE[1]}, 64, {LE[0]}
    v_add_u32 {LE[2]}, 128, {LE[0]}
    v_add_u32 {LE[3]}, 192, {LE[0]}
    v_lshlrev_b32 {LE[4]}, 6, v0
    v_add_u32 {LE[4]}, {2048*64}, {LE[4]}
    v_lshrrev_b32 {aC}, 2, v0
    v_and_b32 {t0}, 48, {vD}
    v_lshl_add_u32 {aL}, {aC}, 7, {t0}
    v_add_u32 {aL}, {BST}, {aL}
    v_lshl_add_u32 {aG[0]}, {aC}, 14, {t0}
    s_lshl_b32 {sT[2]}, s2, 6
    v_add_u32 {aG[0]}, {sT[2]}, {aG[0]}
    v_add_u32 {aG[1]}, {128*16384}, {aG[0]}
    v_and_b32 {aC}, -4, v0
    v_add_u32 {aC}, {BCN}, {aC}
    v_and_b32 {t3}, 16, {vL}
    v_add_u32 {aWs}, {WE + 8192}, {vD}
    v_and_b32 {t0}, 3, {vL}
    v_lshlrev_b32 {t0}, 3, {t0}
    v_lshl_add_u32 {t0}, {t3}, 1, {t0}
    v_and_b32 {t1}, 12, {vL}
    v_lshl_add_u32 {t2}, {t1}, 4, {t0}
    v_lshl_add_u32 {t2}, {vHalf}, 8, {t2}
    s_lshl_b32 {sT[0]}, {sW}, 11
    s_add_u32 {sT[0]}, {sT[0]}, {WE}
    s_sub_u32 {sT[1]}, {sT[0]}, 8
    v_add_u32 {vTtr}, {sT[0]}, {t2}
    v_lshl_add_u32 {vTrow}, {c31}, 6, {sT[1]}
    v_lshl_add_u32 {aTz}, {vL}, 3, {sT[0]}
    v_lshl_add_u32 {t0}, {t1}, 5, {t0}
    v_and_b32 {t1}, 8, {vL}
    v_lshl_add_u32 {t0}, {t1}, 3, {t0}
    v_lshl_add_u32 {vWb}, {vHalf}, 9, {t0}
    v_add_u32 {vWb}, {WH + 8192}, {vWb}
    v_lshl_add_u32 {t0}, {vHalf}, 10, {t0}
    v_add_u32 {vT1}, {WE}, {t0}
    v_xor_b32 {vT2}, 64, {vT1}
    """)
    slot(2)
    A(f"""
    s_bfe_u32 {sT[0]}, {sW}, 0x10001
    s_mul_i32 {sT[0]}, {sT[0]}, 20
    v_add_u32 {t0}, {sT[0]}, {c31}
    v_lshrrev_b32 {t1}, 3, {t0}
    v_add_u32 {t1}, {t1}, {vHalf}
    v_lshlrev_b32 {aHj}, 7, {t0}
    v_lshl_add_u32 {aHj}, {t1}, 4, {aHj}
    v_add_u32 {aHj}, {HO}, {aHj}
    s_and_b32 {sT[1]}, {sW}, 1
    s_lshr_b32 {sT[2]}, {sW}, 2
    s_lshl_b32 {sT[0]}, {sT[1]}, 6
    s_mul_i32 {sT[3]}, {sT[2]}, {WH - WE}
    v_xor_b32 {aFj}, {sT[0]}, {vT1}
    v_add_u32 {aFj}, {sT[3]}, {aFj}
    s_mul_i32 {sT[3]}, {sT[2]}, {40*272}
    s_lshl_b32 {sT[0]}, {sT[1]}, 7
    s_add_u32 {sT[3]}, {sT[3]}, {sT[0]}
    s_add_u32 {sT[3]}, {sT[3]}, {TB}
    v_mul_u32_u24 {aWj}, 272, {t0}
    v_lshl_add_u32 {aWj}, {vHalf}, 4, {aWj}
    v_add_u32 {aWj}, {sT[3]}, {aWj}
    s_sub_u32 {sT[0]}, {sN0}, {sNb}
    s_mul_i32 {sT[1]}, {sT[0]}, 272
    s_add_u32 {sT[1]}, {sT[1]}, {TB}
    v_lshl_add_u32 {aA}, {c31}, 2, {sT[1]}
    v_mul_u32_u24 {aZ}, 272, {vHalf}
    v_add_u32 {aZ}, {aZ}, {aA}
    v_lshlrev_b32 {t2}, 1, {c31}
    v_add_u32 {aWD}, {WE + 18432}, {t2}
    v_add_u32 {t2}, {HO}, {t2}
    v_add_u32 {t0}, {sT[0]}, {vHalf}
    """)
    for j in range(3):
        A(f"v_lshrrev_b32 {t1}, 3, {t0}"); A(f"v_lshl_add_u32 {aHR[j]}, {t0}, 7, {t2}"); A(f"v_lshl_add_u32 {aHR[j]}, {t1}, 4, {aHR[j]}")
        if j < 2: A(f"v_add_u32 {t0}, 2, {t0}")
    aBw = TM[24]; aBr = TM[25]; aBs = TM[26:28]
    A(f"""
    s_lshl_b32 {sT[0]}, {sW}, 11
    s_add_u32 {sT[0]}, {sT[0]}, {POS}
    v_mul_u32_u24 {aBw}, 80, {c31}
    v_lshl_add_u32 {aBw}, {vHalf}, 5, {aBw}
    v_add_u32 {aBw}, {sT[0]}, {aBw}
    v_lshrrev_b32 {t0}, 2, {vL}
    v_and_b32 {t1}, 48, {vD}
    v_mul_u32_u24 {aBr}, 80, {t0}
    v_add3_u32 {aBr}, {aBr}, {t1}, {sT[0]}
    s_bfe_u32 {sT[0]}, {sW}, 0x10001
    s_mul_i32 {sT[0]}, {sT[0]}, 20
    s_add_u32 {sT[0]}, {sT[0]}, {sNb}
    v_add_u32 {aBs[0]}, {sT[0]}, {t0}
    s_and_b32 {sT[0]}, {sW}, 1
    s_lshl_b32 {sT[0]}, {sT[0]}, 6
    v_add_u32 {aBs[1]}, {sT[0]}, {t1}
    s_movk_i32 {sT[0]}, 625
    s_movk_i32 {sT[1]}, 120
    s_mov_b32 {sT[2]}, {BCN}
    s_movk_i32 {sT[3]}, 8192
    """)
    slot(3)
    stamp(A, 1)
    BH = W2[0:16]; BF = W2[16:32]; BD = ACC[0:16]; BP = ACC[16:24]; BR = ACC[24:32]
    lab = {"n": 0}
    def old(fn):
        lab["n"] += 1; A(f"s_cmp_ge_u32 {sW}, 4"); A(f"s_cbranch_scc1 L_old{lab['n']}"); fn(); A(f"L_old{lab['n']}:")
    A(f"s_waitcnt vmcnt({4 if spos < 4 else 2}) lgkmcnt(0)"); A("s_barrier")
    stamp(A, 29)
    slot(4)
    A(f"s_and_b32 {sNon}, {sNon}, -8")
    hashc = []
    for q in range(4):
        r = sNq[q]
        hashc.append(lines(f"""
        s_add_u32 {r}, {sNon}, {0x9e3779b8 + q:#x}
        s_mul_i32 {r}, {r}, 0x85ebca6b
        s_lshr_b32 s3, {r}, 15
        s_xor_b32 {r}, {r}, s3
        s_mul_i32 {r}, {r}, 0xc2b2ae35
        s_and_b32 {r}, {r}, -16
        s_or_b32 {r}, {r}, {1 << q}
        """))
    def b_reads():
        for s in range(4):
            A(f"ds_read_b128 {BH[4*s:4*s+4]}, {aHj} offset:{32*s}")
            for half in range(2): A(f"ds_read_b64_tr_b16 {BF[4*s+2*half:4*s+2*half+2]}, {aFj} offset:{8192 + (16*s + 4*half)*128}")
    srd(A, SE, pE, E, 32)
    st2 = lines(f"""
    s_mul_i32 {sStg}, {sW}, 5120
    s_add_u32 {sStg}, {sStg}, {STG}
    s_add_u32 {sEm}, {sStg}, 4096
    s_mul_i32 {sPd}, {sN0}, 6
    s_sub_u32 {sPd}, {sPd}, 6
    s_mov_b32 {sTo}, 0
    s_mov_b32 {sScan}, 0
    s_mov_b32 {sEarly}, 0
    s_mov_b32 {sOv}, 0
    v_and_b32 {t3}, 31, {vL}
    v_bfe_u32 {t0}, {vL}, 1, 3
    v_xor_b32 {t0}, {t0}, {vHalf}
    v_lshlrev_b32 {t0}, 4, {t0}
    v_lshl_add_u32 {t0}, {t3}, 7, {t0}
    v_add_u32 {HRD[0]}, {sStg}, {t0}
    v_xor_b32 {HRD[1]}, 32, {HRD[0]}
    v_xor_b32 {HRD[2]}, 64, {HRD[0]}
    v_xor_b32 {HRD[3]}, 0x60, {HRD[0]}
    v_bfe_u32 {t0}, {vL}, 3, 1
    v_xor_b32 {t0}, {t0}, {vHalf}
    v_lshlrev_b32 {t0}, 4, {t0}
    v_lshl_add_u32 {t0}, {t3}, 5, {t0}
    v_add_u32 {ERD}, {sEm}, {t0}
    v_lshl_add_u32 {LO[2]}, {t3}, 3, {sLb}
    v_and_b32 {t0}, 56, {vL}
    v_add3_u32 {LO[0]}, {t0}, {sLb}, 4
    v_lshrrev_b32 {t0}, 1, {vL}
    v_lshl_add_u32 {LO[1]}, {t0}, 3, {sLb}
    v_mov_b32 {vAh}, {LO[0]}
    v_mov_b32 {vAe}, {LO[1]}
    v_mov_b32 {HALF[0]}, 0x3f003f00
    v_mov_b32 {HALF[1]}, 0x3f003f00
    v_mov_b32 {v8}, 8
    v_add_u32 {vCB[1]}, {64*CH*64}, {vCB[0]}
    v_add_u32 {vCB[2]}, {128*CH*64}, {vCB[0]}
    v_add_u32 {vCB[3]}, {192*CH*64}, {vCB[0]}
    v_and_b32 {t0}, 15, {vL}
    v_lshlrev_b32 {aCn}, 3, {t0}
    v_mul_u32_u24 {vLim}, {CAP*8}, {t0}
    v_add_u32 {vLim}, {LIST + CAP*8}, {vLim}
    s_mov_b64 {sS2[4:6]}, 0xff
    v_cndmask_b32 {vLim}, 0, {vLim}, {sS2[4:6]}
    """)
    st2 += ["s_mov_b32 exec_lo, 0x80808080", "s_mov_b32 exec_hi, 0x80808080"] + [f"v_mov_b32 {RS[q][1]}, {sNq[q]}" for q in range(4)] + ["s_mov_b64 exec, -1"]
    st3 = lines(f"""
    v_and_b32 {t0}, 48, {vL}
    v_and_b32 {t1}, 0x70, {vD}
    v_xor_b32 {IX[1]}, {t0}, {t1}
    v_xor_b32 {IX[3]}, 64, {IX[1]}
    v_mov_b32 {IX[5]}, {IX[1]}
    v_mov_b32 {IX[7]}, {IX[3]}
    v_and_b32 {IX[9]}, 16, {IX[1]}
    """) + [f"v_mov_b32 {IX[2*i]}, -1" for i in range(5)]
    A(f"s_cmp_ge_u32 {sW}, 4"); A("s_cbranch_scc1 L_y1")
    b_reads()
    for s in range(4):
        A(f"s_waitcnt lgkmcnt({9 - 3*s})"); A(f"{mf} {BD}, {BF[4*s:4*s+4]}, {BH[4*s:4*s+4]}, {BD if s else 0}")
    A("\n".join(x for q in range(2) for x in hashc[q]))
    for k in range(16): A(f"v_mul_f32 {BD[k]}, {NLOG2E:#x}, {BD[k]}")
    for k in range(8): A(f"v_cvt_pk_bf16_f32 {BP[k]}, {BD[2*k]}, {BD[2*k+1]}")
    A("s_mov_b32 exec_lo, 0xfffff"); A("s_mov_b32 exec_hi, 0xfffff")
    for k in range(2): A(f"ds_write_b128 {aBw}, {BP[4*k:4*k+4]} offset:{16*k}")
    A("s_mov_b64 exec, -1")
    for k in range(2): A(f"ds_read_b128 {BR[4*k:4*k+4]}, {aBr} offset:{1280*k}")
    A("\n".join(x for q in range(2, 4) for x in hashc[q]))
    if "xto" in OPT: A("s_cmp_eq_u32 s2, 5"); A(f"s_cselect_b32 {SH[2]}, 0, {SH[2]}")
    A("s_waitcnt lgkmcnt(0)")
    A(f"buffer_store_dwordx4 {BR[0:4]}, {aBs}, {SH}, 0 idxen offen sc1")
    A(f"v_add_u32 {aBs[0]}, 16, {aBs[0]}"); A("s_mov_b64 exec, 0xffff")
    A(f"buffer_store_dwordx4 {BR[4:8]}, {aBs}, {SH}, 0 idxen offen sc1")
    A("s_mov_b64 exec, -1")
    A("s_waitcnt vmcnt(4)")
    A("s_branch L_y2")
    A("L_y1:")
    for s in range(4): A(f"ds_read_b128 {BH[4*s:4*s+4]}, {aHj} offset:{32*s}")
    A("\n".join(x for q in range(4) for x in hashc[q]))
    A("s_waitcnt vmcnt(2)")
    A("L_y2:")
    if "xto" in OPT: A(f"s_mov_b32 {SH[2]}, {N}"); A("s_cmp_eq_u32 s2, 5"); A(f"s_cselect_b32 {SX[2]}, 0, {SX[2]}")
    stamp(A, 2)
    WA = PK[0:4]; WB = PK[4:8]
    for i in range(5):
        if i == 4: A(f"s_mov_b64 exec, {m5}")
        A(f"""
        v_mul_u32_u24 {RC[i]}, 429497, {DS[i]}
        v_lshrrev_b32 {B4[i]}, 24, {RC[i]}
        v_lshl_add_u32 {RT[i]}, {B4[i]}, 2, {sT[2]}
        ds_add_rtn_u32 {RT[i]}, {RT[i]}, {v4}
        """)
    A("s_mov_b64 exec, -1")
    A(f"s_mov_b32 {sT[2]}, {BST + 4}")
    for i in range(5):
        v = lines(f"""
        v_lshrrev_b32 {RC[i]}, 21, {RC[i]}
        v_mad_u32_u24 {t0}, {RC[i]}, {sT[0]}, -1
        v_lshl_add_u32 {RC[i]}, {RC[i]}, 3, {DS[i]}
        v_ashrrev_i32 {t0}, 7, {t0}
        v_sub_u32 {RC[i]}, {RC[i]}, {t0}
        v_and_or_b32 {RC[i]}, {RC[i]}, 63, {LE[i]}
        v_lshl_add_u32 {B4[i]}, {B4[i]}, 7, {sT[2]}
        """)
        A("\n".join(v))
    A("s_waitcnt lgkmcnt(0)")
    for i in range(5):
        A(f"v_cmp_gt_u32 {sM[2*i:2*i+2]}, {sT[1]}, {RT[i]}")
        A(f"v_add_u32 {RT[i]}, {RT[i]}, {B4[i]}")
    A(f"s_and_b64 {sM[8:10]}, {sM[8:10]}, {m5}")
    def tables():
        A(f"""
        s_cmp_gt_u32 {sW}, 2
        s_cbranch_scc1 L_odone
        s_cmp_lg_u32 {sW}, 0
        s_cbranch_scc1 L_o6
        v_lshlrev_b32 {t0}, 2, {vL}
        s_mov_b32 m0, {WE + 18432}
        s_mov_b32 {sT[2]}, 16384
        s_mov_b32 exec_hi, 0
        buffer_load_dword {t0}, {SY}, {sT[2]} offen lds
        s_mov_b64 exec, -1
        v_lshlrev_b32 {t0}, 1, {vL}
        global_load_ushort {WB[0]}, {t0}, {pWx}
        s_branch L_odone
        L_o6:
        s_mov_b32 {sT[2]}, {129*128 - 1024}
        buffer_load_dwordx4 {WB}, {vDs}, {SY}, {sT[2]} offen
        L_odone:
        s_add_u32 m0, {sW10}, {WE}
        s_nop 0
        buffer_load_dwordx4 {vDs}, {SY}, 0 offen lds
        s_add_u32 m0, {sW10}, {WH}
        s_nop 0
        buffer_load_dwordx4 {vDs}, {SZ}, 0 offen lds
        s_add_u32 m0, {sW10}, {WH + 8192}
        s_nop 0
        buffer_load_dwordx4 {vDs}, {SZ}, {sT[3]} offen lds
        """)
    A(f"""
    s_xor_b32 {sK}, {sNq[0]}, {sNq[1]}
    s_xor_b32 {sK}, {sK}, {sNq[2]}
    s_xor_b32 {sK}, {sK}, {sNq[3]}
    s_bitcmp1_b32 s2, 6
    s_cselect_b32 {sNon}, {sNq[1]}, {sNq[0]}
    s_cselect_b32 s3, {sNq[3]}, {sNq[2]}
    s_bitcmp1_b32 s2, 7
    s_cselect_b32 {sNon}, s3, {sNon}
    """)
    stamp(A, 3)
    A(f"s_cmp_ge_u32 {sW}, 4"); A("s_waitcnt vmcnt(2)"); A("s_cbranch_scc0 L_srcok"); A("s_waitcnt vmcnt(0)"); A("L_srcok:")
    stamp(A, 4)
    for i in range(5):
        A(f"s_mov_b64 exec, {sM[2*i:2*i+2]}"); A(f"v_lshl_or_b32 {RC[i]}, {SR[i]}, 18, {RC[i]}"); A(f"ds_write_b32 {RT[i]}, {RC[i]}")
    A("s_mov_b64 exec, -1")
    tables()
    ncut = geto("cut", 0)
    A("\n".join(st2[:ncut] + st3))
    stamp(A, 22)
    PR = [Y[0:4], Y[4:8]]; SC = [Y[8:12], Y[12:16]]; CN = Y[16:18]; XR = Y[20:24]; ST = Y[24:26]
    A(f"""
    s_mov_b32 {sM[0]}, 0x11111111
    s_mov_b32 {sM[1]}, 0x11111111
    s_mov_b32 {sM[2]}, 0x88888888
    s_mov_b32 {sM[3]}, 0x88888888
    s_and_b32 s3, {sNon}, 15
    s_lshl_b32 s3, s3, 4
    s_xor_b32 s3, s3, {sNon}
    v_mov_b32 {t0}, {sNon}
    v_mov_b32 {t1}, s3
    """)
    old(lambda: A("s_waitcnt vmcnt(3)"))
    A(f"""
    s_waitcnt lgkmcnt(0)
    s_barrier
    """)
    stamp(A, 5)
    for i in range(2): A(f"ds_read_b128 {PR[i]}, {aL} offset:{16384*i}")
    for i in range(2): A(f"ds_read_b128 {SC[i]}, {aL} offset:{16384*i + 64}"); A(f"ds_read_b32 {CN[i]}, {aC} offset:{512*i}")
    A(f"s_mov_b32 {sT[2]}, {SEC}")
    def xor4(x, r):
        A(f"v_bitop3_b32 {x}, {r[0]}, {r[1]}, {r[2]} bitop3:0x96"); A(f"v_xor_b32 {x}, {x}, {r[3]}")
    A("s_waitcnt lgkmcnt(4)")
    for i in range(2): xor4(XR[i], PR[i])
    A("s_nop 0")
    for i in range(2): A(f"v_xor_b32_dpp {XR[i]}, {XR[i]}, {XR[i]} quad_perm:[1,0,3,2] {dpp}")
    A("s_nop 0")
    for i in range(2): A(f"v_xor_b32_dpp {XR[i]}, {XR[i]}, {XR[i]} quad_perm:[2,3,0,1] {dpp}")
    A(f"s_mov_b64 exec, {sM[0:2]}")
    for i in range(2): A(f"v_xor_b32 {PR[i][0]}, {XR[i]}, {t0}")
    A("s_mov_b64 exec, -1")
    for i in range(2): A(f"buffer_store_dwordx4 {PR[i]}, {aG[i]}, {SX}, 0 offen sc1")
    A("s_waitcnt lgkmcnt(0)")
    for i in range(2): xor4(XR[2+i], SC[i])
    for i in range(2):
        A(f"v_cmp_le_u32 {sM[4+2*i:6+2*i]}, 60, {CN[i]}"); A(f"v_cmp_lt_u32 {sM[8+2*i:10+2*i]}, {sT[1]}, {CN[i]}")
    for i in range(2): A(f"v_xor_b32_dpp {XR[2+i]}, {XR[2+i]}, {XR[2+i]} quad_perm:[1,0,3,2] {dpp}")
    for i in range(2): A(f"v_cndmask_b32 {aS[i]}, -2.0, {aG[i]}, {sM[4+2*i:6+2*i]}")
    for i in range(2): A(f"v_xor_b32_dpp {XR[2+i]}, {XR[2+i]}, {XR[2+i]} quad_perm:[2,3,0,1] {dpp}")
    for i in range(2): A(f"v_cndmask_b32 {ST[i]}, {t0}, {t1}, {sM[8+2*i:10+2*i]}")
    A(f"s_mov_b64 exec, {sM[2:4]}")
    for i in range(2): A(f"v_xor_b32 {SC[i][3]}, {XR[2+i]}, {ST[i]}")
    A("s_mov_b64 exec, -1")
    for i in range(2): A(f"buffer_store_dwordx4 {SC[i]}, {aS[i]}, {SX}, {sT[2]} offen sc1")
    stamp(A, 6)
    srd(A, SZ, pPos, N * 6)
    def poll():
        for q in range(4): A(f"buffer_load_dwordx2 {RP[2*q:2*q+2]}, {vRo}, {SX}, {sS2[q-1] if q else 0} offen sc1")
    def posdma(k):
        if k < 7:
            A(f"s_add_u32 m0, {sW10}, {POS + 8192*k}"); A(f"s_mov_b32 {sT[1]}, {8192*k}"); A(f"buffer_load_dwordx4 {vD}, {SZ}, {sT[1]} offen lds")
        else:
            A(f"""
            s_cmp_gt_u32 {sW}, 2
            s_cbranch_scc1 L_ptail
            v_add_u32 {vSl}, {8192*7}, {vD}
            s_add_u32 m0, {sW10}, {POS + 8192*7}
            v_cmpx_gt_u32 vcc, 60032, {vSl}
            buffer_load_dwordx4 {vSl}, {SZ}, 0 offen lds
            s_mov_b64 exec, -1
            L_ptail:
            """)
    A("s_waitcnt vmcnt(4)")
    def scale(r):
        for i in range(4):
            A(f"v_lshlrev_b32 {t0}, 16, {r[i]}"); A(f"v_and_b32 {t1}, 0xffff0000, {r[i]}")
            A(f"v_mul_f32 {t0}, {NLOG2E:#x}, {t0}"); A(f"v_mul_f32 {t1}, {NLOG2E:#x}, {t1}"); A(f"v_cvt_pk_bf16_f32 {r[i]}, {t0}, {t1}")
    A("s_setprio 0")
    A("s_barrier")
    stamp(A, 7)
    WD = D
    def frag(dst, base, s, n):
        for half in range(2): A(f"ds_read_b64_tr_b16 {dst[2*half:2*half+2]}, {vT2 if n else vT1} offset:{base + (16*s + 4*half)*128}")
    def frags(dst, base, n):
        for s in range(4): frag(dst[16*n+4*s:16*n+4*s+4], base, s, n)
    npre = geto("npre", 3); hp = geto("npost", 1); pollat = geto("poll", 3)
    state = {"k": 0}
    def vm():
        k = state["k"]; state["k"] += 1
        if k == 0 and "xjob" in OPT: A("s_nop 7")
        k -= 2 if "xjob" in OPT else 0
        if k < 0: return
        if k == 0: posdma(7)
        if k < npre: posdma(k)
        if k == geto("hpf", -1):
            A(f"""
            s_and_b32 {sT[0]}, s2, -8
            s_add_u32 {sT[0]}, {sT[0]}, {sW}
            s_mul_i32 {sT[0]}, {sT[0]}, 40
            v_add_u32 {vSl}, {sT[0]}, {vL}
            s_bfm_b64 exec, 40, 0
            buffer_load_dword {vJ}, {vSl}, {SH}, 0 idxen
            s_mov_b64 exec, -1
            """)
        if k == geto("epf", -1):
            ne = geto("nepf", 32)
            A(f"""
            s_lshl_b32 {sT[0]}, s2, 3
            s_add_u32 {sT[0]}, {sT[0]}, {sW}
            s_mul_i32 {sT[0]}, {sT[0]}, {ne}
            v_add_lshl_u32 {vSl}, {vL}, {sT[0]}, 2
            {'s_bfm_b64 exec, %d, 0' % ne if ne < 64 else ''}
            buffer_load_dword {vJ}, {vSl}, {SE}, 0 idxen
            s_mov_b64 exec, -1
            """)
        if k == pollat:
            poll()
            for u in range(hp): posdma(npre + u)
    JF = Y[0:16]; JD = Y[16:32]
    for s in range(4):
        for half in range(2): A(f"ds_read_b64_tr_b16 {JF[4*s+2*half:4*s+2*half+2]}, {aFj} offset:{(16*s + 4*half)*128}")
    PB = W2[0:8]
    def build_pb():
        A(f"s_mov_b32 {sT[2]}, 0xaaaaaaaa"); A(f"s_mov_b32 {sT[3]}, 0xaaaaaaaa"); A(f"v_mov_b32 {t0}, 0x3f80"); A(f"v_cndmask_b32 {t0}, {t0}, 1.0, {sT[2:4]}")
        A(f"s_mov_b32 {sM[0]}, 3"); A(f"s_mov_b32 {sM[1]}, 0x30000")
        for r in range(8):
            b = (r >> 2) * 4 + ((r >> 1) & 1) * 8 + (r & 1) * 2
            A(f"s_lshl_b64 {sT[2:4]}, {sM[0:2]}, {b}"); A(f"v_cndmask_b32 {PB[r]}, 0, {t0}, {sT[2:4]}")
    if "fine" in OPT: stamp(A, 23); A("s_waitcnt lgkmcnt(0)"); stamp(A, 24)
    for s in range(4):
        A(f"s_waitcnt lgkmcnt({6 - 2*s})")
        A(f"{mf} {JD}, {JF[4*s:4*s+4]}, {BH[4*s:4*s+4]}, {JD if s else 0}")
    if "fine" in OPT: stamp(A, 25)
    vm()
    if "fine" in OPT: A("s_waitcnt lgkmcnt(0)"); stamp(A, 26)
    A(f"""
    s_lshl_b32 {sT[0]}, s2, 14
    v_lshl_add_u32 {vRo}, v0, 3, {sT[0]}
    s_movk_i32 {sS2[0]}, 4096
    s_movk_i32 {sS2[1]}, 8192
    s_movk_i32 {sS2[2]}, 12288
    s_mov_b32 exec_lo, 0xfffff
    s_mov_b32 exec_hi, 0xfffff
    """)
    for i in range(4): A(f"ds_write_b128 {aWj}, {JD[4*i:4*i+4]} offset:{32*i}")
    A("s_mov_b64 exec, -1")
    if "fine" in OPT: stamp(A, 27)
    A(f"s_cmp_gt_u32 {sW}, 2"); A("s_cbranch_scc1 L_nowx"); A(f"s_cmp_eq_u32 {sW}, 0"); A("s_cbranch_scc1 L_wx")
    scale(WB)
    A(f"""
    ds_write_b128 {aWs}, {WB} offset:{8192 - 1024}
    s_branch L_nowx
    L_wx:
    v_lshlrev_b32 {WB[0]}, 16, {WB[0]}
    v_lshlrev_b32 {t0}, 2, {vL}
    ds_write_b32 {t0}, {WB[0]} offset:{WX}
    L_nowx:
    """)
    vm()
    if "fine" in OPT: A("s_waitcnt lgkmcnt(0)"); stamp(A, 28)
    A(zero16(ACC[0:16], ZERO)); A(zero16(ACC[16:32], ZERO))
    A("s_waitcnt lgkmcnt(0)"); A("s_barrier")
    stamp(A, 8)
    for n in range(2):
        for k in range(5): A(f"ds_read_b32 {Y[16*n+k]}, {aA} offset:{272*k + 128*n}")
        A(f"ds_read_u16 {WD[n]}, {aWD} offset:{64*n}")
    vm()
    build_pb()
    A("s_waitcnt lgkmcnt(0)")
    frag(W4[0:4], 16384, 0, 0); frag(W4[4:8], 16384, 0, 1)
    vm()
    for n in range(2):
        a = Y[16*n:16*n+16]
        A(f"v_lshlrev_b32 {a[5]}, 16, {WD[n]}")
        for i in range(6): A(f"v_mul_f32 {a[i]}, {NLOG2E:#x}, {a[i]}")
        for i in range(6): A(f"v_and_b32 {a[8+i]}, 0xffff0000, {a[i]}")
    vm()
    A("s_mov_b32 exec_lo, 0")
    for n in range(2):
        a = Y[16*n:16*n+16]
        for i in range(6): A(f"v_sub_f32 {a[8+i]}, {a[i]}, {a[8+i]}")
    A("s_mov_b64 exec, -1")
    for n in range(2):
        a = Y[16*n+8:16*n+16]; B = BX[4*n:4*n+4]
        A(f"v_cvt_pk_bf16_f32 {B[0]}, {a[0]}, {a[1]}"); A(f"v_cvt_pk_bf16_f32 {B[1]}, {a[2]}, {a[3]}")
        A(f"v_cvt_pk_bf16_f32 {B[2]}, {a[4]}, 0"); A(f"v_cvt_pk_bf16_f32 {B[3]}, 0, {a[5]}")
    A("s_waitcnt lgkmcnt(3)")
    for j in range(3):
        for n in range(2):
            A(f"ds_read_b32 {ZH[2*j+n]}, {aZ} offset:{40*272 + 544*j + 128*n}"); A(f"ds_read_u16_d16_hi {HR[2*j+n]}, {aHR[j]} offset:{64*n}")
    vm()
    A("\n".join(st2[ncut:]))
    vm()
    stamp(A, 9)
    XQ = Y[0]
    def xorall(r):
        A(f"v_bitop3_b32 {XQ}, {r[0]}, {r[1]}, {r[2]} bitop3:0x96"); A(f"v_bitop3_b32 {Y[1]}, {r[3]}, {r[4]}, {r[5]} bitop3:0x96")
        A(f"v_bitop3_b32 {XQ}, {XQ}, {r[6]}, {r[7]} bitop3:0x96"); A(f"v_xor_b32 {XQ}, {XQ}, {Y[1]}")
    PW = Y[8:20]; PA = TM[24:32]
    A(f"s_waitcnt vmcnt({hp + (geto('hpf', -1) > pollat) + (geto('epf', -1) > pollat)}) lgkmcnt(0)")
    A("L_poll:")
    xorall([RP[i] for i in range(8)])
    pre = [x for i in range(3) for x in (f"v_cmp_ne_u32 {sM[2*i:2*i+2]}, 0, {RP[i]}", f"v_and_b32 {PA[i]}, 0x38, {RP[i]}")]
    for k, c in enumerate(("quad_perm:[1,0,3,2]", "quad_perm:[2,3,0,1]", "row_half_mirror")):
        A(pre[2*k]); A(pre[2*k+1]); A(f"v_xor_b32_dpp {XQ}, {XQ}, {XQ} {c} {dpp}")
    A(f"""
    v_cmp_ne_u32 vcc, {sK}, {XQ}
    s_add_u32 {sTo}, {sTo}, 1
    s_cbranch_vccz L_got
    s_cmp_gt_u32 {sTo}, {TIMEOUT}
    s_cbranch_scc1 L_timeout
    """)
    poll()
    A(f"""
    s_waitcnt vmcnt(0)
    s_branch L_poll
    L_timeout:
    s_mov_b32 {sOv}, 1
    L_got:
    """)
    stamp(A, 10)
    def notag(i, pat):
        A(f"s_and_b32 {sM[2*i]}, {sM[2*i]}, {pat}"); A(f"s_and_b32 {sM[2*i+1]}, {sM[2*i+1]}, {pat}")
    def atomics(idx):
        for i in idx:
            if i % 2 == 0: notag(i, "0xfefefefe")
            A(f"s_mov_b64 exec, {sM[2*i:2*i+2]}"); A(f"ds_add_rtn_u32 {PA[i]}, {PA[i]}, {v8}")
        A("s_mov_b64 exec, -1")
    def words(r, W, q):
        A(f"v_and_b32 {W[0]}, 0x3ffff, {r}"); A(f"v_lshrrev_b32 {W[1]}, 18, {r}"); A(f"v_add_u32 {W[0]}, {W[0]}, {vCB[q]}")
    def writes(idx, extra=0):
        for k, i in enumerate(idx):
            A(f"s_waitcnt lgkmcnt({len(idx)-1+extra})")
            A(f"s_mov_b64 exec, {sM[2*i:2*i+2]}"); A(f"ds_write_b64 {PA[i]}, {PW[2*k:2*k+2]}")
        A("s_mov_b64 exec, -1")
    def secloads(tag):
        for q in range(4):
            A(f"""
            s_mov_b64 exec, {sS2[2*q:2*q+2]}
            s_cbranch_execz L_{tag}{q}
            s_mov_b32 {sT[0]}, {SEC + 4096*q}
            buffer_load_dwordx2 {RS[q]}, {vRo}, {SX}, {sT[0]} offen sc1
            L_{tag}{q}:
            """)
        A("s_mov_b64 exec, -1")
    def read_idx(e=True):
        for i in range(4): A(f"ds_read_b32 {IX[2*i]}, {vAh} offset:{64*i}")
        if e: A(f"ds_read_b32 {IX[8]}, {vAe}")
    adv_idx = [f"v_add_u32 {vAh}, 256, {vAh}", f"v_add_u32 {vAe}, 256, {vAe}"]
    shift_e = f"v_lshrrev_b32 {IX[8]}, 6, {IX[8]}"
    E0 = Y[6:8]
    def dma_h(rng=range(4)):
        for i in rng:
            A(f"s_add_u32 m0, {sStg}, {1024*i}"); A("s_nop 0"); A(f"buffer_load_dwordx4 {IX[2*i:2*i+2]}, {SH}, 0 idxen offen sc1 lds")
    def dma_e():
        A(f"s_mov_b32 m0, {sEm}"); A("s_nop 0")
        A(f"buffer_load_dwordx4 {IX[8:10]}, {SE}, 0 idxen offen lds")
    read_first = read_idx
    def shift_first(): A(shift_e)
    atomics([0, 1])
    for k in range(2): words(RP[k], PW[2*k:2*k+2], 0)
    for i in range(3, 8): A(f"v_cmp_ne_u32 {sM[2*i:2*i+2]}, 0, {RP[i]}"); A(f"v_and_b32 {PA[i]}, 0x38, {RP[i]}")
    A(f"s_mov_b32 {sT[2]}, 0x01010101"); A(f"s_mov_b32 {sT[3]}, 0x01010101")
    for q in range(4):
        A(f"s_lshr_b64 {sS2[2*q:2*q+2]}, {sM[4*q+2:4*q+4]}, 7"); A(f"s_and_b64 {sS2[2*q:2*q+2]}, {sS2[2*q:2*q+2]}, {sT[2:4]}")
        for u in range(2): A(f"s_mulk_i32 {sS2[2*q+u]}, 255")
    writes([0, 1])
    secloads("sl")
    for u in range(npre + hp, 7): posdma(u)
    A(f"s_cmp_ge_u32 {sW}, 4")
    A("s_waitcnt lgkmcnt(0)"); A("s_barrier")
    stamp(A, 16)
    def try_early(lab):
        shift_first()
        A(f"""
        v_max3_u32 {Y[4]}, {IX[0]}, {IX[2]}, {IX[4]}
        v_max_u32 {Y[4]}, {Y[4]}, {IX[6]}
        v_cmp_le_u32 vcc, {E}, {IX[8]}
        s_mov_b64 {sT[2:4]}, vcc
        v_cmp_le_u32 vcc, {N}, {Y[4]}
        s_or_b64 vcc, vcc, {sT[2:4]}
        s_cbranch_vccnz {lab}
        """)
        dma_e(); dma_h()
        A(f"s_mov_b32 {sEarly}, 1")
    A("s_cbranch_scc1 L_noread"); read_first(); A("L_noread:")
    atomics(range(2, 8))
    A(f"s_cmp_ge_u32 {sW}, 4"); A("s_cbranch_scc1 L_noearly"); A("s_waitcnt lgkmcnt(6)")
    try_early("L_noearly")
    A("L_noearly:")
    stamp(A, 17)
    for k in range(6): words(RP[2+k], PW[2*k:2*k+2], 1 + k // 2)
    RSf = [RS[q][i] for q in range(4) for i in range(2)]
    A(f"""
    s_cmp_eq_u32 {sEarly}, 0
    s_cbranch_scc1 L_w0
    s_waitcnt vmcnt(5)
    s_branch L_w1
    L_w0:
    s_waitcnt vmcnt(0)
    L_w1:
    """)
    xorall(RSf)
    for k, c in enumerate(("quad_perm:[1,0,3,2]", "quad_perm:[2,3,0,1]", "row_half_mirror")):
        A("s_nop 1"); A(f"v_xor_b32_dpp {XQ}, {XQ}, {XQ} {c} {dpp}")
    A(f"""
    v_cmp_ne_u32 vcc, {sK}, {XQ}
    s_cbranch_vccz L_sgot
    v_xor_b32 {XQ}, {sK}, {XQ}
    v_and_b32 {XQ}, 0xffffff0f, {XQ}
    v_cmp_ne_u32 vcc, 0, {XQ}
    s_add_u32 {sTo}, {sTo}, 1
    s_cbranch_vccz L_stimeout
    s_cmp_gt_u32 {sTo}, {TIMEOUT}
    s_cbranch_scc1 L_stimeout
    """)
    secloads("rl")
    A(f"""
    s_branch L_w0
    L_stimeout:
    s_mov_b32 {sOv}, 1
    L_sgot:
    """)
    writes(list(range(2, 8)))
    stamp(A, 18)
    SWd = TM[0:16]; SA = Y[20:28]
    for i in range(8): A(f"v_cmp_ne_u32 {sM[2*i:2*i+2]}, 0, {RSf[i]}")
    for q in range(4):
        A(f"s_mov_b64 exec, {sM[4*q:4*q+2]}"); A(f"s_cbranch_execz L_sa{q}")
        notag(2*q+1, "0x7f7f7f7f")
        A(f"v_and_b32 {SA[2*q]}, 0x38, {RS[q][0]}"); A(f"v_and_b32 {SA[2*q+1]}, 0x38, {RS[q][1]}")
        A(f"ds_add_rtn_u32 {SA[2*q]}, {SA[2*q]}, {v8}")
        for i in range(2): words(RS[q][i], SWd[4*q+2*i:4*q+2*i+2], q)
        A(f"s_mov_b64 exec, {sM[4*q+2:4*q+4]}"); A(f"ds_add_rtn_u32 {SA[2*q+1]}, {SA[2*q+1]}, {v8}")
        A(f"L_sa{q}:")
    A("s_mov_b64 exec, -1")
    A(f"s_cmp_lt_u32 {sW}, 4"); A("s_waitcnt lgkmcnt(5)"); A("s_cbranch_scc1 L_noread2"); read_first(); A("L_noread2:")
    for i in range(4): A(f"ds_write_b64 {aTz}, {ZERO} offset:{512*i}")
    A("s_waitcnt lgkmcnt(4)")
    for q in range(4):
        A(f"s_mov_b64 exec, {sM[4*q:4*q+2]}"); A(f"s_cbranch_execz L_sb{q}")
        A(f"ds_write_b64 {SA[2*q]}, {SWd[4*q:4*q+2]}")
        A(f"s_mov_b64 exec, {sM[4*q+2:4*q+4]}"); A(f"ds_write_b64 {SA[2*q+1]}, {SWd[4*q+2:4*q+4]}")
        A(f"L_sb{q}:")
    A(f"""
    s_mov_b64 exec, -1
    s_cmp_eq_u32 {sOv}, 0
    s_cbranch_scc1 L_noflag
    ds_write_b32 {ZERO[0]}, {v8} offset:{FLAG}
    L_noflag:
    """)
    def young_early():
        A(f"s_cmp_lt_u32 {sW}, 4"); A("s_cbranch_scc1 L_noearly2")
        try_early("L_noearly2")
        A("L_noearly2:")
    if "yafter" not in OPT: young_early()
    stamp(A, 19)
    A(f"""
    s_waitcnt lgkmcnt(0)
    s_barrier
    ds_read_b32 {t0}, {aCn}
    """)
    if "yafter" in OPT: young_early()
    A(f"""
    s_waitcnt lgkmcnt(0)
    v_cmp_gt_u32 vcc, {t0}, {vLim}
    v_readlane_b32 {sCnt}, {t0}, {sW}
    s_and_b32 {sSlow}, vcc_lo, 0x1ff
    s_sub_u32 {sCnt}, {sCnt}, {sLb}
    s_lshr_b32 {sCnt}, {sCnt}, 3
    s_cmp_eq_u32 {sSlow}, 0
    s_cselect_b32 {sCnt}, {sCnt}, 0
    s_cselect_b32 {sEarly}, {sEarly}, 0
    s_cselect_b32 {sScan}, {E}, 0
    """)
    mk_at = f"v_lshl_add_u32 {vAt}, {vSl}, 3, {vTrow}"
    derive_a = lines(f"""
        v_mul_u32_u24 {DT[0]}, 6, {EN[1]}
        v_and_b32 {vSl}, 7, {EN[0]}
        v_mad_u32_u24 {DT[1]}, {vSl}, 6, {sPd}
        v_lshlrev_b32 {vAl}, 4, {vSl}
        """)
    def pos_reads():
        for i in range(3): A(f"ds_read_u16_d16_hi {PS[i]}, {DT[0]} offset:{POS+2*i}")
        for i in range(3): A(f"ds_read_u16_d16_hi {PD[i]}, {DT[1]} offset:{POS+2*i}")
    lut_read = f"ds_read_b96 {X[0:3]}, {vAl} offset:{LUT}"
    derive_b = lines(f"""
        v_sub_f32 {DT[0]}, {PD[0]}, {PS[0]}
        v_sub_f32 {DT[1]}, {PD[1]}, {PS[1]}
        v_sub_f32 {DT[2]}, {PD[2]}, {PS[2]}
        v_cvt_pk_bf16_f32 {D[0]}, {DT[0]}, {DT[1]}
        v_cvt_pk_bf16_f32 {D[1]}, {DT[2]}, 1.0
        v_lshlrev_b32 {DT[0]}, 16, {D[0]}
        v_and_b32 {DT[1]}, 0xffff0000, {D[0]}
        v_lshlrev_b32 {DT[2]}, 16, {D[1]}
        v_mul_f32 {DT[0]}, {DT[0]}, {DT[0]}
        v_fmac_f32 {DT[0]}, {DT[1]}, {DT[1]}
        v_fmac_f32 {DT[0]}, {DT[2]}, {DT[2]}
        v_cvt_pk_bf16_f32 {X[3]}, 0, {DT[0]}
        """)
    read_entry = f"ds_read_b64 {EN}, {vAn}"; adv_n = f"v_add_u32 {vAn}, 256, {vAn}"
    flip_v = f"v_add_u32 {ERD}, {sEx}, {ERD}"
    def flip_s(): A(f"s_add_u32 {sEm}, {sEm}, {sEx}"); A(f"s_sub_u32 {sEx}, 0, {sEx}")
    def read_he():
        for s in range(4): A(f"ds_read_b128 {H[4*s:4*s+4]}, {HRD[s]}")
        A(f"ds_read_b128 {EA}, {ERD}")
    def m1(n):
        y = Y[16*n:16*n+16]
        ops = [(X, BX[4*n:4*n+4]), (EA, W4[4*n:4*n+4])] + [(H[8*n+4*s:8*n+4*s+4], PB[4*s:4*s+4]) for s in range(2)]
        return [f"{mf} {y}, {a}, {b}, {y if i else 0}" for i, (a, b) in enumerate(ops)]
    ndef = geto("def", 0)
    A("L_round:")
    stamp(A, 20)
    A(f"""
    s_add_u32 {sNt}, {sCnt}, 31
    s_lshr_b32 {sNt}, {sNt}, 5
    s_cbranch_scc0 L_round_end
    s_lshl_b32 {sT[0]}, {sNt}, 5
    s_sub_u32 {sT[0]}, {sT[0]}, {sCnt}
    s_lshl_b32 {sT[1]}, {sCnt}, 3
    v_add_u32 {t0}, {sT[1]}, {LO[2]}
    s_bfm_b64 exec, {sT[0]}, 0
    ds_write_b64 {t0}, {INV}
    s_mov_b64 exec, -1
    ds_read_b64 {EN}, {LO[2]}
    ds_read_b64 {D}, {LO[2]} offset:256
    s_cmp_lg_u32 {sEarly}, 0
    s_cbranch_scc1 L_have0
    v_mov_b32 {vAh}, {LO[0]}
    v_mov_b32 {vAe}, {LO[1]}
    """)
    read_first(); A("s_waitcnt lgkmcnt(0)"); shift_first(); dma_e(); dma_h()
    A("L_have0:")
    A("\n".join(adv_idx)); read_idx(); A("\n".join(adv_idx))
    A(f"v_add_u32 {vAn}, 512, {LO[2]}")
    A(f"s_mov_b32 {sTi}, 2"); A(f"s_mov_b32 {sEarly}, 0")
    A("s_waitcnt lgkmcnt(5)")
    A("\n".join(derive_a)); pos_reads(); A(lut_read); A(mk_at)
    A(f"v_mov_b32 {EN[0]}, {D[0]}"); A(f"v_mov_b32 {EN[1]}, {D[1]}")
    A(f"s_cmp_lt_u32 {sNt}, 2")
    A("s_waitcnt vmcnt(0) lgkmcnt(7)")
    stamp(A, 21)
    read_he(); A(shift_e)
    A("s_waitcnt lgkmcnt(5)")
    A("\n".join(derive_b)); A(f"ds_write_b64 {vAt}, {D}")
    A("\n".join(derive_a))
    A("s_waitcnt lgkmcnt(1)")
    mm = m1(0)
    A("\n".join(mm[:2]))
    A("s_cbranch_scc1 L_nd1"); dma_e(); dma_h(); A("L_nd1:")
    pos_reads(); read_idx(); A("\n".join(mm[2:])); A("s_waitcnt lgkmcnt(0)")
    stamp(A, 13)
    one = lambda r: f"v_mfma_f32_16x16x4_4b_bf16 {r}, {HALF}, {HALF}, {r}"
    def finish(o, part):
        t = TM[16*o:16*o+16]; y = Y[16*o:16*o+16]
        if part == "mul0": return [f"v_mul_f32 {t[i]}, {y[i]}, {t[i]}" for i in range(8)]
        if part == "mul1": return [f"v_mul_f32 {t[i]}, {y[i]}, {t[i]}" for i in range(8, 16)]
        if part == "cvt": return [f"v_cvt_pk_bf16_f32 {PK[i]}, {t[2*i]}, {t[2*i+1]}" for i in range(8)]
        if part == "m2": return [f"{mf} {ACC[16*o:16*o+16]}, {PK[4*u:4*u+4]}, {A2[4*u:4*u+4]}, {ACC[16*o:16*o+16]}" for u in range(2)]
    def phase(n, f1, f2, first=False):
        o = 1 - n; t = TM[16*n:16*n+16]; y = Y[16*n:16*n+16]
        a = m1(o)
        if first:
            prio(1); A(a[0]); A("s_nop 9")
        else:
            prio(0); A("\n".join(finish(o, "mul1"))); prio(1); A(a[0])
        for i in range(16):
            if i % 4 == 0 and i: A(a[i // 4])
            A(f"v_exp_f32 {t[i]}, {y[i]}")
        A("\n".join(f1)); A(one(t))
        m2 = finish(o, "m2")
        if not first: A("\n".join(finish(o, "cvt"))); A(m2[0])
        A("\n".join(f2))
        for i in range(16):
            if i == 2 and not first: A(m2[1])
            if "xnorcp" not in OPT: A(f"v_rcp_f32 {t[i]}, {t[i]}")
        A("\n".join(finish(n, "mul0")))
        prio(2)
    phase(0, [shift_e, "s_nop 0"], derive_b, first=True)
    A("s_branch L_prep1")
    A(".p2align 6")
    A("L_tile:")
    phase(0, derive_b[:9], derive_b[9:] + [shift_e])
    A("L_prep1:")
    for i in range(4): A(f"ds_read_b64_tr_b16 {A2[2*i:2*i+2]}, {vTtr} offset:{512*i}")
    A(f"ds_write_b64 {vAt}, {ZERO}")
    A(f"s_cmp_gt_u32 {sTi}, {sNt}"); A("s_cbranch_scc1 L_last")
    A(read_entry); A(lut_read)
    A("s_waitcnt vmcnt(0)")
    read_he()
    A(f"s_cmp_ge_u32 {sTi}, {sNt}")
    A("s_waitcnt lgkmcnt(0)")
    A("s_cbranch_scc1 L_skipdma")
    if "efirst" not in OPT: dma_h(range(4 - ndef)); dma_e()
    else: dma_e(); dma_h(range(4 - ndef))
    A("L_skipdma:")
    phase(1, [mk_at] + derive_a, adv_idx + [adv_n])
    A(f"ds_write_b64 {vAt}, {D}")
    pos_reads()
    if ndef:
        A(f"s_cmp_ge_u32 {sTi}, {sNt}"); A("s_cbranch_scc1 L_skipdma2"); dma_h(range(4 - ndef, 4)); A("L_skipdma2:")
    read_idx()
    A(f"s_add_u32 {sTi}, {sTi}, 1")
    A("s_waitcnt lgkmcnt(0)")
    A("s_branch L_tile")
    WXR = [H[0:4], H[4:8], H[8:12], H[12:16], EA, X, A2[0:4], A2[4:8]]
    def epi_reads():
        A(f"v_xor_b32 {DT[3]}, 64, {vWb}"); A(f"v_lshlrev_b32 {vAl}, 4, {vHalf}")
        for n2 in range(2):
            for st in range(4):
                for hf in range(2):
                    A(f"ds_read_b64_tr_b16 {W2[16*n2+4*st+2*hf:16*n2+4*st+2*hf+2]}, {DT[3] if n2 else vWb} offset:{(16*st + 8*hf)*128}")
            A("s_waitcnt lgkmcnt(6)")
        for i in range(6): A(f"ds_read_b128 {WXR[i]}, {vAl} offset:{WX + 32*i}")
    A("L_last:")
    A(f"s_cmp_lt_u32 {sScan}, {E}"); A("s_cbranch_scc1 L_noer"); epi_reads(); A("L_noer:")
    prio(0); A("\n".join(finish(0, "mul1"))); prio(1)
    A("\n".join(finish(0, "cvt")))
    m2 = finish(0, "m2")
    A("s_waitcnt lgkmcnt(0)")
    for i in range(16):
        if i in (1, 4): A(m2[i // 4])
        A(f"v_exp_f32 {TM[16+i]}, {Y[16+i]}")
    epiaddr = lines(f"""
    v_lshrrev_b32 {DT[1]}, 2, {vL}
    v_and_b32 {DT[2]}, 3, {vL}
    v_add_u32 {DT[1]}, {sN0}, {DT[1]}
    v_mul_u32_u24 {DT[1]}, 6, {DT[1]}
    v_lshl_add_u32 {DT[1]}, {DT[2]}, 1, {DT[1]}
    ds_read_u16_d16_hi {PS[0]}, {DT[1]} offset:{POS}
    v_add_u32 {DT[0]}, {sN0}, {vHalf}
    v_lshlrev_b32 {DT[0]}, 7, {DT[0]}
    v_and_b32 {DT[2]}, 31, {vL}
    v_lshl_add_u32 {DT[0]}, {DT[2]}, 1, {DT[0]}
    v_add_u32 {DT[1]}, {N*128}, {DT[1]}
    """)
    A("\n".join(epiaddr[:2])); A(one(TM[16:32])); A("\n".join(epiaddr[2:])); A("s_nop 2")
    for i in range(16): A(f"v_rcp_f32 {TM[16+i]}, {TM[16+i]}")
    A("\n".join(finish(1, "mul0") + finish(1, "mul1") + finish(1, "cvt") + ["s_nop 1"] + finish(1, "m2")))
    A(f"s_cmp_ge_u32 {sScan}, {E}"); A("s_cbranch_scc1 L_epi")
    A("L_round_end:")
    A(f"s_cmp_lt_u32 {sScan}, {E}"); A("s_cbranch_scc1 L_more")
    epi_reads(); A("\n".join(epiaddr)); A("s_branch L_epi")
    A("L_more:")
    A(f"s_cmp_lg_u32 {sScan}, 0"); A("s_cbranch_scc1 L_havetab")
    srd(A, SZ, pH, N, 128)
    FP = W2[8:24]
    A(f"""
    v_lshlrev_b32 {t0}, 4, v0
    v_and_b32 {t1}, 16, {vL}
    v_lshlrev_b32 {t1}, 2, {t1}
    v_xor_b32 {t0}, {t0}, {t1}
    s_add_u32 m0, {sW10}, {STG}
    s_movk_i32 {sT[0]}, 8192
    s_waitcnt vmcnt(0)
    s_barrier
    buffer_load_dwordx4 {t0}, {SY}, {sT[0]} offen lds
    v_add_u32 {t0}, {STG - WE}, {vT1}
    v_xor_b32 {t1}, 64, {t0}
    v_and_b32 {EN[0]}, 31, {vL}
    v_lshl_add_u32 {EN[0]}, {sW}, 5, {EN[0]}
    v_lshlrev_b32 {EN[1]}, 4, {vHalf}
    v_lshlrev_b32 {D[1]}, 5, {vHalf}
    s_mov_b32 {sTi}, {sW}
    s_waitcnt vmcnt(0)
    s_barrier
    """)
    for n in range(2):
        for s_ in range(4):
            for half in range(2): A(f"ds_read_b64_tr_b16 {Y[16*n+4*s_+2*half:16*n+4*s_+2*half+2]}, {t1 if n else t0} offset:{(16*s_ + 4*half)*128}")
        A("s_waitcnt lgkmcnt(0)")
    A("L_tab:")
    for s_ in range(4): A(f"buffer_load_dwordx4 {H[4*s_:4*s_+4]}, {EN}, {SZ}, 0 idxen offen offset:{32*s_}")
    A(f"v_mov_b32 {D[0]}, {EN[0]}"); A(f"v_add_u32 {EN[0]}, 256, {EN[0]}")
    A("s_waitcnt vmcnt(0)")
    for n in range(2):
        for s_ in range(4): A(f"{mf} {TM[16*n:16*n+16]}, {Y[16*n+4*s_:16*n+4*s_+4]}, {H[4*s_:4*s_+4]}, {TM[16*n:16*n+16] if s_ else 0}")
    A("s_nop 11")
    for k in range(32): A(f"v_mul_f32 {TM[k]}, {NLOG2E:#x}, {TM[k]}")
    for k in range(16): A(f"v_cvt_pk_bf16_f32 {FP[k]}, {TM[2*k]}, {TM[2*k+1]}")
    for k in range(4): A(f"buffer_store_dwordx4 {FP[4*k:4*k+4]}, {D}, {SH}, 0 idxen offen offset:{64*(k//2) + 16*(k%2)} sc1")
    A(f"""
    s_add_u32 {sTi}, {sTi}, 8
    s_cmp_lt_u32 {sTi}, {(N + 31)//32}
    s_cbranch_scc1 L_tab
    s_waitcnt vmcnt(0)
    s_barrier
    L_havetab:
    """)
    A(f"s_mov_b32 {sCnt}, 0")
    A("L_scan:")
    Dd = H[0:4]; Ss = H[4:8]
    A(f"""
    s_lshl_b32 {sT[0]}, {sScan}, 2
    v_lshl_add_u32 {DT[0]}, {vL}, 4, {sT[0]}
    global_load_dwordx4 {Dd}, {DT[0]}, {pDst}
    global_load_dwordx4 {Ss}, {DT[0]}, {pSrc}
    v_lshlrev_b32 {DT[0]}, 4, {DT[0]}
    s_waitcnt vmcnt(0)
    """)
    for i in range(4):
        A(f"""
        v_subrev_u32 {DT[1]}, {sN0}, {Dd[i]}
        v_cmp_gt_u32 vcc, {sNn}, {DT[1]}
        v_add3_u32 {EN[0]}, {DT[0]}, {DT[1]}, 1
        v_mov_b32 {EN[1]}, {Ss[i]}
        v_mbcnt_lo_u32_b32 {DT[2]}, vcc_lo, 0
        v_mbcnt_hi_u32_b32 {DT[2]}, vcc_hi, {DT[2]}
        v_add_u32 {DT[2]}, {sCnt}, {DT[2]}
        v_lshl_add_u32 {DT[2]}, {DT[2]}, 3, {sLb}
        s_bcnt1_i32_b64 {sT[0]}, vcc
        s_add_u32 {sCnt}, {sCnt}, {sT[0]}
        s_mov_b64 exec, vcc
        ds_write_b64 {DT[2]}, {EN}
        s_mov_b64 exec, -1
        v_add_u32 {DT[0]}, 64, {DT[0]}
        """)
    A(f"""
    s_add_u32 {sScan}, {sScan}, 256
    s_cmp_ge_u32 {sScan}, {E}
    s_cbranch_scc1 L_round
    s_cmp_le_u32 {sCnt}, {CAP - 256}
    s_cbranch_scc1 L_scan
    s_branch L_round
    """)
    A("L_epi:")
    stamp(A, 11)
    SO = SY
    srd(A, SO, pOut, N * 134)
    A(f"""
    s_cmp_eq_u32 {sSlow}, 0
    s_cselect_b32 {sT[0]}, s2, 0
    s_or_b32 {sT[0]}, {sT[0]}, {sW}
    s_cbranch_scc1 L_noepo
    v_mov_b32 {DT[2]}, {EPO}
    s_mov_b64 exec, 1
    global_atomic_add {DT[2]}, {v8}, {pWs}
    s_mov_b64 exec, -1
    L_noepo:
    s_waitcnt lgkmcnt(0)
    """)
    for i in (6, 7): A(f"ds_read_b128 {WXR[i]}, {vAl} offset:{WX + 32*i}")
    fm = [f"v_mul_f32 {DT[2]}, {ACC[0]}, {WXR[0][0]}"] + [f"v_fmac_f32 {DT[2]}, {ACC[i]}, {WXR[i//4][i%4]}" for i in range(1, 32)]
    for st in range(4):
        for i in range(8): A(f"v_mul_f32 {ACC[8*st+i]}, {NLN2:#x}, {ACC[8*st+i]}")
        for i in range(4): A(f"v_cvt_pk_bf16_f32 {Y[4*st+i]}, {ACC[8*st+2*i]}, {ACC[8*st+2*i+1]}")
        A(fm[2*st]); A(fm[2*st+1])
        for n2 in range(2): A(f"{mf} {TM[16*n2:16*n2+16]}, {Y[4*st:4*st+4]}, {W2[16*n2+4*st:16*n2+4*st+4]}, {TM[16*n2:16*n2+16] if st else 0}")
    A("\n".join(fm[8:24])); A("s_waitcnt lgkmcnt(0)"); A("\n".join(fm[24:]))
    A(f"v_mov_b32 {DT[3]}, {DT[2]}")
    A(f"s_cmp_eq_u32 {sNn}, 5"); A(f"s_mov_b32 {sT[2]}, 0x7777"); A(f"s_cselect_b32 {sT[2]}, 0x77777, {sT[2]}"); A(f"s_mov_b32 {sT[3]}, 0")
    A(f"v_permlane32_swap_b32 {DT[2]}, {DT[3]}")
    TT = PK
    for n in range(2):
        for j in range(3):
            z = ZH[2*j+n]; t = TT[2*j+n]
            A(f"v_add_f32 {z}, {z}, {TM[16*n+4*j+3]}")
            A(f"v_mul_f32 {t}, {NLOG2E:#x}, {z}"); A(f"v_exp_f32 {t}, {t}")
    A(f"v_add_f32 {DT[2]}, {DT[2]}, {DT[3]}")
    for i in range(6): A(f"v_add_f32 {TT[i]}, 1.0, {TT[i]}"); A(f"v_rcp_f32 {TT[i]}, {TT[i]}")
    A(f"v_add_f32 {DT[2]}, {DT[2]}, {PS[0]}")
    for i in range(6):
        A(f"v_fmac_f32 {HR[i]}, {ZH[i]}, {TT[i]}"); A(f"v_cvt_pk_bf16_f32 {HR[i]}, {HR[i]}, {HR[i]}")
        if i < 4: A(f"buffer_store_short {HR[i]}, {DT[0]}, {SO}, 0 offen offset:{256*(i//2) + 64*(i%2)}")
    A(f"""
    v_cvt_pk_bf16_f32 {DT[2]}, {DT[2]}, {DT[2]}
    s_mov_b64 exec, {sT[2:4]}
    buffer_store_short {DT[2]}, {DT[1]}, {SO}, 0 offen
    s_cbranch_scc0 L_fin
    s_mov_b32 exec_lo, -1
    """)
    for n in range(2): A(f"buffer_store_short {HR[4+n]}, {DT[0]}, {SO}, 0 offen offset:{512 + 64*n}")
    A("L_fin:")
    if "stamp" in OPT:
        A("s_waitcnt vmcnt(0)"); A(f"v_writelane_b32 v255, {sTo}, 14"); A(f"v_writelane_b32 v255, {sNt}, 15")
    stamp(A, 12); stamp_out(A, pWs)
    A("L_done:"); A("s_endpgm")
    print("vgprs", nv, "sgprs", S.n, "lds", LDS_MAIN, "instrs", len(A.o), file=sys.stderr)
    return A.text()

if __name__ == "__main__":
    OPT.update(sys.argv[2:])
    if "xto" in OPT: TIMEOUT = 50
    KN = "standalone__cheap_equivariant_egnn__graph_kernel"
    s = assemble([(KN, k_main(), 256)], [(KN, NB, 512, LDS_MAIN)], single=True).replace("next_free_sgpr 96", "next_free_sgpr 102")
    open(sys.argv[1], "w").write(s)
```

```python
import sys, struct
from lib import *
N, E = 10000, 640000
NB, CH = 256, 2500
CAP = 416
NLOG2E = 0xbfb8aa3b
NLN2 = 0xbf317218
SEC = NB * NB * 64
EPO = 2 * SEC
BTO = 16 << 20
TIMEOUT = 20000
INV0 = 0xffffffc6
CNT, FLAG, LUT, WX = 0, 64, 128, 256
POS = 512
WE = POS + 60032
WH = WE + 18560
STG = WH + 16384
LIST = STG + 8 * 5120
LDS_MAIN = LIST + 8 * CAP * 8
BST = STG
BCN = STG + 32768
TB = STG
HO = STG + 34816
assert STG % 128 == 0 and WE % 128 == 0 and WH % 128 == 0 and LDS_MAIN <= 163840
OPT = set()
geto = lambda name, d: int([o for o in OPT if o.startswith(name)][0][len(name):]) if any(o.startswith(name) for o in OPT) else d
PEND = []
def stamp(A, i):
    if "marks" in OPT: A(f"M_{i}:")
    if "stamp" not in OPT: return
    k = len(PEND)
    if k >= 2: A(f"v_writelane_b32 v255, s{96+2*((k-2)%3)}, {PEND[k-2]}")
    A(f"s_memrealtime s[{96+2*(k%3)}:{97+2*(k%3)}]"); PEND.append(i)
def stamp_out(A, wsp):
    if "stamp" not in OPT: return
    A("s_waitcnt lgkmcnt(0)")
    k = len(PEND)
    for u in (k - 2, k - 1): A(f"v_writelane_b32 v255, s{96+2*(u%3)}, {PEND[u]}")
    A("s_mov_b64 exec, -1")
    A(f"v_lshrrev_b32 v1, 6, v0"); A(f"s_lshl_b32 s3, s2, 3"); A("v_add_u32 v1, s3, v1"); A("v_lshlrev_b32 v1, 7, v1"); A(f"v_add_u32 v1, {200<<20}, v1")
    A("v_and_b32 v2, 63, v0"); A("v_lshl_add_u32 v1, v2, 2, v1"); A("s_mov_b32 exec_hi, 0"); A(f"global_store_dword v1, v255, {wsp}")
def lines(s): return [l.strip() for l in s.strip().split("\n") if l.strip()]

def k_main():
    A = Asm(); COLD = []
    class cold:
        def __enter__(self): self.k = len(A.o)
        def __exit__(self, *a): COLD.extend(A.o[self.k:]); del A.o[self.k:]
    notouch = "notouch" in OPT
    def stub(name, over=False, page=None):
        if notouch and not page: return
        if over or page: A(f"s_branch L_sk_{name}")
        if page: A(".p2align 12")
        if not notouch:
            A(f"L_st_{name}:"); A("s_branch L_back1")
            if page: A(f"L_lt_{name}:"); A(f"s_branch {page}")
        if over or page: A(f"L_sk_{name}:")
    def touch_local(w, name, back):
        if notouch: return
        A(f"s_cmp_eq_u32 {sW}, {w}"); A(f"s_cbranch_scc1 L_lt_{name}"); A(f"{back}:")
    S = Regs("s", 26, 96); V = Regs("v", 1, 255)
    pH, pPos, pE, pSrc, pDst, pWe, pWx, pWh, pOut, pDbg, pWs = [R("s", 4 + 2 * i, 2) for i in range(11)]
    sW = S.alloc("wave"); sN0 = S.alloc("node0")
    SH = S.alloc("SH", 4, 4); SE = S.alloc("SE", 4, 4); SX = S.alloc("SX", 4, 4); SY = S.alloc("SY", 4, 4); SZ = S.alloc("SZ", 4, 4)
    sM = S.alloc("masks", 16, 2); sT = S.alloc("tmp", 4, 2); sS2 = S.alloc("secmask", 8, 2); sNq = S.alloc("nq", 4)
    sStg = S.alloc("stg"); sLb = S.alloc("listbase"); sCnt = S.alloc("cnt"); sNt = S.alloc("nt"); sTi = S.alloc("ti")
    sSlow = S.alloc("slow"); sScan = S.alloc("scan"); sPd = S.alloc("pd"); sNn = S.alloc("nn")
    sNon = S.alloc("nonce"); sK = S.alloc("K"); sTo = S.alloc("to"); sEarly = S.alloc("early"); sW10 = S.alloc("w10"); sNb = S.alloc("nb0")
    sOv = S.alloc("ov"); sEm = pDbg[0]; sEx = pDbg[1]
    vL = V.alloc("lane"); vHalf = V.alloc("half"); vT1 = V.alloc("t1")
    W2 = V.alloc("W2", 32, 4); W4 = V.alloc("W4", 8, 4); BX = V.alloc("BX", 8, 4)
    ACC = V.alloc("ACC", 32, 4); Y = V.alloc("Y", 32, 4); TM = V.alloc("TM", 32, 4)
    H = V.alloc("H", 16, 4); EA = V.alloc("EA", 4, 4); X = V.alloc("X", 4, 4); A2 = V.alloc("A2", 8, 4); PK = V.alloc("PK", 8, 4)
    IX = V.alloc("IX", 10, 2); HRD = V.alloc("HRD", 4); ERD = V.alloc("ERD")
    vAh = V.alloc("Ah"); vAe = V.alloc("Ae"); vAn = V.alloc("An"); vTrow = V.alloc("Trow"); vTtr = V.alloc("Ttr")
    ZB = V.alloc("ZB", 16, 4); ZERO = ZB[0:2]; D = ZB[2:4]; PS = ZB[4:7]; PD = ZB[7:10]; HR = ZB[10:16]
    EN = V.alloc("EN", 2, 2); HALF = V.alloc("HALFC", 2, 2); INV = V.alloc("INV", 2, 2)
    vAt = V.alloc("At"); DT = V.alloc("DT", 4); vSl = V.alloc("Sl"); vAl = V.alloc("Al")
    ZH = V.alloc("ZH", 6); vWb = V.alloc("Wb"); LO = V.alloc("LO", 3)
    vJ = V.alloc("junk"); vCB = V.alloc("CB", 4); v8 = V.alloc("v8")
    nv = V.n
    mf = "v_mfma_f32_32x32x16_bf16"
    dpp = "row_mask:0xf bank_mask:0xf"
    prio = lambda p: A(f"s_setprio {p}") if "noprio" not in OPT else None
    zero16 = lambda r, z: f"v_mfma_f32_16x16x4_4b_bf16 {r}, {z}, {z}, 0"
    EXA = R("v", EA.b, 16)
    assert X.b == EA.b + 4 and A2.b == EA.b + 8
    DS = Y[0:5]; SR = Y[8:13]; RC = Y[16:21]; B4 = Y[21:26]; RT = Y[26:31]
    LE = H[0:5]; Z4 = H[8:12]; v4 = H[12]; c31 = H[13]
    aD4 = TM[0]; aD1 = TM[1]; aL = TM[2]; aC = TM[3]; aG = TM[4:6]; aS = TM[6:8]; vDs = TM[8]; vD = TM[9]; aWs = TM[10]
    aHj = TM[11]; aFj = TM[12]; aWj = TM[13]; aA = TM[14]; aZ = TM[15]; aHR = TM[16:19]; aWD = TM[19]; vT2 = TM[20]; aTz = TM[21]; aCn = TM[22]; vLim = TM[23]
    t0, t1, t2, t3 = DT[0], DT[1], DT[2], DT[3]
    RP = A2; RS = [EA[0:2], EA[2:4], X[0:2], X[2:4]]; vRo = vAt
    m5 = sM[10:12]
    if "stamp" in OPT: A("v_mov_b32 v255, 0")
    stamp(A, 0)
    A(f"""
    s_cmp_ge_u32 s2, {NB}
    s_cbranch_scc1 L_done
    s_load_dwordx16 s[4:19], s[0:1], 0
    s_load_dwordx4 s[20:23], s[0:1], 64
    s_load_dwordx2 s[24:25], s[0:1], 80
    v_lshrrev_b32 {vT1}, 6, v0
    v_and_b32 {vL}, 63, v0
    v_readfirstlane_b32 {sW}, {vT1}
    s_setprio 1
    """)
    if not notouch:
        names = ["b1", "y1", "p2", "wx", "c", "poll", "b5", "w0", "p3", "e", "tile", "last", "epi"]
        nw = geto("tw", 1)
        A(f"s_cmp_lt_u32 {sW}, {8 - nw}"); A("s_cbranch_scc1 L_back1")
        A(f"s_lshr_b32 s3, s2, 3")
        if nw > 1: A(f"s_mul_i32 s3, s3, {nw}"); A(f"s_add_u32 s3, s3, {sW}")
        A(f"s_and_b32 s3, s3, 15")
        for k, nm in enumerate(names): A(f"s_cmp_eq_u32 s3, {k}"); A(f"s_cbranch_scc1 L_st_{nm}")
        A("L_back1:")
    A(f"""
    s_mul_i32 s3, s2, {CH*4}
    v_lshl_add_u32 {aD4}, v0, 4, s3
    s_add_u32 s3, s3, 8192
    v_lshl_add_u32 {aD1}, v0, 2, s3
    v_cmp_gt_u32 vcc, {CH - 2048}, v0
    v_lshrrev_b32 {vHalf}, 5, {vL}
    s_mul_i32 {sT[0]}, s2, 5000
    s_add_u32 {sNb}, {sT[0]}, 127
    s_lshr_b32 {sNb}, {sNb}, 7
    s_mov_b64 {m5}, vcc
    s_lshl_b32 {sW10}, {sW}, 10
    s_mov_b32 {sT[1]}, {EPO}
    v_mov_b32 {Z4[0]}, 0
    v_mov_b32 {Z4[1]}, 0
    v_mov_b32 {Z4[2]}, 0
    v_mov_b32 {Z4[3]}, 0
    v_lshlrev_b32 {vD}, 4, v0
    v_add_u32 {t0}, {BST}, {vD}
    v_lshlrev_b32 {t1}, 2, v0
    v_add_u32 {t1}, {BCN}, {t1}
    v_lshrrev_b32 {EN[0]}, 3, v0
    v_mul_u32_u24 {vCB[0]}, {CH*64}, {EN[0]}
    v_add_u32 {EN[0]}, {sNb}, {EN[0]}
    v_and_b32 {EN[1]}, 0x70, {vD}
    v_and_b32 {c31}, 31, {vL}
    s_mul_i32 {sLb}, {sW}, {CAP*8}
    s_add_u32 {sLb}, {sLb}, {LIST}
    v_and_b32 {t3}, 16, {vL}
    v_lshlrev_b32 {t2}, 2, {t3}
    v_xor_b32 {vDs}, {vD}, {t2}
    s_add_u32 m0, {sW10}, {WE + 8192}
    s_movk_i32 {sT[3]}, 8192
    s_mov_b32 {SY[2]}, {145*128}
    s_mov_b32 {SY[3]}, 0x20000
    s_mov_b32 {SH[2]}, {N}
    s_mov_b32 {SH[3]}, 0x20000
    s_mul_i32 {sT[2]}, {sW}, 1040
    s_waitcnt lgkmcnt(0)
    s_mov_b64 {SY[0:2]}, {pWe}
    s_mov_b32 {SH[0]}, {pH[0]}
    s_cmp_gt_u32 {sW}, 6
    s_cbranch_scc1 L_w2done
    buffer_load_dwordx4 {vDs}, {SY}, {sT[3]} offen lds
    s_cmp_lt_u32 {sW}, 6
    s_cbranch_scc1 L_w2done
    buffer_load_dwordx4 {vDs}, {SY}, {sT[3]} offen offset:1024 lds
    L_w2done:
    s_add_u32 m0, {sT[2]}, {HO}
    s_and_b32 {SH[1]}, {pH[1]}, 0xffff
    s_or_b32 {SH[1]}, {SH[1]}, 0x800000
    s_load_dword {sNon}, {pWs}, {sT[1]}
    s_cmp_ge_u32 {sW}, 5
    s_cbranch_scc1 L_share
    buffer_load_dwordx4 {EN}, {SH}, 0 idxen offen lds
    s_branch L_share_done
    L_share:
    s_lshr_b32 {sT[0]}, s2, 3
    """)
    srd(A, SY, pPos, N * 6)
    A(f"s_mov_b32 {sT[2]}, 15")
    for w, (ptr, size, cnt) in ((6, (pWe, 145 * 128, 5)), (7, (pWh, 16384, 4))):
        A(f"""
        s_cmp_eq_u32 {sW}, {w}
        s_cselect_b64 {SY[0:2]}, {ptr}, {SY[0:2]}
        s_cselect_b32 {SY[2]}, {size}, {SY[2]}
        s_cselect_b32 {sT[2]}, {cnt}, {sT[2]}
        """)
    A(f"""
    s_mul_i32 {sT[0]}, {sT[0]}, {sT[2]}
    v_add_lshl_u32 {t2}, {vL}, {sT[0]}, 7
    s_bfm_b64 exec, {sT[2]}, 0
    buffer_load_dword {vJ}, {t2}, {SY}, 0 offen
    s_mov_b64 exec, -1
    L_share_done:
    """)
    for i in range(4): A(f"ds_write_b128 {t0}, {Z4} offset:{8192*i}")
    A(f"ds_write_b32 {t1}, {Z4[0]}")
    def ld(R_, p_):
        A(f"""
        global_load_dwordx4 {R_[0:4]}, {aD4}, {p_}
        s_mov_b64 exec, {m5}
        global_load_dword {R_[4]}, {aD1}, {p_}
        s_mov_b64 exec, -1
        """)
    dpos = geto("dpos", 1); spos = geto("spos", 3)
    def slot(k):
        if dpos == k: ld(DS, pDst)
        if spos == k: ld(SR, pSrc)
    slot(0)
    A(zero16(ZB, Z4[0:2])); A(zero16(EXA, Z4[0:2]))
    A(f"""
    s_add_u32 {SH[0]}, {pWs[0]}, {BTO}
    s_addc_u32 {SH[1]}, {pWs[1]}, 0
    s_and_b32 {SH[1]}, {SH[1]}, 0xffff
    s_or_b32 {SH[1]}, {SH[1]}, 0x800000
    """)
    lo = sum(1 << ((k + 1) * 4 + (k >> 1)) for k in range(5) if k % 2 == 0)
    hi = sum(1 << ((k + 1) * 4 + (k >> 1)) for k in range(5) if k % 2 == 1)
    A(f"""
    v_mov_b32 {INV[0]}, {INV0:#x}
    v_mov_b32 {INV[1]}, {N}
    v_lshl_add_u32 {t0}, {vL}, 3, {sLb}
    ds_write_b64 {t0}, {INV}
    s_cmp_lg_u32 {sW}, 0
    s_cbranch_scc1 L_init_done
    v_lshrrev_b32 {t0}, 1, {vL}
    v_mul_u32_u24 {t0}, {CAP*8}, {t0}
    v_add_u32 {t0}, {LIST}, {t0}
    v_mov_b32 {t1}, 0x3f80
    s_mov_b64 {sT[2:4]}, 0xffff
    v_cndmask_b32 {t0}, 0, {t0}, {sT[2:4]}
    s_mov_b32 {sT[2]}, 0
    s_mov_b32 {sT[3]}, {lo:#x}
    v_cndmask_b32 {t0}, {t0}, {t1}, {sT[2:4]}
    s_mov_b32 {sT[3]}, {hi:#x}
    v_cndmask_b32 {t0}, {t0}, 1.0, {sT[2:4]}
    v_lshlrev_b32 {t1}, 2, {vL}
    ds_write_b32 {t1}, {t0}
    L_init_done:
    """)
    slot(1)
    srd(A, SX, pWs, 2 * SEC); srd(A, SY, pWe, 145 * 128); srd(A, SZ, pWh, 16384)
    A(f"""
    s_lshl_b32 {sT[0]}, s2, 3
    s_add_u32 {sT[0]}, {sT[0]}, {sW}
    s_mul_i32 {sT[0]}, {sT[0]}, 625
    s_add_u32 {sN0}, {sT[0]}, 127
    s_lshr_b32 {sN0}, {sN0}, 7
    s_add_u32 {sNn}, {sT[0]}, {625 + 127}
    s_lshr_b32 {sNn}, {sNn}, 7
    s_sub_u32 {sNn}, {sNn}, {sN0}
    v_mov_b32 {v4}, 4
    v_lshlrev_b32 {LE[0]}, 8, v0
    v_add_u32 {LE[1]}, 64, {LE[0]}
    v_add_u32 {LE[2]}, 128, {LE[0]}
    v_add_u32 {LE[3]}, 192, {LE[0]}
    v_lshlrev_b32 {LE[4]}, 6, v0
    v_add_u32 {LE[4]}, {2048*64}, {LE[4]}
    v_lshrrev_b32 {aC}, 2, v0
    v_and_b32 {t0}, 48, {vD}
    v_lshl_add_u32 {aL}, {aC}, 7, {t0}
    v_add_u32 {aL}, {BST}, {aL}
    v_lshl_add_u32 {aG[0]}, {aC}, 14, {t0}
    s_lshl_b32 {sT[2]}, s2, 6
    v_add_u32 {aG[0]}, {sT[2]}, {aG[0]}
    v_add_u32 {aG[1]}, {128*16384}, {aG[0]}
    v_and_b32 {aC}, -4, v0
    v_add_u32 {aC}, {BCN}, {aC}
    v_and_b32 {t3}, 16, {vL}
    v_add_u32 {aWs}, {WE + 8192}, {vD}
    v_and_b32 {t0}, 3, {vL}
    v_lshlrev_b32 {t0}, 3, {t0}
    v_lshl_add_u32 {t0}, {t3}, 1, {t0}
    v_and_b32 {t1}, 12, {vL}
    v_lshl_add_u32 {t2}, {t1}, 4, {t0}
    v_lshl_add_u32 {t2}, {vHalf}, 8, {t2}
    s_lshl_b32 {sT[0]}, {sW}, 11
    s_add_u32 {sT[0]}, {sT[0]}, {WE}
    s_sub_u32 {sT[1]}, {sT[0]}, 8
    v_add_u32 {vTtr}, {sT[0]}, {t2}
    v_lshl_add_u32 {vTrow}, {c31}, 6, {sT[1]}
    v_lshl_add_u32 {aTz}, {vL}, 3, {sT[0]}
    v_lshl_add_u32 {t0}, {t1}, 5, {t0}
    v_and_b32 {t1}, 8, {vL}
    v_lshl_add_u32 {t0}, {t1}, 3, {t0}
    v_lshl_add_u32 {vWb}, {vHalf}, 9, {t0}
    v_add_u32 {vWb}, {WH + 8192}, {vWb}
    v_lshl_add_u32 {t0}, {vHalf}, 10, {t0}
    v_add_u32 {vT1}, {WE}, {t0}
    v_xor_b32 {vT2}, 64, {vT1}
    """)
    slot(2)
    A(f"""
    s_bfe_u32 {sT[0]}, {sW}, 0x10001
    s_mul_i32 {sT[0]}, {sT[0]}, 20
    v_add_u32 {t0}, {sT[0]}, {c31}
    v_lshrrev_b32 {t1}, 3, {t0}
    v_add_u32 {t1}, {t1}, {vHalf}
    v_lshlrev_b32 {aHj}, 7, {t0}
    v_lshl_add_u32 {aHj}, {t1}, 4, {aHj}
    v_add_u32 {aHj}, {HO}, {aHj}
    s_and_b32 {sT[1]}, {sW}, 1
    s_lshr_b32 {sT[2]}, {sW}, 2
    s_lshl_b32 {sT[0]}, {sT[1]}, 6
    s_mul_i32 {sT[3]}, {sT[2]}, {WH - WE}
    v_xor_b32 {aFj}, {sT[0]}, {vT1}
    v_add_u32 {aFj}, {sT[3]}, {aFj}
    s_mul_i32 {sT[3]}, {sT[2]}, {40*272}
    s_lshl_b32 {sT[0]}, {sT[1]}, 7
    s_add_u32 {sT[3]}, {sT[3]}, {sT[0]}
    s_add_u32 {sT[3]}, {sT[3]}, {TB}
    v_mul_u32_u24 {aWj}, 272, {t0}
    v_lshl_add_u32 {aWj}, {vHalf}, 4, {aWj}
    v_add_u32 {aWj}, {sT[3]}, {aWj}
    s_sub_u32 {sT[0]}, {sN0}, {sNb}
    s_mul_i32 {sT[1]}, {sT[0]}, 272
    s_add_u32 {sT[1]}, {sT[1]}, {TB}
    v_lshl_add_u32 {aA}, {c31}, 2, {sT[1]}
    v_mul_u32_u24 {aZ}, 272, {vHalf}
    v_add_u32 {aZ}, {aZ}, {aA}
    v_lshlrev_b32 {t2}, 1, {c31}
    v_add_u32 {aWD}, {WE + 18432}, {t2}
    v_add_u32 {t2}, {HO}, {t2}
    v_add_u32 {t0}, {sT[0]}, {vHalf}
    """)
    for j in range(3):
        A(f"v_lshrrev_b32 {t1}, 3, {t0}"); A(f"v_lshl_add_u32 {aHR[j]}, {t0}, 7, {t2}"); A(f"v_lshl_add_u32 {aHR[j]}, {t1}, 4, {aHR[j]}")
        if j < 2: A(f"v_add_u32 {t0}, 2, {t0}")
    aBw = TM[24]; aBr = TM[25]; aBs = TM[26:28]
    A(f"""
    s_lshl_b32 {sT[0]}, {sW}, 11
    s_add_u32 {sT[0]}, {sT[0]}, {POS}
    v_mul_u32_u24 {aBw}, 80, {c31}
    v_lshl_add_u32 {aBw}, {vHalf}, 5, {aBw}
    v_add_u32 {aBw}, {sT[0]}, {aBw}
    v_lshrrev_b32 {t0}, 2, {vL}
    v_and_b32 {t1}, 48, {vD}
    v_mul_u32_u24 {aBr}, 80, {t0}
    v_add3_u32 {aBr}, {aBr}, {t1}, {sT[0]}
    s_bfe_u32 {sT[0]}, {sW}, 0x10001
    s_mul_i32 {sT[0]}, {sT[0]}, 20
    s_add_u32 {sT[0]}, {sT[0]}, {sNb}
    v_add_u32 {aBs[0]}, {sT[0]}, {t0}
    s_and_b32 {sT[0]}, {sW}, 1
    s_lshl_b32 {sT[0]}, {sT[0]}, 6
    v_add_u32 {aBs[1]}, {sT[0]}, {t1}
    s_movk_i32 {sT[0]}, 625
    s_movk_i32 {sT[1]}, 120
    s_mov_b32 {sT[2]}, {BCN}
    s_movk_i32 {sT[3]}, 8192
    """)
    slot(3)
    stub("b1", over=True)
    stamp(A, 1)
    BH = W2[0:16]; BF = W2[16:32]; BD = ACC[0:16]; BP = ACC[16:24]; BR = ACC[24:32]
    lab = {"n": 0}
    def old(fn):
        lab["n"] += 1; A(f"s_cmp_ge_u32 {sW}, 4"); A(f"s_cbranch_scc1 L_old{lab['n']}"); fn(); A(f"L_old{lab['n']}:")
    A(f"s_waitcnt vmcnt({4 if spos < 4 else 2}) lgkmcnt(0)"); A("s_barrier")
    stamp(A, 29)
    slot(4)
    A(f"s_and_b32 {sNon}, {sNon}, -8")
    hashc = []
    for q in range(4):
        r = sNq[q]
        hashc.append(lines(f"""
        s_add_u32 {r}, {sNon}, {0x9e3779b8 + q:#x}
        s_mul_i32 {r}, {r}, 0x85ebca6b
        s_lshr_b32 s3, {r}, 15
        s_xor_b32 {r}, {r}, s3
        s_mul_i32 {r}, {r}, 0xc2b2ae35
        s_and_b32 {r}, {r}, -16
        s_or_b32 {r}, {r}, {1 << q}
        """))
    def b_reads():
        for s in range(4):
            A(f"ds_read_b128 {BH[4*s:4*s+4]}, {aHj} offset:{32*s}")
            for half in range(2): A(f"ds_read_b64_tr_b16 {BF[4*s+2*half:4*s+2*half+2]}, {aFj} offset:{8192 + (16*s + 4*half)*128}")
    srd(A, SE, pE, E, 32)
    st2 = lines(f"""
    s_mul_i32 {sStg}, {sW}, 5120
    s_add_u32 {sStg}, {sStg}, {STG}
    s_add_u32 {sEm}, {sStg}, 4096
    s_mul_i32 {sPd}, {sN0}, 6
    s_sub_u32 {sPd}, {sPd}, 6
    s_mov_b32 {sTo}, 0
    s_mov_b32 {sScan}, 0
    s_mov_b32 {sEarly}, 0
    s_mov_b32 {sOv}, 0
    v_and_b32 {t3}, 31, {vL}
    v_bfe_u32 {t0}, {vL}, 1, 3
    v_xor_b32 {t0}, {t0}, {vHalf}
    v_lshlrev_b32 {t0}, 4, {t0}
    v_lshl_add_u32 {t0}, {t3}, 7, {t0}
    v_add_u32 {HRD[0]}, {sStg}, {t0}
    v_xor_b32 {HRD[1]}, 32, {HRD[0]}
    v_xor_b32 {HRD[2]}, 64, {HRD[0]}
    v_xor_b32 {HRD[3]}, 0x60, {HRD[0]}
    v_bfe_u32 {t0}, {vL}, 3, 1
    v_xor_b32 {t0}, {t0}, {vHalf}
    v_lshlrev_b32 {t0}, 4, {t0}
    v_lshl_add_u32 {t0}, {t3}, 5, {t0}
    v_add_u32 {ERD}, {sEm}, {t0}
    v_lshl_add_u32 {LO[2]}, {t3}, 3, {sLb}
    v_and_b32 {t0}, 56, {vL}
    v_add3_u32 {LO[0]}, {t0}, {sLb}, 4
    v_lshrrev_b32 {t0}, 1, {vL}
    v_lshl_add_u32 {LO[1]}, {t0}, 3, {sLb}
    v_mov_b32 {vAh}, {LO[0]}
    v_mov_b32 {vAe}, {LO[1]}
    v_mov_b32 {HALF[0]}, 0x3f003f00
    v_mov_b32 {HALF[1]}, 0x3f003f00
    v_mov_b32 {v8}, 8
    v_add_u32 {vCB[1]}, {64*CH*64}, {vCB[0]}
    v_add_u32 {vCB[2]}, {128*CH*64}, {vCB[0]}
    v_add_u32 {vCB[3]}, {192*CH*64}, {vCB[0]}
    v_and_b32 {t0}, 15, {vL}
    v_lshlrev_b32 {aCn}, 3, {t0}
    v_mul_u32_u24 {vLim}, {CAP*8}, {t0}
    v_add_u32 {vLim}, {LIST + CAP*8}, {vLim}
    s_mov_b64 {sS2[4:6]}, 0xff
    v_cndmask_b32 {vLim}, 0, {vLim}, {sS2[4:6]}
    """)
    st2 += ["s_mov_b32 exec_lo, 0x80808080", "s_mov_b32 exec_hi, 0x80808080"] + [f"v_mov_b32 {RS[q][1]}, {sNq[q]}" for q in range(4)] + ["s_mov_b64 exec, -1"]
    st3 = lines(f"""
    v_and_b32 {t0}, 48, {vL}
    v_and_b32 {t1}, 0x70, {vD}
    v_xor_b32 {IX[1]}, {t0}, {t1}
    v_xor_b32 {IX[3]}, 64, {IX[1]}
    v_mov_b32 {IX[5]}, {IX[1]}
    v_mov_b32 {IX[7]}, {IX[3]}
    v_and_b32 {IX[9]}, 16, {IX[1]}
    """) + [f"v_mov_b32 {IX[2*i]}, -1" for i in range(5)]
    A(f"s_cmp_ge_u32 {sW}, 4"); A("s_cbranch_scc1 L_y1")
    b_reads()
    for s in range(4):
        A(f"s_waitcnt lgkmcnt({9 - 3*s})"); A(f"{mf} {BD}, {BF[4*s:4*s+4]}, {BH[4*s:4*s+4]}, {BD if s else 0}")
    A("\n".join(x for q in range(2) for x in hashc[q]))
    for k in range(16): A(f"v_mul_f32 {BD[k]}, {NLOG2E:#x}, {BD[k]}")
    for k in range(8): A(f"v_cvt_pk_bf16_f32 {BP[k]}, {BD[2*k]}, {BD[2*k+1]}")
    A("s_mov_b32 exec_lo, 0xfffff"); A("s_mov_b32 exec_hi, 0xfffff")
    for k in range(2): A(f"ds_write_b128 {aBw}, {BP[4*k:4*k+4]} offset:{16*k}")
    A("s_mov_b64 exec, -1")
    for k in range(2): A(f"ds_read_b128 {BR[4*k:4*k+4]}, {aBr} offset:{1280*k}")
    A("\n".join(x for q in range(2, 4) for x in hashc[q]))
    if "xto" in OPT: A("s_cmp_eq_u32 s2, 5"); A(f"s_cselect_b32 {SH[2]}, 0, {SH[2]}")
    A("s_waitcnt lgkmcnt(0)")
    A(f"buffer_store_dwordx4 {BR[0:4]}, {aBs}, {SH}, 0 idxen offen sc1")
    A(f"v_add_u32 {aBs[0]}, 16, {aBs[0]}"); A("s_mov_b64 exec, 0xffff")
    A(f"buffer_store_dwordx4 {BR[4:8]}, {aBs}, {SH}, 0 idxen offen sc1")
    A("s_mov_b64 exec, -1")
    A("s_waitcnt vmcnt(4)")
    A("s_branch L_y2")
    stub("y1")
    A("L_y1:")
    touch_local(4, "p2", "L_back3")
    for s in range(4): A(f"ds_read_b128 {BH[4*s:4*s+4]}, {aHj} offset:{32*s}")
    A("\n".join(x for q in range(4) for x in hashc[q]))
    A("s_waitcnt vmcnt(2)")
    A("L_y2:")
    if "xto" in OPT: A(f"s_mov_b32 {SH[2]}, {N}"); A("s_cmp_eq_u32 s2, 5"); A(f"s_cselect_b32 {SX[2]}, 0, {SX[2]}")
    stamp(A, 2)
    WA = PK[0:4]; WB = PK[4:8]
    for i in range(5):
        if i == 4: A(f"s_mov_b64 exec, {m5}")
        A(f"""
        v_mul_u32_u24 {RC[i]}, 429497, {DS[i]}
        v_lshrrev_b32 {B4[i]}, 24, {RC[i]}
        v_lshl_add_u32 {RT[i]}, {B4[i]}, 2, {sT[2]}
        ds_add_rtn_u32 {RT[i]}, {RT[i]}, {v4}
        """)
    A("s_mov_b64 exec, -1")
    A(f"s_mov_b32 {sT[2]}, {BST + 4}")
    for i in range(5):
        v = lines(f"""
        v_lshrrev_b32 {RC[i]}, 21, {RC[i]}
        v_mad_u32_u24 {t0}, {RC[i]}, {sT[0]}, -1
        v_lshl_add_u32 {RC[i]}, {RC[i]}, 3, {DS[i]}
        v_ashrrev_i32 {t0}, 7, {t0}
        v_sub_u32 {RC[i]}, {RC[i]}, {t0}
        v_and_or_b32 {RC[i]}, {RC[i]}, 63, {LE[i]}
        v_lshl_add_u32 {B4[i]}, {B4[i]}, 7, {sT[2]}
        """)
        A("\n".join(v))
    A("s_waitcnt lgkmcnt(0)")
    for i in range(5):
        A(f"v_cmp_gt_u32 {sM[2*i:2*i+2]}, {sT[1]}, {RT[i]}")
        A(f"v_add_u32 {RT[i]}, {RT[i]}, {B4[i]}")
    A(f"s_and_b64 {sM[8:10]}, {sM[8:10]}, {m5}")
    def tables():
        A(f"""
        s_cmp_gt_u32 {sW}, 2
        s_cbranch_scc1 L_odone
        s_cmp_lg_u32 {sW}, 0
        s_cbranch_scc1 L_o6
        v_lshlrev_b32 {t0}, 2, {vL}
        s_mov_b32 m0, {WE + 18432}
        s_mov_b32 {sT[2]}, 16384
        s_mov_b32 exec_hi, 0
        buffer_load_dword {t0}, {SY}, {sT[2]} offen lds
        s_mov_b64 exec, -1
        v_lshlrev_b32 {t0}, 1, {vL}
        global_load_ushort {WB[0]}, {t0}, {pWx}
        s_branch L_odone
        L_o6:
        s_mov_b32 {sT[2]}, {129*128 - 1024}
        buffer_load_dwordx4 {WB}, {vDs}, {SY}, {sT[2]} offen
        L_odone:
        s_add_u32 m0, {sW10}, {WE}
        s_nop 0
        buffer_load_dwordx4 {vDs}, {SY}, 0 offen lds
        s_add_u32 m0, {sW10}, {WH}
        s_nop 0
        buffer_load_dwordx4 {vDs}, {SZ}, 0 offen lds
        s_add_u32 m0, {sW10}, {WH + 8192}
        s_nop 0
        buffer_load_dwordx4 {vDs}, {SZ}, {sT[3]} offen lds
        """)
    A(f"""
    s_xor_b32 {sK}, {sNq[0]}, {sNq[1]}
    s_xor_b32 {sK}, {sK}, {sNq[2]}
    s_xor_b32 {sK}, {sK}, {sNq[3]}
    s_bitcmp1_b32 s2, 6
    s_cselect_b32 {sNon}, {sNq[1]}, {sNq[0]}
    s_cselect_b32 s3, {sNq[3]}, {sNq[2]}
    s_bitcmp1_b32 s2, 7
    s_cselect_b32 {sNon}, s3, {sNon}
    """)
    stamp(A, 3)
    A(f"s_cmp_ge_u32 {sW}, 4"); A("s_waitcnt vmcnt(2)"); A("s_cbranch_scc0 L_srcok"); A("s_waitcnt vmcnt(0)"); A("L_srcok:")
    stamp(A, 4)
    for i in range(5):
        A(f"s_mov_b64 exec, {sM[2*i:2*i+2]}"); A(f"v_lshl_or_b32 {RC[i]}, {SR[i]}, 18, {RC[i]}"); A(f"ds_write_b32 {RT[i]}, {RC[i]}")
    A("s_mov_b64 exec, -1")
    tables()
    stub("p2", page="L_back3")
    ncut = geto("cut", 0)
    A("\n".join(st2[:ncut] + st3))
    stamp(A, 22)
    PR = [Y[0:4], Y[4:8]]; SC = [Y[8:12], Y[12:16]]; CN = Y[16:18]; XR = Y[20:24]; ST = Y[24:26]
    A(f"""
    s_mov_b32 {sM[0]}, 0x11111111
    s_mov_b32 {sM[1]}, 0x11111111
    s_mov_b32 {sM[2]}, 0x88888888
    s_mov_b32 {sM[3]}, 0x88888888
    s_and_b32 s3, {sNon}, 15
    s_lshl_b32 s3, s3, 4
    s_xor_b32 s3, s3, {sNon}
    v_mov_b32 {t0}, {sNon}
    v_mov_b32 {t1}, s3
    """)
    touch_local(0, "p3", "L_back2")
    old(lambda: A("s_waitcnt vmcnt(3)"))
    A(f"""
    s_waitcnt lgkmcnt(0)
    s_barrier
    """)
    stamp(A, 5)
    for i in range(2): A(f"ds_read_b128 {PR[i]}, {aL} offset:{16384*i}")
    for i in range(2): A(f"ds_read_b128 {SC[i]}, {aL} offset:{16384*i + 64}"); A(f"ds_read_b32 {CN[i]}, {aC} offset:{512*i}")
    A(f"s_mov_b32 {sT[2]}, {SEC}")
    def xor4(x, r):
        A(f"v_bitop3_b32 {x}, {r[0]}, {r[1]}, {r[2]} bitop3:0x96"); A(f"v_xor_b32 {x}, {x}, {r[3]}")
    A("s_waitcnt lgkmcnt(4)")
    for i in range(2): xor4(XR[i], PR[i])
    A("s_nop 0")
    for i in range(2): A(f"v_xor_b32_dpp {XR[i]}, {XR[i]}, {XR[i]} quad_perm:[1,0,3,2] {dpp}")
    A("s_nop 0")
    for i in range(2): A(f"v_xor_b32_dpp {XR[i]}, {XR[i]}, {XR[i]} quad_perm:[2,3,0,1] {dpp}")
    A(f"s_mov_b64 exec, {sM[0:2]}")
    for i in range(2): A(f"v_xor_b32 {PR[i][0]}, {XR[i]}, {t0}")
    A("s_mov_b64 exec, -1")
    for i in range(2): A(f"buffer_store_dwordx4 {PR[i]}, {aG[i]}, {SX}, 0 offen sc1")
    A("s_waitcnt lgkmcnt(0)")
    for i in range(2): xor4(XR[2+i], SC[i])
    for i in range(2):
        A(f"v_cmp_le_u32 {sM[4+2*i:6+2*i]}, 60, {CN[i]}"); A(f"v_cmp_lt_u32 {sM[8+2*i:10+2*i]}, {sT[1]}, {CN[i]}")
    for i in range(2): A(f"v_xor_b32_dpp {XR[2+i]}, {XR[2+i]}, {XR[2+i]} quad_perm:[1,0,3,2] {dpp}")
    for i in range(2): A(f"v_cndmask_b32 {aS[i]}, -2.0, {aG[i]}, {sM[4+2*i:6+2*i]}")
    for i in range(2): A(f"v_xor_b32_dpp {XR[2+i]}, {XR[2+i]}, {XR[2+i]} quad_perm:[2,3,0,1] {dpp}")
    for i in range(2): A(f"v_cndmask_b32 {ST[i]}, {t0}, {t1}, {sM[8+2*i:10+2*i]}")
    A(f"s_mov_b64 exec, {sM[2:4]}")
    for i in range(2): A(f"v_xor_b32 {SC[i][3]}, {XR[2+i]}, {ST[i]}")
    A("s_mov_b64 exec, -1")
    for i in range(2): A(f"buffer_store_dwordx4 {SC[i]}, {aS[i]}, {SX}, {sT[2]} offen sc1")
    stamp(A, 6)
    srd(A, SZ, pPos, N * 6)
    def poll():
        for q in range(4): A(f"buffer_load_dwordx2 {RP[2*q:2*q+2]}, {vRo}, {SX}, {sS2[q-1] if q else 0} offen sc1")
    def posdma(k):
        if k < 7:
            A(f"s_add_u32 m0, {sW10}, {POS + 8192*k}"); A(f"s_mov_b32 {sT[1]}, {8192*k}"); A(f"buffer_load_dwordx4 {vD}, {SZ}, {sT[1]} offen lds")
        else:
            A(f"""
            s_cmp_gt_u32 {sW}, 2
            s_cbranch_scc1 L_ptail
            v_add_u32 {vSl}, {8192*7}, {vD}
            s_add_u32 m0, {sW10}, {POS + 8192*7}
            v_cmpx_gt_u32 vcc, 60032, {vSl}
            buffer_load_dwordx4 {vSl}, {SZ}, 0 offen lds
            s_mov_b64 exec, -1
            L_ptail:
            """)
    A("s_waitcnt vmcnt(4)")
    def scale(r):
        for i in range(4):
            A(f"v_lshlrev_b32 {t0}, 16, {r[i]}"); A(f"v_and_b32 {t1}, 0xffff0000, {r[i]}")
            A(f"v_mul_f32 {t0}, {NLOG2E:#x}, {t0}"); A(f"v_mul_f32 {t1}, {NLOG2E:#x}, {t1}"); A(f"v_cvt_pk_bf16_f32 {r[i]}, {t0}, {t1}")
    A("s_setprio 0")
    A("s_barrier")
    stamp(A, 7)
    WD = D
    def frag(dst, base, s, n):
        for half in range(2): A(f"ds_read_b64_tr_b16 {dst[2*half:2*half+2]}, {vT2 if n else vT1} offset:{base + (16*s + 4*half)*128}")
    def frags(dst, base, n):
        for s in range(4): frag(dst[16*n+4*s:16*n+4*s+4], base, s, n)
    npre = geto("npre", 4); hp = geto("npost", 1); pollat = geto("poll", 4)
    state = {"k": 0}
    def vm():
        k = state["k"]; state["k"] += 1
        if k == 0 and "xjob" in OPT: A("s_nop 7")
        k -= 2 if "xjob" in OPT else 0
        if k < 0: return
        if k == 0: posdma(7)
        if k < npre: posdma(k)
        if k == geto("hpf", -1):
            A(f"""
            s_and_b32 {sT[0]}, s2, -8
            s_add_u32 {sT[0]}, {sT[0]}, {sW}
            s_mul_i32 {sT[0]}, {sT[0]}, 40
            v_add_u32 {vSl}, {sT[0]}, {vL}
            s_bfm_b64 exec, 40, 0
            buffer_load_dword {vJ}, {vSl}, {SH}, 0 idxen
            s_mov_b64 exec, -1
            """)
        if k == geto("epf", -1):
            ne = geto("nepf", 32)
            A(f"""
            s_lshl_b32 {sT[0]}, s2, 3
            s_add_u32 {sT[0]}, {sT[0]}, {sW}
            s_mul_i32 {sT[0]}, {sT[0]}, {ne}
            v_add_lshl_u32 {vSl}, {vL}, {sT[0]}, 2
            {'s_bfm_b64 exec, %d, 0' % ne if ne < 64 else ''}
            buffer_load_dword {vJ}, {vSl}, {SE}, 0 idxen
            s_mov_b64 exec, -1
            """)
        if k == pollat:
            poll()
            for u in range(hp): posdma(npre + u)
    JF = Y[0:16]; JD = Y[16:32]
    for s in range(4):
        for half in range(2): A(f"ds_read_b64_tr_b16 {JF[4*s+2*half:4*s+2*half+2]}, {aFj} offset:{(16*s + 4*half)*128}")
    PB = W2[0:8]
    def build_pb():
        A(f"s_mov_b32 {sT[2]}, 0xaaaaaaaa"); A(f"s_mov_b32 {sT[3]}, 0xaaaaaaaa"); A(f"v_mov_b32 {t0}, 0x3f80"); A(f"v_cndmask_b32 {t0}, {t0}, 1.0, {sT[2:4]}")
        A(f"s_mov_b32 {sM[0]}, 3"); A(f"s_mov_b32 {sM[1]}, 0x30000")
        for r in range(8):
            b = (r >> 2) * 4 + ((r >> 1) & 1) * 8 + (r & 1) * 2
            A(f"s_lshl_b64 {sT[2:4]}, {sM[0:2]}, {b}"); A(f"v_cndmask_b32 {PB[r]}, 0, {t0}, {sT[2:4]}")
    if "fine" in OPT: stamp(A, 23); A("s_waitcnt lgkmcnt(0)"); stamp(A, 24)
    for s in range(4):
        A(f"s_waitcnt lgkmcnt({6 - 2*s})")
        A(f"{mf} {JD}, {JF[4*s:4*s+4]}, {BH[4*s:4*s+4]}, {JD if s else 0}")
    if "fine" in OPT: stamp(A, 25)
    vm()
    if "fine" in OPT: A("s_waitcnt lgkmcnt(0)"); stamp(A, 26)
    A(f"""
    s_lshl_b32 {sT[0]}, s2, 14
    v_lshl_add_u32 {vRo}, v0, 3, {sT[0]}
    s_movk_i32 {sS2[0]}, 4096
    s_movk_i32 {sS2[1]}, 8192
    s_movk_i32 {sS2[2]}, 12288
    s_mov_b32 exec_lo, 0xfffff
    s_mov_b32 exec_hi, 0xfffff
    """)
    for i in range(4): A(f"ds_write_b128 {aWj}, {JD[4*i:4*i+4]} offset:{32*i}")
    A("s_mov_b64 exec, -1")
    if "fine" in OPT: stamp(A, 27)
    A(f"s_cmp_gt_u32 {sW}, 2"); A("s_cbranch_scc1 L_nowx"); A(f"s_cmp_eq_u32 {sW}, 0"); A("s_cbranch_scc1 L_wx")
    scale(WB)
    A(f"""
    ds_write_b128 {aWs}, {WB} offset:{8192 - 1024}
    s_branch L_nowx
    """)
    stub("wx")
    A(f"""
    L_wx:
    v_lshlrev_b32 {WB[0]}, 16, {WB[0]}
    v_lshlrev_b32 {t0}, 2, {vL}
    ds_write_b32 {t0}, {WB[0]} offset:{WX}
    L_nowx:
    """)
    vm()
    if "fine" in OPT: A("s_waitcnt lgkmcnt(0)"); stamp(A, 28)
    A(zero16(ACC[0:16], ZERO)); A(zero16(ACC[16:32], ZERO))
    A("s_waitcnt lgkmcnt(0)"); A("s_barrier")
    stamp(A, 8)
    for n in range(2):
        for k in range(5): A(f"ds_read_b32 {Y[16*n+k]}, {aA} offset:{272*k + 128*n}")
        A(f"ds_read_u16 {WD[n]}, {aWD} offset:{64*n}")
    vm()
    build_pb()
    A("s_waitcnt lgkmcnt(0)")
    frag(W4[0:4], 16384, 0, 0); frag(W4[4:8], 16384, 0, 1)
    vm()
    for n in range(2):
        a = Y[16*n:16*n+16]
        A(f"v_lshlrev_b32 {a[5]}, 16, {WD[n]}")
        for i in range(6): A(f"v_mul_f32 {a[i]}, {NLOG2E:#x}, {a[i]}")
        for i in range(6): A(f"v_and_b32 {a[8+i]}, 0xffff0000, {a[i]}")
    vm()
    stub("c", over=True)
    A("s_mov_b32 exec_lo, 0")
    for n in range(2):
        a = Y[16*n:16*n+16]
        for i in range(6): A(f"v_sub_f32 {a[8+i]}, {a[i]}, {a[8+i]}")
    A("s_mov_b64 exec, -1")
    for n in range(2):
        a = Y[16*n+8:16*n+16]; B = BX[4*n:4*n+4]
        A(f"v_cvt_pk_bf16_f32 {B[0]}, {a[0]}, {a[1]}"); A(f"v_cvt_pk_bf16_f32 {B[1]}, {a[2]}, {a[3]}")
        A(f"v_cvt_pk_bf16_f32 {B[2]}, {a[4]}, 0"); A(f"v_cvt_pk_bf16_f32 {B[3]}, 0, {a[5]}")
    A("s_waitcnt lgkmcnt(3)")
    for j in range(3):
        for n in range(2):
            A(f"ds_read_b32 {ZH[2*j+n]}, {aZ} offset:{40*272 + 544*j + 128*n}"); A(f"ds_read_u16_d16_hi {HR[2*j+n]}, {aHR[j]} offset:{64*n}")
    vm()
    A("\n".join(st2[ncut:]))
    vm()
    stamp(A, 9)
    stub("poll", over=True)
    XQ = Y[0]
    def xorall(r):
        A(f"v_bitop3_b32 {XQ}, {r[0]}, {r[1]}, {r[2]} bitop3:0x96"); A(f"v_bitop3_b32 {Y[1]}, {r[3]}, {r[4]}, {r[5]} bitop3:0x96")
        A(f"v_bitop3_b32 {XQ}, {XQ}, {r[6]}, {r[7]} bitop3:0x96"); A(f"v_xor_b32 {XQ}, {XQ}, {Y[1]}")
    PW = Y[8:20]; PA = TM[24:32]
    A(f"s_waitcnt vmcnt({hp + (geto('hpf', -1) > pollat) + (geto('epf', -1) > pollat)}) lgkmcnt(0)")
    A("L_poll:")
    xorall([RP[i] for i in range(8)])
    pre = [x for i in range(3) for x in (f"v_cmp_ne_u32 {sM[2*i:2*i+2]}, 0, {RP[i]}", f"v_and_b32 {PA[i]}, 0x38, {RP[i]}")]
    for k, c in enumerate(("quad_perm:[1,0,3,2]", "quad_perm:[2,3,0,1]", "row_half_mirror")):
        A(pre[2*k]); A(pre[2*k+1]); A(f"v_xor_b32_dpp {XQ}, {XQ}, {XQ} {c} {dpp}")
    A(f"""
    v_cmp_ne_u32 vcc, {sK}, {XQ}
    s_add_u32 {sTo}, {sTo}, 1
    s_cbranch_vccz L_got
    """)
    poll()
    A(f"""
    s_cmp_le_u32 {sTo}, {TIMEOUT}
    s_waitcnt vmcnt(0)
    s_cbranch_scc1 L_poll
    s_mov_b32 {sOv}, 1
    L_got:
    """)
    stamp(A, 10)
    def notag(i, pat):
        A(f"s_and_b32 {sM[2*i]}, {sM[2*i]}, {pat}"); A(f"s_and_b32 {sM[2*i+1]}, {sM[2*i+1]}, {pat}")
    def atomics(idx):
        for i in idx:
            if i % 2 == 0: notag(i, "0xfefefefe")
            A(f"s_mov_b64 exec, {sM[2*i:2*i+2]}"); A(f"ds_add_rtn_u32 {PA[i]}, {PA[i]}, {v8}")
        A("s_mov_b64 exec, -1")
    def words(r, W, q):
        A(f"v_and_b32 {W[0]}, 0x3ffff, {r}"); A(f"v_lshrrev_b32 {W[1]}, 18, {r}"); A(f"v_add_u32 {W[0]}, {W[0]}, {vCB[q]}")
    def writes(idx, extra=0):
        for k, i in enumerate(idx):
            A(f"s_waitcnt lgkmcnt({len(idx)-1+extra})")
            A(f"s_mov_b64 exec, {sM[2*i:2*i+2]}"); A(f"ds_write_b64 {PA[i]}, {PW[2*k:2*k+2]}")
        A("s_mov_b64 exec, -1")
    def secloads(tag):
        for q in range(4):
            A(f"""
            s_mov_b64 exec, {sS2[2*q:2*q+2]}
            s_cbranch_execz L_{tag}{q}
            s_mov_b32 {sT[0]}, {SEC + 4096*q}
            buffer_load_dwordx2 {RS[q]}, {vRo}, {SX}, {sT[0]} offen sc1
            L_{tag}{q}:
            """)
        A("s_mov_b64 exec, -1")
    def read_idx(e=True):
        for i in range(4): A(f"ds_read_b32 {IX[2*i]}, {vAh} offset:{64*i}")
        if e: A(f"ds_read_b32 {IX[8]}, {vAe}")
    adv_idx = [f"v_add_u32 {vAh}, 256, {vAh}", f"v_add_u32 {vAe}, 256, {vAe}"]
    shift_e = f"v_lshrrev_b32 {IX[8]}, 6, {IX[8]}"
    E0 = Y[6:8]
    def dma_h(rng=range(4)):
        for i in rng:
            A(f"s_add_u32 m0, {sStg}, {1024*i}"); A("s_nop 0"); A(f"buffer_load_dwordx4 {IX[2*i:2*i+2]}, {SH}, 0 idxen offen sc1 lds")
    def dma_e():
        A(f"s_mov_b32 m0, {sEm}"); A("s_nop 0")
        A(f"buffer_load_dwordx4 {IX[8:10]}, {SE}, 0 idxen offen lds")
    read_first = read_idx
    def shift_first(): A(shift_e)
    atomics([0, 1])
    for k in range(2): words(RP[k], PW[2*k:2*k+2], 0)
    for i in range(3, 8): A(f"v_cmp_ne_u32 {sM[2*i:2*i+2]}, 0, {RP[i]}"); A(f"v_and_b32 {PA[i]}, 0x38, {RP[i]}")
    A(f"s_mov_b32 {sT[2]}, 0x01010101"); A(f"s_mov_b32 {sT[3]}, 0x01010101")
    for q in range(4):
        A(f"s_lshr_b64 {sS2[2*q:2*q+2]}, {sM[4*q+2:4*q+4]}, 7"); A(f"s_and_b64 {sS2[2*q:2*q+2]}, {sS2[2*q:2*q+2]}, {sT[2:4]}")
        for u in range(2): A(f"s_mulk_i32 {sS2[2*q+u]}, 255")
    writes([0, 1])
    secloads("sl")
    for u in range(npre + hp, 7): posdma(u)
    stub("b5", over=True)
    A(f"s_cmp_ge_u32 {sW}, 4")
    A("s_waitcnt lgkmcnt(0)"); A("s_barrier")
    stamp(A, 16)
    def try_early(lab):
        shift_first()
        A(f"""
        v_max3_u32 {Y[4]}, {IX[0]}, {IX[2]}, {IX[4]}
        v_max_u32 {Y[4]}, {Y[4]}, {IX[6]}
        v_cmp_le_u32 vcc, {E}, {IX[8]}
        s_mov_b64 {sT[2:4]}, vcc
        v_cmp_le_u32 vcc, {N}, {Y[4]}
        s_or_b64 vcc, vcc, {sT[2:4]}
        s_cbranch_vccnz {lab}
        """)
        dma_e(); dma_h()
        A(f"s_mov_b32 {sEarly}, 1")
    A("s_cbranch_scc1 L_noread"); read_first(); A("L_noread:")
    atomics(range(2, 8))
    A(f"s_cmp_ge_u32 {sW}, 4"); A("s_cbranch_scc1 L_noearly"); A("s_waitcnt lgkmcnt(6)")
    try_early("L_noearly")
    A("L_noearly:")
    stamp(A, 17)
    for k in range(6): words(RP[2+k], PW[2*k:2*k+2], 1 + k // 2)
    RSf = [RS[q][i] for q in range(4) for i in range(2)]
    A(f"""
    s_cmp_eq_u32 {sEarly}, 0
    s_cbranch_scc1 L_w0
    s_waitcnt vmcnt(5)
    s_branch L_w1
    """)
    stub("w0")
    A(f"""
    L_w0:
    s_waitcnt vmcnt(0)
    L_w1:
    """)
    xorall(RSf)
    for k, c in enumerate(("quad_perm:[1,0,3,2]", "quad_perm:[2,3,0,1]", "row_half_mirror")):
        A("s_nop 1"); A(f"v_xor_b32_dpp {XQ}, {XQ}, {XQ} {c} {dpp}")
    A(f"""
    v_cmp_ne_u32 vcc, {sK}, {XQ}
    s_cbranch_vccnz L_sbad
    L_sgot:
    """)
    with cold():
        A(f"""
        L_sbad:
        v_xor_b32 {XQ}, {sK}, {XQ}
        v_and_b32 {XQ}, 0xffffff0f, {XQ}
        v_cmp_ne_u32 vcc, 0, {XQ}
        s_add_u32 {sTo}, {sTo}, 1
        s_cbranch_vccz L_stimeout
        s_cmp_gt_u32 {sTo}, {TIMEOUT}
        s_cbranch_scc1 L_stimeout
        """)
        secloads("rl")
        A(f"""
        s_branch L_w0
        L_stimeout:
        s_mov_b32 {sOv}, 1
        s_branch L_sgot
        """)
    writes(list(range(2, 8)))
    stamp(A, 18)
    SWd = TM[0:16]; SA = Y[20:28]
    for i in range(8): A(f"v_cmp_ne_u32 {sM[2*i:2*i+2]}, 0, {RSf[i]}")
    for q in range(4):
        A(f"s_mov_b64 exec, {sM[4*q:4*q+2]}"); A(f"s_cbranch_execz L_sa{q}")
        notag(2*q+1, "0x7f7f7f7f")
        A(f"v_and_b32 {SA[2*q]}, 0x38, {RS[q][0]}"); A(f"v_and_b32 {SA[2*q+1]}, 0x38, {RS[q][1]}")
        A(f"ds_add_rtn_u32 {SA[2*q]}, {SA[2*q]}, {v8}")
        for i in range(2): words(RS[q][i], SWd[4*q+2*i:4*q+2*i+2], q)
        A(f"s_mov_b64 exec, {sM[4*q+2:4*q+4]}"); A(f"ds_add_rtn_u32 {SA[2*q+1]}, {SA[2*q+1]}, {v8}")
        A(f"L_sa{q}:")
    A("s_mov_b64 exec, -1")
    A(f"s_cmp_lt_u32 {sW}, 4"); A("s_waitcnt lgkmcnt(5)"); A("s_cbranch_scc1 L_noread2"); read_first(); A("L_noread2:")
    for i in range(4): A(f"ds_write_b64 {aTz}, {ZERO} offset:{512*i}")
    A("s_waitcnt lgkmcnt(4)")
    for q in range(4):
        A(f"s_mov_b64 exec, {sM[4*q:4*q+2]}"); A(f"s_cbranch_execz L_sb{q}")
        A(f"ds_write_b64 {SA[2*q]}, {SWd[4*q:4*q+2]}")
        A(f"s_mov_b64 exec, {sM[4*q+2:4*q+4]}"); A(f"ds_write_b64 {SA[2*q+1]}, {SWd[4*q+2:4*q+4]}")
        A(f"L_sb{q}:")
    A(f"""
    s_mov_b64 exec, -1
    s_cmp_eq_u32 {sOv}, 0
    s_cbranch_scc1 L_noflag
    ds_write_b32 {ZERO[0]}, {v8} offset:{FLAG}
    L_noflag:
    """)
    def young_early():
        A(f"s_cmp_lt_u32 {sW}, 4"); A("s_cbranch_scc1 L_noearly2")
        try_early("L_noearly2")
        A("L_noearly2:")
    stub("p3", page="L_back2")
    if "yafter" not in OPT: young_early()
    stamp(A, 19)
    A(f"""
    s_waitcnt lgkmcnt(0)
    s_barrier
    ds_read_b32 {t0}, {aCn}
    """)
    if "yafter" in OPT: young_early()
    A(f"""
    s_waitcnt lgkmcnt(0)
    v_cmp_gt_u32 vcc, {t0}, {vLim}
    v_readlane_b32 {sCnt}, {t0}, {sW}
    s_and_b32 {sSlow}, vcc_lo, 0x1ff
    s_sub_u32 {sCnt}, {sCnt}, {sLb}
    s_lshr_b32 {sCnt}, {sCnt}, 3
    s_cmp_eq_u32 {sSlow}, 0
    s_cselect_b32 {sCnt}, {sCnt}, 0
    s_cselect_b32 {sEarly}, {sEarly}, 0
    s_cselect_b32 {sScan}, {E}, 0
    """)
    mk_at = f"v_lshl_add_u32 {vAt}, {vSl}, 3, {vTrow}"
    derive_a = lines(f"""
        v_mul_u32_u24 {DT[0]}, 6, {EN[1]}
        v_and_b32 {vSl}, 7, {EN[0]}
        v_mad_u32_u24 {DT[1]}, {vSl}, 6, {sPd}
        v_lshlrev_b32 {vAl}, 4, {vSl}
        """)
    def pos_reads():
        for i in range(3): A(f"ds_read_u16_d16_hi {PS[i]}, {DT[0]} offset:{POS+2*i}")
        for i in range(3): A(f"ds_read_u16_d16_hi {PD[i]}, {DT[1]} offset:{POS+2*i}")
    lut_read = f"ds_read_b96 {X[0:3]}, {vAl} offset:{LUT}"
    derive_b = lines(f"""
        v_sub_f32 {DT[0]}, {PD[0]}, {PS[0]}
        v_sub_f32 {DT[1]}, {PD[1]}, {PS[1]}
        v_sub_f32 {DT[2]}, {PD[2]}, {PS[2]}
        v_cvt_pk_bf16_f32 {D[0]}, {DT[0]}, {DT[1]}
        v_cvt_pk_bf16_f32 {D[1]}, {DT[2]}, 1.0
        v_lshlrev_b32 {DT[0]}, 16, {D[0]}
        v_and_b32 {DT[1]}, 0xffff0000, {D[0]}
        v_lshlrev_b32 {DT[2]}, 16, {D[1]}
        v_mul_f32 {DT[0]}, {DT[0]}, {DT[0]}
        v_fmac_f32 {DT[0]}, {DT[1]}, {DT[1]}
        v_fmac_f32 {DT[0]}, {DT[2]}, {DT[2]}
        v_cvt_pk_bf16_f32 {X[3]}, 0, {DT[0]}
        """)
    read_entry = f"ds_read_b64 {EN}, {vAn}"; adv_n = f"v_add_u32 {vAn}, 256, {vAn}"
    flip_v = f"v_add_u32 {ERD}, {sEx}, {ERD}"
    def flip_s(): A(f"s_add_u32 {sEm}, {sEm}, {sEx}"); A(f"s_sub_u32 {sEx}, 0, {sEx}")
    def read_he():
        for s in range(4): A(f"ds_read_b128 {H[4*s:4*s+4]}, {HRD[s]}")
        A(f"ds_read_b128 {EA}, {ERD}")
    def m1(n):
        y = Y[16*n:16*n+16]
        ops = [(X, BX[4*n:4*n+4]), (EA, W4[4*n:4*n+4])] + [(H[8*n+4*s:8*n+4*s+4], PB[4*s:4*s+4]) for s in range(2)]
        return [f"{mf} {y}, {a}, {b}, {y if i else 0}" for i, (a, b) in enumerate(ops)]
    ndef = geto("def", 0)
    A("L_round:")
    stamp(A, 20)
    A(f"""
    s_add_u32 {sNt}, {sCnt}, 31
    s_lshr_b32 {sNt}, {sNt}, 5
    s_cbranch_scc0 L_round_end
    s_lshl_b32 {sT[0]}, {sNt}, 5
    s_sub_u32 {sT[0]}, {sT[0]}, {sCnt}
    s_lshl_b32 {sT[1]}, {sCnt}, 3
    v_add_u32 {t0}, {sT[1]}, {LO[2]}
    s_bfm_b64 exec, {sT[0]}, 0
    ds_write_b64 {t0}, {INV}
    s_mov_b64 exec, -1
    ds_read_b64 {EN}, {LO[2]}
    ds_read_b64 {D}, {LO[2]} offset:256
    s_cmp_eq_u32 {sEarly}, 0
    s_cbranch_scc1 L_first
    """)
    with cold():
        A("L_first:"); A(f"v_mov_b32 {vAh}, {LO[0]}"); A(f"v_mov_b32 {vAe}, {LO[1]}")
        read_first(); A("s_waitcnt lgkmcnt(0)"); shift_first(); dma_e(); dma_h()
        A("s_branch L_have0")
    A("L_have0:")
    A("\n".join(adv_idx)); read_idx(); A("\n".join(adv_idx))
    A(f"v_add_u32 {vAn}, 512, {LO[2]}")
    A(f"s_mov_b32 {sTi}, 2"); A(f"s_mov_b32 {sEarly}, 0")
    A("s_waitcnt lgkmcnt(5)")
    A("\n".join(derive_a)); pos_reads(); A(lut_read); A(mk_at)
    A(f"v_mov_b32 {EN[0]}, {D[0]}"); A(f"v_mov_b32 {EN[1]}, {D[1]}")
    stub("e", over=True)
    A(f"s_cmp_lt_u32 {sNt}, 2")
    A("s_waitcnt vmcnt(0) lgkmcnt(7)")
    stamp(A, 21)
    read_he(); A(shift_e)
    A("s_waitcnt lgkmcnt(5)")
    A("\n".join(derive_b)); A(f"ds_write_b64 {vAt}, {D}")
    A("\n".join(derive_a))
    A("s_waitcnt lgkmcnt(1)")
    mm = m1(0)
    A("\n".join(mm[:2]))
    A("s_cbranch_scc1 L_nd1"); dma_e(); dma_h(); A("L_nd1:")
    pos_reads(); read_idx(); A("\n".join(mm[2:])); A("s_waitcnt lgkmcnt(0)")
    stamp(A, 13)
    one = lambda r: f"v_mfma_f32_16x16x4_4b_bf16 {r}, {HALF}, {HALF}, {r}"
    def finish(o, part):
        t = TM[16*o:16*o+16]; y = Y[16*o:16*o+16]
        if part == "mul0": return [f"v_mul_f32 {t[i]}, {y[i]}, {t[i]}" for i in range(8)]
        if part == "mul1": return [f"v_mul_f32 {t[i]}, {y[i]}, {t[i]}" for i in range(8, 16)]
        if part == "cvt": return [f"v_cvt_pk_bf16_f32 {PK[i]}, {t[2*i]}, {t[2*i+1]}" for i in range(8)]
        if part == "m2": return [f"{mf} {ACC[16*o:16*o+16]}, {PK[4*u:4*u+4]}, {A2[4*u:4*u+4]}, {ACC[16*o:16*o+16]}" for u in range(2)]
    def phase(n, f1, f2, first=False):
        o = 1 - n; t = TM[16*n:16*n+16]; y = Y[16*n:16*n+16]
        a = m1(o)
        if first:
            prio(1); A(a[0]); A("s_nop 9")
        else:
            prio(0); A("\n".join(finish(o, "mul1"))); prio(1); A(a[0])
        for i in range(16):
            if i % 4 == 0 and i: A(a[i // 4])
            A(f"v_exp_f32 {t[i]}, {y[i]}")
        A("\n".join(f1)); A(one(t))
        m2 = finish(o, "m2")
        if not first: A("\n".join(finish(o, "cvt"))); A(m2[0])
        A("\n".join(f2))
        for i in range(16):
            if i == 2 and not first: A(m2[1])
            if "xnorcp" not in OPT: A(f"v_rcp_f32 {t[i]}, {t[i]}")
        A("\n".join(finish(n, "mul0")))
        prio(2)
    phase(0, [shift_e, "s_nop 0"], derive_b, first=True)
    A("s_branch L_prep1")
    stub("tile")
    A(".p2align 6")
    A("L_tile:")
    phase(0, derive_b[:9], derive_b[9:] + [shift_e])
    A("L_prep1:")
    for i in range(4): A(f"ds_read_b64_tr_b16 {A2[2*i:2*i+2]}, {vTtr} offset:{512*i}")
    A(f"ds_write_b64 {vAt}, {ZERO}")
    A(f"s_cmp_gt_u32 {sTi}, {sNt}"); A("s_cbranch_scc1 L_last")
    A(read_entry); A(lut_read)
    A("s_waitcnt vmcnt(0)")
    read_he()
    A(f"s_cmp_ge_u32 {sTi}, {sNt}")
    A("s_waitcnt lgkmcnt(0)")
    A("s_cbranch_scc1 L_skipdma")
    if "efirst" not in OPT: dma_h(range(4 - ndef)); dma_e()
    else: dma_e(); dma_h(range(4 - ndef))
    A("L_skipdma:")
    phase(1, [mk_at] + derive_a, adv_idx + [adv_n])
    A(f"ds_write_b64 {vAt}, {D}")
    pos_reads()
    if ndef:
        A(f"s_cmp_ge_u32 {sTi}, {sNt}"); A("s_cbranch_scc1 L_skipdma2"); dma_h(range(4 - ndef, 4)); A("L_skipdma2:")
    read_idx()
    A(f"s_add_u32 {sTi}, {sTi}, 1")
    A("s_waitcnt lgkmcnt(0)")
    A("s_branch L_tile")
    WXR = [H[0:4], H[4:8], H[8:12], H[12:16], EA, X, A2[0:4], A2[4:8]]
    def epi_reads():
        A(f"v_xor_b32 {DT[3]}, 64, {vWb}"); A(f"v_lshlrev_b32 {vAl}, 4, {vHalf}")
        for n2 in range(2):
            for st in range(4):
                for hf in range(2):
                    A(f"ds_read_b64_tr_b16 {W2[16*n2+4*st+2*hf:16*n2+4*st+2*hf+2]}, {DT[3] if n2 else vWb} offset:{(16*st + 8*hf)*128}")
            A("s_waitcnt lgkmcnt(6)")
        for i in range(6): A(f"ds_read_b128 {WXR[i]}, {vAl} offset:{WX + 32*i}")
    stub("last")
    A("L_last:")
    A(f"s_cmp_lt_u32 {sScan}, {E}"); A("s_cbranch_scc1 L_noer"); epi_reads(); A("L_noer:")
    prio(0); A("\n".join(finish(0, "mul1"))); prio(1)
    A("\n".join(finish(0, "cvt")))
    m2 = finish(0, "m2")
    A("s_waitcnt lgkmcnt(0)")
    for i in range(16):
        if i in (1, 4): A(m2[i // 4])
        A(f"v_exp_f32 {TM[16+i]}, {Y[16+i]}")
    epiaddr = lines(f"""
    v_lshrrev_b32 {DT[1]}, 2, {vL}
    v_and_b32 {DT[2]}, 3, {vL}
    v_add_u32 {DT[1]}, {sN0}, {DT[1]}
    v_mul_u32_u24 {DT[1]}, 6, {DT[1]}
    v_lshl_add_u32 {DT[1]}, {DT[2]}, 1, {DT[1]}
    ds_read_u16_d16_hi {PS[0]}, {DT[1]} offset:{POS}
    v_add_u32 {DT[0]}, {sN0}, {vHalf}
    v_lshlrev_b32 {DT[0]}, 7, {DT[0]}
    v_and_b32 {DT[2]}, 31, {vL}
    v_lshl_add_u32 {DT[0]}, {DT[2]}, 1, {DT[0]}
    v_add_u32 {DT[1]}, {N*128}, {DT[1]}
    """)
    A("\n".join(epiaddr[:2])); A(one(TM[16:32])); A("\n".join(epiaddr[2:])); A("s_nop 2")
    for i in range(16): A(f"v_rcp_f32 {TM[16+i]}, {TM[16+i]}")
    A("\n".join(finish(1, "mul0") + finish(1, "mul1") + finish(1, "cvt") + ["s_nop 1"] + finish(1, "m2")))
    A(f"s_cmp_lt_u32 {sScan}, {E}"); A("s_cbranch_scc1 L_more")
    kcold = len(A.o)
    A("L_round_end:")
    A(f"s_cmp_lt_u32 {sScan}, {E}"); A("s_cbranch_scc1 L_more")
    epi_reads(); A("\n".join(epiaddr)); A("s_branch L_epi")
    A("L_more:")
    A(f"s_cmp_lg_u32 {sScan}, 0"); A("s_cbranch_scc1 L_havetab")
    srd(A, SZ, pH, N, 128)
    FP = W2[8:24]
    A(f"""
    v_lshlrev_b32 {t0}, 4, v0
    v_and_b32 {t1}, 16, {vL}
    v_lshlrev_b32 {t1}, 2, {t1}
    v_xor_b32 {t0}, {t0}, {t1}
    s_add_u32 m0, {sW10}, {STG}
    s_movk_i32 {sT[0]}, 8192
    s_waitcnt vmcnt(0)
    s_barrier
    buffer_load_dwordx4 {t0}, {SY}, {sT[0]} offen lds
    v_add_u32 {t0}, {STG - WE}, {vT1}
    v_xor_b32 {t1}, 64, {t0}
    v_and_b32 {EN[0]}, 31, {vL}
    v_lshl_add_u32 {EN[0]}, {sW}, 5, {EN[0]}
    v_lshlrev_b32 {EN[1]}, 4, {vHalf}
    v_lshlrev_b32 {D[1]}, 5, {vHalf}
    s_mov_b32 {sTi}, {sW}
    s_waitcnt vmcnt(0)
    s_barrier
    """)
    for n in range(2):
        for s_ in range(4):
            for half in range(2): A(f"ds_read_b64_tr_b16 {Y[16*n+4*s_+2*half:16*n+4*s_+2*half+2]}, {t1 if n else t0} offset:{(16*s_ + 4*half)*128}")
        A("s_waitcnt lgkmcnt(0)")
    A("L_tab:")
    for s_ in range(4): A(f"buffer_load_dwordx4 {H[4*s_:4*s_+4]}, {EN}, {SZ}, 0 idxen offen offset:{32*s_}")
    A(f"v_mov_b32 {D[0]}, {EN[0]}"); A(f"v_add_u32 {EN[0]}, 256, {EN[0]}")
    A("s_waitcnt vmcnt(0)")
    for n in range(2):
        for s_ in range(4): A(f"{mf} {TM[16*n:16*n+16]}, {Y[16*n+4*s_:16*n+4*s_+4]}, {H[4*s_:4*s_+4]}, {TM[16*n:16*n+16] if s_ else 0}")
    A("s_nop 11")
    for k in range(32): A(f"v_mul_f32 {TM[k]}, {NLOG2E:#x}, {TM[k]}")
    for k in range(16): A(f"v_cvt_pk_bf16_f32 {FP[k]}, {TM[2*k]}, {TM[2*k+1]}")
    for k in range(4): A(f"buffer_store_dwordx4 {FP[4*k:4*k+4]}, {D}, {SH}, 0 idxen offen offset:{64*(k//2) + 16*(k%2)} sc1")
    A(f"""
    s_add_u32 {sTi}, {sTi}, 8
    s_cmp_lt_u32 {sTi}, {(N + 31)//32}
    s_cbranch_scc1 L_tab
    s_waitcnt vmcnt(0)
    s_barrier
    L_havetab:
    """)
    A(f"s_mov_b32 {sCnt}, 0")
    A("L_scan:")
    Dd = H[0:4]; Ss = H[4:8]
    A(f"""
    s_lshl_b32 {sT[0]}, {sScan}, 2
    v_lshl_add_u32 {DT[0]}, {vL}, 4, {sT[0]}
    global_load_dwordx4 {Dd}, {DT[0]}, {pDst}
    global_load_dwordx4 {Ss}, {DT[0]}, {pSrc}
    v_lshlrev_b32 {DT[0]}, 4, {DT[0]}
    s_waitcnt vmcnt(0)
    """)
    for i in range(4):
        A(f"""
        v_subrev_u32 {DT[1]}, {sN0}, {Dd[i]}
        v_cmp_gt_u32 vcc, {sNn}, {DT[1]}
        v_add3_u32 {EN[0]}, {DT[0]}, {DT[1]}, 1
        v_mov_b32 {EN[1]}, {Ss[i]}
        v_mbcnt_lo_u32_b32 {DT[2]}, vcc_lo, 0
        v_mbcnt_hi_u32_b32 {DT[2]}, vcc_hi, {DT[2]}
        v_add_u32 {DT[2]}, {sCnt}, {DT[2]}
        v_lshl_add_u32 {DT[2]}, {DT[2]}, 3, {sLb}
        s_bcnt1_i32_b64 {sT[0]}, vcc
        s_add_u32 {sCnt}, {sCnt}, {sT[0]}
        s_mov_b64 exec, vcc
        ds_write_b64 {DT[2]}, {EN}
        s_mov_b64 exec, -1
        v_add_u32 {DT[0]}, 64, {DT[0]}
        """)
    A(f"""
    s_add_u32 {sScan}, {sScan}, 256
    s_cmp_ge_u32 {sScan}, {E}
    s_cbranch_scc1 L_round
    s_cmp_le_u32 {sCnt}, {CAP - 256}
    s_cbranch_scc1 L_scan
    s_branch L_round
    """)
    COLD.extend(A.o[kcold:]); del A.o[kcold:]
    A("L_epi:")
    stamp(A, 11)
    SO = SY
    srd(A, SO, pOut, N * 134)
    A(f"""
    s_cmp_eq_u32 {sSlow}, 0
    s_cselect_b32 {sT[0]}, s2, 0
    s_or_b32 {sT[0]}, {sT[0]}, {sW}
    s_cbranch_scc1 L_noepo
    v_mov_b32 {DT[2]}, {EPO}
    s_mov_b64 exec, 1
    global_atomic_add {DT[2]}, {v8}, {pWs}
    s_mov_b64 exec, -1
    s_branch L_noepo
    """)
    stub("epi")
    A(f"""
    L_noepo:
    s_waitcnt lgkmcnt(0)
    """)
    for i in (6, 7): A(f"ds_read_b128 {WXR[i]}, {vAl} offset:{WX + 32*i}")
    fm = [f"v_mul_f32 {DT[2]}, {ACC[0]}, {WXR[0][0]}"] + [f"v_fmac_f32 {DT[2]}, {ACC[i]}, {WXR[i//4][i%4]}" for i in range(1, 32)]
    for st in range(4):
        for i in range(8): A(f"v_mul_f32 {ACC[8*st+i]}, {NLN2:#x}, {ACC[8*st+i]}")
        for i in range(4): A(f"v_cvt_pk_bf16_f32 {Y[4*st+i]}, {ACC[8*st+2*i]}, {ACC[8*st+2*i+1]}")
        A(fm[2*st]); A(fm[2*st+1])
        for n2 in range(2): A(f"{mf} {TM[16*n2:16*n2+16]}, {Y[4*st:4*st+4]}, {W2[16*n2+4*st:16*n2+4*st+4]}, {TM[16*n2:16*n2+16] if st else 0}")
    A("\n".join(fm[8:24])); A("s_waitcnt lgkmcnt(0)"); A("\n".join(fm[24:]))
    A(f"v_mov_b32 {DT[3]}, {DT[2]}")
    A(f"s_cmp_eq_u32 {sNn}, 5"); A(f"s_mov_b32 {sT[2]}, 0x7777"); A(f"s_cselect_b32 {sT[2]}, 0x77777, {sT[2]}"); A(f"s_mov_b32 {sT[3]}, 0")
    A(f"v_permlane32_swap_b32 {DT[2]}, {DT[3]}")
    TT = PK
    for n in range(2):
        for j in range(3):
            z = ZH[2*j+n]; t = TT[2*j+n]
            A(f"v_add_f32 {z}, {z}, {TM[16*n+4*j+3]}")
            A(f"v_mul_f32 {t}, {NLOG2E:#x}, {z}"); A(f"v_exp_f32 {t}, {t}")
    A(f"v_add_f32 {DT[2]}, {DT[2]}, {DT[3]}")
    for i in range(6): A(f"v_add_f32 {TT[i]}, 1.0, {TT[i]}"); A(f"v_rcp_f32 {TT[i]}, {TT[i]}")
    A(f"v_add_f32 {DT[2]}, {DT[2]}, {PS[0]}")
    for i in range(6):
        A(f"v_fmac_f32 {HR[i]}, {ZH[i]}, {TT[i]}"); A(f"v_cvt_pk_bf16_f32 {HR[i]}, {HR[i]}, {HR[i]}")
        if i < 4: A(f"buffer_store_short {HR[i]}, {DT[0]}, {SO}, 0 offen offset:{256*(i//2) + 64*(i%2)}")
    A(f"""
    v_cvt_pk_bf16_f32 {DT[2]}, {DT[2]}, {DT[2]}
    s_mov_b64 exec, {sT[2:4]}
    buffer_store_short {DT[2]}, {DT[1]}, {SO}, 0 offen
    s_cbranch_scc0 L_fin
    s_mov_b32 exec_lo, -1
    """)
    for n in range(2): A(f"buffer_store_short {HR[4+n]}, {DT[0]}, {SO}, 0 offen offset:{512 + 64*n}")
    A("L_fin:")
    if "stamp" in OPT:
        A("s_waitcnt vmcnt(0)"); A(f"v_writelane_b32 v255, {sTo}, 14"); A(f"v_writelane_b32 v255, {sNt}, 15")
    stamp(A, 12); stamp_out(A, pWs)
    A("L_done:"); A("s_endpgm")
    A.o.extend(COLD)
    print("vgprs", nv, "sgprs", S.n, "lds", LDS_MAIN, "instrs", len(A.o), file=sys.stderr)
    return A.text()

if __name__ == "__main__":
    OPT.update(sys.argv[2:])
    if "xto" in OPT: TIMEOUT = 50
    KN = "standalone__cheap_equivariant_egnn__graph_kernel"
    s = assemble([(KN, k_main(), 256)], [(KN, NB, 512, LDS_MAIN)], single=True).replace("next_free_sgpr 96", "next_free_sgpr 102")
    open(sys.argv[1], "w").write(s)
```

```python
import sys, struct
from lib import *
N, E = 10000, 640000
NB, CH = 256, 2500
CAP = 416
NLOG2E = 0xbfb8aa3b
NLN2 = 0xbf317218
SEC = NB * NB * 64
EPO = 2 * SEC
BTO = 16 << 20
TIMEOUT = 20000
INV0 = 0xffffffc6
CNT, FLAG, LUT, WX = 0, 64, 128, 256
POS = 512
WE = POS + 60032
WH = WE + 18560
STG = WH + 16384
LIST = STG + 8 * 5120
LDS_MAIN = LIST + 8 * CAP * 8
BST = STG
BCN = STG + 32768
TB = STG
HO = STG + 34816
assert STG % 128 == 0 and WE % 128 == 0 and WH % 128 == 0 and LDS_MAIN <= 163840
OPT = set()
geto = lambda name, d: int([o for o in OPT if o.startswith(name)][0][len(name):]) if any(o.startswith(name) for o in OPT) else d
PEND = []
def stamp(A, i):
    if "marks" in OPT: A(f"M_{i}:")
    if "stamp" not in OPT: return
    k = len(PEND)
    if k >= 2: A(f"v_writelane_b32 v255, s{96+2*((k-2)%3)}, {PEND[k-2]}")
    A(f"s_memrealtime s[{96+2*(k%3)}:{97+2*(k%3)}]"); PEND.append(i)
def stamp_out(A, wsp):
    if "stamp" not in OPT: return
    A("s_waitcnt lgkmcnt(0)")
    k = len(PEND)
    for u in (k - 2, k - 1): A(f"v_writelane_b32 v255, s{96+2*(u%3)}, {PEND[u]}")
    A("s_mov_b64 exec, -1")
    A(f"v_lshrrev_b32 v1, 6, v0"); A(f"s_lshl_b32 s3, s2, 3"); A("v_add_u32 v1, s3, v1"); A("v_lshlrev_b32 v1, 7, v1"); A(f"v_add_u32 v1, {200<<20}, v1")
    A("v_and_b32 v2, 63, v0"); A("v_lshl_add_u32 v1, v2, 2, v1"); A("s_mov_b32 exec_hi, 0"); A(f"global_store_dword v1, v255, {wsp}")
def lines(s): return [l.strip() for l in s.strip().split("\n") if l.strip()]

def k_main():
    A = Asm(); COLD = []
    class cold:
        def __enter__(self): self.k = len(A.o)
        def __exit__(self, *a): COLD.extend(A.o[self.k:]); del A.o[self.k:]
    notouch = "notouch" in OPT
    def stub(name, over=False, page=None, dead=False):
        if notouch and not page: return
        if (over or page) and not dead: A(f"s_branch L_sk_{name}")
        if page: A(".p2align 12")
        if not notouch:
            A(f"L_st_{name}:"); A("s_branch L_back1")
            if page: A(f"L_lt_{name}:"); A(f"s_branch {page}")
        if (over or page) and not dead: A(f"L_sk_{name}:")
    def touch_local(w, name, back):
        if notouch: return
        for ww, nm in zip(w, name): A(f"s_cmp_eq_u32 {sW}, {ww}"); A(f"s_cbranch_scc1 L_lt_{nm}")
        A(f"{back}:")
    S = Regs("s", 26, 96); V = Regs("v", 1, 255)
    pH, pPos, pE, pSrc, pDst, pWe, pWx, pWh, pOut, pDbg, pWs = [R("s", 4 + 2 * i, 2) for i in range(11)]
    sW = S.alloc("wave"); sN0 = S.alloc("node0")
    SH = S.alloc("SH", 4, 4); SE = S.alloc("SE", 4, 4); SX = S.alloc("SX", 4, 4); SY = S.alloc("SY", 4, 4); SZ = S.alloc("SZ", 4, 4)
    sM = S.alloc("masks", 16, 2); sT = S.alloc("tmp", 4, 2); sS2 = S.alloc("secmask", 8, 2); sNq = S.alloc("nq", 4)
    sStg = S.alloc("stg"); sLb = S.alloc("listbase"); sCnt = S.alloc("cnt"); sNt = S.alloc("nt"); sTi = S.alloc("ti")
    sSlow = S.alloc("slow"); sScan = S.alloc("scan"); sPd = S.alloc("pd"); sNn = S.alloc("nn")
    sNon = S.alloc("nonce"); sK = S.alloc("K"); sTo = S.alloc("to"); sEarly = S.alloc("early"); sW10 = S.alloc("w10"); sNb = S.alloc("nb0")
    sOv = S.alloc("ov"); sEm = pDbg[0]; sEx = pDbg[1]; sAg = pDbg[1]
    vL = V.alloc("lane"); vHalf = V.alloc("half"); vT1 = V.alloc("t1")
    W2 = V.alloc("W2", 32, 4); W4 = V.alloc("W4", 8, 4); BX = V.alloc("BX", 8, 4)
    ACC = V.alloc("ACC", 32, 4); Y = V.alloc("Y", 32, 4); TM = V.alloc("TM", 32, 4)
    H = V.alloc("H", 16, 4); EA = V.alloc("EA", 4, 4); X = V.alloc("X", 4, 4); A2 = V.alloc("A2", 8, 4); PK = V.alloc("PK", 8, 4)
    IX = V.alloc("IX", 10, 2); HRD = V.alloc("HRD", 4); ERD = V.alloc("ERD")
    vAh = V.alloc("Ah"); vAe = V.alloc("Ae"); vAn = V.alloc("An"); vTrow = V.alloc("Trow"); vTtr = V.alloc("Ttr")
    ZB = V.alloc("ZB", 16, 4); ZERO = ZB[0:2]; D = ZB[2:4]; PS = ZB[4:7]; PD = ZB[7:10]; HR = ZB[10:16]
    EN = V.alloc("EN", 2, 2); HALF = V.alloc("HALFC", 2, 2); INV = V.alloc("INV", 2, 2)
    vAt = V.alloc("At"); DT = V.alloc("DT", 4); vSl = V.alloc("Sl"); vAl = V.alloc("Al")
    ZH = V.alloc("ZH", 6); vWb = V.alloc("Wb"); LO = V.alloc("LO", 3)
    vJ = V.alloc("junk"); vCB = V.alloc("CB", 4); v8 = V.alloc("v8")
    nv = V.n
    mf = "v_mfma_f32_32x32x16_bf16"
    dpp = "row_mask:0xf bank_mask:0xf"
    prio = lambda p: A(f"s_setprio {p}") if "noprio" not in OPT else None
    zero16 = lambda r, z: f"v_mfma_f32_16x16x4_4b_bf16 {r}, {z}, {z}, 0"
    EXA = R("v", EA.b, 16)
    assert X.b == EA.b + 4 and A2.b == EA.b + 8
    DS = Y[0:5]; SR = Y[8:13]; RC = Y[16:21]; B4 = Y[21:26]; RT = Y[26:31]
    LE = H[0:5]; Z4 = H[8:12]; v4 = H[12]; c31 = H[13]
    aD4 = TM[0]; aD1 = TM[1]; aL = TM[2]; aC = TM[3]; aG = TM[4:6]; aS = TM[6:8]; vDs = TM[8]; vD = TM[9]; aWs = TM[10]
    aHj = TM[11]; aFj = TM[12]; aWj = TM[13]; aA = TM[14]; aZ = TM[15]; aHR = TM[16:19]; aWD = TM[19]; vT2 = TM[20]; aTz = TM[21]; aCn = TM[22]; vLim = TM[23]
    t0, t1, t2, t3 = DT[0], DT[1], DT[2], DT[3]
    RP = A2; RS = [EA[0:2], EA[2:4], X[0:2], X[2:4]]; vRo = vAt
    m5 = sM[10:12]
    if "stamp" in OPT: A("v_mov_b32 v255, 0")
    stamp(A, 0)
    A(f"""
    s_cmp_ge_u32 s2, {NB}
    s_cbranch_scc1 L_done
    s_load_dwordx16 s[4:19], s[0:1], 0
    s_load_dwordx4 s[20:23], s[0:1], 64
    s_load_dwordx2 s[24:25], s[0:1], 80
    v_lshrrev_b32 {vT1}, 6, v0
    v_and_b32 {vL}, 63, v0
    v_readfirstlane_b32 {sW}, {vT1}
    s_setprio 1
    """)
    if not notouch:
        names = ["b1", "y1", "y2", "p2", "b3", "wx", "c", "poll", "p3", "w0", "b5", "e", "tile", "last", "l2", "epi"]
        nw = geto("tw", 1)
        A(f"s_cmp_lt_u32 {sW}, {8 - nw}"); A("s_cbranch_scc1 L_back1")
        A(f"s_lshr_b32 s3, s2, 3")
        if nw > 1: A(f"s_mul_i32 s3, s3, {nw}"); A(f"s_add_u32 s3, s3, {sW}")
        A(f"s_and_b32 s3, s3, 15")
        for k, nm in enumerate(names): A(f"s_cmp_eq_u32 s3, {k}"); A(f"s_cbranch_scc1 L_st_{nm}")
        A("L_back1:")
    A(f"""
    s_mul_i32 s3, s2, {CH*4}
    v_lshl_add_u32 {aD4}, v0, 4, s3
    s_add_u32 s3, s3, 8192
    v_lshl_add_u32 {aD1}, v0, 2, s3
    v_cmp_gt_u32 vcc, {CH - 2048}, v0
    v_lshrrev_b32 {vHalf}, 5, {vL}
    s_mul_i32 {sT[0]}, s2, 5000
    s_add_u32 {sNb}, {sT[0]}, 127
    s_lshr_b32 {sNb}, {sNb}, 7
    s_mov_b64 {m5}, vcc
    s_lshl_b32 {sW10}, {sW}, 10
    s_mov_b32 {sT[1]}, {EPO}
    v_mov_b32 {Z4[0]}, 0
    v_mov_b32 {Z4[1]}, 0
    v_mov_b32 {Z4[2]}, 0
    v_mov_b32 {Z4[3]}, 0
    v_lshlrev_b32 {vD}, 4, v0
    v_add_u32 {t0}, {BST}, {vD}
    v_lshlrev_b32 {t1}, 2, v0
    v_add_u32 {t1}, {BCN}, {t1}
    v_lshrrev_b32 {EN[0]}, 3, v0
    v_mul_u32_u24 {vCB[0]}, {CH*64}, {EN[0]}
    v_add_u32 {EN[0]}, {sNb}, {EN[0]}
    v_and_b32 {EN[1]}, 0x70, {vD}
    v_and_b32 {c31}, 31, {vL}
    s_mul_i32 {sLb}, {sW}, {CAP*8}
    s_add_u32 {sLb}, {sLb}, {LIST}
    v_and_b32 {t3}, 16, {vL}
    v_lshlrev_b32 {t2}, 2, {t3}
    v_xor_b32 {vDs}, {vD}, {t2}
    s_add_u32 m0, {sW10}, {WE + 8192}
    s_movk_i32 {sT[3]}, 8192
    s_mov_b32 {SY[2]}, {145*128}
    s_mov_b32 {SY[3]}, 0x20000
    s_mov_b32 {SH[2]}, {N}
    s_mov_b32 {SH[3]}, 0x20000
    s_mul_i32 {sT[2]}, {sW}, 1040
    s_waitcnt lgkmcnt(0)
    s_mov_b64 {SY[0:2]}, {pWe}
    s_mov_b32 {SH[0]}, {pH[0]}
    s_cmp_gt_u32 {sW}, 6
    s_cbranch_scc1 L_w2done
    buffer_load_dwordx4 {vDs}, {SY}, {sT[3]} offen lds
    s_cmp_lt_u32 {sW}, 6
    s_cbranch_scc1 L_w2done
    buffer_load_dwordx4 {vDs}, {SY}, {sT[3]} offen offset:1024 lds
    L_w2done:
    s_add_u32 m0, {sT[2]}, {HO}
    s_and_b32 {SH[1]}, {pH[1]}, 0xffff
    s_or_b32 {SH[1]}, {SH[1]}, 0x800000
    s_load_dword {sNon}, {pWs}, {sT[1]}
    s_cmp_ge_u32 {sW}, 5
    s_cbranch_scc1 L_share
    buffer_load_dwordx4 {EN}, {SH}, 0 idxen offen lds
    s_branch L_share_done
    L_share:
    s_lshr_b32 {sT[0]}, s2, 3
    """)
    srd(A, SY, pPos, N * 6)
    A(f"s_mov_b32 {sT[2]}, 15")
    for w, (ptr, size, cnt) in ((6, (pWe, 145 * 128, 5)), (7, (pWh, 16384, 4))):
        A(f"""
        s_cmp_eq_u32 {sW}, {w}
        s_cselect_b64 {SY[0:2]}, {ptr}, {SY[0:2]}
        s_cselect_b32 {SY[2]}, {size}, {SY[2]}
        s_cselect_b32 {sT[2]}, {cnt}, {sT[2]}
        """)
    A(f"""
    s_mul_i32 {sT[0]}, {sT[0]}, {sT[2]}
    v_add_lshl_u32 {t2}, {vL}, {sT[0]}, 7
    s_bfm_b64 exec, {sT[2]}, 0
    buffer_load_dword {vJ}, {t2}, {SY}, 0 offen
    s_mov_b64 exec, -1
    L_share_done:
    """)
    for i in range(4): A(f"ds_write_b128 {t0}, {Z4} offset:{8192*i}")
    A(f"ds_write_b32 {t1}, {Z4[0]}")
    def ld(R_, p_):
        A(f"""
        global_load_dwordx4 {R_[0:4]}, {aD4}, {p_}
        s_mov_b64 exec, {m5}
        global_load_dword {R_[4]}, {aD1}, {p_}
        s_mov_b64 exec, -1
        """)
    dpos = geto("dpos", 2); spos = geto("spos", 3)
    def slot(k):
        if dpos == k: ld(DS, pDst)
        if spos == k: ld(SR, pSrc)
    slot(0)
    A(zero16(ZB, Z4[0:2])); A(zero16(EXA, Z4[0:2]))
    A(f"""
    s_add_u32 {SH[0]}, {pWs[0]}, {BTO}
    s_addc_u32 {SH[1]}, {pWs[1]}, 0
    s_and_b32 {SH[1]}, {SH[1]}, 0xffff
    s_or_b32 {SH[1]}, {SH[1]}, 0x800000
    """)
    lo = sum(1 << ((k + 1) * 4 + (k >> 1)) for k in range(5) if k % 2 == 0)
    hi = sum(1 << ((k + 1) * 4 + (k >> 1)) for k in range(5) if k % 2 == 1)
    A(f"""
    v_mov_b32 {INV[0]}, {INV0:#x}
    v_mov_b32 {INV[1]}, {N}
    v_lshl_add_u32 {t0}, {vL}, 3, {sLb}
    ds_write_b64 {t0}, {INV}
    s_cmp_lg_u32 {sW}, 0
    s_cbranch_scc1 L_init_done
    v_lshrrev_b32 {t0}, 1, {vL}
    v_mul_u32_u24 {t0}, {CAP*8}, {t0}
    v_add_u32 {t0}, {LIST}, {t0}
    v_mov_b32 {t1}, 0x3f80
    s_mov_b64 {sT[2:4]}, 0xffff
    v_cndmask_b32 {t0}, 0, {t0}, {sT[2:4]}
    s_mov_b32 {sT[2]}, 0
    s_mov_b32 {sT[3]}, {lo:#x}
    v_cndmask_b32 {t0}, {t0}, {t1}, {sT[2:4]}
    s_mov_b32 {sT[3]}, {hi:#x}
    v_cndmask_b32 {t0}, {t0}, 1.0, {sT[2:4]}
    v_lshlrev_b32 {t1}, 2, {vL}
    ds_write_b32 {t1}, {t0}
    L_init_done:
    """)
    slot(1)
    A(f"""
    v_mov_b32 {v4}, 4
    v_lshlrev_b32 {LE[0]}, 8, v0
    v_add_u32 {LE[1]}, 64, {LE[0]}
    v_add_u32 {LE[2]}, 128, {LE[0]}
    v_add_u32 {LE[3]}, 192, {LE[0]}
    v_lshlrev_b32 {LE[4]}, 6, v0
    v_add_u32 {LE[4]}, {2048*64}, {LE[4]}
    v_and_b32 {t0}, 3, {vL}
    v_lshlrev_b32 {t0}, 3, {t0}
    v_lshl_add_u32 {vTtr}, {t3}, 1, {t0}
    v_and_b32 {t1}, 12, {vL}
    v_lshl_add_u32 {t0}, {t1}, 5, {vTtr}
    v_lshl_add_u32 {vTtr}, {t1}, 4, {vTtr}
    v_and_b32 {t1}, 8, {vL}
    v_lshl_add_u32 {vWb}, {t1}, 3, {t0}
    v_lshl_add_u32 {t0}, {vHalf}, 10, {vWb}
    v_add_u32 {vT1}, {WE}, {t0}
    """)
    slot(2)
    A(f"""
    s_bfe_u32 {sT[0]}, {sW}, 0x10001
    s_mul_i32 {sT[0]}, {sT[0]}, 20
    v_add_u32 {aWj}, {sT[0]}, {c31}
    v_lshrrev_b32 {t1}, 3, {aWj}
    v_add_u32 {t1}, {t1}, {vHalf}
    v_lshlrev_b32 {aHj}, 7, {aWj}
    v_lshl_add_u32 {aHj}, {t1}, 4, {aHj}
    v_add_u32 {aHj}, {HO}, {aHj}
    s_and_b32 {sT[1]}, {sW}, 1
    s_lshr_b32 {sT[2]}, {sW}, 2
    s_lshl_b32 {sT[0]}, {sT[1]}, 6
    s_mul_i32 {sT[3]}, {sT[2]}, {WH - WE}
    v_xor_b32 {aFj}, {sT[0]}, {vT1}
    v_add_u32 {aFj}, {sT[3]}, {aFj}
    s_lshl_b32 {sT[0]}, s2, 3
    s_add_u32 {sT[0]}, {sT[0]}, {sW}
    s_mul_i32 {sT[0]}, {sT[0]}, 625
    s_add_u32 {sN0}, {sT[0]}, 127
    s_lshr_b32 {sN0}, {sN0}, 7
    s_add_u32 {sNn}, {sT[0]}, {625 + 127}
    s_lshr_b32 {sNn}, {sNn}, 7
    s_sub_u32 {sNn}, {sNn}, {sN0}
    s_movk_i32 {sT[0]}, 625
    s_movk_i32 {sT[1]}, 120
    s_mov_b32 {sT[2]}, {BCN}
    s_movk_i32 {sT[3]}, 8192
    """)
    aBw = TM[24]; aBr = TM[25]; aBs = TM[26:28]
    u0, u1 = sS2[0], sS2[1]
    stB = lines(f"""
    s_lshl_b32 {u0}, {sW}, 11
    s_add_u32 {u0}, {u0}, {POS}
    v_mul_u32_u24 {aBw}, 80, {c31}
    v_lshl_add_u32 {aBw}, {vHalf}, 5, {aBw}
    v_add_u32 {aBw}, {u0}, {aBw}
    v_lshrrev_b32 {t0}, 2, {vL}
    v_and_b32 {t1}, 48, {vD}
    v_mul_u32_u24 {aBr}, 80, {t0}
    v_add3_u32 {aBr}, {aBr}, {t1}, {u0}
    s_bfe_u32 {u0}, {sW}, 0x10001
    s_mul_i32 {u0}, {u0}, 20
    s_add_u32 {u0}, {u0}, {sNb}
    v_add_u32 {aBs[0]}, {u0}, {t0}
    s_and_b32 {u0}, {sW}, 1
    s_lshl_b32 {u0}, {u0}, 6
    v_add_u32 {aBs[1]}, {u0}, {t1}
    """)
    stG = lines(f"""
    v_lshrrev_b32 {aC}, 2, v0
    v_and_b32 {t0}, 48, {vD}
    v_lshl_add_u32 {aL}, {aC}, 7, {t0}
    v_add_u32 {aL}, {BST}, {aL}
    v_lshl_add_u32 {aG[0]}, {aC}, 14, {t0}
    s_lshl_b32 {u0}, s2, 6
    v_add_u32 {aG[0]}, {u0}, {aG[0]}
    v_add_u32 {aG[1]}, {128*16384}, {aG[0]}
    v_and_b32 {aC}, -4, v0
    v_add_u32 {aC}, {BCN}, {aC}
    """)
    stL = lines(f"""
    v_add_u32 {aWs}, {WE + 8192}, {vD}
    s_lshl_b32 {u0}, {sW}, 11
    s_add_u32 {u0}, {u0}, {WE}
    s_sub_u32 {u1}, {u0}, 8
    v_lshl_add_u32 {vTtr}, {vHalf}, 8, {vTtr}
    v_add_u32 {vTtr}, {u0}, {vTtr}
    v_lshl_add_u32 {vTrow}, {c31}, 6, {u1}
    v_lshl_add_u32 {aTz}, {vL}, 3, {u0}
    v_lshl_add_u32 {vWb}, {vHalf}, 9, {vWb}
    v_add_u32 {vWb}, {WH + 8192}, {vWb}
    v_xor_b32 {vT2}, 64, {vT1}
    s_lshr_b32 {u0}, {sW}, 2
    s_mul_i32 {u0}, {u0}, {40*272}
    s_and_b32 {u1}, {sW}, 1
    s_lshl_b32 {u1}, {u1}, 7
    s_add_u32 {u0}, {u0}, {u1}
    s_add_u32 {u0}, {u0}, {TB}
    v_mul_u32_u24 {aWj}, 272, {aWj}
    v_lshl_add_u32 {aWj}, {vHalf}, 4, {aWj}
    v_add_u32 {aWj}, {u0}, {aWj}
    s_sub_u32 {u0}, {sN0}, {sNb}
    s_mul_i32 {u1}, {u0}, 272
    s_add_u32 {u1}, {u1}, {TB}
    v_lshl_add_u32 {aA}, {c31}, 2, {u1}
    v_mul_u32_u24 {aZ}, 272, {vHalf}
    v_add_u32 {aZ}, {aZ}, {aA}
    v_lshlrev_b32 {t2}, 1, {c31}
    v_add_u32 {aWD}, {WE + 18432}, {t2}
    v_add_u32 {t2}, {HO}, {t2}
    v_add_u32 {t0}, {u0}, {vHalf}
    """)
    for j in range(3):
        stL += [f"v_lshrrev_b32 {t1}, 3, {t0}", f"v_lshl_add_u32 {aHR[j]}, {t0}, 7, {t2}", f"v_lshl_add_u32 {aHR[j]}, {t1}, 4, {aHR[j]}"]
        if j < 2: stL.append(f"v_add_u32 {t0}, 2, {t0}")
    slot(3)
    stub("b1", over=True)
    stamp(A, 1)
    BH = W2[0:16]; BF = W2[16:32]; BD = ACC[0:16]; BP = ACC[16:24]; BR = ACC[24:32]
    lab = {"n": 0}
    def old(fn):
        lab["n"] += 1; A(f"s_cmp_ge_u32 {sW}, 4"); A(f"s_cbranch_scc1 L_old{lab['n']}"); fn(); A(f"L_old{lab['n']}:")
    ny = 4 if spos < 4 else 2
    if "f2" in OPT:
        A("s_waitcnt lgkmcnt(0)"); stamp(A, 23); A(f"s_waitcnt vmcnt({ny + 1})"); stamp(A, 24); A("s_waitcnt lgkmcnt(0)"); A(f"s_waitcnt vmcnt({ny})"); stamp(A, 25)
    A(f"s_cmp_ge_u32 {sW}, 5"); A(f"s_waitcnt vmcnt({ny + 1}) lgkmcnt(0)"); A("s_cbranch_scc1 L_b1"); A(f"s_waitcnt vmcnt({ny})"); A("L_b1:"); A("s_barrier")
    stamp(A, 29)
    slot(4)
    A(f"s_and_b32 {sNon}, {sNon}, -8")
    hashc = []
    for q in range(4):
        r = sNq[q]
        hashc.append(lines(f"""
        s_add_u32 {r}, {sNon}, {0x9e3779b8 + q:#x}
        s_mul_i32 {r}, {r}, 0x85ebca6b
        s_lshr_b32 s3, {r}, 15
        s_xor_b32 {r}, {r}, s3
        s_mul_i32 {r}, {r}, 0xc2b2ae35
        s_and_b32 {r}, {r}, -16
        s_or_b32 {r}, {r}, {1 << q}
        """))
    def b_reads():
        for s in range(4):
            A(f"ds_read_b128 {BH[4*s:4*s+4]}, {aHj} offset:{32*s}")
            for half in range(2): A(f"ds_read_b64_tr_b16 {BF[4*s+2*half:4*s+2*half+2]}, {aFj} offset:{8192 + (16*s + 4*half)*128}")
    st2 = lines(f"""
    s_mul_i32 {sStg}, {sW}, 5120
    s_add_u32 {sStg}, {sStg}, {STG}
    s_add_u32 {sEm}, {sStg}, 4096
    s_mul_i32 {sPd}, {sN0}, 6
    s_sub_u32 {sPd}, {sPd}, 6
    s_mov_b32 {sTo}, 0
    s_mov_b32 {sScan}, 0
    s_mov_b32 {sEarly}, 0
    s_mov_b32 {sOv}, 0
    v_and_b32 {t3}, 31, {vL}
    v_bfe_u32 {t0}, {vL}, 1, 3
    v_xor_b32 {t0}, {t0}, {vHalf}
    v_lshlrev_b32 {t0}, 4, {t0}
    v_lshl_add_u32 {t0}, {t3}, 7, {t0}
    v_add_u32 {HRD[0]}, {sStg}, {t0}
    v_xor_b32 {HRD[1]}, 32, {HRD[0]}
    v_xor_b32 {HRD[2]}, 64, {HRD[0]}
    v_xor_b32 {HRD[3]}, 0x60, {HRD[0]}
    v_bfe_u32 {t0}, {vL}, 3, 1
    v_xor_b32 {t0}, {t0}, {vHalf}
    v_lshlrev_b32 {t0}, 4, {t0}
    v_lshl_add_u32 {t0}, {t3}, 5, {t0}
    v_add_u32 {ERD}, {sEm}, {t0}
    v_lshl_add_u32 {LO[2]}, {t3}, 3, {sLb}
    v_and_b32 {t0}, 56, {vL}
    v_add3_u32 {LO[0]}, {t0}, {sLb}, 4
    v_lshrrev_b32 {t0}, 1, {vL}
    v_lshl_add_u32 {LO[1]}, {t0}, 3, {sLb}
    v_mov_b32 {vAh}, {LO[0]}
    v_mov_b32 {vAe}, {LO[1]}
    v_mov_b32 {HALF[0]}, 0x3f003f00
    v_mov_b32 {HALF[1]}, 0x3f003f00
    v_mov_b32 {v8}, 8
    v_add_u32 {vCB[1]}, {64*CH*64}, {vCB[0]}
    v_add_u32 {vCB[2]}, {128*CH*64}, {vCB[0]}
    v_add_u32 {vCB[3]}, {192*CH*64}, {vCB[0]}
    v_and_b32 {t0}, 15, {vL}
    v_lshlrev_b32 {aCn}, 3, {t0}
    v_mul_u32_u24 {vLim}, {CAP*8}, {t0}
    v_add_u32 {vLim}, {LIST + CAP*8}, {vLim}
    s_mov_b64 {sS2[4:6]}, 0xff
    v_cndmask_b32 {vLim}, 0, {vLim}, {sS2[4:6]}
    """)
    st2 += ["s_mov_b32 exec_lo, 0x80808080", "s_mov_b32 exec_hi, 0x80808080"] + [f"v_mov_b32 {RS[q][1]}, {sNq[q]}" for q in range(4)] + ["s_mov_b64 exec, -1"]
    st3 = lines(f"""
    v_and_b32 {t0}, 48, {vL}
    v_and_b32 {t1}, 0x70, {vD}
    v_xor_b32 {IX[1]}, {t0}, {t1}
    v_xor_b32 {IX[3]}, 64, {IX[1]}
    v_mov_b32 {IX[5]}, {IX[1]}
    v_mov_b32 {IX[7]}, {IX[3]}
    v_and_b32 {IX[9]}, 16, {IX[1]}
    """) + [f"v_mov_b32 {IX[2*i]}, -1" for i in range(5)]
    A(f"s_cmp_ge_u32 {sW}, 4"); A("s_cbranch_scc1 L_y1")
    b_reads()
    A("\n".join(stB))
    for s in range(4):
        A(f"s_waitcnt lgkmcnt({9 - 3*s})"); A(f"{mf} {BD}, {BF[4*s:4*s+4]}, {BH[4*s:4*s+4]}, {BD if s else 0}")
    A("\n".join(x for q in range(2) for x in hashc[q]))
    for k in range(16): A(f"v_mul_f32 {BD[k]}, {NLOG2E:#x}, {BD[k]}")
    for k in range(8): A(f"v_cvt_pk_bf16_f32 {BP[k]}, {BD[2*k]}, {BD[2*k+1]}")
    A("s_mov_b32 exec_lo, 0xfffff"); A("s_mov_b32 exec_hi, 0xfffff")
    for k in range(2): A(f"ds_write_b128 {aBw}, {BP[4*k:4*k+4]} offset:{16*k}")
    A("s_mov_b64 exec, -1")
    for k in range(2): A(f"ds_read_b128 {BR[4*k:4*k+4]}, {aBr} offset:{1280*k}")
    A("\n".join(x for q in range(2, 4) for x in hashc[q]))
    if "xto" in OPT: A("s_cmp_eq_u32 s2, 5"); A(f"s_cselect_b32 {SH[2]}, 0, {SH[2]}")
    A("s_waitcnt lgkmcnt(0)")
    A(f"buffer_store_dwordx4 {BR[0:4]}, {aBs}, {SH}, 0 idxen offen sc1")
    A(f"v_add_u32 {aBs[0]}, 16, {aBs[0]}"); A("s_mov_b64 exec, 0xffff")
    A(f"buffer_store_dwordx4 {BR[4:8]}, {aBs}, {SH}, 0 idxen offen sc1")
    A("s_mov_b64 exec, -1")
    A("s_waitcnt vmcnt(4)")
    A("s_branch L_y2")
    stub("y1")
    A("L_y1:")
    touch_local([4], ["p2"], "L_back3")
    for s in range(4): A(f"ds_read_b128 {BH[4*s:4*s+4]}, {aHj} offset:{32*s}")
    A("\n".join(x for q in range(4) for x in hashc[q]))
    A("\n".join(stL))
    stub("y2", over=True)
    A("s_waitcnt vmcnt(2)")
    A("L_y2:")
    if "xto" in OPT: A(f"s_mov_b32 {SH[2]}, {N}")
    stamp(A, 2)
    WA = PK[0:4]; WB = PK[4:8]
    for i in range(5):
        if i == 4: A(f"s_mov_b64 exec, {m5}")
        A(f"""
        v_mul_u32_u24 {RC[i]}, 429497, {DS[i]}
        v_lshrrev_b32 {B4[i]}, 24, {RC[i]}
        v_lshl_add_u32 {RT[i]}, {B4[i]}, 2, {sT[2]}
        ds_add_rtn_u32 {RT[i]}, {RT[i]}, {v4}
        """)
    A("s_mov_b64 exec, -1")
    A(f"s_mov_b32 {sT[2]}, {BST + 4}")
    for i in range(5):
        v = lines(f"""
        v_lshrrev_b32 {RC[i]}, 21, {RC[i]}
        v_mad_u32_u24 {t0}, {RC[i]}, {sT[0]}, -1
        v_lshl_add_u32 {RC[i]}, {RC[i]}, 3, {DS[i]}
        v_ashrrev_i32 {t0}, 7, {t0}
        v_sub_u32 {RC[i]}, {RC[i]}, {t0}
        v_and_or_b32 {RC[i]}, {RC[i]}, 63, {LE[i]}
        v_lshl_add_u32 {B4[i]}, {B4[i]}, 7, {sT[2]}
        """)
        A("\n".join(v))
    A("s_waitcnt lgkmcnt(0)")
    for i in range(5):
        A(f"v_cmp_gt_u32 {sM[2*i:2*i+2]}, {sT[1]}, {RT[i]}")
        A(f"v_add_u32 {RT[i]}, {RT[i]}, {B4[i]}")
    A(f"s_and_b64 {sM[8:10]}, {sM[8:10]}, {m5}")
    def tables():
        A(f"""
        s_cmp_gt_u32 {sW}, 2
        s_cbranch_scc1 L_odone
        s_cmp_lg_u32 {sW}, 0
        s_cbranch_scc1 L_o6
        v_lshlrev_b32 {t0}, 2, {vL}
        s_mov_b32 m0, {WE + 18432}
        s_mov_b32 {sT[2]}, 16384
        s_mov_b32 exec_hi, 0
        buffer_load_dword {t0}, {SY}, {sT[2]} offen lds
        s_mov_b64 exec, -1
        v_lshlrev_b32 {t0}, 1, {vL}
        global_load_ushort {WB[0]}, {t0}, {pWx}
        s_branch L_odone
        L_o6:
        s_mov_b32 {sT[2]}, {129*128 - 1024}
        buffer_load_dwordx4 {WB}, {vDs}, {SY}, {sT[2]} offen
        L_odone:
        s_add_u32 m0, {sW10}, {WE}
        s_nop 0
        buffer_load_dwordx4 {vDs}, {SY}, 0 offen lds
        s_add_u32 m0, {sW10}, {WH}
        s_nop 0
        buffer_load_dwordx4 {vDs}, {SZ}, 0 offen lds
        s_add_u32 m0, {sW10}, {WH + 8192}
        s_nop 0
        buffer_load_dwordx4 {vDs}, {SZ}, {sT[3]} offen lds
        """)
    A(f"""
    s_xor_b32 {sK}, {sNq[0]}, {sNq[1]}
    s_xor_b32 {sK}, {sK}, {sNq[2]}
    s_xor_b32 {sK}, {sK}, {sNq[3]}
    s_bitcmp1_b32 s2, 6
    s_cselect_b32 {sNon}, {sNq[1]}, {sNq[0]}
    s_cselect_b32 s3, {sNq[3]}, {sNq[2]}
    s_bitcmp1_b32 s2, 7
    s_cselect_b32 {sNon}, s3, {sNon}
    """)
    srd(A, SX, pWs, 2 * SEC); srd(A, SY, pWe, 145 * 128); srd(A, SZ, pWh, 16384)
    if "xto" in OPT: A("s_cmp_eq_u32 s2, 5"); A(f"s_cselect_b32 {SX[2]}, 0, {SX[2]}")
    A("\n".join(stG))
    stamp(A, 3)
    A(f"s_cmp_ge_u32 {sW}, 4"); A("s_waitcnt vmcnt(2)"); A("s_cbranch_scc0 L_srcok"); A("s_waitcnt vmcnt(0)"); A("L_srcok:")
    stamp(A, 4)
    for i in range(5):
        A(f"s_mov_b64 exec, {sM[2*i:2*i+2]}"); A(f"v_lshl_or_b32 {RC[i]}, {SR[i]}, 18, {RC[i]}"); A(f"ds_write_b32 {RT[i]}, {RC[i]}")
    A("s_mov_b64 exec, -1")
    tables()
    stub("p2", page="L_back3")
    ncut = geto("cut", 0)
    old(lambda: A("\n".join(stL)))
    stamp(A, 22)
    PR = [Y[0:4], Y[4:8]]; SC = [Y[8:12], Y[12:16]]; CN = Y[16:18]; XR = Y[20:24]; ST = Y[24:26]
    A(f"""
    s_mov_b32 {sM[0]}, 0x11111111
    s_mov_b32 {sM[1]}, 0x11111111
    s_mov_b32 {sM[2]}, 0x88888888
    s_mov_b32 {sM[3]}, 0x88888888
    s_and_b32 s3, {sNon}, 15
    s_lshl_b32 s3, s3, 4
    s_xor_b32 s3, s3, {sNon}
    v_mov_b32 {t0}, {sNon}
    v_mov_b32 {t1}, s3
    """)
    old(lambda: A(f"s_waitcnt vmcnt({4 if geto('eb', 0) else 3})"))
    A(f"""
    s_waitcnt lgkmcnt(0)
    s_barrier
    """)
    stamp(A, 5)
    for i in range(2): A(f"ds_read_b128 {PR[i]}, {aL} offset:{16384*i}")
    for i in range(2): A(f"ds_read_b128 {SC[i]}, {aL} offset:{16384*i + 64}"); A(f"ds_read_b32 {CN[i]}, {aC} offset:{512*i}")
    A(f"s_mov_b32 {sT[2]}, {SEC}")
    def xor4(x, r):
        A(f"v_bitop3_b32 {x}, {r[0]}, {r[1]}, {r[2]} bitop3:0x96"); A(f"v_xor_b32 {x}, {x}, {r[3]}")
    A("s_waitcnt lgkmcnt(4)")
    for i in range(2): xor4(XR[i], PR[i])
    A("s_nop 0")
    for i in range(2): A(f"v_xor_b32_dpp {XR[i]}, {XR[i]}, {XR[i]} quad_perm:[1,0,3,2] {dpp}")
    A("s_nop 0")
    for i in range(2): A(f"v_xor_b32_dpp {XR[i]}, {XR[i]}, {XR[i]} quad_perm:[2,3,0,1] {dpp}")
    A(f"s_mov_b64 exec, {sM[0:2]}")
    for i in range(2): A(f"v_xor_b32 {PR[i][0]}, {XR[i]}, {t0}")
    A("s_mov_b64 exec, -1")
    for i in range(2): A(f"buffer_store_dwordx4 {PR[i]}, {aG[i]}, {SX}, 0 offen sc1")
    A("s_waitcnt lgkmcnt(0)")
    for i in range(2): xor4(XR[2+i], SC[i])
    for i in range(2):
        A(f"v_cmp_le_u32 {sM[4+2*i:6+2*i]}, 60, {CN[i]}"); A(f"v_cmp_lt_u32 {sM[8+2*i:10+2*i]}, {sT[1]}, {CN[i]}")
    for i in range(2): A(f"v_xor_b32_dpp {XR[2+i]}, {XR[2+i]}, {XR[2+i]} quad_perm:[1,0,3,2] {dpp}")
    for i in range(2): A(f"v_cndmask_b32 {aS[i]}, -2.0, {aG[i]}, {sM[4+2*i:6+2*i]}")
    for i in range(2): A(f"v_xor_b32_dpp {XR[2+i]}, {XR[2+i]}, {XR[2+i]} quad_perm:[2,3,0,1] {dpp}")
    for i in range(2): A(f"v_cndmask_b32 {ST[i]}, {t0}, {t1}, {sM[8+2*i:10+2*i]}")
    A(f"s_mov_b64 exec, {sM[2:4]}")
    for i in range(2): A(f"v_xor_b32 {SC[i][3]}, {XR[2+i]}, {ST[i]}")
    A("s_mov_b64 exec, -1")
    for i in range(2): A(f"buffer_store_dwordx4 {SC[i]}, {aS[i]}, {SX}, {sT[2]} offen sc1")
    stamp(A, 6)
    srd(A, SZ, pPos, N * 6)
    def poll():
        for q in range(4): A(f"buffer_load_dwordx2 {RP[2*q:2*q+2]}, {vRo}, {SX}, {sS2[q-1] if q else 0} offen {'sc0 sc1' if 'sys' in OPT else 'sc1'}")
    def posdma(k):
        if k < 7:
            A(f"s_add_u32 m0, {sW10}, {POS + 8192*k}"); A(f"s_mov_b32 {sT[1]}, {8192*k}"); A(f"buffer_load_dwordx4 {vD}, {SZ}, {sT[1]} offen lds")
        else:
            A(f"""
            s_cmp_gt_u32 {sW}, 2
            s_cbranch_scc1 L_ptail
            v_add_u32 {vSl}, {8192*7}, {vD}
            s_add_u32 m0, {sW10}, {POS + 8192*7}
            v_cmpx_gt_u32 vcc, 60032, {vSl}
            buffer_load_dwordx4 {vSl}, {SZ}, 0 offen lds
            s_mov_b64 exec, -1
            L_ptail:
            """)
    A(f"s_waitcnt vmcnt({5 if geto('eb', 0) else 4})")
    def scale(r):
        for i in range(4):
            A(f"v_lshlrev_b32 {t0}, 16, {r[i]}"); A(f"v_and_b32 {t1}, 0xffff0000, {r[i]}")
            A(f"v_mul_f32 {t0}, {NLOG2E:#x}, {t0}"); A(f"v_mul_f32 {t1}, {NLOG2E:#x}, {t1}"); A(f"v_cvt_pk_bf16_f32 {r[i]}, {t0}, {t1}")
    stub("b3", over=True)
    A("s_setprio 0")
    A("s_barrier")
    stamp(A, 7)
    WD = D
    def frag(dst, base, s, n):
        for half in range(2): A(f"ds_read_b64_tr_b16 {dst[2*half:2*half+2]}, {vT2 if n else vT1} offset:{base + (16*s + 4*half)*128}")
    def frags(dst, base, n):
        for s in range(4): frag(dst[16*n+4*s:16*n+4*s+4], base, s, n)
    npre = geto("npre", 7); hp = 7 - npre; pollat = geto("poll", 4)
    state = {"k": 0}
    def vm():
        k = state["k"]; state["k"] += 1
        if k == 0 and "xjob" in OPT: A("s_nop 7")
        k -= 2 if "xjob" in OPT else 0
        if k < 0: return
        if k == 0: posdma(7)
        for u in range(npre):
            if min(u * (pollat + 1) // npre, pollat) == k: posdma(u)
        if k == pollat:
            poll()
            for u in range(hp): posdma(npre + u)
    JF = Y[0:16]; JD = Y[16:32]
    for s in range(4):
        for half in range(2): A(f"ds_read_b64_tr_b16 {JF[4*s+2*half:4*s+2*half+2]}, {aFj} offset:{(16*s + 4*half)*128}")
    PB = W2[0:8]
    def build_pb():
        A(f"s_mov_b32 {sT[2]}, 0xaaaaaaaa"); A(f"s_mov_b32 {sT[3]}, 0xaaaaaaaa"); A(f"v_mov_b32 {t0}, 0x3f80"); A(f"v_cndmask_b32 {t0}, {t0}, 1.0, {sT[2:4]}")
        A(f"s_mov_b32 {sM[0]}, 3"); A(f"s_mov_b32 {sM[1]}, 0x30000")
        for r in range(8):
            b = (r >> 2) * 4 + ((r >> 1) & 1) * 8 + (r & 1) * 2
            A(f"s_lshl_b64 {sT[2:4]}, {sM[0:2]}, {b}"); A(f"v_cndmask_b32 {PB[r]}, 0, {t0}, {sT[2:4]}")
    if "fine" in OPT: stamp(A, 23); A("s_waitcnt lgkmcnt(0)"); stamp(A, 24)
    for s in range(4):
        A(f"s_waitcnt lgkmcnt({6 - 2*s})")
        A(f"{mf} {JD}, {JF[4*s:4*s+4]}, {BH[4*s:4*s+4]}, {JD if s else 0}")
    if "fine" in OPT: stamp(A, 25)
    vm()
    if "fine" in OPT: A("s_waitcnt lgkmcnt(0)"); stamp(A, 26)
    A(f"""
    s_lshl_b32 {sT[0]}, s2, 14
    v_lshl_add_u32 {vRo}, v0, 3, {sT[0]}
    s_movk_i32 {sS2[0]}, 4096
    s_movk_i32 {sS2[1]}, 8192
    s_movk_i32 {sS2[2]}, 12288
    s_mov_b32 exec_lo, 0xfffff
    s_mov_b32 exec_hi, 0xfffff
    """)
    for i in range(4): A(f"ds_write_b128 {aWj}, {JD[4*i:4*i+4]} offset:{32*i}")
    A("s_mov_b64 exec, -1")
    if "fine" in OPT: stamp(A, 27)
    A(f"s_cmp_gt_u32 {sW}, 2"); A("s_cbranch_scc1 L_nowx"); A(f"s_cmp_eq_u32 {sW}, 0"); A("s_cbranch_scc1 L_wx")
    scale(WB)
    A(f"""
    ds_write_b128 {aWs}, {WB} offset:{8192 - 1024}
    s_branch L_nowx
    """)
    stub("wx")
    A(f"""
    L_wx:
    v_lshlrev_b32 {WB[0]}, 16, {WB[0]}
    v_lshlrev_b32 {t0}, 2, {vL}
    ds_write_b32 {t0}, {WB[0]} offset:{WX}
    L_nowx:
    """)
    vm()
    if "fine" in OPT: A("s_waitcnt lgkmcnt(0)"); stamp(A, 28)
    A(zero16(ACC[0:16], ZERO)); A(zero16(ACC[16:32], ZERO))
    A("s_waitcnt lgkmcnt(0)"); A("s_barrier")
    stamp(A, 8)
    for n in range(2):
        for k in range(5): A(f"ds_read_b32 {Y[16*n+k]}, {aA} offset:{272*k + 128*n}")
        A(f"ds_read_u16 {WD[n]}, {aWD} offset:{64*n}")
    vm()
    build_pb()
    A("s_waitcnt lgkmcnt(0)")
    frag(W4[0:4], 16384, 0, 0); frag(W4[4:8], 16384, 0, 1)
    vm()
    for n in range(2):
        a = Y[16*n:16*n+16]
        A(f"v_lshlrev_b32 {a[5]}, 16, {WD[n]}")
        for i in range(6): A(f"v_mul_f32 {a[i]}, {NLOG2E:#x}, {a[i]}")
        for i in range(6): A(f"v_and_b32 {a[8+i]}, 0xffff0000, {a[i]}")
    vm()
    stub("c", over=True)
    A("s_mov_b32 exec_lo, 0")
    for n in range(2):
        a = Y[16*n:16*n+16]
        for i in range(6): A(f"v_sub_f32 {a[8+i]}, {a[i]}, {a[8+i]}")
    A("s_mov_b64 exec, -1")
    for n in range(2):
        a = Y[16*n+8:16*n+16]; B = BX[4*n:4*n+4]
        A(f"v_cvt_pk_bf16_f32 {B[0]}, {a[0]}, {a[1]}"); A(f"v_cvt_pk_bf16_f32 {B[1]}, {a[2]}, {a[3]}")
        A(f"v_cvt_pk_bf16_f32 {B[2]}, {a[4]}, 0"); A(f"v_cvt_pk_bf16_f32 {B[3]}, 0, {a[5]}")
    A("s_waitcnt lgkmcnt(3)")
    for j in range(3):
        for n in range(2):
            A(f"ds_read_b32 {ZH[2*j+n]}, {aZ} offset:{40*272 + 544*j + 128*n}"); A(f"ds_read_u16_d16_hi {HR[2*j+n]}, {aHR[j]} offset:{64*n}")
    vm()
    srd(A, SE, pE, E, 32)
    A("\n".join(st2 + st3))
    vm()
    if geto("bpf", 16):
        A(f"""
        s_and_b32 {sT[0]}, s2, 0xc0
        s_bfe_u32 {sT[1]}, s2, 0x30003
        s_add_u32 {sT[0]}, {sT[0]}, {sT[1]}
        s_lshl_b32 {sT[1]}, {sW}, 3
        s_add_u32 {sT[0]}, {sT[0]}, {sT[1]}
        s_mul_i32 {sT[0]}, {sT[0]}, 5000
        s_add_u32 {sT[0]}, {sT[0]}, 127
        s_lshr_b32 {sT[0]}, {sT[0]}, 7
        v_add_u32 {W2[8]}, {sT[0]}, {vL}
        """)
    stamp(A, 9)
    touch_local([0, 1], ["p3", "last"], "L_back2")
    stub("poll", over=True)
    XQ = Y[0]
    def xorall(r):
        A(f"v_bitop3_b32 {XQ}, {r[0]}, {r[1]}, {r[2]} bitop3:0x96"); A(f"v_bitop3_b32 {Y[1]}, {r[3]}, {r[4]}, {r[5]} bitop3:0x96")
        A(f"v_bitop3_b32 {XQ}, {XQ}, {r[6]}, {r[7]} bitop3:0x96"); A(f"v_xor_b32 {XQ}, {XQ}, {Y[1]}")
    PW = Y[8:20]; PA = TM[24:32]
    A(f"s_waitcnt vmcnt({hp}) lgkmcnt(0)")
    A("L_poll:")
    xorall([RP[i] for i in range(8)])
    pre = [x for i in range(3) for x in (f"v_cmp_ne_u32 {sM[2*i:2*i+2]}, 0, {RP[i]}", f"v_and_b32 {PA[i]}, 0x38, {RP[i]}")]
    for k, c in enumerate(("quad_perm:[1,0,3,2]", "quad_perm:[2,3,0,1]", "row_half_mirror")):
        A(pre[2*k]); A(pre[2*k+1]); A(f"v_xor_b32_dpp {XQ}, {XQ}, {XQ} {c} {dpp}")
    A(f"""
    v_cmp_ne_u32 vcc, {sK}, {XQ}
    s_add_u32 {sTo}, {sTo}, 1
    s_cbranch_vccz L_got
    """)
    poll()
    A(f"""
    s_cmp_le_u32 {sTo}, {TIMEOUT}
    s_waitcnt vmcnt(0)
    s_cbranch_scc1 L_poll
    s_mov_b32 {sOv}, 1
    L_got:
    """)
    stamp(A, 10)
    def notag(i, pat):
        A(f"s_and_b32 {sM[2*i]}, {sM[2*i]}, {pat}"); A(f"s_and_b32 {sM[2*i+1]}, {sM[2*i+1]}, {pat}")
    def atomics(idx):
        for i in idx:
            if i % 2 == 0: notag(i, "0xfefefefe")
            A(f"s_mov_b64 exec, {sM[2*i:2*i+2]}"); A(f"ds_add_rtn_u32 {PA[i]}, {PA[i]}, {v8}")
        A("s_mov_b64 exec, -1")
    def words(r, W, q):
        A(f"v_and_b32 {W[0]}, 0x3ffff, {r}"); A(f"v_lshrrev_b32 {W[1]}, 18, {r}"); A(f"v_add_u32 {W[0]}, {W[0]}, {vCB[q]}")
    def writes(idx, extra=0):
        for k, i in enumerate(idx):
            A(f"s_waitcnt lgkmcnt({len(idx)-1+extra})")
            A(f"s_mov_b64 exec, {sM[2*i:2*i+2]}"); A(f"ds_write_b64 {PA[i]}, {PW[2*k:2*k+2]}")
        A("s_mov_b64 exec, -1")
    def secloads(tag):
        for q in range(4):
            A(f"""
            s_mov_b64 exec, {sS2[2*q:2*q+2]}
            s_cbranch_execz L_{tag}{q}
            s_mov_b32 {sT[0]}, {SEC + 4096*q}
            buffer_load_dwordx2 {RS[q]}, {vRo}, {SX}, {sT[0]} offen sc1
            L_{tag}{q}:
            """)
        A("s_mov_b64 exec, -1")
    def read_idx(e=True):
        for i in range(4): A(f"ds_read_b32 {IX[2*i]}, {vAh} offset:{64*i}")
        if e: A(f"ds_read_b32 {IX[8]}, {vAe}")
    adv_idx = [f"v_add_u32 {vAh}, 256, {vAh}", f"v_add_u32 {vAe}, 256, {vAe}"]
    shift_e = f"v_lshrrev_b32 {IX[8]}, 6, {IX[8]}"
    E0 = Y[6:8]
    def dma_h(rng=range(4)):
        for i in rng:
            A(f"s_add_u32 m0, {sStg}, {1024*i}"); A("s_nop 0"); A(f"buffer_load_dwordx4 {IX[2*i:2*i+2]}, {SH}, 0 idxen offen sc1 lds")
    def dma_e():
        A(f"s_mov_b32 m0, {sEm}"); A("s_nop 0")
        A(f"buffer_load_dwordx4 {IX[8:10]}, {SE}, 0 idxen offen lds")
    read_first = read_idx
    def shift_first(): A(shift_e)
    atomics([0, 1])
    nb = geto("bpf", 16)
    def bpf():
        A(f"s_bfm_b64 exec, {nb}, 0"); A(f"buffer_load_dword {vJ}, {W2[8]}, {SH}, 0 idxen sc1"); A("s_mov_b64 exec, -1")
    if nb and "bfirst" in OPT: bpf()
    for k in range(2): words(RP[k], PW[2*k:2*k+2], 0)
    for i in range(3, 8): A(f"v_cmp_ne_u32 {sM[2*i:2*i+2]}, 0, {RP[i]}"); A(f"v_and_b32 {PA[i]}, 0x38, {RP[i]}")
    A(f"s_mov_b32 {sT[2]}, 0x01010101"); A(f"s_mov_b32 {sT[3]}, 0x01010101")
    for q in range(4):
        A(f"s_lshr_b64 {sS2[2*q:2*q+2]}, {sM[4*q+2:4*q+4]}, 7"); A(f"s_and_b64 {sS2[2*q:2*q+2]}, {sS2[2*q:2*q+2]}, {sT[2:4]}")
        for u in range(2): A(f"s_mulk_i32 {sS2[2*q+u]}, 255")
    writes([0, 1])
    if "prime" in OPT: A(f"s_waitcnt vmcnt({1 if nb and 'bfirst' in OPT else 0})")
    secloads("sl")
    if nb and "bfirst" not in OPT: bpf()
    stub("p3", page="L_back2")
    A(f"s_cmp_ge_u32 {sW}, 4")
    A("s_waitcnt lgkmcnt(0)"); A("s_barrier")
    stamp(A, 16)
    def try_early(lab):
        shift_first()
        A(f"""
        v_max3_u32 {Y[4]}, {IX[0]}, {IX[2]}, {IX[4]}
        v_max_u32 {Y[4]}, {Y[4]}, {IX[6]}
        v_cmp_le_u32 vcc, {E}, {IX[8]}
        s_mov_b64 {sT[2:4]}, vcc
        v_cmp_le_u32 vcc, {N}, {Y[4]}
        s_or_b64 vcc, vcc, {sT[2:4]}
        s_cbranch_vccnz {lab}
        """)
        dma_e(); dma_h()
        A(f"s_mov_b32 {sEarly}, 1")
    A("s_cbranch_scc1 L_noread"); read_first(); A("L_noread:")
    atomics(range(2, 8))
    A(f"s_cmp_ge_u32 {sW}, 4"); A("s_cbranch_scc1 L_noearly"); A("s_waitcnt lgkmcnt(6)")
    try_early("L_noearly")
    A("L_noearly:")
    stamp(A, 17)
    for k in range(6): words(RP[2+k], PW[2*k:2*k+2], 1 + k // 2)
    RSf = [RS[q][i] for q in range(4) for i in range(2)]
    A(f"""
    s_cmp_eq_u32 {sEarly}, 0
    s_cbranch_scc1 L_w0
    s_waitcnt vmcnt(5)
    s_branch L_w1
    """)
    stub("w0")
    A(f"""
    L_w0:
    s_waitcnt vmcnt(0)
    L_w1:
    """)
    xorall(RSf)
    for k, c in enumerate(("quad_perm:[1,0,3,2]", "quad_perm:[2,3,0,1]", "row_half_mirror")):
        A("s_nop 1"); A(f"v_xor_b32_dpp {XQ}, {XQ}, {XQ} {c} {dpp}")
    A(f"""
    v_cmp_ne_u32 vcc, {sK}, {XQ}
    s_cbranch_vccnz L_sbad
    L_sgot:
    """)
    with cold():
        A(f"""
        L_sbad:
        v_xor_b32 {XQ}, {sK}, {XQ}
        v_and_b32 {XQ}, 0xffffff0f, {XQ}
        v_cmp_ne_u32 vcc, 0, {XQ}
        s_add_u32 {sTo}, {sTo}, 1
        s_cbranch_vccz L_stimeout
        s_cmp_gt_u32 {sTo}, {TIMEOUT}
        s_cbranch_scc1 L_stimeout
        """)
        secloads("rl")
        A(f"""
        s_branch L_w0
        L_stimeout:
        s_mov_b32 {sOv}, 1
        s_branch L_sgot
        """)
    writes(list(range(2, 8)))
    stamp(A, 18)
    if "ymid" in OPT:
        A(f"s_cmp_lt_u32 {sW}, 4"); A("s_cbranch_scc1 L_ym"); read_first(); A("s_waitcnt lgkmcnt(0)"); try_early("L_ym"); A("L_ym:")
    SWd = TM[0:16]; SA = Y[20:28]
    for i in range(8): A(f"v_cmp_ne_u32 {sM[2*i:2*i+2]}, 0, {RSf[i]}")
    for q in range(4):
        A(f"s_mov_b64 exec, {sM[4*q:4*q+2]}"); A(f"s_cbranch_execz L_sa{q}")
        notag(2*q+1, "0x7f7f7f7f")
        A(f"v_and_b32 {SA[2*q]}, 0x38, {RS[q][0]}"); A(f"v_and_b32 {SA[2*q+1]}, 0x38, {RS[q][1]}")
        A(f"ds_add_rtn_u32 {SA[2*q]}, {SA[2*q]}, {v8}")
        for i in range(2): words(RS[q][i], SWd[4*q+2*i:4*q+2*i+2], q)
        A(f"s_mov_b64 exec, {sM[4*q+2:4*q+4]}"); A(f"ds_add_rtn_u32 {SA[2*q+1]}, {SA[2*q+1]}, {v8}")
        A(f"L_sa{q}:")
    A("s_mov_b64 exec, -1")
    A("s_waitcnt lgkmcnt(5)")
    if "ymid" not in OPT: A(f"s_cmp_lt_u32 {sW}, 4"); A("s_cbranch_scc1 L_noread2"); read_first(); A("L_noread2:")
    for i in range(4): A(f"ds_write_b64 {aTz}, {ZERO} offset:{512*i}")
    stub("b5", over=True)
    A("s_waitcnt lgkmcnt(4)")
    for q in range(4):
        A(f"s_mov_b64 exec, {sM[4*q:4*q+2]}"); A(f"s_cbranch_execz L_sb{q}")
        A(f"ds_write_b64 {SA[2*q]}, {SWd[4*q:4*q+2]}")
        A(f"s_mov_b64 exec, {sM[4*q+2:4*q+4]}"); A(f"ds_write_b64 {SA[2*q+1]}, {SWd[4*q+2:4*q+4]}")
        A(f"L_sb{q}:")
    A(f"""
    s_mov_b64 exec, -1
    s_cmp_eq_u32 {sOv}, 0
    s_cbranch_scc1 L_noflag
    ds_write_b32 {ZERO[0]}, {v8} offset:{FLAG}
    L_noflag:
    """)
    stamp(A, 19)
    A(f"s_cmp_lt_u32 {sW}, 4"); A("s_cbranch_scc0 L_yng")
    if "prime" in OPT:
        A(f"s_mov_b32 {sNt}, 2"); A(f"s_lshl_b32 {sEarly}, {sEarly}, 1"); A("s_cbranch_scc1 L_prime")
    A("s_branch L_b6")
    A("L_yng:")
    if "ymid" not in OPT: try_early("L_b6")
    A(f"""
    L_b6:
    s_waitcnt lgkmcnt(0)
    s_barrier
    ds_read_b32 {t0}, {aCn}
    s_xor_b32 {sT[0]}, {sW}, 4
    s_mul_i32 {sT[1]}, {sT[0]}, {CAP*8}
    s_add_u32 {sT[1]}, {sT[1]}, {LIST - 248}
    s_cmp_ge_u32 {sW}, 4
    s_cselect_b32 {sT[2]}, {2 + geto("lag", 2)}, {2 - geto("lag", 2)}
    """)
    A(f"""
    s_waitcnt lgkmcnt(0)
    v_cmp_gt_u32 vcc, {t0}, {vLim}
    v_readlane_b32 {sCnt}, {t0}, {sW}
    v_readlane_b32 {sAg}, {t0}, {sT[0]}
    s_and_b32 {sSlow}, vcc_lo, 0x1ff
    s_sub_u32 {sCnt}, {sCnt}, {sLb}
    s_sub_u32 {sAg}, {sAg}, {sT[1]}
    s_lshr_b32 {sAg}, {sAg}, 8
    s_add_u32 {sT[0]}, {sCnt}, 248
    s_lshr_b32 {sT[0]}, {sT[0]}, 8
    s_sub_i32 {sAg}, {sT[0]}, {sAg}
    s_mul_i32 {sAg}, {sAg}, {geto("ag", 2)}
    s_add_i32 {sAg}, {sAg}, {sT[2]}
    s_lshr_b32 {sCnt}, {sCnt}, 3
    s_cmp_eq_u32 {sSlow}, 0
    s_cselect_b32 {sCnt}, {sCnt}, 0
    s_cselect_b32 {sEarly}, {sEarly}, 0
    s_cselect_b32 {sScan}, {E}, 0
    """)
    mk_at = f"v_lshl_add_u32 {vAt}, {vSl}, 3, {vTrow}"
    derive_a = lines(f"""
        v_mul_u32_u24 {DT[0]}, 6, {EN[1]}
        v_and_b32 {vSl}, 7, {EN[0]}
        v_mad_u32_u24 {DT[1]}, {vSl}, 6, {sPd}
        v_lshlrev_b32 {vAl}, 4, {vSl}
        """)
    def pos_reads():
        for i in range(3): A(f"ds_read_u16_d16_hi {PS[i]}, {DT[0]} offset:{POS+2*i}")
        for i in range(3): A(f"ds_read_u16_d16_hi {PD[i]}, {DT[1]} offset:{POS+2*i}")
    lut_read = f"ds_read_b96 {X[0:3]}, {vAl} offset:{LUT}"
    derive_b = lines(f"""
        v_sub_f32 {DT[0]}, {PD[0]}, {PS[0]}
        v_sub_f32 {DT[1]}, {PD[1]}, {PS[1]}
        v_sub_f32 {DT[2]}, {PD[2]}, {PS[2]}
        v_cvt_pk_bf16_f32 {D[0]}, {DT[0]}, {DT[1]}
        v_cvt_pk_bf16_f32 {D[1]}, {DT[2]}, 1.0
        v_lshlrev_b32 {DT[0]}, 16, {D[0]}
        v_and_b32 {DT[1]}, 0xffff0000, {D[0]}
        v_lshlrev_b32 {DT[2]}, 16, {D[1]}
        v_mul_f32 {DT[0]}, {DT[0]}, {DT[0]}
        v_fmac_f32 {DT[0]}, {DT[1]}, {DT[1]}
        v_fmac_f32 {DT[0]}, {DT[2]}, {DT[2]}
        v_cvt_pk_bf16_f32 {X[3]}, 0, {DT[0]}
        """)
    read_entry = f"ds_read_b64 {EN}, {vAn}"; adv_n = f"v_add_u32 {vAn}, 256, {vAn}"
    flip_v = f"v_add_u32 {ERD}, {sEx}, {ERD}"
    def flip_s(): A(f"s_add_u32 {sEm}, {sEm}, {sEx}"); A(f"s_sub_u32 {sEx}, 0, {sEx}")
    def read_he():
        for s in range(4): A(f"ds_read_b128 {H[4*s:4*s+4]}, {HRD[s]}")
        A(f"ds_read_b128 {EA}, {ERD}")
    def m1(n):
        y = Y[16*n:16*n+16]
        ops = [(X, BX[4*n:4*n+4]), (EA, W4[4*n:4*n+4])] + [(H[8*n+4*s:8*n+4*s+4], PB[4*s:4*s+4]) for s in range(2)]
        return [f"{mf} {y}, {a}, {b}, {y if i else 0}" for i, (a, b) in enumerate(ops)]
    ndef = geto("def", 0)
    A("L_round:")
    A(f"""
    s_add_u32 {sNt}, {sCnt}, 31
    s_lshr_b32 {sNt}, {sNt}, 5
    s_cbranch_scc0 L_round_end
    s_lshl_b32 {sT[0]}, {sNt}, 5
    s_sub_u32 {sT[0]}, {sT[0]}, {sCnt}
    s_lshl_b32 {sT[1]}, {sCnt}, 3
    v_add_u32 {t0}, {sT[1]}, {LO[2]}
    s_bfm_b64 exec, {sT[0]}, 0
    ds_write_b64 {t0}, {INV}
    s_mov_b64 exec, -1
    s_cmp_eq_u32 {sEarly}, 2
    s_cbranch_scc1 L_primed
    s_cmp_eq_u32 {sEarly}, 0
    s_cbranch_scc1 L_first
    """)
    with cold():
        A("L_first:"); A(f"v_mov_b32 {vAh}, {LO[0]}"); A(f"v_mov_b32 {vAe}, {LO[1]}")
        read_first(); A("s_waitcnt lgkmcnt(0)"); shift_first(); dma_e(); dma_h()
        A("s_branch L_prime")
        A("L_unprime:"); A(f"s_cmp_lg_u32 {sEarly}, 2"); A("s_cbranch_scc1 L_prime2"); A(f"s_mov_b32 {sEarly}, 1"); A("s_branch L_b6")
    A(f"""
    L_prime:
    ds_read_b64 {EN}, {LO[2]}
    ds_read_b64 {D}, {LO[2]} offset:256
    v_add_u32 {vAh}, 256, {LO[0]}
    v_add_u32 {vAe}, 256, {LO[1]}
    """)
    read_idx(); A("\n".join(adv_idx))
    A(f"v_add_u32 {vAn}, 512, {LO[2]}")
    A(f"s_mov_b32 {sTi}, 2")
    A("s_waitcnt lgkmcnt(5)")
    A(f"v_cmp_le_u32 vcc, {N}, {D[1]}"); A("s_cbranch_vccnz L_unprime"); A("L_prime2:")
    A("\n".join(derive_a)); pos_reads(); A(lut_read); A(mk_at)
    A(f"v_mov_b32 {EN[0]}, {D[0]}"); A(f"v_mov_b32 {EN[1]}, {D[1]}")
    stub("e", over=True)
    A(f"s_cmp_lt_u32 {sNt}, 2")
    A("s_waitcnt vmcnt(0) lgkmcnt(7)")
    read_he(); A(shift_e)
    A("s_waitcnt lgkmcnt(5)")
    A("\n".join(derive_b)); A(f"ds_write_b64 {vAt}, {D}")
    A("\n".join(derive_a))
    A("s_waitcnt lgkmcnt(1)")
    mm = m1(0)
    A("\n".join(mm[:2]))
    A("s_cbranch_scc1 L_nd1"); dma_e(); dma_h(); A("L_nd1:")
    pos_reads(); A("\n".join(mm[2:]))
    A(f"s_cmp_eq_u32 {sEarly}, 2"); A("s_cbranch_scc1 L_b6")
    A("L_primed:")
    read_idx(); A(f"s_mov_b32 {sEarly}, 0"); A("s_waitcnt lgkmcnt(0)")
    stamp(A, 13)
    one = lambda r: f"v_mfma_f32_16x16x4_4b_bf16 {r}, {HALF}, {HALF}, {r}"
    def finish(o, part):
        t = TM[16*o:16*o+16]; y = Y[16*o:16*o+16]
        if part == "mul0": return [f"v_mul_f32 {t[i]}, {y[i]}, {t[i]}" for i in range(8)]
        if part == "mul1": return [f"v_mul_f32 {t[i]}, {y[i]}, {t[i]}" for i in range(8, 16)]
        if part == "cvt": return [f"v_cvt_pk_bf16_f32 {PK[i]}, {t[2*i]}, {t[2*i+1]}" for i in range(8)]
        if part == "m2": return [f"{mf} {ACC[16*o:16*o+16]}, {PK[4*u:4*u+4]}, {A2[4*u:4*u+4]}, {ACC[16*o:16*o+16]}" for u in range(2)]
    def phase(n, f1, f2, first=False, prio=prio):
        o = 1 - n; t = TM[16*n:16*n+16]; y = Y[16*n:16*n+16]
        a = m1(o)
        if first:
            prio(1); A(a[0]); A("s_nop 1")
        else:
            prio(0); A("\n".join(finish(o, "mul1"))); prio(1); A(a[0])
        for i in range(16):
            if i % 4 == 0 and i: A(a[i // 4])
            A(f"v_exp_f32 {t[i]}, {y[i]}")
        A("\n".join(f1)); A(one(t))
        m2 = finish(o, "m2")
        if not first: A("\n".join(finish(o, "cvt"))); A(m2[0])
        A("\n".join(f2))
        for i in range(16):
            if i == 2 and not first: A(m2[1])
            if "xnorcp" not in OPT: A(f"v_rcp_f32 {t[i]}, {t[i]}")
        A("\n".join(finish(n, "mul0")))
        prio(2)
    phase(0, [shift_e, "s_nop 0"], derive_b, first=True)
    def body(x):
        pr = prio if not x else (lambda p: None)
        A(".p2align 6")
        A(f"L_tile{x}:")
        phase(0, derive_b[:9], derive_b[9:] + [shift_e], prio=pr)
        A(f"L_prep1{x}:")
        for i in range(4): A(f"ds_read_b64_tr_b16 {A2[2*i:2*i+2]}, {vTtr} offset:{512*i}")
        A(f"ds_write_b64 {vAt}, {ZERO}")
        A(f"s_cmp_gt_u32 {sTi}, {sNt}"); A(f"s_cbranch_scc1 L_last{x}")
        A(read_entry); A(lut_read)
        A("s_waitcnt vmcnt(0)")
        read_he()
        A(f"s_cmp_ge_u32 {sTi}, {sNt}")
        A("s_waitcnt lgkmcnt(0)")
        A(f"s_cbranch_scc1 L_skipdma{x}")
        dma_h(); dma_e()
        A(f"L_skipdma{x}:")
        phase(1, [mk_at] + derive_a, adv_idx + [adv_n], prio=pr)
        A(f"ds_write_b64 {vAt}, {D}")
        pos_reads(); read_idx()
        A(f"s_add_u32 {sTi}, {sTi}, 1")
        if x: A(f"s_cmp_lt_i32 {sTi}, {sAg}")
        A("s_waitcnt lgkmcnt(0)")
        if x: A(f"s_cbranch_scc1 L_tile{x}")
        A("s_branch L_tile")
    if "noag" not in OPT:
        A(f"s_cmp_lt_i32 {sTi}, {sAg}"); A("s_cbranch_scc0 L_prep1"); A("s_setprio 3"); A("s_branch L_prep1A")
    else: A("s_branch L_prep1")
    stub("tile")
    body("")
    stub("last", page="L_back2", dead=True)
    if "noag" not in OPT: body("A")
    stub("l2")
    WXR = [H[0:4], H[4:8], H[8:12], H[12:16], EA, X, A2[0:4], A2[4:8]]
    def epi_reads():
        A(f"v_xor_b32 {DT[3]}, 64, {vWb}"); A(f"v_lshlrev_b32 {vAl}, 4, {vHalf}")
        for n2 in range(2):
            for st in range(4):
                for hf in range(2):
                    A(f"ds_read_b64_tr_b16 {W2[16*n2+4*st+2*hf:16*n2+4*st+2*hf+2]}, {DT[3] if n2 else vWb} offset:{(16*st + 8*hf)*128}")
            A("s_waitcnt lgkmcnt(6)")
        for i in range(6): A(f"ds_read_b128 {WXR[i]}, {vAl} offset:{WX + 32*i}")
    A("L_lastA:")
    A("L_last:")
    A(f"s_cmp_lt_u32 {sScan}, {E}"); A("s_cbranch_scc1 L_noer"); epi_reads(); A("L_noer:")
    prio(0); A("\n".join(finish(0, "mul1"))); prio(1)
    A("\n".join(finish(0, "cvt")))
    m2 = finish(0, "m2")
    A("s_waitcnt lgkmcnt(0)")
    for i in range(16):
        if i in (1, 4): A(m2[i // 4])
        A(f"v_exp_f32 {TM[16+i]}, {Y[16+i]}")
    epiaddr = lines(f"""
    v_lshrrev_b32 {DT[1]}, 2, {vL}
    v_and_b32 {DT[2]}, 3, {vL}
    v_add_u32 {DT[1]}, {sN0}, {DT[1]}
    v_mul_u32_u24 {DT[1]}, 6, {DT[1]}
    v_lshl_add_u32 {DT[1]}, {DT[2]}, 1, {DT[1]}
    ds_read_u16_d16_hi {PS[0]}, {DT[1]} offset:{POS}
    v_add_u32 {DT[0]}, {sN0}, {vHalf}
    v_lshlrev_b32 {DT[0]}, 7, {DT[0]}
    v_and_b32 {DT[2]}, 31, {vL}
    v_lshl_add_u32 {DT[0]}, {DT[2]}, 1, {DT[0]}
    v_add_u32 {DT[1]}, {N*128}, {DT[1]}
    """)
    A("\n".join(epiaddr[:2])); A(one(TM[16:32])); A("\n".join(epiaddr[2:])); A("s_nop 2")
    for i in range(16): A(f"v_rcp_f32 {TM[16+i]}, {TM[16+i]}")
    A("\n".join(finish(1, "mul0") + finish(1, "mul1") + finish(1, "cvt") + ["s_nop 1"] + finish(1, "m2")))
    A(f"s_cmp_lt_u32 {sScan}, {E}"); A("s_cbranch_scc1 L_more")
    kcold = len(A.o)
    A("L_round_end:")
    A(f"s_cmp_lt_u32 {sScan}, {E}"); A("s_cbranch_scc1 L_more")
    epi_reads(); A("\n".join(epiaddr)); A("s_branch L_epi")
    A("L_more:")
    A(f"s_cmp_lg_u32 {sScan}, 0"); A("s_cbranch_scc1 L_havetab")
    srd(A, SZ, pH, N, 128)
    FP = W2[8:24]
    A(f"""
    v_lshlrev_b32 {t0}, 4, v0
    v_and_b32 {t1}, 16, {vL}
    v_lshlrev_b32 {t1}, 2, {t1}
    v_xor_b32 {t0}, {t0}, {t1}
    s_add_u32 m0, {sW10}, {STG}
    s_movk_i32 {sT[0]}, 8192
    s_lshl_b32 {sT[1]}, {sW}, 11
    s_add_u32 {sT[1]}, {sT[1]}, {WE}
    v_lshl_add_u32 {t2}, {vL}, 3, {sT[1]}
    s_waitcnt vmcnt(0)
    s_barrier
    ds_write_b64 {t2}, {ZERO}
    ds_write_b64 {t2}, {ZERO} offset:512
    ds_write_b64 {t2}, {ZERO} offset:1024
    ds_write_b64 {t2}, {ZERO} offset:1536
    buffer_load_dwordx4 {t0}, {SY}, {sT[0]} offen lds
    v_add_u32 {t0}, {STG - WE}, {vT1}
    v_xor_b32 {t1}, 64, {t0}
    v_and_b32 {EN[0]}, 31, {vL}
    v_lshl_add_u32 {EN[0]}, {sW}, 5, {EN[0]}
    v_lshlrev_b32 {EN[1]}, 4, {vHalf}
    v_lshlrev_b32 {D[1]}, 5, {vHalf}
    s_mov_b32 {sTi}, {sW}
    s_waitcnt vmcnt(0)
    s_barrier
    """)
    for n in range(2):
        for s_ in range(4):
            for half in range(2): A(f"ds_read_b64_tr_b16 {Y[16*n+4*s_+2*half:16*n+4*s_+2*half+2]}, {t1 if n else t0} offset:{(16*s_ + 4*half)*128}")
        A("s_waitcnt lgkmcnt(0)")
    A("L_tab:")
    for s_ in range(4): A(f"buffer_load_dwordx4 {H[4*s_:4*s_+4]}, {EN}, {SZ}, 0 idxen offen offset:{32*s_}")
    A(f"v_mov_b32 {D[0]}, {EN[0]}"); A(f"v_add_u32 {EN[0]}, 256, {EN[0]}")
    A("s_waitcnt vmcnt(0)")
    for n in range(2):
        for s_ in range(4): A(f"{mf} {TM[16*n:16*n+16]}, {Y[16*n+4*s_:16*n+4*s_+4]}, {H[4*s_:4*s_+4]}, {TM[16*n:16*n+16] if s_ else 0}")
    A("s_nop 11")
    for k in range(32): A(f"v_mul_f32 {TM[k]}, {NLOG2E:#x}, {TM[k]}")
    for k in range(16): A(f"v_cvt_pk_bf16_f32 {FP[k]}, {TM[2*k]}, {TM[2*k+1]}")
    for k in range(4): A(f"buffer_store_dwordx4 {FP[4*k:4*k+4]}, {D}, {SH}, 0 idxen offen offset:{64*(k//2) + 16*(k%2)} sc1")
    A(f"""
    s_add_u32 {sTi}, {sTi}, 8
    s_cmp_lt_u32 {sTi}, {(N + 31)//32}
    s_cbranch_scc1 L_tab
    s_waitcnt vmcnt(0)
    s_barrier
    L_havetab:
    """)
    A(f"s_mov_b32 {sCnt}, 0")
    A("L_scan:")
    Dd = H[0:4]; Ss = H[4:8]
    A(f"""
    s_lshl_b32 {sT[0]}, {sScan}, 2
    v_lshl_add_u32 {DT[0]}, {vL}, 4, {sT[0]}
    global_load_dwordx4 {Dd}, {DT[0]}, {pDst}
    global_load_dwordx4 {Ss}, {DT[0]}, {pSrc}
    v_lshlrev_b32 {DT[0]}, 4, {DT[0]}
    s_waitcnt vmcnt(0)
    """)
    for i in range(4):
        A(f"""
        v_subrev_u32 {DT[1]}, {sN0}, {Dd[i]}
        v_cmp_gt_u32 vcc, {sNn}, {DT[1]}
        v_add3_u32 {EN[0]}, {DT[0]}, {DT[1]}, 1
        v_mov_b32 {EN[1]}, {Ss[i]}
        v_mbcnt_lo_u32_b32 {DT[2]}, vcc_lo, 0
        v_mbcnt_hi_u32_b32 {DT[2]}, vcc_hi, {DT[2]}
        v_add_u32 {DT[2]}, {sCnt}, {DT[2]}
        v_lshl_add_u32 {DT[2]}, {DT[2]}, 3, {sLb}
        s_bcnt1_i32_b64 {sT[0]}, vcc
        s_add_u32 {sCnt}, {sCnt}, {sT[0]}
        s_mov_b64 exec, vcc
        ds_write_b64 {DT[2]}, {EN}
        s_mov_b64 exec, -1
        v_add_u32 {DT[0]}, 64, {DT[0]}
        """)
    A(f"""
    s_add_u32 {sScan}, {sScan}, 256
    s_cmp_ge_u32 {sScan}, {E}
    s_cbranch_scc1 L_round
    s_cmp_le_u32 {sCnt}, {CAP - 256}
    s_cbranch_scc1 L_scan
    s_branch L_round
    """)
    COLD.extend(A.o[kcold:]); del A.o[kcold:]
    A("L_epi:")
    stamp(A, 11)
    SO = SY
    srd(A, SO, pOut, N * 134)
    A(f"""
    s_cmp_eq_u32 {sSlow}, 0
    s_cselect_b32 {sT[0]}, s2, 0
    s_or_b32 {sT[0]}, {sT[0]}, {sW}
    s_cbranch_scc1 L_noepo
    v_mov_b32 {DT[2]}, {EPO}
    s_mov_b64 exec, 1
    global_atomic_add {DT[2]}, {v8}, {pWs}
    s_mov_b64 exec, -1
    s_branch L_noepo
    """)
    stub("epi")
    A(f"""
    L_noepo:
    s_waitcnt lgkmcnt(0)
    """)
    for i in (6, 7): A(f"ds_read_b128 {WXR[i]}, {vAl} offset:{WX + 32*i}")
    fm = [f"v_mul_f32 {DT[2]}, {ACC[0]}, {WXR[0][0]}"] + [f"v_fmac_f32 {DT[2]}, {ACC[i]}, {WXR[i//4][i%4]}" for i in range(1, 32)]
    for st in range(4):
        for i in range(8): A(f"v_mul_f32 {ACC[8*st+i]}, {NLN2:#x}, {ACC[8*st+i]}")
        for i in range(4): A(f"v_cvt_pk_bf16_f32 {Y[4*st+i]}, {ACC[8*st+2*i]}, {ACC[8*st+2*i+1]}")
        A(fm[2*st]); A(fm[2*st+1])
        for n2 in range(2): A(f"{mf} {TM[16*n2:16*n2+16]}, {Y[4*st:4*st+4]}, {W2[16*n2+4*st:16*n2+4*st+4]}, {TM[16*n2:16*n2+16] if st else 0}")
    A("\n".join(fm[8:24])); A("s_waitcnt lgkmcnt(0)"); A("\n".join(fm[24:]))
    A(f"v_mov_b32 {DT[3]}, {DT[2]}")
    A(f"s_cmp_eq_u32 {sNn}, 5"); A(f"s_mov_b32 {sT[2]}, 0x7777"); A(f"s_cselect_b32 {sT[2]}, 0x77777, {sT[2]}"); A(f"s_mov_b32 {sT[3]}, 0")
    A(f"v_permlane32_swap_b32 {DT[2]}, {DT[3]}")
    TT = PK
    for n in range(2):
        for j in range(3):
            z = ZH[2*j+n]; t = TT[2*j+n]
            A(f"v_add_f32 {z}, {z}, {TM[16*n+4*j+3]}")
            A(f"v_mul_f32 {t}, {NLOG2E:#x}, {z}"); A(f"v_exp_f32 {t}, {t}")
    A(f"v_add_f32 {DT[2]}, {DT[2]}, {DT[3]}")
    for i in range(6): A(f"v_add_f32 {TT[i]}, 1.0, {TT[i]}"); A(f"v_rcp_f32 {TT[i]}, {TT[i]}")
    A(f"v_add_f32 {DT[2]}, {DT[2]}, {PS[0]}")
    for i in range(6):
        A(f"v_fmac_f32 {HR[i]}, {ZH[i]}, {TT[i]}"); A(f"v_cvt_pk_bf16_f32 {HR[i]}, {HR[i]}, {HR[i]}")
        if i < 4: A(f"buffer_store_short {HR[i]}, {DT[0]}, {SO}, 0 offen offset:{256*(i//2) + 64*(i%2)}")
    A(f"""
    v_cvt_pk_bf16_f32 {DT[2]}, {DT[2]}, {DT[2]}
    s_mov_b64 exec, {sT[2:4]}
    buffer_store_short {DT[2]}, {DT[1]}, {SO}, 0 offen
    s_cbranch_scc0 L_fin
    s_mov_b32 exec_lo, -1
    """)
    for n in range(2): A(f"buffer_store_short {HR[4+n]}, {DT[0]}, {SO}, 0 offen offset:{512 + 64*n}")
    A("L_fin:")
    if "stamp" in OPT:
        A("s_waitcnt vmcnt(0)"); A(f"v_writelane_b32 v255, {sTo}, 14"); A(f"v_writelane_b32 v255, {sNt}, 15")
    stamp(A, 12); stamp_out(A, pWs)
    A("L_done:"); A("s_endpgm")
    A.o.extend(COLD)
    fl = "" if "oplain" in OPT else "sc1"
    A.o = [l + " " + fl if l.startswith("buffer_store_short") else l for l in A.o]
    print("vgprs", nv, "sgprs", S.n, "lds", LDS_MAIN, "instrs", len(A.o), file=sys.stderr)
    return A.text()

if __name__ == "__main__":
    OPT.update(sys.argv[2:])
    if "xto" in OPT: TIMEOUT = 50
    KN = "standalone__cheap_equivariant_egnn__graph_kernel"
    s = assemble([(KN, k_main(), 256)], [(KN, NB, 512, LDS_MAIN)], single=True).replace("next_free_sgpr 96", "next_free_sgpr 102")
    open(sys.argv[1], "w").write(s)
```

```python
import sys, struct
from lib import *
N, E = 10000, 640000
NB, CH = 256, 2500
CAP = 416
NLOG2E = 0xbfb8aa3b
NLN2 = 0xbf317218
SEC = NB * NB * 64
EPO = 2 * SEC
BTO = 16 << 20
TIMEOUT = 20000
INV0 = 0xffffffc6
CNT, FLAG, LUT, WX = 0, 64, 128, 256
POS = 512
WE = POS + 60032
WH = WE + 18560
STG = WH + 16384
LIST = STG + 8 * 5120
LDS_MAIN = LIST + 8 * CAP * 8
BST = STG
BCN = STG + 32768
TB = STG
HO = STG + 34816
assert STG % 128 == 0 and WE % 128 == 0 and WH % 128 == 0 and LDS_MAIN <= 163840
OPT = set()
geto = lambda name, d: int([o for o in OPT if o.startswith(name)][0][len(name):]) if any(o.startswith(name) for o in OPT) else d
PEND = []
def stamp(A, i):
    if "marks" in OPT: A(f"M_{i}:")
    if "stamp" not in OPT: return
    k = len(PEND)
    if k >= 2: A(f"v_writelane_b32 v255, s{96+2*((k-2)%3)}, {PEND[k-2]}")
    A(f"s_memrealtime s[{96+2*(k%3)}:{97+2*(k%3)}]"); PEND.append(i)
def stamp_out(A, wsp):
    if "stamp" not in OPT: return
    A("s_waitcnt lgkmcnt(0)")
    k = len(PEND)
    for u in (k - 2, k - 1): A(f"v_writelane_b32 v255, s{96+2*(u%3)}, {PEND[u]}")
    A("s_mov_b64 exec, -1")
    A(f"v_lshrrev_b32 v1, 6, v0"); A(f"s_lshl_b32 s3, s2, 3"); A("v_add_u32 v1, s3, v1"); A("v_lshlrev_b32 v1, 7, v1"); A(f"v_add_u32 v1, {200<<20}, v1")
    A("v_and_b32 v2, 63, v0"); A("v_lshl_add_u32 v1, v2, 2, v1"); A("s_mov_b32 exec_hi, 0"); A(f"global_store_dword v1, v255, {wsp}")
def lines(s): return [l.strip() for l in s.strip().split("\n") if l.strip()]

def k_main():
    A = Asm(); COLD = []
    class cold:
        def __enter__(self): self.k = len(A.o)
        def __exit__(self, *a): COLD.extend(A.o[self.k:]); del A.o[self.k:]
    notouch = "notouch" in OPT
    def stub(name, over=False, page=None, dead=False):
        if notouch and not page: return
        if (over or page) and not dead: A(f"s_branch L_sk_{name}")
        if page: A(".p2align 12")
        if not notouch:
            A(f"L_st_{name}:"); A("s_branch L_back1")
            if page: A(f"L_lt_{name}:"); A(f"s_branch {page}")
        if (over or page) and not dead: A(f"L_sk_{name}:")
    def touch_local(w, name, back):
        if notouch: return
        for ww, nm in zip(w, name): A(f"s_cmp_eq_u32 {sW}, {ww}"); A(f"s_cbranch_scc1 L_lt_{nm}")
        A(f"{back}:")
    S = Regs("s", 26, 96); V = Regs("v", 1, 255)
    pH, pPos, pE, pSrc, pDst, pWe, pWx, pWh, pOut, pDbg, pWs = [R("s", 4 + 2 * i, 2) for i in range(11)]
    sW = S.alloc("wave"); sN0 = S.alloc("node0")
    SH = S.alloc("SH", 4, 4); SE = S.alloc("SE", 4, 4); SX = S.alloc("SX", 4, 4); SY = S.alloc("SY", 4, 4); SZ = S.alloc("SZ", 4, 4)
    sM = S.alloc("masks", 16, 2); sT = S.alloc("tmp", 4, 2); sS2 = S.alloc("secmask", 8, 2); sNq = S.alloc("nq", 4, 2)
    sStg = S.alloc("stg"); sLb = S.alloc("listbase"); sCnt = S.alloc("cnt"); sNt = S.alloc("nt"); sTi = S.alloc("ti")
    sSlow = S.alloc("slow"); sScan = S.alloc("scan"); sPd = S.alloc("pd"); sNn = S.alloc("nn")
    sNon = S.alloc("nonce"); sK = S.alloc("K"); sTo = S.alloc("to"); sEarly = S.alloc("early"); sW10 = S.alloc("w10"); sNb = S.alloc("nb0")
    sOv = S.alloc("ov"); sEm = pDbg[0]; sEx = pDbg[1]; sAg = pDbg[1]
    vL = V.alloc("lane"); vHalf = V.alloc("half"); vT1 = V.alloc("t1")
    W2 = V.alloc("W2", 32, 4); W4 = V.alloc("W4", 8, 4); BX = V.alloc("BX", 8, 4)
    ACC = V.alloc("ACC", 32, 4); Y = V.alloc("Y", 32, 4); TM = V.alloc("TM", 32, 4)
    H = V.alloc("H", 16, 4); EA = V.alloc("EA", 4, 4); X = V.alloc("X", 4, 4); A2 = V.alloc("A2", 8, 4); PK = V.alloc("PK", 8, 4)
    IX = V.alloc("IX", 10, 2); HRD = V.alloc("HRD", 4); ERD = V.alloc("ERD")
    vAh = V.alloc("Ah"); vAe = V.alloc("Ae"); vAn = V.alloc("An"); vTrow = V.alloc("Trow"); vTtr = V.alloc("Ttr")
    ZB = V.alloc("ZB", 16, 4); ZERO = ZB[0:2]; D = ZB[2:4]; PS = ZB[4:7]; PD = ZB[7:10]; HR = ZB[10:16]
    EN = V.alloc("EN", 2, 2); HALF = V.alloc("HALFC", 2, 2); INV = V.alloc("INV", 2, 2)
    vAt = V.alloc("At"); DT = V.alloc("DT", 4); vSl = V.alloc("Sl"); vAl = V.alloc("Al")
    ZH = V.alloc("ZH", 6); vWb = V.alloc("Wb"); LO = V.alloc("LO", 3)
    vJ = V.alloc("junk"); vCB = V.alloc("CB", 4); v8 = V.alloc("v8")
    nv = V.n
    mf = "v_mfma_f32_32x32x16_bf16"
    dpp = "row_mask:0xf bank_mask:0xf"
    prio = lambda p: A(f"s_setprio {p}") if "noprio" not in OPT else None
    zero16 = lambda r, z: f"v_mfma_f32_16x16x4_4b_bf16 {r}, {z}, {z}, 0"
    EXA = R("v", EA.b, 16)
    assert X.b == EA.b + 4 and A2.b == EA.b + 8
    DS = Y[0:5]; SR = Y[8:13]; RC = Y[16:21]; B4 = Y[21:26]; RT = Y[26:31]
    LE = H[0:5]; Z4 = H[8:12]; v4 = H[12]; c31 = H[13]
    aD4 = TM[0]; aD1 = TM[1]; aL = TM[2]; aC = TM[3]; aG = TM[4:6]; aS = TM[6:8]; vDs = TM[8]; vD = TM[9]; aWs = TM[10]
    aHj = TM[11]; aFj = TM[12]; aWj = TM[13]; aA = TM[14]; aZ = TM[15]; aHR = TM[16:19]; aWD = TM[19]; vT2 = TM[20]; aTz = TM[21]; aCn = TM[22]; vLim = TM[23]
    t0, t1, t2, t3 = DT[0], DT[1], DT[2], DT[3]
    RP = A2; RS = [EA[0:2], EA[2:4], X[0:2], X[2:4]]; vRo = vAt
    m5 = sM[10:12]
    if "stamp" in OPT: A("v_mov_b32 v255, 0")
    stamp(A, 0)
    A(f"""
    s_cmp_ge_u32 s2, {NB}
    s_cbranch_scc1 L_done
    s_load_dwordx16 s[4:19], s[0:1], 0
    s_load_dwordx4 s[20:23], s[0:1], 64
    s_load_dwordx2 s[24:25], s[0:1], 80
    v_lshrrev_b32 {vT1}, 6, v0
    v_and_b32 {vL}, 63, v0
    v_readfirstlane_b32 {sW}, {vT1}
    s_setprio 1
    """)
    if not notouch:
        names = ["sh", "b1", "y1", "y2", "p2", "b3", "wx", "c", "poll", "p3", "w0", "b5", "tile", "last", "l2", "epi"]
        nw = geto("tw", 1)
        A(f"s_cmp_lt_u32 {sW}, {8 - nw}"); A("s_cbranch_scc1 L_back1")
        A(f"s_lshr_b32 s3, s2, 3")
        if nw > 1: A(f"s_mul_i32 s3, s3, {nw}"); A(f"s_add_u32 s3, s3, {sW}")
        A(f"s_and_b32 s3, s3, 15")
        for k, nm in enumerate(names): A(f"s_cmp_eq_u32 s3, {k}"); A(f"s_cbranch_scc1 L_st_{nm}")
        A("L_back1:")
    A(f"""
    s_mul_i32 s3, s2, {CH*4}
    v_lshl_add_u32 {aD4}, v0, 4, s3
    s_add_u32 s3, s3, 8192
    v_lshl_add_u32 {aD1}, v0, 2, s3
    v_cmp_gt_u32 vcc, {CH - 2048}, v0
    v_lshrrev_b32 {vHalf}, 5, {vL}
    s_mul_i32 {sT[0]}, s2, 5000
    s_add_u32 {sNb}, {sT[0]}, 127
    s_lshr_b32 {sNb}, {sNb}, 7
    s_mov_b64 {m5}, vcc
    s_lshl_b32 {sW10}, {sW}, 10
    s_mov_b32 {sT[1]}, {EPO}
    v_mov_b32 {Z4[0]}, 0
    v_mov_b32 {Z4[1]}, 0
    v_mov_b32 {Z4[2]}, 0
    v_mov_b32 {Z4[3]}, 0
    v_lshlrev_b32 {vD}, 4, v0
    v_add_u32 {t0}, {BST}, {vD}
    v_lshlrev_b32 {t1}, 2, v0
    v_add_u32 {t1}, {BCN}, {t1}
    v_lshrrev_b32 {EN[0]}, 3, v0
    v_mul_u32_u24 {vCB[0]}, {CH*64}, {EN[0]}
    v_add_u32 {EN[0]}, {sNb}, {EN[0]}
    v_and_b32 {EN[1]}, 0x70, {vD}
    v_and_b32 {c31}, 31, {vL}
    s_mul_i32 {sLb}, {sW}, {CAP*8}
    s_add_u32 {sLb}, {sLb}, {LIST}
    v_and_b32 {t3}, 16, {vL}
    v_lshlrev_b32 {t2}, 2, {t3}
    v_xor_b32 {vDs}, {vD}, {t2}
    s_add_u32 m0, {sW10}, {WE + 8192}
    s_movk_i32 {sT[3]}, 8192
    s_mov_b32 {SY[2]}, {145*128}
    s_mov_b32 {SY[3]}, 0x20000
    s_mov_b32 {SH[2]}, {N}
    s_mov_b32 {SH[3]}, 0x20000
    s_mul_i32 {sT[2]}, {sW}, 1040
    s_waitcnt lgkmcnt(0)
    s_mov_b64 {SY[0:2]}, {pWe}
    s_mov_b32 {SH[0]}, {pH[0]}
    s_cmp_gt_u32 {sW}, 6
    s_cbranch_scc1 L_w2done
    buffer_load_dwordx4 {vDs}, {SY}, {sT[3]} offen lds
    s_cmp_lt_u32 {sW}, 6
    s_cbranch_scc1 L_w2done
    buffer_load_dwordx4 {vDs}, {SY}, {sT[3]} offen offset:1024 lds
    L_w2done:
    s_add_u32 m0, {sT[2]}, {HO}
    s_and_b32 {SH[1]}, {pH[1]}, 0xffff
    s_or_b32 {SH[1]}, {SH[1]}, 0x800000
    s_load_dword {sNon}, {pWs}, {sT[1]}
    s_cmp_ge_u32 {sW}, 5
    s_cbranch_scc1 L_share
    buffer_load_dwordx4 {EN}, {SH}, 0 idxen offen lds
    s_branch L_share_done
    """)
    stub("sh")
    A(f"""
    L_share:
    s_lshr_b32 {sT[0]}, s2, 3
    """)
    srd(A, SY, pPos, N * 6)
    A(f"s_mov_b32 {sT[2]}, 15")
    for w, (ptr, size, cnt) in ((6, (pWe, 145 * 128, 5)), (7, (pWh, 16384, 4))):
        A(f"""
        s_cmp_eq_u32 {sW}, {w}
        s_cselect_b64 {SY[0:2]}, {ptr}, {SY[0:2]}
        s_cselect_b32 {SY[2]}, {size}, {SY[2]}
        s_cselect_b32 {sT[2]}, {cnt}, {sT[2]}
        """)
    A(f"""
    s_mul_i32 {sT[0]}, {sT[0]}, {sT[2]}
    v_add_lshl_u32 {t2}, {vL}, {sT[0]}, 7
    s_bfm_b64 exec, {sT[2]}, 0
    buffer_load_dword {vJ}, {t2}, {SY}, 0 offen
    s_mov_b64 exec, -1
    L_share_done:
    """)
    for i in range(4): A(f"ds_write_b128 {t0}, {Z4} offset:{8192*i}")
    A(f"ds_write_b32 {t1}, {Z4[0]}")
    def ld(R_, p_):
        A(f"""
        global_load_dwordx4 {R_[0:4]}, {aD4}, {p_}
        s_mov_b64 exec, {m5}
        global_load_dword {R_[4]}, {aD1}, {p_}
        s_mov_b64 exec, -1
        """)
    dpos = geto("dpos", 2); spos = geto("spos", 3)
    def slot(k):
        if dpos == k: ld(DS, pDst)
        if spos == k: ld(SR, pSrc)
    slot(0)
    A(zero16(ZB, Z4[0:2])); A(zero16(EXA, Z4[0:2]))
    A(f"""
    s_add_u32 {SH[0]}, {pWs[0]}, {BTO}
    s_addc_u32 {SH[1]}, {pWs[1]}, 0
    s_and_b32 {SH[1]}, {SH[1]}, 0xffff
    s_or_b32 {SH[1]}, {SH[1]}, 0x800000
    """)
    lo = sum(1 << ((k + 1) * 4 + (k >> 1)) for k in range(5) if k % 2 == 0)
    hi = sum(1 << ((k + 1) * 4 + (k >> 1)) for k in range(5) if k % 2 == 1)
    A(f"""
    v_mov_b32 {INV[0]}, {INV0:#x}
    v_mov_b32 {INV[1]}, {N}
    v_lshl_add_u32 {t0}, {vL}, 3, {sLb}
    ds_write_b64 {t0}, {INV}
    s_cmp_lg_u32 {sW}, 0
    s_cbranch_scc1 L_init_done
    v_lshrrev_b32 {t0}, 1, {vL}
    v_mul_u32_u24 {t0}, {CAP*8}, {t0}
    v_add_u32 {t0}, {LIST}, {t0}
    v_mov_b32 {t1}, 0x3f80
    s_mov_b64 {sT[2:4]}, 0xffff
    v_cndmask_b32 {t0}, 0, {t0}, {sT[2:4]}
    s_mov_b32 {sT[2]}, 0
    s_mov_b32 {sT[3]}, {lo:#x}
    v_cndmask_b32 {t0}, {t0}, {t1}, {sT[2:4]}
    s_mov_b32 {sT[3]}, {hi:#x}
    v_cndmask_b32 {t0}, {t0}, 1.0, {sT[2:4]}
    v_lshlrev_b32 {t1}, 2, {vL}
    ds_write_b32 {t1}, {t0}
    L_init_done:
    """)
    slot(1)
    A(f"""
    v_mov_b32 {v4}, 4
    v_lshlrev_b32 {LE[0]}, 8, v0
    v_add_u32 {LE[1]}, 64, {LE[0]}
    v_add_u32 {LE[2]}, 128, {LE[0]}
    v_add_u32 {LE[3]}, 192, {LE[0]}
    v_lshlrev_b32 {LE[4]}, 6, v0
    v_add_u32 {LE[4]}, {2048*64}, {LE[4]}
    v_and_b32 {t0}, 3, {vL}
    v_lshlrev_b32 {t0}, 3, {t0}
    v_lshl_add_u32 {vTtr}, {t3}, 1, {t0}
    v_and_b32 {t1}, 12, {vL}
    v_lshl_add_u32 {t0}, {t1}, 5, {vTtr}
    v_lshl_add_u32 {vTtr}, {t1}, 4, {vTtr}
    v_and_b32 {t1}, 8, {vL}
    v_lshl_add_u32 {vWb}, {t1}, 3, {t0}
    v_lshl_add_u32 {t0}, {vHalf}, 10, {vWb}
    v_add_u32 {vT1}, {WE}, {t0}
    """)
    slot(2)
    A(f"""
    s_bfe_u32 {sT[0]}, {sW}, 0x10001
    s_mul_i32 {sT[0]}, {sT[0]}, 20
    v_add_u32 {aWj}, {sT[0]}, {c31}
    v_lshrrev_b32 {t1}, 3, {aWj}
    v_add_u32 {t1}, {t1}, {vHalf}
    v_lshlrev_b32 {aHj}, 7, {aWj}
    v_lshl_add_u32 {aHj}, {t1}, 4, {aHj}
    v_add_u32 {aHj}, {HO}, {aHj}
    s_and_b32 {sT[1]}, {sW}, 1
    s_lshr_b32 {sT[2]}, {sW}, 2
    s_lshl_b32 {sT[0]}, {sT[1]}, 6
    s_mul_i32 {sT[3]}, {sT[2]}, {WH - WE}
    v_xor_b32 {aFj}, {sT[0]}, {vT1}
    v_add_u32 {aFj}, {sT[3]}, {aFj}
    s_lshl_b32 {sT[0]}, s2, 3
    s_add_u32 {sT[0]}, {sT[0]}, {sW}
    s_mul_i32 {sT[0]}, {sT[0]}, 625
    s_add_u32 {sN0}, {sT[0]}, 127
    s_lshr_b32 {sN0}, {sN0}, 7
    s_add_u32 {sNn}, {sT[0]}, {625 + 127}
    s_lshr_b32 {sNn}, {sNn}, 7
    s_sub_u32 {sNn}, {sNn}, {sN0}
    s_movk_i32 {sT[0]}, 625
    s_movk_i32 {sT[1]}, 120
    s_mov_b32 {sT[2]}, {BCN}
    s_movk_i32 {sT[3]}, 8192
    """)
    aBw = TM[24]; aBr = TM[25]; aBs = TM[26:28]
    u0, u1 = sS2[0], sS2[1]
    stB = lines(f"""
    s_lshl_b32 {u0}, {sW}, 11
    s_add_u32 {u0}, {u0}, {POS}
    v_mul_u32_u24 {aBw}, 80, {c31}
    v_lshl_add_u32 {aBw}, {vHalf}, 5, {aBw}
    v_add_u32 {aBw}, {u0}, {aBw}
    v_lshrrev_b32 {t0}, 2, {vL}
    v_and_b32 {t1}, 48, {vD}
    v_mul_u32_u24 {aBr}, 80, {t0}
    v_add3_u32 {aBr}, {aBr}, {t1}, {u0}
    s_bfe_u32 {u0}, {sW}, 0x10001
    s_mul_i32 {u0}, {u0}, 20
    s_add_u32 {u0}, {u0}, {sNb}
    v_add_u32 {aBs[0]}, {u0}, {t0}
    s_and_b32 {u0}, {sW}, 1
    s_lshl_b32 {u0}, {u0}, 6
    v_add_u32 {aBs[1]}, {u0}, {t1}
    """)
    stG = lines(f"""
    v_lshrrev_b32 {aC}, 2, v0
    v_and_b32 {t0}, 48, {vD}
    v_lshl_add_u32 {aL}, {aC}, 7, {t0}
    v_add_u32 {aL}, {BST}, {aL}
    v_lshl_add_u32 {aG[0]}, {aC}, 14, {t0}
    s_lshl_b32 {u0}, s2, 6
    v_add_u32 {aG[0]}, {u0}, {aG[0]}
    v_add_u32 {aG[1]}, {128*16384}, {aG[0]}
    v_and_b32 {aC}, -4, v0
    v_add_u32 {aC}, {BCN}, {aC}
    """)
    stL = lines(f"""
    v_add_u32 {aWs}, {WE + 8192}, {vD}
    s_lshl_b32 {u0}, {sW}, 11
    s_add_u32 {u0}, {u0}, {WE}
    s_sub_u32 {u1}, {u0}, 8
    v_lshl_add_u32 {vTtr}, {vHalf}, 8, {vTtr}
    v_add_u32 {vTtr}, {u0}, {vTtr}
    v_lshl_add_u32 {vTrow}, {c31}, 6, {u1}
    v_lshl_add_u32 {aTz}, {vL}, 3, {u0}
    v_lshl_add_u32 {vWb}, {vHalf}, 9, {vWb}
    v_add_u32 {vWb}, {WH + 8192}, {vWb}
    v_xor_b32 {vT2}, 64, {vT1}
    s_lshr_b32 {u0}, {sW}, 2
    s_mul_i32 {u0}, {u0}, {40*272}
    s_and_b32 {u1}, {sW}, 1
    s_lshl_b32 {u1}, {u1}, 7
    s_add_u32 {u0}, {u0}, {u1}
    s_add_u32 {u0}, {u0}, {TB}
    v_mul_u32_u24 {aWj}, 272, {aWj}
    v_lshl_add_u32 {aWj}, {vHalf}, 4, {aWj}
    v_add_u32 {aWj}, {u0}, {aWj}
    s_sub_u32 {u0}, {sN0}, {sNb}
    s_mul_i32 {u1}, {u0}, 272
    s_add_u32 {u1}, {u1}, {TB}
    v_lshl_add_u32 {aA}, {c31}, 2, {u1}
    v_mul_u32_u24 {aZ}, 272, {vHalf}
    v_add_u32 {aZ}, {aZ}, {aA}
    v_lshlrev_b32 {t2}, 1, {c31}
    v_add_u32 {aWD}, {WE + 18432}, {t2}
    v_add_u32 {t2}, {HO}, {t2}
    v_add_u32 {t0}, {u0}, {vHalf}
    """)
    for j in range(3):
        stL += [f"v_lshrrev_b32 {t1}, 3, {t0}", f"v_lshl_add_u32 {aHR[j]}, {t0}, 7, {t2}", f"v_lshl_add_u32 {aHR[j]}, {t1}, 4, {aHR[j]}"]
        if j < 2: stL.append(f"v_add_u32 {t0}, 2, {t0}")
    slot(3)
    stub("b1", over=True)
    stamp(A, 1)
    BH = W2[0:16]; BF = W2[16:32]; BD = ACC[0:16]; BP = ACC[16:24]; BR = ACC[24:32]
    lab = {"n": 0}
    def old(fn):
        lab["n"] += 1; A(f"s_cmp_ge_u32 {sW}, 4"); A(f"s_cbranch_scc1 L_old{lab['n']}"); fn(); A(f"L_old{lab['n']}:")
    ny = 4 if spos < 4 else 2
    if "f2" in OPT:
        A("s_waitcnt lgkmcnt(0)"); stamp(A, 23); A(f"s_waitcnt vmcnt({ny + 1})"); stamp(A, 24); A("s_waitcnt lgkmcnt(0)"); A(f"s_waitcnt vmcnt({ny})"); stamp(A, 25)
    A(f"s_cmp_ge_u32 {sW}, 5"); A(f"s_waitcnt vmcnt({ny + 1}) lgkmcnt(0)"); A("s_cbranch_scc1 L_b1"); A(f"s_waitcnt vmcnt({ny})"); A("L_b1:"); A("s_barrier")
    stamp(A, 29)
    slot(4)
    A(f"s_and_b32 {sNon}, {sNon}, -8")
    hashc = []
    for q in range(4):
        r = sNq[q]
        hashc.append(lines(f"""
        s_add_u32 {r}, {sNon}, {0x9e3779b8 + q:#x}
        s_mul_i32 {r}, {r}, 0x85ebca6b
        s_lshr_b32 s3, {r}, 15
        s_xor_b32 {r}, {r}, s3
        s_mul_i32 {r}, {r}, 0xc2b2ae35
        s_and_b32 {r}, {r}, -16
        s_or_b32 {r}, {r}, {1 << q}
        """))
    def b_reads():
        for s in range(4):
            A(f"ds_read_b128 {BH[4*s:4*s+4]}, {aHj} offset:{32*s}")
            for half in range(2): A(f"ds_read_b64_tr_b16 {BF[4*s+2*half:4*s+2*half+2]}, {aFj} offset:{8192 + (16*s + 4*half)*128}")
    st2 = lines(f"""
    s_mul_i32 {sStg}, {sW}, 5120
    s_add_u32 {sStg}, {sStg}, {STG}
    s_add_u32 {sEm}, {sStg}, 4096
    s_mul_i32 {sPd}, {sN0}, 6
    s_sub_u32 {sPd}, {sPd}, 6
    s_mov_b32 {sTo}, 0
    s_mov_b32 {sScan}, 0
    s_mov_b32 {sEarly}, 0
    s_mov_b32 {sOv}, 0
    v_and_b32 {t3}, 31, {vL}
    v_bfe_u32 {t0}, {vL}, 1, 3
    v_xor_b32 {t0}, {t0}, {vHalf}
    v_lshlrev_b32 {t0}, 4, {t0}
    v_lshl_add_u32 {t0}, {t3}, 7, {t0}
    v_add_u32 {HRD[0]}, {sStg}, {t0}
    v_xor_b32 {HRD[1]}, 32, {HRD[0]}
    v_xor_b32 {HRD[2]}, 64, {HRD[0]}
    v_xor_b32 {HRD[3]}, 0x60, {HRD[0]}
    v_bfe_u32 {t0}, {vL}, 3, 1
    v_xor_b32 {t0}, {t0}, {vHalf}
    v_lshlrev_b32 {t0}, 4, {t0}
    v_lshl_add_u32 {t0}, {t3}, 5, {t0}
    v_add_u32 {ERD}, {sEm}, {t0}
    v_lshl_add_u32 {LO[2]}, {t3}, 3, {sLb}
    v_and_b32 {t0}, 56, {vL}
    v_add3_u32 {LO[0]}, {t0}, {sLb}, 4
    v_lshrrev_b32 {t0}, 1, {vL}
    v_lshl_add_u32 {LO[1]}, {t0}, 3, {sLb}
    v_mov_b32 {vAh}, {LO[0]}
    v_mov_b32 {vAe}, {LO[1]}
    v_mov_b32 {HALF[0]}, 0x3f003f00
    v_mov_b32 {HALF[1]}, 0x3f003f00
    v_mov_b32 {v8}, 8
    v_add_u32 {vCB[1]}, {64*CH*64}, {vCB[0]}
    v_add_u32 {vCB[2]}, {128*CH*64}, {vCB[0]}
    v_add_u32 {vCB[3]}, {192*CH*64}, {vCB[0]}
    v_and_b32 {t0}, 15, {vL}
    v_lshlrev_b32 {aCn}, 3, {t0}
    v_mul_u32_u24 {vLim}, {CAP*8}, {t0}
    v_add_u32 {vLim}, {LIST + CAP*8}, {vLim}
    s_mov_b64 {sS2[4:6]}, 0xff
    v_cndmask_b32 {vLim}, 0, {vLim}, {sS2[4:6]}
    """)
    st2 += ["s_mov_b32 exec_lo, 0x80808080", "s_mov_b32 exec_hi, 0x80808080"] + [f"v_mov_b32 {RS[q][1]}, {sNq[q]}" for q in range(4)] + ["s_mov_b64 exec, -1"]
    st3 = lines(f"""
    v_and_b32 {t0}, 48, {vL}
    v_and_b32 {t1}, 0x70, {vD}
    v_xor_b32 {IX[1]}, {t0}, {t1}
    v_xor_b32 {IX[3]}, 64, {IX[1]}
    v_mov_b32 {IX[5]}, {IX[1]}
    v_mov_b32 {IX[7]}, {IX[3]}
    v_and_b32 {IX[9]}, 16, {IX[1]}
    """) + [f"v_mov_b32 {IX[2*i]}, -1" for i in range(5)]
    A(f"s_cmp_ge_u32 {sW}, 4"); A("s_cbranch_scc1 L_y1")
    b_reads()
    A("\n".join(stB))
    for s in range(4):
        A(f"s_waitcnt lgkmcnt({9 - 3*s})"); A(f"{mf} {BD}, {BF[4*s:4*s+4]}, {BH[4*s:4*s+4]}, {BD if s else 0}")
    A("\n".join(x for q in range(2) for x in hashc[q]))
    for k in range(16): A(f"v_mul_f32 {BD[k]}, {NLOG2E:#x}, {BD[k]}")
    for k in range(8): A(f"v_cvt_pk_bf16_f32 {BP[k]}, {BD[2*k]}, {BD[2*k+1]}")
    A("s_mov_b32 exec_lo, 0xfffff"); A("s_mov_b32 exec_hi, 0xfffff")
    for k in range(2): A(f"ds_write_b128 {aBw}, {BP[4*k:4*k+4]} offset:{16*k}")
    A("s_mov_b64 exec, -1")
    for k in range(2): A(f"ds_read_b128 {BR[4*k:4*k+4]}, {aBr} offset:{1280*k}")
    A("\n".join(x for q in range(2, 4) for x in hashc[q]))
    if "xto" in OPT: A("s_cmp_eq_u32 s2, 5"); A(f"s_cselect_b32 {SH[2]}, 0, {SH[2]}")
    A("s_waitcnt lgkmcnt(0)")
    A(f"buffer_store_dwordx4 {BR[0:4]}, {aBs}, {SH}, 0 idxen offen sc1")
    A(f"v_add_u32 {aBs[0]}, 16, {aBs[0]}"); A("s_mov_b64 exec, 0xffff")
    A(f"buffer_store_dwordx4 {BR[4:8]}, {aBs}, {SH}, 0 idxen offen sc1")
    A("s_mov_b64 exec, -1")
    A("s_waitcnt vmcnt(4)")
    A("s_branch L_y2")
    stub("y1")
    A("L_y1:")
    touch_local([4], ["p2"], "L_back3")
    for s in range(4): A(f"ds_read_b128 {BH[4*s:4*s+4]}, {aHj} offset:{32*s}")
    A("\n".join(x for q in range(4) for x in hashc[q]))
    A("\n".join(stL))
    stub("y2", over=True)
    A("s_waitcnt vmcnt(2)")
    A("L_y2:")
    if "xto" in OPT: A(f"s_mov_b32 {SH[2]}, {N}")
    stamp(A, 2)
    WA = PK[0:4]; WB = PK[4:8]
    for i in range(5):
        if i == 4: A(f"s_mov_b64 exec, {m5}")
        A(f"""
        v_mul_u32_u24 {RC[i]}, 429497, {DS[i]}
        v_lshrrev_b32 {B4[i]}, 24, {RC[i]}
        v_lshl_add_u32 {RT[i]}, {B4[i]}, 2, {sT[2]}
        ds_add_rtn_u32 {RT[i]}, {RT[i]}, {v4}
        """)
    A("s_mov_b64 exec, -1")
    A(f"s_mov_b32 {sT[2]}, {BST + 4}")
    for i in range(5):
        v = lines(f"""
        v_lshrrev_b32 {RC[i]}, 21, {RC[i]}
        v_mad_u32_u24 {t0}, {RC[i]}, {sT[0]}, -1
        v_lshl_add_u32 {RC[i]}, {RC[i]}, 3, {DS[i]}
        v_ashrrev_i32 {t0}, 7, {t0}
        v_sub_u32 {RC[i]}, {RC[i]}, {t0}
        v_and_or_b32 {RC[i]}, {RC[i]}, 63, {LE[i]}
        v_lshl_add_u32 {B4[i]}, {B4[i]}, 7, {sT[2]}
        """)
        A("\n".join(v))
    A("s_waitcnt lgkmcnt(0)")
    for i in range(5):
        A(f"v_cmp_gt_u32 {sM[2*i:2*i+2]}, {sT[1]}, {RT[i]}")
        A(f"v_add_u32 {RT[i]}, {RT[i]}, {B4[i]}")
    A(f"s_and_b64 {sM[8:10]}, {sM[8:10]}, {m5}")
    def tables():
        A(f"""
        s_cmp_gt_u32 {sW}, 2
        s_cbranch_scc1 L_odone
        s_cmp_lg_u32 {sW}, 0
        s_cbranch_scc1 L_o6
        v_lshlrev_b32 {t0}, 2, {vL}
        s_mov_b32 m0, {WE + 18432}
        s_mov_b32 {sT[2]}, 16384
        s_mov_b32 exec_hi, 0
        buffer_load_dword {t0}, {SY}, {sT[2]} offen lds
        s_mov_b64 exec, -1
        v_lshlrev_b32 {t0}, 1, {vL}
        global_load_ushort {WB[0]}, {t0}, {pWx}
        s_branch L_odone
        L_o6:
        s_mov_b32 {sT[2]}, {129*128 - 1024}
        buffer_load_dwordx4 {WB}, {vDs}, {SY}, {sT[2]} offen
        L_odone:
        s_add_u32 m0, {sW10}, {WE}
        s_nop 0
        buffer_load_dwordx4 {vDs}, {SY}, 0 offen lds
        s_add_u32 m0, {sW10}, {WH}
        s_nop 0
        buffer_load_dwordx4 {vDs}, {SZ}, 0 offen lds
        s_add_u32 m0, {sW10}, {WH + 8192}
        s_nop 0
        buffer_load_dwordx4 {vDs}, {SZ}, {sT[3]} offen lds
        """)
    A(f"""
    s_xor_b32 {sK}, {sNq[0]}, {sNq[1]}
    s_xor_b32 {sK}, {sK}, {sNq[2]}
    s_xor_b32 {sK}, {sK}, {sNq[3]}
    s_bitcmp1_b32 s2, 6
    s_cselect_b32 {sNon}, {sNq[1]}, {sNq[0]}
    s_cselect_b32 s3, {sNq[3]}, {sNq[2]}
    s_bitcmp1_b32 s2, 7
    s_cselect_b32 {sNon}, s3, {sNon}
    """)
    srd(A, SX, pWs, 2 * SEC); srd(A, SY, pWe, 145 * 128); srd(A, SZ, pWh, 16384)
    if "xto" in OPT: A("s_cmp_eq_u32 s2, 5"); A(f"s_cselect_b32 {SX[2]}, 0, {SX[2]}")
    A("\n".join(stG))
    stamp(A, 3)
    A(f"s_cmp_ge_u32 {sW}, 4"); A("s_waitcnt vmcnt(2)"); A("s_cbranch_scc0 L_srcok"); A("s_waitcnt vmcnt(0)"); A("L_srcok:")
    stamp(A, 4)
    for i in range(5):
        A(f"s_mov_b64 exec, {sM[2*i:2*i+2]}"); A(f"v_lshl_or_b32 {RC[i]}, {SR[i]}, 18, {RC[i]}"); A(f"ds_write_b32 {RT[i]}, {RC[i]}")
    A("s_mov_b64 exec, -1")
    tables()
    stub("p2", page="L_back3")
    ncut = geto("cut", 0)
    old(lambda: A("\n".join(stL)))
    stamp(A, 22)
    PR = [Y[0:4], Y[4:8]]; SC = [Y[8:12], Y[12:16]]; CN = Y[16:18]; XR = Y[20:24]; ST = Y[24:26]
    A(f"""
    s_mov_b32 {sM[0]}, 0x11111111
    s_mov_b32 {sM[1]}, 0x11111111
    s_mov_b32 {sM[2]}, 0x88888888
    s_mov_b32 {sM[3]}, 0x88888888
    s_and_b32 s3, {sNon}, 15
    s_lshl_b32 s3, s3, 4
    s_xor_b32 s3, s3, {sNon}
    v_mov_b32 {t0}, {sNon}
    v_mov_b32 {t1}, s3
    """)
    old(lambda: A(f"s_waitcnt vmcnt({4 if geto('eb', 0) else 3})"))
    A(f"""
    s_waitcnt lgkmcnt(0)
    s_barrier
    """)
    stamp(A, 5)
    for i in range(2): A(f"ds_read_b128 {PR[i]}, {aL} offset:{16384*i}")
    for i in range(2): A(f"ds_read_b128 {SC[i]}, {aL} offset:{16384*i + 64}"); A(f"ds_read_b32 {CN[i]}, {aC} offset:{512*i}")
    A(f"s_mov_b32 {sT[2]}, {SEC}")
    def xor4(x, r):
        A(f"v_bitop3_b32 {x}, {r[0]}, {r[1]}, {r[2]} bitop3:0x96"); A(f"v_xor_b32 {x}, {x}, {r[3]}")
    A("s_waitcnt lgkmcnt(4)")
    for i in range(2): xor4(XR[i], PR[i])
    A("s_nop 0")
    for i in range(2): A(f"v_xor_b32_dpp {XR[i]}, {XR[i]}, {XR[i]} quad_perm:[1,0,3,2] {dpp}")
    A("s_nop 0")
    for i in range(2): A(f"v_xor_b32_dpp {XR[i]}, {XR[i]}, {XR[i]} quad_perm:[2,3,0,1] {dpp}")
    A(f"s_mov_b64 exec, {sM[0:2]}")
    for i in range(2): A(f"v_xor_b32 {PR[i][0]}, {XR[i]}, {t0}")
    A("s_mov_b64 exec, -1")
    for i in range(2): A(f"buffer_store_dwordx4 {PR[i]}, {aG[i]}, {SX}, 0 offen sc1")
    A("s_waitcnt lgkmcnt(0)")
    for i in range(2): xor4(XR[2+i], SC[i])
    for i in range(2):
        A(f"v_cmp_le_u32 {sM[4+2*i:6+2*i]}, 60, {CN[i]}"); A(f"v_cmp_lt_u32 {sM[8+2*i:10+2*i]}, {sT[1]}, {CN[i]}")
    for i in range(2): A(f"v_xor_b32_dpp {XR[2+i]}, {XR[2+i]}, {XR[2+i]} quad_perm:[1,0,3,2] {dpp}")
    for i in range(2): A(f"v_cndmask_b32 {aS[i]}, -2.0, {aG[i]}, {sM[4+2*i:6+2*i]}")
    for i in range(2): A(f"v_xor_b32_dpp {XR[2+i]}, {XR[2+i]}, {XR[2+i]} quad_perm:[2,3,0,1] {dpp}")
    for i in range(2): A(f"v_cndmask_b32 {ST[i]}, {t0}, {t1}, {sM[8+2*i:10+2*i]}")
    A(f"s_mov_b64 exec, {sM[2:4]}")
    for i in range(2): A(f"v_xor_b32 {SC[i][3]}, {XR[2+i]}, {ST[i]}")
    A("s_mov_b64 exec, -1")
    for i in range(2): A(f"buffer_store_dwordx4 {SC[i]}, {aS[i]}, {SX}, {sT[2]} offen sc1")
    stamp(A, 6)
    srd(A, SZ, pPos, N * 6)
    def poll():
        for q in range(4): A(f"buffer_load_dwordx2 {RP[2*q:2*q+2]}, {vRo}, {SX}, {sS2[q-1] if q else 0} offen {'sc0 sc1' if 'sys' in OPT else 'sc1'}")
    def posdma(k):
        if k < 7:
            A(f"s_add_u32 m0, {sW10}, {POS + 8192*k}"); A(f"s_mov_b32 {sT[1]}, {8192*k}"); A(f"buffer_load_dwordx4 {vD}, {SZ}, {sT[1]} offen lds")
        else:
            A(f"""
            s_cmp_gt_u32 {sW}, 2
            s_cbranch_scc1 L_ptail
            v_add_u32 {vSl}, {8192*7}, {vD}
            s_add_u32 m0, {sW10}, {POS + 8192*7}
            v_cmpx_gt_u32 vcc, 60032, {vSl}
            buffer_load_dwordx4 {vSl}, {SZ}, 0 offen lds
            s_mov_b64 exec, -1
            L_ptail:
            """)
    A(f"s_waitcnt vmcnt({5 if geto('eb', 0) else 4})")
    def scale(r):
        for i in range(4):
            A(f"v_lshlrev_b32 {t0}, 16, {r[i]}"); A(f"v_and_b32 {t1}, 0xffff0000, {r[i]}")
            A(f"v_mul_f32 {t0}, {NLOG2E:#x}, {t0}"); A(f"v_mul_f32 {t1}, {NLOG2E:#x}, {t1}"); A(f"v_cvt_pk_bf16_f32 {r[i]}, {t0}, {t1}")
    stub("b3", over=True)
    A("s_setprio 0")
    A("s_barrier")
    stamp(A, 7)
    WD = D
    def frag(dst, base, s, n):
        for half in range(2): A(f"ds_read_b64_tr_b16 {dst[2*half:2*half+2]}, {vT2 if n else vT1} offset:{base + (16*s + 4*half)*128}")
    def frags(dst, base, n):
        for s in range(4): frag(dst[16*n+4*s:16*n+4*s+4], base, s, n)
    npre = geto("npre", 7); hp = 7 - npre; pollat = geto("poll", 4)
    state = {"k": 0}
    def vm():
        k = state["k"]; state["k"] += 1
        if k == 0 and "xjob" in OPT: A("s_nop 7")
        k -= 2 if "xjob" in OPT else 0
        if k < 0: return
        if k == 0: posdma(7)
        for u in range(npre):
            if min(u * (pollat + 1) // npre, pollat) == k: posdma(u)
        if k == pollat:
            poll()
            for u in range(hp): posdma(npre + u)
    JF = Y[0:16]; JD = Y[16:32]
    for s in range(4):
        for half in range(2): A(f"ds_read_b64_tr_b16 {JF[4*s+2*half:4*s+2*half+2]}, {aFj} offset:{(16*s + 4*half)*128}")
    PB = W2[0:8]
    def build_pb():
        A(f"s_mov_b32 {sT[2]}, 0xaaaaaaaa"); A(f"s_mov_b32 {sT[3]}, 0xaaaaaaaa"); A(f"v_mov_b32 {t0}, 0x3f80"); A(f"v_cndmask_b32 {t0}, {t0}, 1.0, {sT[2:4]}")
        A(f"s_mov_b32 {sM[0]}, 3"); A(f"s_mov_b32 {sM[1]}, 0x30000")
        for r in range(8):
            b = (r >> 2) * 4 + ((r >> 1) & 1) * 8 + (r & 1) * 2
            A(f"s_lshl_b64 {sT[2:4]}, {sM[0:2]}, {b}"); A(f"v_cndmask_b32 {PB[r]}, 0, {t0}, {sT[2:4]}")
    if "fine" in OPT: stamp(A, 23); A("s_waitcnt lgkmcnt(0)"); stamp(A, 24)
    for s in range(4):
        A(f"s_waitcnt lgkmcnt({6 - 2*s})")
        A(f"{mf} {JD}, {JF[4*s:4*s+4]}, {BH[4*s:4*s+4]}, {JD if s else 0}")
    if "fine" in OPT: stamp(A, 25)
    vm()
    if "fine" in OPT: A("s_waitcnt lgkmcnt(0)"); stamp(A, 26)
    A(f"""
    s_lshl_b32 {sT[0]}, s2, 14
    v_lshl_add_u32 {vRo}, v0, 3, {sT[0]}
    s_movk_i32 {sS2[0]}, 4096
    s_movk_i32 {sS2[1]}, 8192
    s_movk_i32 {sS2[2]}, 12288
    s_mov_b32 exec_lo, 0xfffff
    s_mov_b32 exec_hi, 0xfffff
    """)
    for i in range(4): A(f"ds_write_b128 {aWj}, {JD[4*i:4*i+4]} offset:{32*i}")
    A("s_mov_b64 exec, -1")
    if "fine" in OPT: stamp(A, 27)
    A(f"s_cmp_gt_u32 {sW}, 2"); A("s_cbranch_scc1 L_nowx"); A(f"s_cmp_eq_u32 {sW}, 0"); A("s_cbranch_scc1 L_wx")
    scale(WB)
    A(f"""
    ds_write_b128 {aWs}, {WB} offset:{8192 - 1024}
    s_branch L_nowx
    """)
    stub("wx")
    A(f"""
    L_wx:
    v_lshlrev_b32 {WB[0]}, 16, {WB[0]}
    v_lshlrev_b32 {t0}, 2, {vL}
    ds_write_b32 {t0}, {WB[0]} offset:{WX}
    L_nowx:
    """)
    vm()
    if "fine" in OPT: A("s_waitcnt lgkmcnt(0)"); stamp(A, 28)
    A(zero16(ACC[0:16], ZERO)); A(zero16(ACC[16:32], ZERO))
    A("s_waitcnt lgkmcnt(0)"); A("s_barrier")
    stamp(A, 8)
    for n in range(2):
        for k in range(5): A(f"ds_read_b32 {Y[16*n+k]}, {aA} offset:{272*k + 128*n}")
        A(f"ds_read_u16 {WD[n]}, {aWD} offset:{64*n}")
    vm()
    build_pb()
    A("s_waitcnt lgkmcnt(0)")
    frag(W4[0:4], 16384, 0, 0); frag(W4[4:8], 16384, 0, 1)
    vm()
    for n in range(2):
        a = Y[16*n:16*n+16]
        A(f"v_lshlrev_b32 {a[5]}, 16, {WD[n]}")
        for i in range(6): A(f"v_mul_f32 {a[i]}, {NLOG2E:#x}, {a[i]}")
        for i in range(6): A(f"v_and_b32 {a[8+i]}, 0xffff0000, {a[i]}")
    vm()
    stub("c", over=True)
    A("s_mov_b32 exec_lo, 0")
    for n in range(2):
        a = Y[16*n:16*n+16]
        for i in range(6): A(f"v_sub_f32 {a[8+i]}, {a[i]}, {a[8+i]}")
    A("s_mov_b64 exec, -1")
    for n in range(2):
        a = Y[16*n+8:16*n+16]; B = BX[4*n:4*n+4]
        A(f"v_cvt_pk_bf16_f32 {B[0]}, {a[0]}, {a[1]}"); A(f"v_cvt_pk_bf16_f32 {B[1]}, {a[2]}, {a[3]}")
        A(f"v_cvt_pk_bf16_f32 {B[2]}, {a[4]}, 0"); A(f"v_cvt_pk_bf16_f32 {B[3]}, 0, {a[5]}")
    A("s_waitcnt lgkmcnt(3)")
    for j in range(3):
        for n in range(2):
            A(f"ds_read_b32 {ZH[2*j+n]}, {aZ} offset:{40*272 + 544*j + 128*n}"); A(f"ds_read_u16_d16_hi {HR[2*j+n]}, {aHR[j]} offset:{64*n}")
    vm()
    srd(A, SE, pE, E, 32)
    A("\n".join(st2 + st3))
    vm()
    if geto("bpf", 16):
        A(f"""
        s_and_b32 {sT[0]}, s2, 0xc0
        s_bfe_u32 {sT[1]}, s2, 0x30003
        s_add_u32 {sT[0]}, {sT[0]}, {sT[1]}
        s_lshl_b32 {sT[1]}, {sW}, 3
        s_add_u32 {sT[0]}, {sT[0]}, {sT[1]}
        s_mul_i32 {sT[0]}, {sT[0]}, 5000
        s_add_u32 {sT[0]}, {sT[0]}, 127
        s_lshr_b32 {sT[0]}, {sT[0]}, 7
        v_add_u32 {W2[15]}, {sT[0]}, {vL}
        """)
    stamp(A, 9)
    touch_local([0, 1], ["p3", "last"], "L_back2")
    stub("poll", over=True)
    XQ = Y[0]
    def xorall(r):
        A(f"v_bitop3_b32 {XQ}, {r[0]}, {r[1]}, {r[2]} bitop3:0x96"); A(f"v_bitop3_b32 {Y[1]}, {r[3]}, {r[4]}, {r[5]} bitop3:0x96")
        A(f"v_bitop3_b32 {XQ}, {XQ}, {r[6]}, {r[7]} bitop3:0x96"); A(f"v_xor_b32 {XQ}, {XQ}, {Y[1]}")
    PW = Y[8:20]; PA = TM[24:32]
    A(f"s_waitcnt vmcnt({hp}) lgkmcnt(0)")
    A("L_poll:")
    xorall([RP[i] for i in range(8)])
    pre = [x for i in range(3) for x in (f"v_cmp_ne_u32 {sM[2*i:2*i+2]}, 0, {RP[i]}", f"v_and_b32 {PA[i]}, 0x38, {RP[i]}")]
    for k, c in enumerate(("quad_perm:[1,0,3,2]", "quad_perm:[2,3,0,1]", "row_half_mirror")):
        A(pre[2*k]); A(pre[2*k+1]); A(f"v_xor_b32_dpp {XQ}, {XQ}, {XQ} {c} {dpp}")
    A(f"""
    v_cmp_ne_u32 vcc, {sK}, {XQ}
    s_add_u32 {sTo}, {sTo}, 1
    s_cbranch_vccz L_got
    """)
    poll()
    A(f"""
    s_cmp_le_u32 {sTo}, {TIMEOUT}
    s_waitcnt vmcnt(0)
    s_cbranch_scc1 L_poll
    s_mov_b32 {sOv}, 1
    L_got:
    """)
    stamp(A, 10)
    def notag(i, pat):
        A(f"s_and_b32 {sM[2*i]}, {sM[2*i]}, {pat}"); A(f"s_and_b32 {sM[2*i+1]}, {sM[2*i+1]}, {pat}")
    def atomics(idx):
        for i in idx:
            if i % 2 == 0: notag(i, "0xfefefefe")
            A(f"s_mov_b64 exec, {sM[2*i:2*i+2]}"); A(f"ds_add_rtn_u32 {PA[i]}, {PA[i]}, {v8}")
        A("s_mov_b64 exec, -1")
    def words(r, W, q):
        A(f"v_and_b32 {W[0]}, 0x3ffff, {r}"); A(f"v_lshrrev_b32 {W[1]}, 18, {r}"); A(f"v_add_u32 {W[0]}, {W[0]}, {vCB[q]}")
    def writes(idx, extra=0):
        for k, i in enumerate(idx):
            A(f"s_waitcnt lgkmcnt({len(idx)-1+extra})")
            A(f"s_mov_b64 exec, {sM[2*i:2*i+2]}"); A(f"ds_write_b64 {PA[i]}, {PW[2*k:2*k+2]}")
        A("s_mov_b64 exec, -1")
    def secloads(tag):
        for q in range(4):
            A(f"""
            s_mov_b64 exec, {sS2[2*q:2*q+2]}
            s_cbranch_execz L_{tag}{q}
            s_mov_b32 {sT[0]}, {SEC + 4096*q}
            buffer_load_dwordx2 {RS[q]}, {vRo}, {SX}, {sT[0]} offen sc1
            L_{tag}{q}:
            """)
        A("s_mov_b64 exec, -1")
    def read_idx(e=True):
        for i in range(4): A(f"ds_read_b32 {IX[2*i]}, {vAh} offset:{64*i}")
        if e: A(f"ds_read_b32 {IX[8]}, {vAe}")
    adv_idx = [f"v_add_u32 {vAh}, 256, {vAh}", f"v_add_u32 {vAe}, 256, {vAe}"]
    shift_e = f"v_lshrrev_b32 {IX[8]}, 6, {IX[8]}"
    E0 = Y[6:8]
    def dma_h(rng=range(4)):
        for i in rng:
            A(f"s_add_u32 m0, {sStg}, {1024*i}"); A("s_nop 0"); A(f"buffer_load_dwordx4 {IX[2*i:2*i+2]}, {SH}, 0 idxen offen sc1 lds")
    def dma_e():
        A(f"s_mov_b32 m0, {sEm}"); A("s_nop 0")
        A(f"buffer_load_dwordx4 {IX[8:10]}, {SE}, 0 idxen offen lds")
    read_first = read_idx
    def shift_first(): A(shift_e)
    atomics([0, 1])
    nb = geto("bpf", 16)
    def bpf():
        A(f"s_bfm_b64 exec, {nb}, 0"); A(f"buffer_load_dword {vJ}, {W2[15]}, {SH}, 0 idxen sc1"); A("s_mov_b64 exec, -1")
    if nb and "bfirst" in OPT: bpf()
    for k in range(2): words(RP[k], PW[2*k:2*k+2], 0)
    for i in range(3, 8): A(f"v_cmp_ne_u32 {sM[2*i:2*i+2]}, 0, {RP[i]}"); A(f"v_and_b32 {PA[i]}, 0x38, {RP[i]}")
    A(f"s_mov_b32 {sT[2]}, 0x01010101"); A(f"s_mov_b32 {sT[3]}, 0x01010101")
    for q in range(4):
        A(f"s_lshr_b64 {sS2[2*q:2*q+2]}, {sM[4*q+2:4*q+4]}, 7"); A(f"s_and_b64 {sS2[2*q:2*q+2]}, {sS2[2*q:2*q+2]}, {sT[2:4]}")
        for u in range(2): A(f"s_mulk_i32 {sS2[2*q+u]}, 255")
    writes([0, 1])
    if "prime" in OPT: A(f"s_waitcnt vmcnt({1 if nb and 'bfirst' in OPT else 0})")
    secloads("sl")
    if nb and "bfirst" not in OPT: bpf()
    stub("p3", page="L_back2")
    A(f"s_cmp_ge_u32 {sW}, 4")
    A("s_waitcnt lgkmcnt(0)"); A("s_barrier")
    stamp(A, 16)
    def try_early(lab):
        shift_first()
        A(f"""
        v_max3_u32 {Y[4]}, {IX[0]}, {IX[2]}, {IX[4]}
        v_max_u32 {Y[4]}, {Y[4]}, {IX[6]}
        v_cmp_le_u32 vcc, {E}, {IX[8]}
        s_mov_b64 {sT[2:4]}, vcc
        v_cmp_le_u32 vcc, {N}, {Y[4]}
        s_or_b64 vcc, vcc, {sT[2:4]}
        s_cbranch_vccnz {lab}
        """)
        dma_e(); dma_h()
        A(f"s_mov_b32 {sEarly}, 1")
    A("s_cbranch_scc1 L_noread"); read_first(); A("L_noread:")
    atomics(range(2, 8))
    A(f"s_cmp_ge_u32 {sW}, 4"); A("s_cbranch_scc1 L_noearly"); A("s_waitcnt lgkmcnt(6)")
    try_early("L_noearly")
    A("L_noearly:")
    stamp(A, 17)
    for k in range(6): words(RP[2+k], PW[2*k:2*k+2], 1 + k // 2)
    RSf = [RS[q][i] for q in range(4) for i in range(2)]
    A(f"""
    s_cmp_eq_u32 {sEarly}, 0
    s_cbranch_scc1 L_w0
    s_waitcnt vmcnt(5)
    s_branch L_w1
    """)
    stub("w0")
    A(f"""
    L_w0:
    s_waitcnt vmcnt(0)
    L_w1:
    """)
    xorall(RSf)
    for k, c in enumerate(("quad_perm:[1,0,3,2]", "quad_perm:[2,3,0,1]", "row_half_mirror")):
        A("s_nop 1"); A(f"v_xor_b32_dpp {XQ}, {XQ}, {XQ} {c} {dpp}")
    A(f"""
    v_cmp_ne_u32 vcc, {sK}, {XQ}
    s_cbranch_vccnz L_sbad
    L_sgot:
    """)
    with cold():
        A(f"""
        L_sbad:
        v_xor_b32 {XQ}, {sK}, {XQ}
        v_and_b32 {XQ}, 0xffffff0f, {XQ}
        v_cmp_ne_u32 vcc, 0, {XQ}
        s_add_u32 {sTo}, {sTo}, 1
        s_cbranch_vccz L_stimeout
        s_cmp_gt_u32 {sTo}, {TIMEOUT}
        s_cbranch_scc1 L_stimeout
        """)
        secloads("rl")
        A(f"""
        s_branch L_w0
        L_stimeout:
        s_mov_b32 {sOv}, 1
        s_branch L_sgot
        """)
    writes(list(range(2, 8)))
    stamp(A, 18)
    if "ymid" in OPT:
        A(f"s_cmp_lt_u32 {sW}, 4"); A("s_cbranch_scc1 L_ym"); read_first(); A("s_waitcnt lgkmcnt(0)"); try_early("L_ym"); A("L_ym:")
    SWd = TM[0:16]; SA = Y[20:28]
    for i in range(8): A(f"v_cmp_ne_u32 {sM[2*i:2*i+2]}, 0, {RSf[i]}")
    for q in range(4):
        A(f"s_mov_b64 exec, {sM[4*q:4*q+2]}"); A(f"s_cbranch_execz L_sa{q}")
        notag(2*q+1, "0x7f7f7f7f")
        A(f"v_and_b32 {SA[2*q]}, 0x38, {RS[q][0]}"); A(f"v_and_b32 {SA[2*q+1]}, 0x38, {RS[q][1]}")
        A(f"ds_add_rtn_u32 {SA[2*q]}, {SA[2*q]}, {v8}")
        for i in range(2): words(RS[q][i], SWd[4*q+2*i:4*q+2*i+2], q)
        A(f"s_mov_b64 exec, {sM[4*q+2:4*q+4]}"); A(f"ds_add_rtn_u32 {SA[2*q+1]}, {SA[2*q+1]}, {v8}")
        A(f"L_sa{q}:")
    A("s_mov_b64 exec, -1")
    A("s_waitcnt lgkmcnt(5)")
    if "ymid" not in OPT: A(f"s_cmp_lt_u32 {sW}, 4"); A("s_cbranch_scc1 L_noread2"); read_first(); A("L_noread2:")
    for i in range(4): A(f"ds_write_b64 {aTz}, {ZERO} offset:{512*i}")
    stub("b5", over=True)
    A("s_waitcnt lgkmcnt(4)")
    for q in range(4):
        A(f"s_mov_b64 exec, {sM[4*q:4*q+2]}"); A(f"s_cbranch_execz L_sb{q}")
        A(f"ds_write_b64 {SA[2*q]}, {SWd[4*q:4*q+2]}")
        A(f"s_mov_b64 exec, {sM[4*q+2:4*q+4]}"); A(f"ds_write_b64 {SA[2*q+1]}, {SWd[4*q+2:4*q+4]}")
        A(f"L_sb{q}:")
    A(f"""
    s_mov_b64 exec, -1
    s_cmp_eq_u32 {sOv}, 0
    s_cbranch_scc1 L_noflag
    ds_write_b32 {ZERO[0]}, {v8} offset:{FLAG}
    L_noflag:
    """)
    stamp(A, 19)
    A(f"s_cmp_lt_u32 {sW}, 4"); A("s_cbranch_scc0 L_yng")
    A("s_branch L_b6")
    A("L_yng:")
    if "ymid" not in OPT: try_early("L_b6")
    A(f"""
    L_b6:
    s_setprio 3
    s_waitcnt lgkmcnt(0)
    s_barrier
    ds_read_b32 {t0}, {aCn}
    """)
    A(f"""
    s_waitcnt lgkmcnt(0)
    v_cmp_gt_u32 vcc, {t0}, {vLim}
    v_readlane_b32 {sCnt}, {t0}, {sW}
    s_and_b32 {sSlow}, vcc_lo, 0x1ff
    s_sub_u32 {sCnt}, {sCnt}, {sLb}
    s_lshr_b32 {sCnt}, {sCnt}, 3
    s_cmp_eq_u32 {sSlow}, 0
    s_cselect_b32 {sCnt}, {sCnt}, 0
    s_cselect_b32 {sEarly}, {sEarly}, 0
    s_cselect_b32 {sScan}, {E}, 0
    """)
    vAz = W2[8]; aPs = W2[9]; aPd = W2[10]; E2 = W2[12:14]
    slot_ops = [f"v_mov_b32 {vAz}, {vAt}", f"v_lshl_add_u32 {vAt}, {vSl}, 3, {vTrow}", f"v_lshlrev_b32 {vAl}, 4, {vSl}"]
    def derive_a(e=EN): return [f"v_mul_u32_u24 {aPs}, 6, {e[1]}", f"v_and_b32 {vSl}, 7, {e[0]}", f"v_mad_u32_u24 {aPd}, {vSl}, 6, {sPd}"]
    def pos_reads():
        for i in range(3): A(f"ds_read_u16_d16_hi {PS[i]}, {aPs} offset:{POS+2*i}")
        for i in range(3): A(f"ds_read_u16_d16_hi {PD[i]}, {aPd} offset:{POS+2*i}")
    lut_read = f"ds_read_b96 {X[0:3]}, {vAl} offset:{LUT}"
    derive_b = lines(f"""
        v_sub_f32 {DT[0]}, {PD[0]}, {PS[0]}
        v_sub_f32 {DT[1]}, {PD[1]}, {PS[1]}
        v_sub_f32 {DT[2]}, {PD[2]}, {PS[2]}
        v_cvt_pk_bf16_f32 {D[0]}, {DT[0]}, {DT[1]}
        v_cvt_pk_bf16_f32 {D[1]}, {DT[2]}, 1.0
        v_lshlrev_b32 {DT[0]}, 16, {D[0]}
        v_and_b32 {DT[1]}, 0xffff0000, {D[0]}
        v_lshlrev_b32 {DT[2]}, 16, {D[1]}
        v_mul_f32 {DT[0]}, {DT[0]}, {DT[0]}
        v_fmac_f32 {DT[0]}, {DT[1]}, {DT[1]}
        v_fmac_f32 {DT[0]}, {DT[2]}, {DT[2]}
        v_cvt_pk_bf16_f32 {X[3]}, 0, {DT[0]}
        """)
    read_entry = f"ds_read_b64 {EN}, {vAn}"; adv_n = f"v_add_u32 {vAn}, 256, {vAn}"
    flip_v = f"v_add_u32 {ERD}, {sEx}, {ERD}"
    def flip_s(): A(f"s_add_u32 {sEm}, {sEm}, {sEx}"); A(f"s_sub_u32 {sEx}, 0, {sEx}")
    def read_he():
        for s in range(4): A(f"ds_read_b128 {H[4*s:4*s+4]}, {HRD[s]}")
        A(f"ds_read_b128 {EA}, {ERD}")
    def m1(n):
        y = Y[16*n:16*n+16]
        ops = [(X, BX[4*n:4*n+4]), (EA, W4[4*n:4*n+4])] + [(H[8*n+4*s:8*n+4*s+4], PB[4*s:4*s+4]) for s in range(2)]
        return [f"{mf} {y}, {a}, {b}, {y if i else 0}" for i, (a, b) in enumerate(ops)]
    ndef = geto("def", 0)
    A("L_round:")
    A(f"""
    s_add_u32 {sNt}, {sCnt}, 31
    s_lshr_b32 {sNt}, {sNt}, 5
    s_cbranch_scc0 L_round_end
    s_lshl_b32 {sT[0]}, {sNt}, 5
    s_sub_u32 {sT[0]}, {sT[0]}, {sCnt}
    s_lshr_b32 {sEx}, {sT[0]}, 3
    s_lshl_b32 {sT[1]}, {sCnt}, 3
    v_add_u32 {t0}, {sT[1]}, {LO[2]}
    s_bfm_b64 exec, {sT[0]}, 0
    ds_write_b64 {t0}, {INV}
    s_mov_b64 exec, -1
    s_cmp_eq_u32 {sEarly}, 0
    s_cbranch_scc1 L_first
    """)
    with cold():
        A("L_first:"); A(f"v_mov_b32 {vAh}, {LO[0]}"); A(f"v_mov_b32 {vAe}, {LO[1]}")
        read_first(); A("s_waitcnt lgkmcnt(0)"); shift_first(); dma_e(); dma_h()
        A("s_branch L_prime")
    A(f"""
    L_prime:
    ds_read_b64 {D}, {LO[2]}
    ds_read_b64 {EN}, {LO[2]} offset:256
    v_add_u32 {vAh}, 256, {LO[0]}
    v_add_u32 {vAe}, 256, {LO[1]}
    """)
    read_idx(); A("\n".join(adv_idx))
    A(f"v_add_u32 {vAn}, 512, {LO[2]}")
    A(f"s_mov_b32 {sTi}, 1"); A(f"s_mov_b32 {sEarly}, 0")
    A("s_waitcnt lgkmcnt(5)")
    A("\n".join(derive_a(D))); pos_reads()
    for r in (TM[0:16], TM[16:32], Y[16:32]): A(zero16(r, ZERO))
    A("\n".join(slot_ops[1:] + slot_ops[:1] + derive_a()))
    A("s_waitcnt lgkmcnt(0)")
    A("\n".join(derive_b))
    stamp(A, 13)
    one = lambda r: f"v_mfma_f32_16x16x4_4b_bf16 {r}, {HALF}, {HALF}, {r}"
    PKS = [PK, W2[16:24]]
    def finish(o, part):
        t = TM[16*o:16*o+16]; y = Y[16*o:16*o+16]; pk = PKS[o]
        if part == "mul": return [f"v_mul_f32 {t[i]}, {y[i]}, {t[i]}" for i in range(16)]
        if part == "cvt": return [f"v_cvt_pk_bf16_f32 {pk[i]}, {t[2*i]}, {t[2*i+1]}" for i in range(8)]
        if part == "m2": return [f"{mf} {ACC[16*o:16*o+16]}, {pk[4*u:4*u+4]}, {A2[4*u:4*u+4]}, {ACC[16*o:16*o+16]}" for u in range(2)]
    def mt(k):
        if "loop" in OPT: A(f"s_memtime {sM[2*k:2*k+2]}")
    if "loop" in OPT:
        for k in range(6): A(f"s_mov_b32 {sS2[k]}, 0")
        mt(0)
    A("s_branch L_tile")
    stub("tile")
    A(".p2align 6")
    A("L_tile:")
    mt(1)
    for i in range(4): A(f"ds_read_b64_tr_b16 {A2[2*i:2*i+2]}, {vTtr} offset:{512*i}")
    A(f"ds_write_b64 {vAz}, {ZERO}")
    A(f"ds_write_b64 {vAt}, {D}"); A(lut_read); pos_reads(); A(read_entry)
    A("s_waitcnt vmcnt(0) lgkmcnt(9)")
    mt(2)
    read_he(); A(shift_e)
    A(f"s_cmp_ge_u32 {sTi}, {sNt}")
    A("s_waitcnt lgkmcnt(0)")
    mt(3)
    A(f"s_cbranch_scc1 L_last")
    if "xnoh" not in OPT: dma_h()
    if "xnoe" not in OPT: dma_e()
    mt(4)
    read_idx()
    if "loop" in OPT:
        A("s_waitcnt lgkmcnt(0)")
        for k in range(4): A(f"s_sub_u32 s3, {sM[2*k+2]}, {sM[2*k]}"); A(f"s_add_u32 {sS2[k]}, {sS2[k]}, s3")
        A(f"s_mov_b32 {sM[0]}, {sM[8]}")
    A(f"s_add_u32 {sTi}, {sTi}, 1")
    prio(0); A("\n".join(derive_b[:3] + finish(1, "mul"))); prio(1)
    a = m1(0); b = m1(1); m2 = finish(0, "m2") + finish(1, "m2")
    fill = finish(0, "cvt") + finish(1, "cvt") + derive_b[3:11] + slot_ops + derive_a()[:2]
    for k in range(4): A(a[k]); A("\n".join(fill[6*k:6*k+6]))
    A(b[0]); A("\n".join(fill[24:]))
    for i in range(16):
        if i in (0, 3, 6): A(b[1 + i // 3])
        if i == 10: A(m2[0])
        A(f"v_exp_f32 {TM[i]}, {Y[i]}")
    A(derive_b[11]); A(derive_a()[2]); A(one(TM[0:16]))
    for i in range(16):
        if i in (4, 8): A(m2[i // 4])
        A(f"v_exp_f32 {TM[16+i]}, {Y[16+i]}")
    for i in range(32):
        if i == 2: A(one(TM[16:32]))
        if i == 6: A(m2[3])
        if i == 8 and "nop2" not in OPT: prio(2)
        if "xnorcp" not in OPT: A(f"v_rcp_f32 {TM[i]}, {TM[i]}")
    A("\n".join(finish(0, "mul") + adv_idx + [adv_n])); prio(3)
    A("s_branch L_tile")
    WXR = [H[0:4], H[4:8], H[8:12], H[12:16], EA, X, A2[0:4], A2[4:8]]
    WF = [W2[0:16], R("v", W4.b, 16)]
    assert BX.b == W4.b + 8
    def epi_reads():
        A(f"v_xor_b32 {DT[3]}, 64, {vWb}"); A(f"v_lshlrev_b32 {vAl}, 4, {vHalf}")
        for n2 in range(2):
            for st in range(4):
                for hf in range(2):
                    A(f"ds_read_b64_tr_b16 {WF[n2][4*st+2*hf:4*st+2*hf+2]}, {DT[3] if n2 else vWb} offset:{(16*st + 8*hf)*128}")
            A("s_waitcnt lgkmcnt(6)")
        for i in range(6): A(f"ds_read_b128 {WXR[i]}, {vAl} offset:{WX + 32*i}")
    epiaddr = lines(f"""
    v_lshrrev_b32 {DT[1]}, 2, {vL}
    v_and_b32 {DT[2]}, 3, {vL}
    v_add_u32 {DT[1]}, {sN0}, {DT[1]}
    v_mul_u32_u24 {DT[1]}, 6, {DT[1]}
    v_lshl_add_u32 {DT[1]}, {DT[2]}, 1, {DT[1]}
    ds_read_u16_d16_hi {PS[0]}, {DT[1]} offset:{POS}
    v_add_u32 {DT[0]}, {sN0}, {vHalf}
    v_lshlrev_b32 {DT[0]}, 7, {DT[0]}
    v_and_b32 {DT[2]}, 31, {vL}
    v_lshl_add_u32 {DT[0]}, {DT[2]}, 1, {DT[0]}
    v_add_u32 {DT[1]}, {N*128}, {DT[1]}
    """)
    stub("last", page="L_back2", dead=True)
    A("L_last:")
    prio(0); A("\n".join(finish(1, "mul"))); prio(1)
    cv = finish(0, "cvt") + finish(1, "cvt") + epiaddr
    for k in range(4): A(a[k]); A("\n".join(cv[6*k:6*k+6]))
    A(b[0]); A("\n".join(cv[24:])); A(b[1]); A(b[2]); A(b[3]); A(m2[0])
    def enter(tag):
        if "notrim" in OPT: return
        for g in (3, 2, 1): A(f"s_cmp_eq_u32 {sEx}, {g}"); A(f"s_cbranch_scc1 L_{tag}{3-g}")
    A(f"s_cmp_lt_u32 {sScan}, {E}"); A("s_cbranch_scc1 L_noer"); epi_reads(); A("L_noer:")
    A("s_nop 4")
    enter("x")
    for g in (3, 2, 1, 0):
        A(f"L_x{g}:")
        for n in range(2):
            for i in range(4):
                if g == 0 and i == 0: A(m2[1 + n])
                A(f"v_exp_f32 {TM[16*n+4*g+i]}, {Y[16*n+4*g+i]}")
    A(m2[3]); A(one(TM[0:16])); A(one(TM[16:32]))
    A("s_waitcnt lgkmcnt(8)")
    for i in range(4): A(f"ds_read_b64_tr_b16 {A2[2*i:2*i+2]}, {vTtr} offset:{512*i}")
    A(f"ds_write_b64 {vAt}, {ZERO}")
    prio(geto("lq", 1)); stub("l2", over=True); A("s_nop 2")
    enter("r")
    for g in (3, 2, 1, 0):
        A(f"L_r{g}:")
        idx = [16*n + 4*g + i for n in range(2) for i in range(4)]
        for i in idx: A(f"v_rcp_f32 {TM[i]}, {TM[i]}")
        for i in idx: A(f"v_mul_f32 {TM[i]}, {Y[i]}, {TM[i]}")
        for n in range(2):
            for i in range(2): A(finish(n, "cvt")[2*g+i])
        if g == 2: A("s_waitcnt lgkmcnt(0)"); A("s_nop 0"); A(m2[1]); A(m2[3])
    A(f"s_cmp_lt_u32 {sScan}, {E}"); A("s_waitcnt lgkmcnt(0)")
    A(m2[0]); A(m2[2])
    prio(geto("lp", 0))
    A("s_cbranch_scc1 L_more")
    kcold = len(A.o)
    A("L_round_end:")
    A(f"s_cmp_lt_u32 {sScan}, {E}"); A("s_cbranch_scc1 L_more")
    epi_reads(); A("\n".join(epiaddr)); A("s_branch L_epi")
    A("L_more:")
    A(f"s_cmp_lg_u32 {sScan}, 0"); A("s_cbranch_scc1 L_havetab")
    srd(A, SZ, pH, N, 128)
    FP = W2[16:32]
    A(f"""
    v_lshlrev_b32 {t0}, 4, v0
    v_and_b32 {t1}, 16, {vL}
    v_lshlrev_b32 {t1}, 2, {t1}
    v_xor_b32 {t0}, {t0}, {t1}
    s_add_u32 m0, {sW10}, {STG}
    s_movk_i32 {sT[0]}, 8192
    s_lshl_b32 {sT[1]}, {sW}, 11
    s_add_u32 {sT[1]}, {sT[1]}, {WE}
    v_lshl_add_u32 {t2}, {vL}, 3, {sT[1]}
    s_waitcnt vmcnt(0)
    s_barrier
    ds_write_b64 {t2}, {ZERO}
    ds_write_b64 {t2}, {ZERO} offset:512
    ds_write_b64 {t2}, {ZERO} offset:1024
    ds_write_b64 {t2}, {ZERO} offset:1536
    buffer_load_dwordx4 {t0}, {SY}, {sT[0]} offen lds
    v_add_u32 {t0}, {STG - WE}, {vT1}
    v_xor_b32 {t1}, 64, {t0}
    v_and_b32 {EN[0]}, 31, {vL}
    v_lshl_add_u32 {EN[0]}, {sW}, 5, {EN[0]}
    v_lshlrev_b32 {EN[1]}, 4, {vHalf}
    v_lshlrev_b32 {D[1]}, 5, {vHalf}
    s_mov_b32 {sTi}, {sW}
    s_waitcnt vmcnt(0)
    s_barrier
    """)
    for n in range(2):
        for s_ in range(4):
            for half in range(2): A(f"ds_read_b64_tr_b16 {Y[16*n+4*s_+2*half:16*n+4*s_+2*half+2]}, {t1 if n else t0} offset:{(16*s_ + 4*half)*128}")
        A("s_waitcnt lgkmcnt(0)")
    A("L_tab:")
    for s_ in range(4): A(f"buffer_load_dwordx4 {H[4*s_:4*s_+4]}, {EN}, {SZ}, 0 idxen offen offset:{32*s_}")
    A(f"v_mov_b32 {D[0]}, {EN[0]}"); A(f"v_add_u32 {EN[0]}, 256, {EN[0]}")
    A("s_waitcnt vmcnt(0)")
    for n in range(2):
        for s_ in range(4): A(f"{mf} {TM[16*n:16*n+16]}, {Y[16*n+4*s_:16*n+4*s_+4]}, {H[4*s_:4*s_+4]}, {TM[16*n:16*n+16] if s_ else 0}")
    A("s_nop 11")
    for k in range(32): A(f"v_mul_f32 {TM[k]}, {NLOG2E:#x}, {TM[k]}")
    for k in range(16): A(f"v_cvt_pk_bf16_f32 {FP[k]}, {TM[2*k]}, {TM[2*k+1]}")
    for k in range(4): A(f"buffer_store_dwordx4 {FP[4*k:4*k+4]}, {D}, {SH}, 0 idxen offen offset:{64*(k//2) + 16*(k%2)} sc1")
    A(f"""
    s_add_u32 {sTi}, {sTi}, 8
    s_cmp_lt_u32 {sTi}, {(N + 31)//32}
    s_cbranch_scc1 L_tab
    s_waitcnt vmcnt(0)
    s_barrier
    L_havetab:
    """)
    A(f"s_mov_b32 {sCnt}, 0")
    A("L_scan:")
    Dd = H[0:4]; Ss = H[4:8]
    A(f"""
    s_lshl_b32 {sT[0]}, {sScan}, 2
    v_lshl_add_u32 {DT[0]}, {vL}, 4, {sT[0]}
    global_load_dwordx4 {Dd}, {DT[0]}, {pDst}
    global_load_dwordx4 {Ss}, {DT[0]}, {pSrc}
    v_lshlrev_b32 {DT[0]}, 4, {DT[0]}
    s_waitcnt vmcnt(0)
    """)
    for i in range(4):
        A(f"""
        v_subrev_u32 {DT[1]}, {sN0}, {Dd[i]}
        v_cmp_gt_u32 vcc, {sNn}, {DT[1]}
        v_add3_u32 {EN[0]}, {DT[0]}, {DT[1]}, 1
        v_mov_b32 {EN[1]}, {Ss[i]}
        v_mbcnt_lo_u32_b32 {DT[2]}, vcc_lo, 0
        v_mbcnt_hi_u32_b32 {DT[2]}, vcc_hi, {DT[2]}
        v_add_u32 {DT[2]}, {sCnt}, {DT[2]}
        v_lshl_add_u32 {DT[2]}, {DT[2]}, 3, {sLb}
        s_bcnt1_i32_b64 {sT[0]}, vcc
        s_add_u32 {sCnt}, {sCnt}, {sT[0]}
        s_mov_b64 exec, vcc
        ds_write_b64 {DT[2]}, {EN}
        s_mov_b64 exec, -1
        v_add_u32 {DT[0]}, 64, {DT[0]}
        """)
    A(f"""
    s_add_u32 {sScan}, {sScan}, 256
    s_cmp_ge_u32 {sScan}, {E}
    s_cbranch_scc1 L_round
    s_cmp_le_u32 {sCnt}, {CAP - 256}
    s_cbranch_scc1 L_scan
    s_branch L_round
    """)
    COLD.extend(A.o[kcold:]); del A.o[kcold:]
    A("L_epi:")
    stamp(A, 11)
    SO = SY
    srd(A, SO, pOut, N * 134)
    A(f"""
    s_cmp_eq_u32 {sSlow}, 0
    s_cselect_b32 {sT[0]}, s2, 0
    s_or_b32 {sT[0]}, {sT[0]}, {sW}
    s_cbranch_scc1 L_noepo
    v_mov_b32 {DT[2]}, {EPO}
    s_mov_b64 exec, 1
    global_atomic_add {DT[2]}, {v8}, {pWs}
    s_mov_b64 exec, -1
    s_branch L_noepo
    """)
    stub("epi")
    A(f"""
    L_noepo:
    s_waitcnt lgkmcnt(0)
    """)
    for i in (6, 7): A(f"ds_read_b128 {WXR[i]}, {vAl} offset:{WX + 32*i}")
    fm = [f"v_mul_f32 {DT[2]}, {ACC[0]}, {WXR[0][0]}"] + [f"v_fmac_f32 {DT[2]}, {ACC[i]}, {WXR[i//4][i%4]}" for i in range(1, 32)]
    for st in range(4):
        for i in range(8): A(f"v_mul_f32 {ACC[8*st+i]}, {NLN2:#x}, {ACC[8*st+i]}")
        for i in range(4): A(f"v_cvt_pk_bf16_f32 {Y[4*st+i]}, {ACC[8*st+2*i]}, {ACC[8*st+2*i+1]}")
        A(fm[2*st]); A(fm[2*st+1])
        for n2 in range(2): A(f"{mf} {TM[16*n2:16*n2+16]}, {Y[4*st:4*st+4]}, {WF[n2][4*st:4*st+4]}, {TM[16*n2:16*n2+16] if st else 0}")
    A("\n".join(fm[8:24])); A("s_waitcnt lgkmcnt(0)"); A("\n".join(fm[24:]))
    A(f"v_mov_b32 {DT[3]}, {DT[2]}")
    A(f"s_cmp_eq_u32 {sNn}, 5"); A(f"s_mov_b32 {sT[2]}, 0x7777"); A(f"s_cselect_b32 {sT[2]}, 0x77777, {sT[2]}"); A(f"s_mov_b32 {sT[3]}, 0")
    A(f"v_permlane32_swap_b32 {DT[2]}, {DT[3]}")
    TT = PK
    for n in range(2):
        for j in range(3):
            z = ZH[2*j+n]; t = TT[2*j+n]
            A(f"v_add_f32 {z}, {z}, {TM[16*n+4*j+3]}")
            A(f"v_mul_f32 {t}, {NLOG2E:#x}, {z}"); A(f"v_exp_f32 {t}, {t}")
    A(f"v_add_f32 {DT[2]}, {DT[2]}, {DT[3]}")
    for i in range(6): A(f"v_add_f32 {TT[i]}, 1.0, {TT[i]}"); A(f"v_rcp_f32 {TT[i]}, {TT[i]}")
    A(f"v_add_f32 {DT[2]}, {DT[2]}, {PS[0]}")
    for i in range(6):
        A(f"v_fmac_f32 {HR[i]}, {ZH[i]}, {TT[i]}"); A(f"v_cvt_pk_bf16_f32 {HR[i]}, {HR[i]}, {HR[i]}")
        if i < 4: A(f"buffer_store_short {HR[i]}, {DT[0]}, {SO}, 0 offen offset:{256*(i//2) + 64*(i%2)}")
    A(f"""
    v_cvt_pk_bf16_f32 {DT[2]}, {DT[2]}, {DT[2]}
    s_mov_b64 exec, {sT[2:4]}
    buffer_store_short {DT[2]}, {DT[1]}, {SO}, 0 offen
    s_cbranch_scc0 L_fin
    s_mov_b32 exec_lo, -1
    """)
    for n in range(2): A(f"buffer_store_short {HR[4+n]}, {DT[0]}, {SO}, 0 offen offset:{512 + 64*n}")
    A("L_fin:")
    if "stamp" in OPT:
        A("s_waitcnt vmcnt(0)"); A(f"v_writelane_b32 v255, {sTo}, 14"); A(f"v_writelane_b32 v255, {sNt}, 15")
        if "loop" in OPT:
            for k in range(6): A(f"v_writelane_b32 v255, {sS2[k]}, {23+k}")
    stamp(A, 12); stamp_out(A, pWs)
    A("L_done:"); A("s_endpgm")
    A.o.extend(COLD)
    fl = "" if "oplain" in OPT else "sc1"
    A.o = [l + " " + fl if l.startswith("buffer_store_short") else l for l in A.o]
    print("vgprs", nv, "sgprs", S.n, "lds", LDS_MAIN, "instrs", len(A.o), file=sys.stderr)
    return A.text()

if __name__ == "__main__":
    OPT.update(sys.argv[2:])
    if "xto" in OPT: TIMEOUT = 50
    KN = "standalone__cheap_equivariant_egnn__graph_kernel"
    s = assemble([(KN, k_main(), 256)], [(KN, NB, 512, LDS_MAIN)], single=True).replace("next_free_sgpr 96", "next_free_sgpr 102")
    open(sys.argv[1], "w").write(s)
```

```python
import sys, struct
from lib import *
N, E = 10000, 640000
NB, CH = 256, 2500
CAP = 416
NLOG2E = 0xbfb8aa3b
NLN2 = 0xbf317218
SEC = NB * NB * 64
EPO = 2 * SEC
BTO = 16 << 20
TIMEOUT = 20000
INV0 = 0xffffffc6
CNT, FLAG, LUT, WX = 0, 64, 128, 256
STG = 512
WE = STG + 8 * 5120
WH = WE + 18560
POS = WH + 16384
LIST = POS + 60032
LDS_MAIN = LIST + 8 * CAP * 8
BST = STG
BCN = BST + 256 * 144
TB = STG
HO = LIST + 512
HST = CAP * 8 + 16
BO = LIST + 1664
assert STG % 128 == 0 and WE % 128 == 0 and WH % 128 == 0 and LDS_MAIN <= 163840
OPT = set()
geto = lambda name, d: int([o for o in OPT if o.startswith(name)][0][len(name):]) if any(o.startswith(name) for o in OPT) else d
PEND = []
def stamp(A, i):
    if "marks" in OPT: A(f"M_{i}:")
    if "stamp" not in OPT: return
    k = len(PEND)
    if k >= 2: A(f"v_writelane_b32 v255, s{96+2*((k-2)%3)}, {PEND[k-2]}")
    A(f"s_memrealtime s[{96+2*(k%3)}:{97+2*(k%3)}]"); PEND.append(i)
def stamp_out(A, wsp):
    if "stamp" not in OPT: return
    A("s_waitcnt lgkmcnt(0)")
    k = len(PEND)
    for u in (k - 2, k - 1): A(f"v_writelane_b32 v255, s{96+2*(u%3)}, {PEND[u]}")
    A("s_mov_b64 exec, -1")
    A(f"v_lshrrev_b32 v1, 6, v0"); A(f"s_lshl_b32 s3, s2, 3"); A("v_add_u32 v1, s3, v1"); A("v_lshlrev_b32 v1, 7, v1"); A(f"v_add_u32 v1, {200<<20}, v1")
    A("v_and_b32 v2, 63, v0"); A("v_lshl_add_u32 v1, v2, 2, v1"); A("s_mov_b32 exec_hi, 0"); A(f"global_store_dword v1, v255, {wsp}")
def lines(s): return [l.strip() for l in s.strip().split("\n") if l.strip()]

def k_main():
    A = Asm(); COLD = []
    class cold:
        def __enter__(self): self.k = len(A.o)
        def __exit__(self, *a): COLD.extend(A.o[self.k:]); del A.o[self.k:]
    notouch = "notouch" in OPT
    def stub(name, over=False, page=None, dead=False):
        if notouch and not page: return
        if (over or page) and not dead: A(f"s_branch L_sk_{name}")
        if page: A(".p2align 12")
        if not notouch:
            A(f"L_st_{name}:"); A("s_branch L_back1")
            if page: A(f"L_lt_{name}:"); A(f"s_branch {page}")
        if (over or page) and not dead: A(f"L_sk_{name}:")
    def touch_local(w, name, back):
        if notouch: return
        for ww, nm in zip(w, name): A(f"s_cmp_eq_u32 {sW}, {ww}"); A(f"s_cbranch_scc1 L_lt_{nm}")
        A(f"{back}:")
    S = Regs("s", 26, 96); V = Regs("v", 1, 255)
    pH, pPos, pE, pSrc, pDst, pWe, pWx, pWh, pOut, pDbg, pWs = [R("s", 4 + 2 * i, 2) for i in range(11)]
    sW = S.alloc("wave"); sN0 = S.alloc("node0")
    SH = S.alloc("SH", 4, 4); SE = S.alloc("SE", 4, 4); SX = S.alloc("SX", 4, 4); SY = S.alloc("SY", 4, 4); SZ = S.alloc("SZ", 4, 4)
    sM = S.alloc("masks", 16, 2); sT = S.alloc("tmp", 4, 2); sS2 = S.alloc("secmask", 8, 2); sNq = S.alloc("nq", 4, 2)
    sStg = S.alloc("stg"); sLb = S.alloc("listbase"); sCnt = S.alloc("cnt"); sNt = S.alloc("nt"); sTi = S.alloc("ti")
    sSlow = S.alloc("slow"); sScan = S.alloc("scan"); sPd = S.alloc("pd"); sNn = S.alloc("nn")
    sNon = S.alloc("nonce"); sK = S.alloc("K"); sTo = S.alloc("to"); sEarly = S.alloc("early"); sW10 = S.alloc("w10"); sNb = S.alloc("nb0")
    sOv = S.alloc("ov"); sEm = pDbg[0]; sEx = pDbg[1]; sAg = pDbg[1]
    vL = V.alloc("lane"); vHalf = V.alloc("half"); vT1 = V.alloc("t1")
    W2 = V.alloc("W2", 32, 4); W4 = V.alloc("W4", 8, 4); BX = V.alloc("BX", 8, 4)
    ACC = V.alloc("ACC", 32, 4); Y = V.alloc("Y", 32, 4); TM = V.alloc("TM", 32, 4)
    H = V.alloc("H", 16, 4); EA = V.alloc("EA", 4, 4); X = V.alloc("X", 4, 4); A2 = V.alloc("A2", 8, 4); PK = V.alloc("PK", 8, 4)
    IX = V.alloc("IX", 10, 2); HRD = V.alloc("HRD", 4); ERD = V.alloc("ERD")
    vAh = V.alloc("Ah"); vAe = V.alloc("Ae"); vAn = V.alloc("An"); vTrow = V.alloc("Trow"); vTtr = V.alloc("Ttr")
    ZB = V.alloc("ZB", 16, 4); ZERO = ZB[0:2]; D = ZB[2:4]; PS = ZB[4:7]; PD = ZB[7:10]; HR = ZB[10:16]
    EN = V.alloc("EN", 2, 2); HALF = V.alloc("HALFC", 2, 2); INV = V.alloc("INV", 2, 2)
    vAt = V.alloc("At"); DT = V.alloc("DT", 4); vSl = V.alloc("Sl"); vAl = V.alloc("Al")
    ZH = V.alloc("ZH", 6); vWb = V.alloc("Wb"); LO = V.alloc("LO", 3)
    vJ = V.alloc("junk"); vCB = V.alloc("CB", 4); v8 = V.alloc("v8")
    nv = V.n
    mf = "v_mfma_f32_32x32x16_bf16"
    dpp = "row_mask:0xf bank_mask:0xf"
    prio = lambda p: A(f"s_setprio {p}") if "noprio" not in OPT else None
    zero16 = lambda r, z: f"v_mfma_f32_16x16x4_4b_bf16 {r}, {z}, {z}, 0"
    EXA = R("v", EA.b, 16)
    assert X.b == EA.b + 4 and A2.b == EA.b + 8
    DS = Y[0:5]; SR = Y[8:13]; RC = Y[16:21]; B4 = Y[21:26]; RT = Y[26:31]
    LE = H[0:5]; Z4 = H[8:12]; v4 = H[12]; c31 = H[13]
    aD4 = TM[0]; aD1 = TM[1]; aL = TM[2]; aC = TM[3]; aG = TM[4:6]; aS = TM[6:8]; vDs = TM[8]; vD = TM[9]; aWs = TM[10]
    aHj = TM[11]; aFj = TM[12]; aWj = TM[13]; aA = TM[14]; aZ = TM[15]; aHR = TM[16:19]; aWD = TM[19]; vT2 = TM[20]; aTz = TM[21]; aCn = TM[22]; vLim = TM[23]
    t0, t1, t2, t3 = DT[0], DT[1], DT[2], DT[3]
    RP = A2; RS = [EA[0:2], EA[2:4], X[0:2], X[2:4]]; vRo = vAt
    m5 = sM[10:12]
    if "stamp" in OPT: A("v_mov_b32 v255, 0")
    stamp(A, 0)
    A(f"""
    s_cmp_ge_u32 s2, {NB}
    s_cbranch_scc1 L_done
    s_load_dwordx16 s[4:19], s[0:1], 0
    s_load_dwordx4 s[20:23], s[0:1], 64
    s_load_dwordx2 s[24:25], s[0:1], 80
    v_lshrrev_b32 {vT1}, 6, v0
    v_and_b32 {vL}, 63, v0
    v_readfirstlane_b32 {sW}, {vT1}
    s_setprio 1
    """)
    if not notouch:
        names = ["sh", "b1", "y1", "y2", "p2", "b3", "poll", "w0", "c", "p3", "b5", "tile", "odd", "last", "l2", "epi"]
        nw = geto("tw", 1)
        A(f"s_cmp_lt_u32 {sW}, {8 - nw}"); A("s_cbranch_scc1 L_back1")
        A(f"s_lshr_b32 s3, s2, 3")
        if nw > 1: A(f"s_mul_i32 s3, s3, {nw}"); A(f"s_add_u32 s3, s3, {sW}")
        A(f"s_and_b32 s3, s3, 15")
        for k, nm in enumerate(names): A(f"s_cmp_eq_u32 s3, {k}"); A(f"s_cbranch_scc1 L_st_{nm}")
        A("L_back1:")
    A(f"""
    s_mul_i32 s3, s2, {CH*4}
    v_lshl_add_u32 {aD4}, v0, 4, s3
    s_add_u32 s3, s3, 8192
    v_lshl_add_u32 {aD1}, v0, 2, s3
    v_cmp_gt_u32 vcc, {CH - 2048}, v0
    v_lshrrev_b32 {vHalf}, 5, {vL}
    s_mul_i32 {sT[0]}, s2, 5000
    s_add_u32 {sNb}, {sT[0]}, 127
    s_lshr_b32 {sNb}, {sNb}, 7
    s_mov_b64 {m5}, vcc
    s_lshl_b32 {sW10}, {sW}, 10
    s_mov_b32 {sT[1]}, {EPO}
    v_mov_b32 {Z4[0]}, 0
    v_mov_b32 {Z4[1]}, 0
    v_mov_b32 {Z4[2]}, 0
    v_mov_b32 {Z4[3]}, 0
    v_lshlrev_b32 {vD}, 4, v0
    v_lshrrev_b32 {EN[0]}, 3, v0
    v_mul_u32_u24 {vCB[0]}, {CH*64}, {EN[0]}
    v_add_u32 {EN[0]}, {sNb}, {EN[0]}
    v_and_b32 {EN[1]}, 0x70, {vD}
    v_and_b32 {c31}, 31, {vL}
    s_mul_i32 {sLb}, {sW}, {CAP*8}
    s_add_u32 {sLb}, {sLb}, {LIST}
    v_and_b32 {t3}, 16, {vL}
    v_lshlrev_b32 {t2}, 2, {t3}
    v_xor_b32 {vDs}, {vD}, {t2}
    s_add_u32 m0, {sW10}, {WE + 8192}
    s_movk_i32 {sT[3]}, 8192
    s_mov_b32 {SY[2]}, {145*128}
    s_mov_b32 {SY[3]}, 0x20000
    s_mov_b32 {SH[2]}, {N}
    s_mov_b32 {SH[3]}, 0x20000
    s_mul_i32 {sT[2]}, {sW}, {HST}
    s_waitcnt lgkmcnt(0)
    s_mov_b64 {SY[0:2]}, {pWe}
    s_mov_b32 {SH[0]}, {pH[0]}
    s_cmp_gt_u32 {sW}, 6
    s_cbranch_scc1 L_w2done
    buffer_load_dwordx4 {vDs}, {SY}, {sT[3]} offen lds
    s_cmp_lt_u32 {sW}, 6
    s_cbranch_scc1 L_w2done
    buffer_load_dwordx4 {vDs}, {SY}, {sT[3]} offen offset:1024 lds
    L_w2done:
    s_add_u32 m0, {sT[2]}, {HO}
    s_and_b32 {SH[1]}, {pH[1]}, 0xffff
    s_or_b32 {SH[1]}, {SH[1]}, 0x800000
    s_load_dword {sNon}, {pWs}, {sT[1]}
    s_cmp_ge_u32 {sW}, 5
    s_cbranch_scc1 L_share
    buffer_load_dwordx4 {EN}, {SH}, 0 idxen offen lds
    s_branch L_share_done
    """)
    stub("sh")
    A(f"""
    L_share:
    s_lshr_b32 {sT[0]}, s2, 3
    """)
    srd(A, SY, pPos, N * 6)
    A(f"s_mov_b32 {sT[2]}, 15")
    for w, (ptr, size, cnt) in ((6, (pWe, 145 * 128, 5)), (7, (pWh, 16384, 4))):
        A(f"""
        s_cmp_eq_u32 {sW}, {w}
        s_cselect_b64 {SY[0:2]}, {ptr}, {SY[0:2]}
        s_cselect_b32 {SY[2]}, {size}, {SY[2]}
        s_cselect_b32 {sT[2]}, {cnt}, {sT[2]}
        """)
    A(f"""
    s_mul_i32 {sT[0]}, {sT[0]}, {sT[2]}
    v_add_lshl_u32 {t2}, {vL}, {sT[0]}, 7
    s_bfm_b64 exec, {sT[2]}, 0
    buffer_load_dword {vJ}, {t2}, {SY}, 0 offen
    s_mov_b64 exec, -1
    L_share_done:
    """)
    for i in range(5): A(f"ds_write_b128 {vD}, {Z4} offset:{BST + 8192*i}")
    def ld(R_, p_):
        A(f"""
        global_load_dwordx4 {R_[0:4]}, {aD4}, {p_}
        s_mov_b64 exec, {m5}
        global_load_dword {R_[4]}, {aD1}, {p_}
        s_mov_b64 exec, -1
        """)
    dpos = geto("dpos", 0); spos = geto("spos", 3)
    def slot(k):
        if dpos == k: ld(DS, pDst)
        if spos == k: ld(SR, pSrc)
    slot(0)
    A(zero16(ZB, Z4[0:2])); A(zero16(EXA, Z4[0:2]))
    A(f"""
    s_add_u32 {SH[0]}, {pWs[0]}, {BTO}
    s_addc_u32 {SH[1]}, {pWs[1]}, 0
    s_and_b32 {SH[1]}, {SH[1]}, 0xffff
    s_or_b32 {SH[1]}, {SH[1]}, 0x800000
    """)
    lo = sum(1 << ((k + 1) * 4 + (k >> 1)) for k in range(5) if k % 2 == 0)
    hi = sum(1 << ((k + 1) * 4 + (k >> 1)) for k in range(5) if k % 2 == 1)
    A(f"""
    v_mov_b32 {INV[0]}, {INV0:#x}
    v_mov_b32 {INV[1]}, {N}
    v_lshl_add_u32 {t0}, {vL}, 3, {sLb}
    ds_write_b64 {t0}, {INV}
    s_cmp_lg_u32 {sW}, 0
    s_cbranch_scc1 L_init_done
    v_lshrrev_b32 {t0}, 1, {vL}
    v_mul_u32_u24 {t0}, {CAP*8}, {t0}
    v_add_u32 {t0}, {LIST}, {t0}
    v_mov_b32 {t1}, 0x3f80
    s_mov_b64 {sT[2:4]}, 0xffff
    v_cndmask_b32 {t0}, 0, {t0}, {sT[2:4]}
    s_mov_b32 {sT[2]}, 0
    s_mov_b32 {sT[3]}, {lo:#x}
    v_cndmask_b32 {t0}, {t0}, {t1}, {sT[2:4]}
    s_mov_b32 {sT[3]}, {hi:#x}
    v_cndmask_b32 {t0}, {t0}, 1.0, {sT[2:4]}
    v_lshlrev_b32 {t1}, 2, {vL}
    ds_write_b32 {t1}, {t0}
    L_init_done:
    """)
    slot(1)
    A(f"""
    v_mov_b32 {v4}, 4
    v_lshlrev_b32 {LE[0]}, 8, v0
    v_add_u32 {LE[1]}, 64, {LE[0]}
    v_add_u32 {LE[2]}, 128, {LE[0]}
    v_add_u32 {LE[3]}, 192, {LE[0]}
    v_lshlrev_b32 {LE[4]}, 6, v0
    v_add_u32 {LE[4]}, {2048*64}, {LE[4]}
    v_and_b32 {t0}, 3, {vL}
    v_lshlrev_b32 {t0}, 3, {t0}
    v_lshl_add_u32 {vTtr}, {t3}, 1, {t0}
    v_and_b32 {t1}, 12, {vL}
    v_lshl_add_u32 {t0}, {t1}, 5, {vTtr}
    v_lshl_add_u32 {vTtr}, {t1}, 4, {vTtr}
    v_and_b32 {t1}, 8, {vL}
    v_lshl_add_u32 {vWb}, {t1}, 3, {t0}
    v_lshl_add_u32 {t0}, {vHalf}, 10, {vWb}
    v_add_u32 {vT1}, {WE}, {t0}
    """)
    slot(2)
    A(f"""
    s_bfe_u32 {sT[0]}, {sW}, 0x10001
    s_mul_i32 {sT[0]}, {sT[0]}, 20
    v_add_u32 {aWj}, {sT[0]}, {c31}
    v_lshrrev_b32 {t1}, 3, {aWj}
    v_mul_u32_u24 {t1}, {HST - 1024}, {t1}
    v_lshl_add_u32 {aHj}, {aWj}, 7, {t1}
    v_lshl_add_u32 {aHj}, {vHalf}, 4, {aHj}
    v_add_u32 {aHj}, {HO}, {aHj}
    s_and_b32 {sT[1]}, {sW}, 1
    s_lshr_b32 {sT[2]}, {sW}, 2
    s_lshl_b32 {sT[0]}, {sT[1]}, 6
    s_mul_i32 {sT[3]}, {sT[2]}, {WH - WE}
    v_xor_b32 {aFj}, {sT[0]}, {vT1}
    v_add_u32 {aFj}, {sT[3]}, {aFj}
    s_lshl_b32 {sT[0]}, s2, 3
    s_add_u32 {sT[0]}, {sT[0]}, {sW}
    s_mul_i32 {sT[0]}, {sT[0]}, 625
    s_add_u32 {sN0}, {sT[0]}, 127
    s_lshr_b32 {sN0}, {sN0}, 7
    s_add_u32 {sNn}, {sT[0]}, {625 + 127}
    s_lshr_b32 {sNn}, {sNn}, 7
    s_sub_u32 {sNn}, {sNn}, {sN0}
    s_movk_i32 {sT[1]}, 120
    s_movk_i32 {sT[3]}, 8192
    """)
    aBw = TM[24]; aBr = TM[25]; aBs = TM[26:28]
    u0, u1 = sS2[0], sS2[1]
    stB = lines(f"""
    s_add_u32 {u0}, {sLb}, {BO - LIST}
    v_mul_u32_u24 {aBw}, 80, {c31}
    v_lshl_add_u32 {aBw}, {vHalf}, 5, {aBw}
    v_add_u32 {aBw}, {u0}, {aBw}
    v_lshrrev_b32 {t0}, 2, {vL}
    v_and_b32 {t1}, 48, {vD}
    v_mul_u32_u24 {aBr}, 80, {t0}
    v_add3_u32 {aBr}, {aBr}, {t1}, {u0}
    s_bfe_u32 {u0}, {sW}, 0x10001
    s_mul_i32 {u0}, {u0}, 20
    s_add_u32 {u0}, {u0}, {sNb}
    v_add_u32 {aBs[0]}, {u0}, {t0}
    s_and_b32 {u0}, {sW}, 1
    s_lshl_b32 {u0}, {u0}, 6
    v_add_u32 {aBs[1]}, {u0}, {t1}
    """)
    stG = lines(f"""
    v_lshrrev_b32 {aC}, 2, v0
    v_and_b32 {t0}, 48, {vD}
    v_lshl_add_u32 {aG[0]}, {aC}, 14, {t0}
    s_lshl_b32 {u0}, s2, 6
    v_add_u32 {aG[0]}, {u0}, {aG[0]}
    v_add_u32 {aG[1]}, {128*16384}, {aG[0]}
    v_and_b32 {aC}, -4, v0
    v_mad_u32_u24 {aL}, {aC}, 36, {t0}
    """)
    stL = lines(f"""
    v_add_u32 {aWs}, {WE + 8192}, {vD}
    s_lshl_b32 {u0}, {sW}, 11
    s_add_u32 {u0}, {u0}, {WE}
    s_sub_u32 {u1}, {u0}, 8
    v_lshl_add_u32 {vTtr}, {vHalf}, 8, {vTtr}
    v_add_u32 {vTtr}, {u0}, {vTtr}
    v_lshl_add_u32 {vTrow}, {c31}, 6, {u1}
    v_lshl_add_u32 {aTz}, {vL}, 3, {u0}
    v_lshl_add_u32 {vWb}, {vHalf}, 9, {vWb}
    v_add_u32 {vWb}, {WH + 8192}, {vWb}
    v_xor_b32 {vT2}, 64, {vT1}
    s_lshr_b32 {u0}, {sW}, 2
    s_mul_i32 {u0}, {u0}, {40*272}
    s_and_b32 {u1}, {sW}, 1
    s_lshl_b32 {u1}, {u1}, 7
    s_add_u32 {u0}, {u0}, {u1}
    s_add_u32 {u0}, {u0}, {TB}
    v_mul_u32_u24 {aWj}, 272, {aWj}
    v_lshl_add_u32 {aWj}, {vHalf}, 4, {aWj}
    v_add_u32 {aWj}, {u0}, {aWj}
    s_sub_u32 {u0}, {sN0}, {sNb}
    s_mul_i32 {u1}, {u0}, 272
    s_add_u32 {u1}, {u1}, {TB}
    v_lshl_add_u32 {aA}, {c31}, 2, {u1}
    v_mul_u32_u24 {aZ}, 272, {vHalf}
    v_add_u32 {aZ}, {aZ}, {aA}
    v_lshlrev_b32 {t2}, 1, {c31}
    v_add_u32 {aWD}, {WE + 18432}, {t2}
    v_add_u32 {t2}, {HO}, {t2}
    v_add_u32 {t0}, {u0}, {vHalf}
    s_movk_i32 {u0}, {HST - 1024}
    """)
    for j in range(3):
        stL += [f"v_lshrrev_b32 {t1}, 3, {t0}", f"v_lshl_add_u32 {aHR[j]}, {t0}, 7, {t2}", f"v_mad_u32_u24 {aHR[j]}, {t1}, {u0}, {aHR[j]}"]
        if j < 2: stL.append(f"v_add_u32 {t0}, 2, {t0}")
    slot(3)
    srd(A, SX, pWs, 2 * SEC); srd(A, SY, pWe, 145 * 128); srd(A, SZ, pWh, 16384)
    if "xto" in OPT: A("s_cmp_eq_u32 s2, 5"); A(f"s_cselect_b32 {SX[2]}, 0, {SX[2]}")
    A("\n".join(stG + stL))
    touch_local([1], ["p2"], "L_back3")
    stub("b1", over=True)
    stamp(A, 1)
    BH = W2[0:16]; BF = W2[16:32]; BD = ACC[0:16]; BP = ACC[16:24]; BR = ACC[24:32]
    lab = {"n": 0}
    def old(fn):
        lab["n"] += 1; A(f"s_cmp_ge_u32 {sW}, 4"); A(f"s_cbranch_scc1 L_old{lab['n']}"); fn(); A(f"L_old{lab['n']}:")
    ny = 4 if spos < 4 else 2
    if "f2" in OPT:
        A("s_waitcnt lgkmcnt(0)"); stamp(A, 23); A(f"s_waitcnt vmcnt({ny + 1})"); stamp(A, 24); A("s_waitcnt lgkmcnt(0)"); A(f"s_waitcnt vmcnt({ny})"); stamp(A, 25)
    A(f"s_cmp_ge_u32 {sW}, 5"); A(f"s_waitcnt vmcnt({ny + 1}) lgkmcnt(0)"); A("s_cbranch_scc1 L_b1"); A(f"s_waitcnt vmcnt({ny})"); A("L_b1:"); A("s_barrier")
    stamp(A, 29)
    slot(4)
    A(f"s_and_b32 {sNon}, {sNon}, -8")
    hashc = []
    for q in range(4):
        r = sNq[q]
        hashc.append(lines(f"""
        s_add_u32 {r}, {sNon}, {0x9e3779b8 + q:#x}
        s_mul_i32 {r}, {r}, 0x85ebca6b
        s_lshr_b32 s3, {r}, 15
        s_xor_b32 {r}, {r}, s3
        s_mul_i32 {r}, {r}, 0xc2b2ae35
        s_and_b32 {r}, {r}, -16
        s_or_b32 {r}, {r}, {1 << q}
        """))
    def b_reads():
        for s in range(4):
            A(f"ds_read_b128 {BH[4*s:4*s+4]}, {aHj} offset:{32*s}")
            for half in range(2): A(f"ds_read_b64_tr_b16 {BF[4*s+2*half:4*s+2*half+2]}, {aFj} offset:{8192 + (16*s + 4*half)*128}")
    st2 = lines(f"""
    s_mul_i32 {sStg}, {sW}, 5120
    s_add_u32 {sStg}, {sStg}, {STG}
    s_add_u32 {sEm}, {sStg}, 4096
    s_mul_i32 {sPd}, {sN0}, 6
    s_add_u32 {sPd}, {sPd}, {POS - 6}
    s_mov_b32 {sTo}, 0
    s_mov_b32 {sScan}, 0
    s_mov_b32 {sEarly}, 0
    s_mov_b32 {sOv}, 0
    v_and_b32 {t3}, 31, {vL}
    v_bfe_u32 {t0}, {vL}, 1, 3
    v_xor_b32 {t0}, {t0}, {vHalf}
    v_lshlrev_b32 {t0}, 4, {t0}
    v_lshl_add_u32 {t0}, {t3}, 7, {t0}
    v_add_u32 {HRD[0]}, {sStg}, {t0}
    v_xor_b32 {HRD[1]}, 32, {HRD[0]}
    v_xor_b32 {HRD[2]}, 64, {HRD[0]}
    v_xor_b32 {HRD[3]}, 0x60, {HRD[0]}
    v_bfe_u32 {t0}, {vL}, 3, 1
    v_xor_b32 {t0}, {t0}, {vHalf}
    v_lshlrev_b32 {t0}, 4, {t0}
    v_lshl_add_u32 {t0}, {t3}, 5, {t0}
    v_add_u32 {ERD}, {sEm}, {t0}
    v_lshl_add_u32 {LO[2]}, {t3}, 3, {sLb}
    v_and_b32 {t0}, 56, {vL}
    v_add3_u32 {LO[0]}, {t0}, {sLb}, 4
    v_lshrrev_b32 {t0}, 1, {vL}
    v_lshl_add_u32 {LO[1]}, {t0}, 3, {sLb}
    v_mov_b32 {vAh}, {LO[0]}
    v_mov_b32 {vAe}, {LO[1]}
    v_mov_b32 {HALF[0]}, 0x3f003f00
    v_mov_b32 {HALF[1]}, 0x3f003f00
    v_mov_b32 {v8}, 8
    v_add_u32 {vCB[1]}, {64*CH*64}, {vCB[0]}
    v_add_u32 {vCB[2]}, {128*CH*64}, {vCB[0]}
    v_add_u32 {vCB[3]}, {192*CH*64}, {vCB[0]}
    v_and_b32 {t0}, 15, {vL}
    v_lshlrev_b32 {aCn}, 3, {t0}
    v_mul_u32_u24 {vLim}, {CAP*8}, {t0}
    v_add_u32 {vLim}, {LIST + CAP*8}, {vLim}
    s_mov_b64 {sS2[4:6]}, 0xff
    v_cndmask_b32 {vLim}, 0, {vLim}, {sS2[4:6]}
    """)
    st2 += ["s_mov_b32 exec_lo, 0x80808080", "s_mov_b32 exec_hi, 0x80808080"] + [f"v_mov_b32 {RS[q][1]}, {sNq[q]}" for q in range(4)] + ["s_mov_b64 exec, -1"]
    st3 = lines(f"""
    v_and_b32 {t0}, 48, {vL}
    v_and_b32 {t1}, 0x70, {vD}
    v_xor_b32 {IX[1]}, {t0}, {t1}
    v_xor_b32 {IX[3]}, 64, {IX[1]}
    v_mov_b32 {IX[5]}, {IX[1]}
    v_mov_b32 {IX[7]}, {IX[3]}
    v_and_b32 {IX[9]}, 16, {IX[1]}
    """) + [f"v_mov_b32 {IX[2*i]}, -1" for i in range(5)]
    A(f"s_cmp_ge_u32 {sW}, 4"); A("s_cbranch_scc1 L_y1")
    b_reads()
    A("\n".join(stB))
    for s in range(4):
        A(f"s_waitcnt lgkmcnt({9 - 3*s})"); A(f"{mf} {BD}, {BF[4*s:4*s+4]}, {BH[4*s:4*s+4]}, {BD if s else 0}")
    A("\n".join(x for q in range(2) for x in hashc[q]))
    for k in range(16): A(f"v_mul_f32 {BD[k]}, {NLOG2E:#x}, {BD[k]}")
    for k in range(8): A(f"v_cvt_pk_bf16_f32 {BP[k]}, {BD[2*k]}, {BD[2*k+1]}")
    A("s_mov_b32 exec_lo, 0xfffff"); A("s_mov_b32 exec_hi, 0xfffff")
    for k in range(2): A(f"ds_write_b128 {aBw}, {BP[4*k:4*k+4]} offset:{16*k}")
    A("s_mov_b64 exec, -1")
    for k in range(2): A(f"ds_read_b128 {BR[4*k:4*k+4]}, {aBr} offset:{1280*k}")
    A("\n".join(x for q in range(2, 4) for x in hashc[q]))
    if "xto" in OPT: A("s_cmp_eq_u32 s2, 5"); A(f"s_cselect_b32 {SH[2]}, 0, {SH[2]}")
    A("s_waitcnt lgkmcnt(0)")
    A(f"buffer_store_dwordx4 {BR[0:4]}, {aBs}, {SH}, 0 idxen offen sc1")
    A(f"v_add_u32 {aBs[0]}, 16, {aBs[0]}"); A("s_mov_b64 exec, 0xffff")
    A(f"buffer_store_dwordx4 {BR[4:8]}, {aBs}, {SH}, 0 idxen offen sc1")
    A("s_mov_b64 exec, -1")
    A("s_waitcnt vmcnt(4)")
    A("s_branch L_y2")
    stub("y1")
    A("L_y1:")
    for s in range(4): A(f"ds_read_b128 {BH[4*s:4*s+4]}, {aHj} offset:{32*s}")
    WB = PK[4:8]
    def tables():
        A(f"""
        s_add_u32 m0, {sW10}, {WE}
        s_nop 0
        buffer_load_dwordx4 {vDs}, {SY}, 0 offen lds
        s_add_u32 m0, {sW10}, {WH}
        s_nop 0
        buffer_load_dwordx4 {vDs}, {SZ}, 0 offen lds
        s_add_u32 m0, {sW10}, {WH + 8192}
        s_nop 0
        buffer_load_dwordx4 {vDs}, {SZ}, {sT[3]} offen lds
        """)
    ty = "tlate" not in OPT
    A("\n".join(x for q in range(4) for x in hashc[q]))
    if ty: tables()
    stub("y2", over=True)
    A(f"s_waitcnt vmcnt({5 if ty else 2})")
    A("L_y2:")
    if "xto" in OPT: A(f"s_mov_b32 {SH[2]}, {N}")
    stamp(A, 2)
    for i in range(5):
        if i == 4: A(f"s_mov_b64 exec, {m5}")
        A(f"""
        v_mul_u32_u24 {RC[i]}, 429497, {DS[i]}
        v_lshrrev_b32 {B4[i]}, 22, {RC[i]}
        v_and_b32 {B4[i]}, -4, {B4[i]}
        ds_add_rtn_u32 {RT[i]}, {B4[i]}, {v4} offset:{BCN}
        """)
    A("s_mov_b64 exec, -1")
    for i in range(5):
        A(f"""
        v_lshrrev_b32 {RC[i]}, 21, {RC[i]}
        v_mul_u32_u24 {RC[i]}, 399, {RC[i]}
        v_lshrrev_b32 {RC[i]}, 7, {RC[i]}
        v_add3_u32 {RC[i]}, {RC[i]}, {DS[i]}, 1
        v_and_or_b32 {RC[i]}, {RC[i]}, 63, {LE[i]}
        """)
    A(f"""
    s_xor_b32 {sK}, {sNq[0]}, {sNq[1]}
    s_xor_b32 {sK}, {sK}, {sNq[2]}
    s_xor_b32 {sK}, {sK}, {sNq[3]}
    s_bitcmp1_b32 s2, 6
    s_cselect_b32 {sNon}, {sNq[1]}, {sNq[0]}
    s_cselect_b32 s3, {sNq[3]}, {sNq[2]}
    s_bitcmp1_b32 s2, 7
    s_cselect_b32 {sNon}, s3, {sNon}
    """)
    stamp(A, 3)
    if ty: A(f"s_cmp_ge_u32 {sW}, 4"); A("s_waitcnt vmcnt(3) lgkmcnt(0)"); A("s_cbranch_scc1 L_srcok"); A("s_waitcnt vmcnt(2)"); A("L_srcok:")
    else: A(f"s_cmp_ge_u32 {sW}, 4"); A("s_waitcnt vmcnt(2) lgkmcnt(0)"); A("s_cbranch_scc0 L_srcok"); A("s_waitcnt vmcnt(0)"); A("L_srcok:")
    stamp(A, 4)
    for i in range(5):
        if i == 4: A(f"s_mov_b64 exec, {m5}")
        A(f"v_min_u32 {RT[i]}, 120, {RT[i]}"); A(f"v_lshl_or_b32 {RC[i]}, {SR[i]}, 18, {RC[i]}"); A(f"v_mad_u32_u24 {RT[i]}, {B4[i]}, 36, {RT[i]}")
        A(f"ds_write_b32 {RT[i]}, {RC[i]} offset:{BST + 4}")
    A("s_mov_b64 exec, -1")
    A(f"""
    s_cmp_gt_u32 {sW}, 3
    s_cbranch_scc1 L_odone
    s_cbranch_scc0 L_o0
    L_o3:
    v_lshlrev_b32 {t0}, 1, {vL}
    global_load_ushort {WB[0]}, {t0}, {pWx}
    s_branch L_odone
    L_o1:
    s_mov_b32 {sT[2]}, {129*128 - 1024}
    buffer_load_dwordx4 {WB}, {vDs}, {SY}, {sT[2]} offen
    s_branch L_odone
    L_o0:
    s_cmp_eq_u32 {sW}, 3
    s_cbranch_scc1 L_o3
    s_cmp_lg_u32 {sW}, 0
    s_cbranch_scc1 L_o1
    v_lshlrev_b32 {t0}, 2, {vL}
    s_mov_b32 m0, {WE + 18432}
    s_mov_b32 {sT[2]}, 16384
    s_mov_b32 exec_hi, 0
    buffer_load_dword {t0}, {SY}, {sT[2]} offen lds
    s_mov_b64 exec, -1
    L_odone:
    """.replace("s_cbranch_scc0 L_o0", "s_branch L_o0"))
    if ty: old(tables)
    else: tables()
    stub("p2", page="L_back3")
    srd(A, SZ, pPos, N * 6)
    def poll():
        for q in range(4): A(f"buffer_load_dwordx2 {RP[2*q:2*q+2]}, {vRo}, {SX}, {sS2[q-1] if q else 0} offen {'sc0 sc1' if 'sys' in OPT else 'sc1'}")
    def posdma(k):
        if k < 7:
            A(f"s_add_u32 m0, {sW10}, {POS + 8192*k}"); A(f"s_mov_b32 {sT[0]}, {8192*k}"); A(f"buffer_load_dwordx4 {vD}, {SZ}, {sT[0]} offen lds")
        else:
            A(f"""
            s_cmp_gt_u32 {sW}, 2
            s_cbranch_scc1 L_ptail
            v_add_u32 {vSl}, {8192*7}, {vD}
            s_add_u32 m0, {sW10}, {POS + 8192*7}
            v_cmpx_gt_u32 vcc, 60032, {vSl}
            buffer_load_dwordx4 {vSl}, {SZ}, 0 offen lds
            s_mov_b64 exec, -1
            L_ptail:
            """)
    n0 = geto("pz", 2)
    old(lambda: A("s_waitcnt vmcnt(4)")) if "ackfirst" in OPT else None
    for u in range(n0): posdma(6 - u)
    stamp(A, 22)
    PR = [Y[0:4], Y[4:8]]; SC = [Y[8:12], Y[12:16]]; CN = Y[16:18]; XR = Y[20:24]; ST = Y[24:26]
    A(f"""
    s_mov_b32 {sM[0]}, 0x11111111
    s_mov_b32 {sM[1]}, 0x11111111
    s_mov_b32 {sM[2]}, 0x88888888
    s_mov_b32 {sM[3]}, 0x88888888
    s_and_b32 s3, {sNon}, 15
    s_lshl_b32 s3, s3, 4
    s_xor_b32 s3, s3, {sNon}
    v_mov_b32 {t0}, {sNon}
    v_mov_b32 {t1}, s3
    """)
    old(lambda: A(f"s_waitcnt vmcnt({4 + n0})"))
    A(f"""
    s_waitcnt lgkmcnt(0)
    s_barrier
    """)
    stamp(A, 5)
    for i in range(2): A(f"ds_read_b128 {PR[i]}, {aL} offset:{BST + 18432*i}")
    for i in range(2): A(f"ds_read_b128 {SC[i]}, {aL} offset:{BST + 18432*i + 64}"); A(f"ds_read_b32 {CN[i]}, {aC} offset:{BCN + 512*i}")
    A(f"s_mov_b32 {sT[2]}, {SEC}")
    def xor4(x, r):
        A(f"v_bitop3_b32 {x}, {r[0]}, {r[1]}, {r[2]} bitop3:0x96"); A(f"v_xor_b32 {x}, {x}, {r[3]}")
    A("s_waitcnt lgkmcnt(4)")
    for i in range(2): xor4(XR[i], PR[i])
    A("s_nop 0")
    for i in range(2): A(f"v_xor_b32_dpp {XR[i]}, {XR[i]}, {XR[i]} quad_perm:[1,0,3,2] {dpp}")
    A("s_nop 0")
    for i in range(2): A(f"v_xor_b32_dpp {XR[i]}, {XR[i]}, {XR[i]} quad_perm:[2,3,0,1] {dpp}")
    A(f"s_mov_b64 exec, {sM[0:2]}")
    for i in range(2): A(f"v_xor_b32 {PR[i][0]}, {XR[i]}, {t0}")
    A("s_mov_b64 exec, -1")
    for i in range(2): A(f"buffer_store_dwordx4 {PR[i]}, {aG[i]}, {SX}, 0 offen sc1")
    A("s_waitcnt lgkmcnt(0)")
    for i in range(2): A(f"v_cndmask_b32 {SC[i][3]}, {SC[i][3]}, 0, {sM[2:4]}")
    for i in range(2): xor4(XR[2+i], SC[i])
    for i in range(2):
        A(f"v_cmp_le_u32 {sM[4+2*i:6+2*i]}, 60, {CN[i]}"); A(f"v_cmp_lt_u32 {sM[8+2*i:10+2*i]}, {sT[1]}, {CN[i]}")
    for i in range(2): A(f"v_xor_b32_dpp {XR[2+i]}, {XR[2+i]}, {XR[2+i]} quad_perm:[1,0,3,2] {dpp}")
    for i in range(2): A(f"v_cndmask_b32 {aS[i]}, -2.0, {aG[i]}, {sM[4+2*i:6+2*i]}")
    for i in range(2): A(f"v_xor_b32_dpp {XR[2+i]}, {XR[2+i]}, {XR[2+i]} quad_perm:[2,3,0,1] {dpp}")
    for i in range(2): A(f"v_cndmask_b32 {ST[i]}, {t0}, {t1}, {sM[8+2*i:10+2*i]}")
    A(f"s_mov_b64 exec, {sM[2:4]}")
    for i in range(2): A(f"v_xor_b32 {SC[i][3]}, {XR[2+i]}, {ST[i]}")
    A("s_mov_b64 exec, -1")
    for i in range(2): A(f"buffer_store_dwordx4 {SC[i]}, {aS[i]}, {SX}, {sT[2]} offen sc1")
    stamp(A, 6)
    A(f"s_waitcnt vmcnt({4 + n0})")
    def scale(r):
        for i in range(4):
            A(f"v_lshlrev_b32 {t0}, 16, {r[i]}"); A(f"v_and_b32 {t1}, 0xffff0000, {r[i]}")
            A(f"v_mul_f32 {t0}, {NLOG2E:#x}, {t0}"); A(f"v_mul_f32 {t1}, {NLOG2E:#x}, {t1}"); A(f"v_cvt_pk_bf16_f32 {r[i]}, {t0}, {t1}")
    stub("b3", over=True)
    A("s_setprio 0")
    A("s_barrier")
    stamp(A, 7)
    WD = D
    def frag(dst, base, s, n):
        for half in range(2): A(f"ds_read_b64_tr_b16 {dst[2*half:2*half+2]}, {vT2 if n else vT1} offset:{base + (16*s + 4*half)*128}")
    def frags(dst, base, n):
        for s in range(4): frag(dst[16*n+4*s:16*n+4*s+4], base, s, n)
    NP = 7 - n0; npre = min(NP, geto("npre", 3)); hp = min(NP - npre, geto("npost", 2))
    JF = Y[0:16]; JD = Y[16:32]; PB = W2[0:8]
    B_ = Asm(); srd(B_, SE, pE, E, 32)
    stat = st3 + B_.o + st2 + lines(f"""
        s_and_b32 {sT[0]}, s2, 0xc0
        s_bfe_u32 s3, s2, 0x30003
        s_add_u32 {sT[0]}, {sT[0]}, s3
        s_lshl_b32 s3, {sW}, 3
        s_add_u32 {sT[0]}, {sT[0]}, s3
        s_mul_i32 {sT[0]}, {sT[0]}, 5000
        s_add_u32 {sT[0]}, {sT[0]}, 127
        s_lshr_b32 {sT[0]}, {sT[0]}, 7
        v_add_u32 {W2[15]}, {sT[0]}, {vL}
        """)
    c1 = 17
    r2 = stat[c1:]
    need = r2[0:9] + r2[24:30] + r2[32:36] + r2[42:]
    defer = r2[9:24] + r2[30:32] + [x.replace(str(sS2[4:6]), "vcc").replace("v_cndmask_b32", "v_cndmask_b32_e64") for x in r2[36:42]]
    defer += [f"s_mov_b32 vcc_lo, 0xaaaaaaaa", f"s_mov_b32 vcc_hi, 0xaaaaaaaa", f"v_mov_b32 {t0}, 0x3f80", f"v_cndmask_b32_e64 {t0}, {t0}, 1.0, vcc", f"s_mov_b32 {sNq[2]}, 3", f"s_mov_b32 {sNq[3]}, 0x30000"]
    for r in range(8):
        b = (r >> 2) * 4 + ((r >> 1) & 1) * 8 + (r & 1) * 2
        defer += [f"s_lshl_b64 vcc, {sNq[2:4]}, {b}", f"v_cndmask_b32_e64 {PB[r]}, 0, {t0}, vcc"]
    defer = [x.replace("vcc_lo", str(sT[2])).replace("vcc_hi", str(sT[3])).replace("vcc", str(sT[2:4])) for x in defer]
    BXO = W2[24:32]
    for n in range(2):
        a = H[8*n:8*n+8]
        defer += [f"v_lshlrev_b32 {a[5]}, 16, {a[5]}"] + [f"v_mul_f32 {a[i]}, {NLOG2E:#x}, {a[i]}" for i in range(6)] + [f"v_and_b32 {a[6]}, 0xffff0000, {a[5]}", f"v_sub_f32 {a[7]}, {a[5]}, {a[6]}"]
    bxc = []
    for hf, BB in enumerate((BX, BXO)):
        bxc += [f"s_mov_b32 exec_lo, {0 if hf else -1}", f"s_mov_b32 exec_hi, {-1 if hf else 0}"]
        for n in range(2):
            a = H[8*n:8*n+8]; B = BB[4*n:4*n+4]
            bxc += [f"v_cvt_pk_bf16_f32 {B[0]}, {a[0]}, {a[1]}", f"v_cvt_pk_bf16_f32 {B[1]}, {a[2]}, {a[3]}", f"v_cvt_pk_bf16_f32 {B[2]}, {a[4]}, 0", f"v_cvt_pk_bf16_f32 {B[3]}, {a[6]}, {a[7]}"]
    bxc += ["s_mov_b64 exec, -1"]
    nd = geto("nd", 23)
    pq = list(range(npre))
    def pos(n):
        for _ in range(n):
            if pq: posdma(pq.pop(0))
    for s in range(4):
        for half in range(2): A(f"ds_read_b64_tr_b16 {JF[4*s+2*half:4*s+2*half+2]}, {aFj} offset:{(16*s + 4*half)*128}")
    late = "pearly" not in OPT
    if not late: posdma(7); pos(1)
    A("\n".join(stat[:c1 - 5 * late]))
    for s in range(4):
        A(f"s_waitcnt lgkmcnt({6 - 2*s})")
        A(f"{mf} {JD}, {JF[4*s:4*s+4]}, {BH[4*s:4*s+4]}, {JD if s else 0}")
    if late: A("\n".join(stat[c1-5:c1]))
    else: pos(2)
    A(f"""
    s_lshl_b32 {sT[0]}, s2, 14
    v_lshl_add_u32 {vRo}, v0, 3, {sT[0]}
    s_movk_i32 {sS2[0]}, 4096
    s_movk_i32 {sS2[1]}, 8192
    s_movk_i32 {sS2[2]}, 12288
    s_mov_b32 exec_lo, 0xfffff
    s_mov_b32 exec_hi, 0xfffff
    """)
    for i in range(4): A(f"ds_write_b128 {aWj}, {JD[4*i:4*i+4]} offset:{32*i}")
    A("s_mov_b64 exec, -1")
    A(f"s_sub_u32 s3, {sW}, 1"); A("s_cmp_gt_u32 s3, 2"); A("s_cbranch_scc1 L_nowx"); A(f"s_cmp_eq_u32 s3, 2"); A("s_cbranch_scc1 L_wx")
    scale(WB)
    A(f"""
    ds_write_b128 {aWs}, {WB} offset:{8192 - 1024}
    s_branch L_nowx
    """)
    A(f"""
    L_wx:
    v_lshlrev_b32 {WB[0]}, 16, {WB[0]}
    v_lshlrev_b32 {t0}, 2, {vL}
    ds_write_b32 {t0}, {WB[0]} offset:{WX}
    L_nowx:
    """)
    A(zero16(ACC[0:16], ZERO)); A(zero16(ACC[16:32], ZERO)); A(zero16(W2[16:32], ZERO)); A(zero16(R("v", W4.b, 16), ZERO))
    for j in range(3):
        for n in range(2): A(f"ds_read_u16_d16_hi {HR[2*j+n]}, {aHR[j]} offset:{64*n}")
    posdma(7); pos(7)
    A("s_waitcnt lgkmcnt(0)"); A("s_barrier")
    stamp(A, 8)
    poll()
    for n in range(2):
        for k in range(5): A(f"ds_read_b32 {H[8*n+k]}, {aA} offset:{272*k + 128*n}")
        A(f"ds_read_u16 {H[8*n+5]}, {aWD} offset:{64*n}")
    for u in range(hp): posdma(npre + u)
    stub("poll", over=True)
    A("\n".join(need[:19]))
    A("s_waitcnt lgkmcnt(5)")
    frag(W4[0:4], 16384, 0, 0); frag(W4[4:8], 16384, 0, 1)
    for j in range(3):
        for n in range(2): A(f"ds_read_b32 {ZH[2*j+n]}, {aZ} offset:{40*272 + 544*j + 128*n}")
    A("\n".join(need[19:]))
    A("\n".join(defer[:nd])); defer = defer[nd:]
    stamp(A, 9)
    touch_local([0, 1], ["p3", "last"], "L_back2")
    XQ = Y[0]
    def xorall(r):
        A(f"v_bitop3_b32 {XQ}, {r[0]}, {r[1]}, {r[2]} bitop3:0x96"); A(f"v_bitop3_b32 {Y[1]}, {r[3]}, {r[4]}, {r[5]} bitop3:0x96")
        A(f"v_bitop3_b32 {XQ}, {XQ}, {r[6]}, {r[7]} bitop3:0x96"); A(f"v_xor_b32 {XQ}, {XQ}, {Y[1]}")
    PW = Y[8:20]; PA = TM[24:32]
    A(f"s_waitcnt vmcnt({hp}) lgkmcnt(0)")
    A("L_poll:")
    xorall([RP[i] for i in range(8)])
    pre = [x for i in range(3) for x in (f"v_cmp_ne_u32 {sM[2*i:2*i+2]}, 0, {RP[i]}", f"v_and_b32 {PA[i]}, 0x38, {RP[i]}")]
    for k, c in enumerate(("quad_perm:[1,0,3,2]", "quad_perm:[2,3,0,1]", "row_half_mirror")):
        A(pre[2*k]); A(pre[2*k+1]); A(f"v_xor_b32_dpp {XQ}, {XQ}, {XQ} {c} {dpp}")
    A(f"""
    v_cmp_ne_u32 vcc, {sK}, {XQ}
    s_add_u32 {sTo}, {sTo}, 1
    s_cbranch_vccz L_got
    """)
    poll()
    A(f"""
    s_cmp_le_u32 {sTo}, {TIMEOUT}
    s_waitcnt vmcnt(0)
    s_cbranch_scc1 L_poll
    s_mov_b32 {sOv}, 1
    L_got:
    """)
    stamp(A, 10)
    def notag(i, pat):
        A(f"s_and_b32 {sM[2*i]}, {sM[2*i]}, {pat}"); A(f"s_and_b32 {sM[2*i+1]}, {sM[2*i+1]}, {pat}")
    def atomics(idx, between=()):
        idx = list(idx); per = -(-len(between) // len(idx))
        for k, i in enumerate(idx):
            if i % 2 == 0: notag(i, "0xfefefefe")
            A(f"s_mov_b64 exec, {sM[2*i:2*i+2]}"); A(f"ds_add_rtn_u32 {PA[i]}, {PA[i]}, {v8}")
            if between: A("s_mov_b64 exec, -1"); A("\n".join(between[per*k:per*k+per]))
        if not between: A("s_mov_b64 exec, -1")
    def words(r, W, q):
        A(f"v_and_b32 {W[0]}, 0x3ffff, {r}"); A(f"v_lshrrev_b32 {W[1]}, 18, {r}"); A(f"v_add_u32 {W[0]}, {W[0]}, {vCB[q]}")
    def writes(idx, extra=0):
        for k, i in enumerate(idx):
            A(f"s_waitcnt lgkmcnt({len(idx)-1+extra})")
            A(f"s_mov_b64 exec, {sM[2*i:2*i+2]}"); A(f"ds_write_b64 {PA[i]}, {PW[2*k:2*k+2]}")
        A("s_mov_b64 exec, -1")
    def secloads(tag):
        for q in range(4):
            A(f"""
            s_mov_b64 exec, {sS2[2*q:2*q+2]}
            s_cbranch_execz L_{tag}{q}
            s_mov_b32 {sT[0]}, {SEC + 4096*q}
            buffer_load_dwordx2 {RS[q]}, {vRo}, {SX}, {sT[0]} offen sc1
            L_{tag}{q}:
            """)
        A("s_mov_b64 exec, -1")
    def read_idx(off=0):
        for i in range(4): A(f"ds_read_b32 {IX[2*i]}, {vAh} offset:{off + 64*i}")
        A(f"ds_read_b32 {IX[8]}, {vAe} offset:{off}")
    adv_idx = [f"v_add_u32 {vAh}, 512, {vAh}", f"v_add_u32 {vAe}, 512, {vAe}"]
    shift_e = f"v_lshrrev_b32 {IX[8]}, 6, {IX[8]}"
    E0 = Y[6:8]
    def dma_h(rng=range(4)):
        for i in rng:
            A(f"s_add_u32 m0, {sStg}, {1024*i}"); A("s_nop 0"); A(f"buffer_load_dwordx4 {IX[2*i:2*i+2]}, {SH}, 0 idxen offen sc1 lds")
    def dma_e():
        A(f"s_mov_b32 m0, {sEm}"); A("s_nop 0")
        A(f"buffer_load_dwordx4 {IX[8:10]}, {SE}, 0 idxen offen lds")
    read_first = read_idx
    def shift_first(): A(shift_e)
    atomics([0, 1])
    nb = geto("bpf", 16)
    def bpf():
        A(f"s_bfm_b64 exec, {nb}, 0"); A(f"buffer_load_dword {vJ}, {W2[15]}, {SH}, 0 idxen sc1"); A("s_mov_b64 exec, -1")
    if nb and "bfirst" in OPT: bpf()
    for k in range(2): words(RP[k], PW[2*k:2*k+2], 0)
    for i in range(3, 8): A(f"v_cmp_ne_u32 {sM[2*i:2*i+2]}, 0, {RP[i]}"); A(f"v_and_b32 {PA[i]}, 0x38, {RP[i]}")
    A(f"s_mov_b32 {sT[2]}, 0x01010101"); A(f"s_mov_b32 {sT[3]}, 0x01010101")
    for q in range(4):
        A(f"s_lshr_b64 {sS2[2*q:2*q+2]}, {sM[4*q+2:4*q+4]}, 7"); A(f"s_and_b64 {sS2[2*q:2*q+2]}, {sS2[2*q:2*q+2]}, {sT[2:4]}")
        for u in range(2): A(f"s_mulk_i32 {sS2[2*q+u]}, 255")
    writes([0, 1])
    if "prime" in OPT: A(f"s_waitcnt vmcnt({1 if nb and 'bfirst' in OPT else 0})")
    secloads("sl")
    for u in range(npre + hp, NP): posdma(u)
    if nb and "bfirst" not in OPT: bpf()
    stub("w0", over=True)
    A(f"s_cmp_ge_u32 {sW}, 4")
    A("s_waitcnt lgkmcnt(0)"); A("s_barrier")
    stamp(A, 16)
    def try_early(lab):
        shift_first()
        A(f"""
        v_max3_u32 {Y[4]}, {IX[0]}, {IX[2]}, {IX[4]}
        v_max_u32 {Y[4]}, {Y[4]}, {IX[6]}
        v_cmp_le_u32 vcc, {E}, {IX[8]}
        s_mov_b64 {sT[2:4]}, vcc
        v_cmp_le_u32 vcc, {N}, {Y[4]}
        s_or_b64 vcc, vcc, {sT[2:4]}
        s_cbranch_vccnz {lab}
        """)
        dma_e(); dma_h()
        A(f"s_mov_b32 {sEarly}, 1")
    A("s_cbranch_scc1 L_noread"); read_first(); A("L_noread:")
    atomics(range(2, 4))
    A(f"s_cmp_ge_u32 {sW}, 4"); A("s_cbranch_scc1 L_noearly"); A("s_waitcnt lgkmcnt(2)")
    try_early("L_noearly")
    A("L_noearly:")
    stamp(A, 17)
    stub("c", over=True)
    atomics(range(4, 8), defer)
    A("\n".join(bxc))
    for k in range(6): words(RP[2+k], PW[2*k:2*k+2], 1 + k // 2)
    RSf = [RS[q][i] for q in range(4) for i in range(2)]
    A(f"""
    s_cmp_eq_u32 {sEarly}, 0
    s_cbranch_scc1 L_w0
    s_waitcnt vmcnt(5)
    s_branch L_w1
    """)
    stub("p3", page="L_back2", dead=True)
    A(f"""
    L_w0:
    s_waitcnt vmcnt(0)
    L_w1:
    """)
    xorall(RSf)
    for k, c in enumerate(("quad_perm:[1,0,3,2]", "quad_perm:[2,3,0,1]", "row_half_mirror")):
        A("s_nop 1"); A(f"v_xor_b32_dpp {XQ}, {XQ}, {XQ} {c} {dpp}")
    A(f"""
    v_cmp_ne_u32 vcc, {sK}, {XQ}
    s_cbranch_vccnz L_sbad
    L_sgot:
    """)
    with cold():
        A(f"""
        L_sbad:
        v_xor_b32 {XQ}, {sK}, {XQ}
        v_and_b32 {XQ}, 0xffffff0f, {XQ}
        v_cmp_ne_u32 vcc, 0, {XQ}
        s_add_u32 {sTo}, {sTo}, 1
        s_cbranch_vccz L_stimeout
        s_cmp_gt_u32 {sTo}, {TIMEOUT}
        s_cbranch_scc1 L_stimeout
        """)
        secloads("rl")
        A(f"""
        s_branch L_w0
        L_stimeout:
        s_mov_b32 {sOv}, 1
        s_branch L_sgot
        """)
    writes(list(range(2, 8)))
    stamp(A, 18)
    def bp2(n):
        A(f"s_bfm_b64 exec, {n}, {nb}"); A(f"buffer_load_dword {vJ}, {W2[15]}, {SH}, 0 idxen sc1"); A("s_mov_b64 exec, -1")
    if geto("bp2", 0): bp2(geto("bp2", 0))
    if "ymid" in OPT:
        A(f"s_cmp_lt_u32 {sW}, 4"); A("s_cbranch_scc1 L_ym"); read_first(); A("s_waitcnt lgkmcnt(0)"); try_early("L_ym"); A("L_ym:")
    SWd = TM[0:16]; SA = Y[20:28]
    for i in range(8): A(f"v_cmp_ne_u32 {sM[2*i:2*i+2]}, 0, {RSf[i]}")
    for q in range(4):
        A(f"s_mov_b64 exec, {sM[4*q:4*q+2]}"); A(f"s_cbranch_execz L_sa{q}")
        notag(2*q+1, "0x7f7f7f7f")
        A(f"v_and_b32 {SA[2*q]}, 0x38, {RS[q][0]}"); A(f"v_and_b32 {SA[2*q+1]}, 0x38, {RS[q][1]}")
        A(f"ds_add_rtn_u32 {SA[2*q]}, {SA[2*q]}, {v8}")
        for i in range(2): words(RS[q][i], SWd[4*q+2*i:4*q+2*i+2], q)
        A(f"s_mov_b64 exec, {sM[4*q+2:4*q+4]}"); A(f"ds_add_rtn_u32 {SA[2*q+1]}, {SA[2*q+1]}, {v8}")
        A(f"L_sa{q}:")
    A("s_mov_b64 exec, -1")
    A("s_waitcnt lgkmcnt(5)")
    if "ymid" not in OPT: A(f"s_cmp_lt_u32 {sW}, 4"); A("s_cbranch_scc1 L_noread2"); read_first(); A("L_noread2:")
    for i in range(4): A(f"ds_write_b64 {aTz}, {ZERO} offset:{512*i}")
    stub("b5", over=True)
    A("s_waitcnt lgkmcnt(4)")
    for q in range(4):
        A(f"s_mov_b64 exec, {sM[4*q:4*q+2]}"); A(f"s_cbranch_execz L_sb{q}")
        A(f"ds_write_b64 {SA[2*q]}, {SWd[4*q:4*q+2]}")
        A(f"s_mov_b64 exec, {sM[4*q+2:4*q+4]}"); A(f"ds_write_b64 {SA[2*q+1]}, {SWd[4*q+2:4*q+4]}")
        A(f"L_sb{q}:")
    A(f"""
    s_mov_b64 exec, -1
    s_cmp_eq_u32 {sOv}, 0
    s_cbranch_scc1 L_noflag
    ds_write_b32 {ZERO[0]}, {v8} offset:{FLAG}
    L_noflag:
    """)
    stamp(A, 19)
    A(f"s_cmp_lt_u32 {sW}, 4"); A("s_cbranch_scc0 L_yng")
    if geto("bp3", 0): bp2(geto("bp3", 0))
    A("s_branch L_b6")
    A("L_yng:")
    if "ymid" not in OPT: try_early("L_b6")
    A(f"""
    L_b6:
    s_setprio 3
    s_waitcnt lgkmcnt(0)
    s_barrier
    ds_read_b32 {t0}, {aCn}
    """)
    A(f"""
    s_waitcnt lgkmcnt(0)
    v_cmp_gt_u32 vcc, {t0}, {vLim}
    v_readlane_b32 {sCnt}, {t0}, {sW}
    s_and_b32 {sSlow}, vcc_lo, 0x1ff
    s_sub_u32 {sCnt}, {sCnt}, {sLb}
    s_lshr_b32 {sCnt}, {sCnt}, 3
    s_cmp_eq_u32 {sSlow}, 0
    s_cselect_b32 {sCnt}, {sCnt}, 0
    s_cselect_b32 {sEarly}, {sEarly}, 0
    s_cselect_b32 {sScan}, {E}, 0
    """)
    vAz = W2[8]; aPs = W2[9]; aPd = W2[10]; E2 = W2[12:14]
    slot_ops = [f"v_mov_b32 {vAz}, {vAt}", f"v_lshl_add_u32 {vAt}, {vSl}, 3, {vTrow}", f"v_lshlrev_b32 {vAl}, 4, {vSl}"]
    def derive_a(e=EN): return [f"v_mad_u32_u24 {aPs}, {e[1]}, 6, {sNq[1]}", f"v_and_b32 {vSl}, 7, {e[0]}", f"v_mad_u32_u24 {aPd}, {vSl}, 6, {sPd}"]
    def pos_reads():
        for i in range(3): A(f"ds_read_u16_d16_hi {PS[i]}, {aPs} offset:{2*i}")
        for i in range(3): A(f"ds_read_u16_d16_hi {PD[i]}, {aPd} offset:{2*i}")
    lut_read = f"ds_read_b96 {X[0:3]}, {vAl} offset:{LUT}"
    derive_b = lines(f"""
        v_sub_f32 {DT[0]}, {PD[0]}, {PS[0]}
        v_sub_f32 {DT[1]}, {PD[1]}, {PS[1]}
        v_sub_f32 {DT[2]}, {PD[2]}, {PS[2]}
        v_cvt_pk_bf16_f32 {D[0]}, {DT[0]}, {DT[1]}
        v_cvt_pk_bf16_f32 {D[1]}, {DT[2]}, 1.0
        v_lshlrev_b32 {DT[0]}, 16, {D[0]}
        v_and_b32 {DT[1]}, 0xffff0000, {D[0]}
        v_lshlrev_b32 {DT[2]}, 16, {D[1]}
        v_mul_f32 {DT[0]}, {DT[0]}, {DT[0]}
        v_fmac_f32 {DT[0]}, {DT[1]}, {DT[1]}
        v_fmac_f32 {DT[0]}, {DT[2]}, {DT[2]}
        v_cvt_pk_bf16_f32 {X[3]}, {DT[0]}, {DT[0]}
        """)
    read_entry = f"ds_read_b64 {EN}, {vAn}"; sEnd = sNq[0]; adv_n = [f"v_add_u32 {vAn}, 512, {vAn}", f"v_min_u32 {vAn}, {sEnd}, {vAn}"]
    flip_v = f"v_add_u32 {ERD}, {sEx}, {ERD}"
    def flip_s(): A(f"s_add_u32 {sEm}, {sEm}, {sEx}"); A(f"s_sub_u32 {sEx}, 0, {sEx}")
    def read_he():
        for s in range(4): A(f"ds_read_b128 {H[4*s:4*s+4]}, {HRD[s]}")
        A(f"ds_read_b128 {EA}, {ERD}")
    def m1(n, odd=0):
        y = Y[16*n:16*n+16]
        ops = [(X, (BXO if odd else BX)[4*n:4*n+4]), (EA, W4[4*n:4*n+4])] + [(H[8*n+4*s:8*n+4*s+4], PB[4*s:4*s+4]) for s in range(2)]
        return [f"{mf} {y}, {a}, {b}, {y if i else 0}" for i, (a, b) in enumerate(ops)]
    ndef = geto("def", 0)
    A("L_round:")
    A(f"""
    s_add_u32 {sNt}, {sCnt}, 31
    s_lshr_b32 {sNt}, {sNt}, 5
    s_cbranch_scc0 L_round_end
    s_lshl_b32 {sT[0]}, {sNt}, 5
    s_sub_u32 {sT[0]}, {sT[0]}, {sCnt}
    s_lshr_b32 {sEx}, {sT[0]}, 3
    s_lshl_b32 {sT[1]}, {sCnt}, 3
    v_add_u32 {t0}, {sT[1]}, {LO[2]}
    s_bfm_b64 exec, {sT[0]}, 0
    ds_write_b64 {t0}, {INV}
    s_mov_b64 exec, -1
    s_cmp_eq_u32 {sEarly}, 0
    s_cbranch_scc1 L_first
    """)
    with cold():
        A("L_first:"); A(f"v_mov_b32 {vAh}, {LO[0]}"); A(f"v_mov_b32 {vAe}, {LO[1]}")
        read_first(); A("s_waitcnt lgkmcnt(0)"); shift_first(); dma_e(); dma_h()
        A("s_branch L_prime")
    A(f"""
    L_prime:
    s_mov_b32 {sNq[1]}, {POS}
    s_lshl_b32 {sEnd}, {sNt}, 8
    s_add_u32 {sEnd}, {sEnd}, {sLb}
    s_sub_u32 {sEnd}, {sEnd}, 8
    v_lshl_add_u32 {vAn}, {vL}, 3, {sLb}
    v_min_u32 {vAn}, {sEnd}, {vAn}
    ds_read_b64 {D}, {vAn}
    {adv_n[0]}
    {adv_n[1]}
    ds_read_b64 {EN}, {vAn}
    v_mov_b32 {vAh}, {LO[0]}
    v_mov_b32 {vAe}, {LO[1]}
    """)
    read_idx(256); A("\n".join(adv_n))
    A(f"s_mov_b32 {sTi}, 1"); A(f"s_mov_b32 {sEarly}, 0")
    A("s_waitcnt lgkmcnt(5)")
    A("\n".join(derive_a(D))); pos_reads()
    for r in (TM[0:16], TM[16:32], Y[16:32]): A(zero16(r, ZERO))
    A("\n".join(slot_ops[1:] + slot_ops[:1] + derive_a()))
    A("s_waitcnt lgkmcnt(0)")
    A("\n".join(derive_b))
    stamp(A, 13)
    one = lambda r: f"v_mfma_f32_16x16x4_4b_bf16 {r}, {HALF}, {HALF}, {r}"
    PKS = [PK, W2[16:24]]
    def finish(o, part):
        t = TM[16*o:16*o+16]; y = Y[16*o:16*o+16]; pk = PKS[o]
        if part == "mul": return [f"v_mul_f32 {t[i]}, {y[i]}, {t[i]}" for i in range(16)]
        if part == "cvt": return [f"v_cvt_pk_bf16_f32 {pk[i]}, {t[2*i]}, {t[2*i+1]}" for i in range(8)]
        if part == "m2": return [f"{mf} {ACC[16*o:16*o+16]}, {pk[4*u:4*u+4]}, {A2[4*u:4*u+4]}, {ACC[16*o:16*o+16]}" for u in range(2)]
    def mt(k):
        if "loop" in OPT: A(f"s_memtime {sM[2*k:2*k+2]}")
    if "loop" in OPT:
        for k in range(6): A(f"s_mov_b32 {sS2[k]}, 0")
        mt(0)
    A("s_branch L_tile")
    stub("tile")
    m2 = finish(0, "m2") + finish(1, "m2")
    A(f".p2align {geto('al', 3)}")
    A("L_tile:")
    for odd in range(2):
        mt(1)
        for i in range(4): A(f"ds_read_b64_tr_b16 {A2[2*i:2*i+2]}, {vTtr} offset:{512*i}")
        A(f"ds_write_b64 {vAt if odd else vAz}, {ZERO}")
        A(f"s_mov_b32 exec_{'lo' if odd else 'hi'}, 0"); A(f"ds_write_b64 {vAt}, {D}"); A("s_mov_b64 exec, -1")
        if odd: A(read_entry); stub("odd", over=True)
        else: A(lut_read); pos_reads()
        A(f"s_waitcnt vmcnt(0) lgkmcnt({7 if odd else 9})")
        mt(2)
        read_he(); A(shift_e)
        A(f"s_cmp_ge_u32 {sTi}, {sNt}")
        A("s_waitcnt lgkmcnt(0)")
        mt(3)
        a = m1(0, odd); b = m1(1, odd)
        A(a[0]); A(a[1])
        A(f"s_cbranch_scc1 L_last")
        if "xnoh" not in OPT: dma_h()
        if "xnoe" not in OPT: dma_e()
        mt(4)
        read_idx(512 + 256*odd)
        if "loop" in OPT:
            A("s_waitcnt lgkmcnt(0)")
            for k in range(4): A(f"s_sub_u32 s3, {sM[2*k+2]}, {sM[2*k]}"); A(f"s_add_u32 {sS2[k]}, {sS2[k]}, s3")
            A(f"s_mov_b32 {sM[0]}, {sM[8]}")
        A(f"s_add_u32 {sTi}, {sTi}, 1")
        prio(0); A("\n".join(finish(1, "mul"))); prio(1)
        cv = finish(0, "cvt") + finish(1, "cvt")
        if odd: fill = cv + derive_b[3:11] + slot_ops + derive_a()[:2] + adv_n; tail2 = [derive_b[11], derive_a()[2]]; endf = adv_idx
        else: fill = cv + derive_b[:1]; tail2 = derive_b[1:3]; endf = []
        A(a[2]); A("\n".join(fill[:6])); A(a[3]); A("\n".join(fill[6:12])); A(b[0]); A("\n".join(fill[12:]))
        for i in range(16):
            if i in (0, 3, 6): A(b[1 + i // 3])
            if i == 10: A(m2[0])
            A(f"v_exp_f32 {TM[i]}, {Y[i]}")
        A("\n".join(tail2)); A(one(TM[0:16]))
        for i in range(16):
            if i in (4, 8): A(m2[i // 4])
            A(f"v_exp_f32 {TM[16+i]}, {Y[16+i]}")
        for i in range(32):
            if i == 2: A(one(TM[16:32]))
            if i == 6: A(m2[3])
            if i == 8 and "nop2" not in OPT: prio(2)
            if "xnorcp" not in OPT: A(f"v_rcp_f32 {TM[i]}, {TM[i]}")
        A("\n".join(finish(0, "mul") + endf)); prio(3)
    A("s_branch L_tile")
    WXR = [H[0:4], H[4:8], H[8:12], H[12:16], EA, X, A2[0:4], A2[4:8]]
    WF = [W2[0:16], R("v", W4.b, 16)]
    assert BX.b == W4.b + 8
    def epi_reads():
        A(f"v_xor_b32 {DT[3]}, 64, {vWb}"); A(f"v_lshlrev_b32 {vAl}, 4, {vHalf}")
        for n2 in range(2):
            for st in range(4):
                for hf in range(2):
                    A(f"ds_read_b64_tr_b16 {WF[n2][4*st+2*hf:4*st+2*hf+2]}, {DT[3] if n2 else vWb} offset:{(16*st + 8*hf)*128}")
            A("s_waitcnt lgkmcnt(6)")
        for i in range(6): A(f"ds_read_b128 {WXR[i]}, {vAl} offset:{WX + 32*i}")
    epiaddr = lines(f"""
    v_lshrrev_b32 {DT[1]}, 2, {vL}
    v_and_b32 {DT[2]}, 3, {vL}
    v_add_u32 {DT[1]}, {sN0}, {DT[1]}
    v_mul_u32_u24 {DT[1]}, 6, {DT[1]}
    v_lshl_add_u32 {DT[1]}, {DT[2]}, 1, {DT[1]}
    v_add_u32 {DT[0]}, {POS}, {DT[1]}
    ds_read_u16_d16_hi {PS[0]}, {DT[0]}
    v_add_u32 {DT[0]}, {sN0}, {vHalf}
    v_lshlrev_b32 {DT[0]}, 7, {DT[0]}
    v_and_b32 {DT[2]}, 31, {vL}
    v_lshl_add_u32 {DT[0]}, {DT[2]}, 1, {DT[0]}
    v_add_u32 {DT[1]}, {N*128}, {DT[1]}
    """)
    stub("last", page="L_back2", dead=True)
    A("L_last:")
    prio(0); A("\n".join(finish(1, "mul"))); prio(1)
    cv = finish(0, "cvt") + finish(1, "cvt") + epiaddr
    A(f"s_bitcmp1_b32 {sTi}, 0")
    A(a[2]); A("\n".join(cv[:6])); A(a[3]); A("\n".join(cv[6:11]))
    A("s_cbranch_scc1 L_le"); A(m1(1, 1)[0]); A("s_branch L_lo"); A("L_le:"); A(m1(1, 0)[0]); A("L_lo:")
    A("\n".join(cv[11:16])); A(b[1]); A("\n".join(cv[16:22])); A(b[2]); A("\n".join(cv[22:])); A(b[3]); A(m2[0])
    def enter(tag):
        if "notrim" in OPT: return
        for g in (3, 2, 1): A(f"s_cmp_eq_u32 {sEx}, {g}"); A(f"s_cbranch_scc1 L_{tag}{3-g}")
    A(f"s_cmp_lt_u32 {sScan}, {E}"); A("s_cbranch_scc1 L_noer"); epi_reads(); A("L_noer:")
    A("s_nop 4")
    enter("x")
    for g in (3, 2, 1, 0):
        A(f"L_x{g}:")
        for n in range(2):
            for i in range(4):
                if g == 0 and i == 0: A(m2[1 + n])
                A(f"v_exp_f32 {TM[16*n+4*g+i]}, {Y[16*n+4*g+i]}")
    A(m2[3]); A(one(TM[0:16])); A(one(TM[16:32]))
    A("s_waitcnt lgkmcnt(8)")
    for i in range(4): A(f"ds_read_b64_tr_b16 {A2[2*i:2*i+2]}, {vTtr} offset:{512*i}")
    A(f"ds_write_b64 {vAt}, {ZERO}")
    prio(geto("lq", 1)); stub("l2", over=True); A("s_nop 2")
    enter("r")
    for g in (3, 2, 1, 0):
        A(f"L_r{g}:")
        idx = [16*n + 4*g + i for n in range(2) for i in range(4)]
        for i in idx: A(f"v_rcp_f32 {TM[i]}, {TM[i]}")
        for i in idx: A(f"v_mul_f32 {TM[i]}, {Y[i]}, {TM[i]}")
        for n in range(2):
            for i in range(2): A(finish(n, "cvt")[2*g+i])
        if g == 2: A("s_waitcnt lgkmcnt(0)"); A("s_nop 0"); A(m2[1]); A(m2[3])
    A(f"s_cmp_lt_u32 {sScan}, {E}"); A("s_waitcnt lgkmcnt(0)")
    A(m2[0]); A(m2[2])
    prio(geto("lp", 0))
    A("s_cbranch_scc1 L_more")
    kcold = len(A.o)
    A("L_round_end:")
    A(f"s_cmp_lt_u32 {sScan}, {E}"); A("s_cbranch_scc1 L_more")
    epi_reads(); A("\n".join(epiaddr)); A("s_branch L_epi")
    A("L_more:")
    A(f"s_cmp_lg_u32 {sScan}, 0"); A("s_cbranch_scc1 L_havetab")
    srd(A, SZ, pH, N, 128)
    FP = R("v", EA.b, 16)
    A(f"""
    v_lshlrev_b32 {t0}, 4, v0
    v_and_b32 {t1}, 16, {vL}
    v_lshlrev_b32 {t1}, 2, {t1}
    v_xor_b32 {t0}, {t0}, {t1}
    s_add_u32 m0, {sW10}, {STG}
    s_movk_i32 {sT[0]}, 8192
    s_lshl_b32 {sT[1]}, {sW}, 11
    s_add_u32 {sT[1]}, {sT[1]}, {WE}
    v_lshl_add_u32 {t2}, {vL}, 3, {sT[1]}
    s_waitcnt vmcnt(0)
    s_barrier
    ds_write_b64 {t2}, {ZERO}
    ds_write_b64 {t2}, {ZERO} offset:512
    ds_write_b64 {t2}, {ZERO} offset:1024
    ds_write_b64 {t2}, {ZERO} offset:1536
    buffer_load_dwordx4 {t0}, {SY}, {sT[0]} offen lds
    v_subrev_u32 {t0}, {WE - STG}, {vT1}
    v_xor_b32 {t1}, 64, {t0}
    v_and_b32 {EN[0]}, 31, {vL}
    v_lshl_add_u32 {EN[0]}, {sW}, 5, {EN[0]}
    v_lshlrev_b32 {EN[1]}, 4, {vHalf}
    v_lshlrev_b32 {D[1]}, 5, {vHalf}
    s_mov_b32 {sTi}, {sW}
    s_waitcnt vmcnt(0)
    s_barrier
    """)
    for n in range(2):
        for s_ in range(4):
            for half in range(2): A(f"ds_read_b64_tr_b16 {Y[16*n+4*s_+2*half:16*n+4*s_+2*half+2]}, {t1 if n else t0} offset:{(16*s_ + 4*half)*128}")
        A("s_waitcnt lgkmcnt(0)")
    A("L_tab:")
    for s_ in range(4): A(f"buffer_load_dwordx4 {H[4*s_:4*s_+4]}, {EN}, {SZ}, 0 idxen offen offset:{32*s_}")
    A(f"v_mov_b32 {D[0]}, {EN[0]}"); A(f"v_add_u32 {EN[0]}, 256, {EN[0]}")
    A("s_waitcnt vmcnt(0)")
    for n in range(2):
        for s_ in range(4): A(f"{mf} {TM[16*n:16*n+16]}, {Y[16*n+4*s_:16*n+4*s_+4]}, {H[4*s_:4*s_+4]}, {TM[16*n:16*n+16] if s_ else 0}")
    A("s_nop 11")
    for k in range(32): A(f"v_mul_f32 {TM[k]}, {NLOG2E:#x}, {TM[k]}")
    for k in range(16): A(f"v_cvt_pk_bf16_f32 {FP[k]}, {TM[2*k]}, {TM[2*k+1]}")
    for k in range(4): A(f"buffer_store_dwordx4 {FP[4*k:4*k+4]}, {D}, {SH}, 0 idxen offen offset:{64*(k//2) + 16*(k%2)} sc1")
    A(f"""
    s_add_u32 {sTi}, {sTi}, 8
    s_cmp_lt_u32 {sTi}, {(N + 31)//32}
    s_cbranch_scc1 L_tab
    s_waitcnt vmcnt(0)
    s_barrier
    L_havetab:
    """)
    A(f"s_mov_b32 {sCnt}, 0")
    A("L_scan:")
    Dd = H[0:4]; Ss = H[4:8]
    A(f"""
    s_lshl_b32 {sT[0]}, {sScan}, 2
    v_lshl_add_u32 {DT[0]}, {vL}, 4, {sT[0]}
    global_load_dwordx4 {Dd}, {DT[0]}, {pDst}
    global_load_dwordx4 {Ss}, {DT[0]}, {pSrc}
    v_lshlrev_b32 {DT[0]}, 4, {DT[0]}
    s_waitcnt vmcnt(0)
    """)
    for i in range(4):
        A(f"""
        v_subrev_u32 {DT[1]}, {sN0}, {Dd[i]}
        v_cmp_gt_u32 vcc, {sNn}, {DT[1]}
        v_add3_u32 {EN[0]}, {DT[0]}, {DT[1]}, 1
        v_mov_b32 {EN[1]}, {Ss[i]}
        v_mbcnt_lo_u32_b32 {DT[2]}, vcc_lo, 0
        v_mbcnt_hi_u32_b32 {DT[2]}, vcc_hi, {DT[2]}
        v_add_u32 {DT[2]}, {sCnt}, {DT[2]}
        v_lshl_add_u32 {DT[2]}, {DT[2]}, 3, {sLb}
        s_bcnt1_i32_b64 {sT[0]}, vcc
        s_add_u32 {sCnt}, {sCnt}, {sT[0]}
        s_mov_b64 exec, vcc
        ds_write_b64 {DT[2]}, {EN}
        s_mov_b64 exec, -1
        v_add_u32 {DT[0]}, 64, {DT[0]}
        """)
    A(f"""
    s_add_u32 {sScan}, {sScan}, 256
    s_cmp_ge_u32 {sScan}, {E}
    s_cbranch_scc1 L_round
    s_cmp_le_u32 {sCnt}, {CAP - 256}
    s_cbranch_scc1 L_scan
    s_branch L_round
    """)
    COLD.extend(A.o[kcold:]); del A.o[kcold:]
    A("L_epi:")
    stamp(A, 11)
    SO = SY
    srd(A, SO, pOut, N * 134)
    A(f"""
    s_cmp_eq_u32 {sSlow}, 0
    s_cselect_b32 {sT[0]}, s2, 0
    s_or_b32 {sT[0]}, {sT[0]}, {sW}
    s_cbranch_scc1 L_noepo
    v_mov_b32 {DT[2]}, {EPO}
    s_mov_b64 exec, 1
    global_atomic_add {DT[2]}, {v8}, {pWs}
    s_mov_b64 exec, -1
    s_branch L_noepo
    """)
    stub("epi")
    A(f"""
    L_noepo:
    s_waitcnt lgkmcnt(0)
    """)
    for i in (6, 7): A(f"ds_read_b128 {WXR[i]}, {vAl} offset:{WX + 32*i}")
    fm = [f"v_mul_f32 {DT[2]}, {ACC[0]}, {WXR[0][0]}"] + [f"v_fmac_f32 {DT[2]}, {ACC[i]}, {WXR[i//4][i%4]}" for i in range(1, 32)]
    for st in range(4):
        for i in range(8): A(f"v_mul_f32 {ACC[8*st+i]}, {NLN2:#x}, {ACC[8*st+i]}")
        for i in range(4): A(f"v_cvt_pk_bf16_f32 {Y[4*st+i]}, {ACC[8*st+2*i]}, {ACC[8*st+2*i+1]}")
        A(fm[2*st]); A(fm[2*st+1])
        for n2 in range(2): A(f"{mf} {TM[16*n2:16*n2+16]}, {Y[4*st:4*st+4]}, {WF[n2][4*st:4*st+4]}, {TM[16*n2:16*n2+16] if st else 0}")
    A("\n".join(fm[8:24])); A("s_waitcnt lgkmcnt(0)"); A("\n".join(fm[24:]))
    A(f"v_mov_b32 {DT[3]}, {DT[2]}")
    A(f"s_cmp_eq_u32 {sNn}, 5"); A(f"s_mov_b32 {sT[2]}, 0x7777"); A(f"s_cselect_b32 {sT[2]}, 0x77777, {sT[2]}"); A(f"s_mov_b32 {sT[3]}, 0")
    A(f"v_permlane32_swap_b32 {DT[2]}, {DT[3]}")
    TT = PK
    for n in range(2):
        for j in range(3):
            z = ZH[2*j+n]; t = TT[2*j+n]
            A(f"v_add_f32 {z}, {z}, {TM[16*n+4*j+3]}")
            A(f"v_mul_f32 {t}, {NLOG2E:#x}, {z}"); A(f"v_exp_f32 {t}, {t}")
    A(f"v_add_f32 {DT[2]}, {DT[2]}, {DT[3]}")
    for i in range(6): A(f"v_add_f32 {TT[i]}, 1.0, {TT[i]}"); A(f"v_rcp_f32 {TT[i]}, {TT[i]}")
    A(f"v_add_f32 {DT[2]}, {DT[2]}, {PS[0]}")
    for i in range(6):
        A(f"v_fmac_f32 {HR[i]}, {ZH[i]}, {TT[i]}"); A(f"v_cvt_pk_bf16_f32 {HR[i]}, {HR[i]}, {HR[i]}")
        if i < 4: A(f"buffer_store_short {HR[i]}, {DT[0]}, {SO}, 0 offen offset:{256*(i//2) + 64*(i%2)}")
    A(f"""
    v_cvt_pk_bf16_f32 {DT[2]}, {DT[2]}, {DT[2]}
    s_mov_b64 exec, {sT[2:4]}
    buffer_store_short {DT[2]}, {DT[1]}, {SO}, 0 offen
    s_cbranch_scc0 L_fin
    s_mov_b32 exec_lo, -1
    """)
    for n in range(2): A(f"buffer_store_short {HR[4+n]}, {DT[0]}, {SO}, 0 offen offset:{512 + 64*n}")
    A("L_fin:")
    if "stamp" in OPT:
        A("s_waitcnt vmcnt(0)"); A(f"v_writelane_b32 v255, {sTo}, 14"); A(f"v_writelane_b32 v255, {sNt}, 15")
        if "loop" in OPT:
            for k in range(6): A(f"v_writelane_b32 v255, {sS2[k]}, {23+k}")
    stamp(A, 12); stamp_out(A, pWs)
    A("L_done:"); A("s_endpgm")
    A.o.extend(COLD)
    fl = "" if "oplain" in OPT else "sc1"
    A.o = [l + " " + fl if l.startswith("buffer_store_short") else l for l in A.o]
    print("vgprs", nv, "sgprs", S.n, "lds", LDS_MAIN, "instrs", len(A.o), file=sys.stderr)
    return A.text()

if __name__ == "__main__":
    OPT.update(sys.argv[2:])
    if "xto" in OPT: TIMEOUT = 50
    KN = "standalone__cheap_equivariant_egnn__graph_kernel"
    s = assemble([(KN, k_main(), 256)], [(KN, NB, 512, LDS_MAIN)], single=True).replace("next_free_sgpr 96", "next_free_sgpr 102")
    open(sys.argv[1], "w").write(s)
```

```python
import sys, struct
from lib import *
N, E = 10000, 640000
NB, CH = 256, 2500
CAP = 416
NLOG2E = 0xbfb8aa3b
NLN2 = 0xbf317218
SEC = NB * NB * 64
EPO = 2 * SEC
BTO = 16 << 20
TIMEOUT = 20000
INV0 = 0xffffffc6
CNT, FLAG, LUT, WX = 0, 64, 128, 256
STG = 512
WE = STG + 8 * 5120
WH = WE + 18560
POS = WH + 16384
LIST = POS + 60032
LDS_MAIN = LIST + 8 * CAP * 8
BST = STG
BCN = BST + 256 * 144
TB = STG
HO = LIST + 512
HST = CAP * 8 + 16
BO = LIST + 1664
assert STG % 128 == 0 and WE % 128 == 0 and WH % 128 == 0 and LDS_MAIN <= 163840
OPT = set()
geto = lambda name, d: int([o for o in OPT if o.startswith(name)][0][len(name):]) if any(o.startswith(name) for o in OPT) else d
PEND = []
def stamp(A, i):
    if "marks" in OPT: A(f"M_{i}:")
    if "stamp" not in OPT: return
    k = len(PEND)
    if k >= 2: A(f"v_writelane_b32 v255, s{96+2*((k-2)%3)}, {PEND[k-2]}")
    A(f"s_memrealtime s[{96+2*(k%3)}:{97+2*(k%3)}]"); PEND.append(i)
def stamp_out(A, wsp):
    if "stamp" not in OPT: return
    A("s_waitcnt lgkmcnt(0)")
    k = len(PEND)
    for u in (k - 2, k - 1): A(f"v_writelane_b32 v255, s{96+2*(u%3)}, {PEND[u]}")
    A("s_mov_b64 exec, -1")
    A(f"v_lshrrev_b32 v1, 6, v0"); A(f"s_lshl_b32 s3, s2, 3"); A("v_add_u32 v1, s3, v1"); A("v_lshlrev_b32 v1, 7, v1"); A(f"v_add_u32 v1, {200<<20}, v1")
    A("v_and_b32 v2, 63, v0"); A("v_lshl_add_u32 v1, v2, 2, v1"); A("s_mov_b32 exec_hi, 0"); A(f"global_store_dword v1, v255, {wsp}")
def lines(s): return [l.strip() for l in s.strip().split("\n") if l.strip()]

def k_main():
    A = Asm(); COLD = []
    class cold:
        def __enter__(self): self.k = len(A.o)
        def __exit__(self, *a): COLD.extend(A.o[self.k:]); del A.o[self.k:]
    notouch = "notouch" in OPT
    def stub(name, over=False, page=None, dead=False):
        if notouch and not page: return
        if (over or page) and not dead: A(f"s_branch L_sk_{name}")
        if page: A(".p2align 12")
        if not notouch:
            A(f"L_st_{name}:"); A("s_branch L_back1")
            if page: A(f"L_lt_{name}:"); A(f"s_branch {page}")
        if (over or page) and not dead: A(f"L_sk_{name}:")
    def touch_local(w, name, back):
        if notouch: return
        for ww, nm in zip(w, name): A(f"s_cmp_eq_u32 {sW}, {ww}"); A(f"s_cbranch_scc1 L_lt_{nm}")
        A(f"{back}:")
    S = Regs("s", 26, 96); V = Regs("v", 1, 255)
    pH, pPos, pE, pSrc, pDst, pWe, pWx, pWh, pOut, pDbg, pWs = [R("s", 4 + 2 * i, 2) for i in range(11)]
    sW = S.alloc("wave"); sN0 = S.alloc("node0")
    SH = S.alloc("SH", 4, 4); SE = S.alloc("SE", 4, 4); SX = S.alloc("SX", 4, 4); SY = S.alloc("SY", 4, 4); SZ = S.alloc("SZ", 4, 4)
    sM = S.alloc("masks", 16, 2); sT = S.alloc("tmp", 4, 2); sS2 = S.alloc("secmask", 8, 2); sNq = S.alloc("nq", 4, 2)
    sStg = S.alloc("stg"); sLb = S.alloc("listbase"); sCnt = S.alloc("cnt"); sNt = S.alloc("nt"); sTi = S.alloc("ti")
    sSlow = S.alloc("slow"); sScan = S.alloc("scan"); sPd = S.alloc("pd"); sNn = S.alloc("nn")
    sNon = S.alloc("nonce"); sK = S.alloc("K"); sTo = S.alloc("to"); sEarly = S.alloc("early"); sW10 = S.alloc("w10"); sNb = S.alloc("nb0")
    sOv = S.alloc("ov"); sEm = pDbg[0]; sEx = pDbg[1]; sAg = pDbg[1]
    vL = V.alloc("lane"); vHalf = V.alloc("half"); vT1 = V.alloc("t1")
    W2 = V.alloc("W2", 32, 4); W4 = V.alloc("W4", 8, 4); BX = V.alloc("BX", 8, 4)
    ACC = V.alloc("ACC", 32, 4); Y = V.alloc("Y", 32, 4); TM = V.alloc("TM", 32, 4)
    H = V.alloc("H", 16, 4); EA = V.alloc("EA", 4, 4); X = V.alloc("X", 4, 4); A2 = V.alloc("A2", 8, 4); PK = V.alloc("PK", 8, 4)
    IX = V.alloc("IX", 10, 2); HRD = V.alloc("HRD", 4); ERD = V.alloc("ERD")
    vAh = V.alloc("Ah"); vAe = V.alloc("Ae"); vAn = V.alloc("An"); vTrow = V.alloc("Trow"); vTtr = V.alloc("Ttr")
    ZB = V.alloc("ZB", 16, 4); ZERO = ZB[0:2]; D = ZB[2:4]; PS = ZB[4:7]; PD = ZB[7:10]; HR = ZB[10:16]
    EN = V.alloc("EN", 2, 2); HALF = V.alloc("HALFC", 2, 2); INV = V.alloc("INV", 2, 2)
    vAt = V.alloc("At"); DT = V.alloc("DT", 4); vSl = V.alloc("Sl"); vAl = V.alloc("Al")
    ZH = V.alloc("ZH", 6); vWb = V.alloc("Wb"); LO = V.alloc("LO", 3)
    vJ = V.alloc("junk"); vCB = V.alloc("CB", 4); v8 = V.alloc("v8")
    nv = V.n
    mf = "v_mfma_f32_32x32x16_bf16"
    dpp = "row_mask:0xf bank_mask:0xf"
    prio = lambda p: A(f"s_setprio {p}") if "noprio" not in OPT else None
    zero16 = lambda r, z: f"v_mfma_f32_16x16x4_4b_bf16 {r}, {z}, {z}, 0"
    EXA = R("v", EA.b, 16)
    assert X.b == EA.b + 4 and A2.b == EA.b + 8
    DS = Y[0:5]; SR = Y[8:13]; RC = Y[16:21]; B4 = Y[21:26]; RT = Y[26:31]
    LE = H[0:5]; Z4 = H[8:12]; v4 = H[12]; c31 = H[13]
    aD4 = TM[0]; aD1 = TM[1]; aL = TM[2]; aC = TM[3]; aG = TM[4:6]; aS = TM[6:8]; vDs = TM[8]; vD = TM[9]; aWs = TM[10]
    aHj = TM[11]; aFj = TM[12]; aWj = TM[13]; aA = TM[14]; aZ = TM[15]; aHR = TM[16:19]; aWD = TM[19]; vT2 = TM[20]; aTz = TM[21]; aCn = TM[22]; vLim = TM[23]
    t0, t1, t2, t3 = DT[0], DT[1], DT[2], DT[3]
    RP = A2; RS = [EA[0:2], EA[2:4], X[0:2], X[2:4]]; vRo = vAt
    m5 = sM[10:12]
    if "stamp" in OPT: A("v_mov_b32 v255, 0")
    stamp(A, 0)
    A(f"""
    s_cmp_ge_u32 s2, {NB}
    s_cbranch_scc1 L_done
    s_load_dwordx16 s[4:19], s[0:1], 0
    s_load_dwordx4 s[20:23], s[0:1], 64
    s_load_dwordx2 s[24:25], s[0:1], 80
    v_lshrrev_b32 {vT1}, 6, v0
    v_and_b32 {vL}, 63, v0
    v_readfirstlane_b32 {sW}, {vT1}
    s_setprio 1
    """)
    if not notouch:
        names = ["sh", "b1", "y1", "y2", "p2", "b3", "poll", "w0", "c", "p3", "b5", "tile", "odd", "last", "l2", "epi"]
        nw = geto("tw", 1)
        A(f"s_cmp_lt_u32 {sW}, {8 - nw}"); A("s_cbranch_scc1 L_back1")
        A(f"s_lshr_b32 s3, s2, 3")
        if nw > 1: A(f"s_mul_i32 s3, s3, {nw}"); A(f"s_add_u32 s3, s3, {sW}")
        A(f"s_and_b32 s3, s3, 15")
        for k, nm in enumerate(names): A(f"s_cmp_eq_u32 s3, {k}"); A(f"s_cbranch_scc1 L_st_{nm}")
        A("L_back1:")
    A(f"""
    s_mul_i32 s3, s2, {CH*4}
    v_lshl_add_u32 {aD4}, v0, 4, s3
    s_add_u32 s3, s3, 8192
    v_lshl_add_u32 {aD1}, v0, 2, s3
    v_cmp_gt_u32 vcc, {CH - 2048}, v0
    v_lshrrev_b32 {vHalf}, 5, {vL}
    s_mul_i32 {sT[0]}, s2, 5000
    s_add_u32 {sNb}, {sT[0]}, 127
    s_lshr_b32 {sNb}, {sNb}, 7
    s_mov_b64 {m5}, vcc
    s_lshl_b32 {sW10}, {sW}, 10
    s_mov_b32 {sT[1]}, {EPO}
    v_mov_b32 {Z4[0]}, 0
    v_mov_b32 {Z4[1]}, 0
    v_mov_b32 {Z4[2]}, 0
    v_mov_b32 {Z4[3]}, 0
    v_lshlrev_b32 {vD}, 4, v0
    v_lshrrev_b32 {EN[0]}, 3, v0
    v_mul_u32_u24 {vCB[0]}, {CH*64}, {EN[0]}
    v_add_u32 {EN[0]}, {sNb}, {EN[0]}
    v_and_b32 {EN[1]}, 0x70, {vD}
    v_and_b32 {c31}, 31, {vL}
    s_mul_i32 {sLb}, {sW}, {CAP*8}
    s_add_u32 {sLb}, {sLb}, {LIST}
    v_and_b32 {t3}, 16, {vL}
    v_lshlrev_b32 {t2}, 2, {t3}
    v_xor_b32 {vDs}, {vD}, {t2}
    s_add_u32 m0, {sW10}, {WE + 8192}
    s_movk_i32 {sT[3]}, 8192
    s_mov_b32 {SY[2]}, {145*128}
    s_mov_b32 {SY[3]}, 0x20000
    s_mov_b32 {SH[2]}, {N}
    s_mov_b32 {SH[3]}, 0x20000
    s_mul_i32 {sT[2]}, {sW}, {HST}
    s_waitcnt lgkmcnt(0)
    s_mov_b64 {SY[0:2]}, {pWe}
    s_mov_b32 {SH[0]}, {pH[0]}
    s_cmp_gt_u32 {sW}, 6
    s_cbranch_scc1 L_w2done
    buffer_load_dwordx4 {vDs}, {SY}, {sT[3]} offen lds
    s_cmp_lt_u32 {sW}, 6
    s_cbranch_scc1 L_w2done
    buffer_load_dwordx4 {vDs}, {SY}, {sT[3]} offen offset:1024 lds
    L_w2done:
    s_add_u32 m0, {sT[2]}, {HO}
    s_and_b32 {SH[1]}, {pH[1]}, 0xffff
    s_or_b32 {SH[1]}, {SH[1]}, 0x800000
    s_load_dword {sNon}, {pWs}, {sT[1]}
    s_cmp_ge_u32 {sW}, 5
    s_cbranch_scc1 L_share
    buffer_load_dwordx4 {EN}, {SH}, 0 idxen offen lds
    s_branch L_share_done
    """)
    stub("sh")
    A(f"""
    L_share:
    s_lshr_b32 {sT[0]}, s2, 3
    """)
    srd(A, SY, pPos, N * 6)
    A(f"s_mov_b32 {sT[2]}, 15")
    for w, (ptr, size, cnt) in ((6, (pWe, 145 * 128, 5)), (7, (pWh, 16384, 4))):
        A(f"""
        s_cmp_eq_u32 {sW}, {w}
        s_cselect_b64 {SY[0:2]}, {ptr}, {SY[0:2]}
        s_cselect_b32 {SY[2]}, {size}, {SY[2]}
        s_cselect_b32 {sT[2]}, {cnt}, {sT[2]}
        """)
    A(f"""
    s_mul_i32 {sT[0]}, {sT[0]}, {sT[2]}
    v_add_lshl_u32 {t2}, {vL}, {sT[0]}, 7
    s_bfm_b64 exec, {sT[2]}, 0
    buffer_load_dword {vJ}, {t2}, {SY}, 0 offen
    s_mov_b64 exec, -1
    L_share_done:
    """)
    for i in range(5): A(f"ds_write_b128 {vD}, {Z4} offset:{BST + 8192*i}")
    def ld(R_, p_):
        A(f"""
        global_load_dwordx4 {R_[0:4]}, {aD4}, {p_}
        s_mov_b64 exec, {m5}
        global_load_dword {R_[4]}, {aD1}, {p_}
        s_mov_b64 exec, -1
        """)
    dpos = geto("dpos", 0); spos = geto("spos", 3)
    def slot(k):
        if dpos == k: ld(DS, pDst)
        if spos == k: ld(SR, pSrc)
    slot(0)
    A(zero16(ZB, Z4[0:2])); A(zero16(EXA, Z4[0:2]))
    A(f"""
    s_add_u32 {SH[0]}, {pWs[0]}, {BTO}
    s_addc_u32 {SH[1]}, {pWs[1]}, 0
    s_and_b32 {SH[1]}, {SH[1]}, 0xffff
    s_or_b32 {SH[1]}, {SH[1]}, 0x800000
    """)
    lo = sum(1 << ((k + 1) * 4 + (k >> 1)) for k in range(5) if k % 2 == 0)
    hi = sum(1 << ((k + 1) * 4 + (k >> 1)) for k in range(5) if k % 2 == 1)
    A(f"""
    v_mov_b32 {INV[0]}, {INV0:#x}
    v_mov_b32 {INV[1]}, {N}
    v_lshl_add_u32 {t0}, {vL}, 3, {sLb}
    ds_write_b64 {t0}, {INV}
    s_cmp_lg_u32 {sW}, 0
    s_cbranch_scc1 L_init_done
    v_lshrrev_b32 {t0}, 1, {vL}
    v_mul_u32_u24 {t0}, {CAP*8}, {t0}
    v_add_u32 {t0}, {LIST}, {t0}
    v_mov_b32 {t1}, 0x3f80
    s_mov_b64 {sT[2:4]}, 0xffff
    v_cndmask_b32 {t0}, 0, {t0}, {sT[2:4]}
    s_mov_b32 {sT[2]}, 0
    s_mov_b32 {sT[3]}, {lo:#x}
    v_cndmask_b32 {t0}, {t0}, {t1}, {sT[2:4]}
    s_mov_b32 {sT[3]}, {hi:#x}
    v_cndmask_b32 {t0}, {t0}, 1.0, {sT[2:4]}
    v_lshlrev_b32 {t1}, 2, {vL}
    ds_write_b32 {t1}, {t0}
    L_init_done:
    """)
    slot(1)
    A(f"""
    v_mov_b32 {v4}, 4
    v_lshlrev_b32 {LE[0]}, 8, v0
    v_add_u32 {LE[1]}, 64, {LE[0]}
    v_add_u32 {LE[2]}, 128, {LE[0]}
    v_add_u32 {LE[3]}, 192, {LE[0]}
    v_lshlrev_b32 {LE[4]}, 6, v0
    v_add_u32 {LE[4]}, {2048*64}, {LE[4]}
    v_and_b32 {t0}, 3, {vL}
    v_lshlrev_b32 {t0}, 3, {t0}
    v_lshl_add_u32 {vTtr}, {t3}, 1, {t0}
    v_and_b32 {t1}, 12, {vL}
    v_lshl_add_u32 {t0}, {t1}, 5, {vTtr}
    v_lshl_add_u32 {vTtr}, {t1}, 4, {vTtr}
    v_and_b32 {t1}, 8, {vL}
    v_lshl_add_u32 {vWb}, {t1}, 3, {t0}
    v_lshl_add_u32 {t0}, {vHalf}, 10, {vWb}
    v_add_u32 {vT1}, {WE}, {t0}
    """)
    slot(2)
    A(f"""
    s_bfe_u32 {sT[0]}, {sW}, 0x10001
    s_mul_i32 {sT[0]}, {sT[0]}, 20
    v_add_u32 {aWj}, {sT[0]}, {c31}
    v_lshrrev_b32 {t1}, 3, {aWj}
    v_mul_u32_u24 {t1}, {HST - 1024}, {t1}
    v_lshl_add_u32 {aHj}, {aWj}, 7, {t1}
    v_lshl_add_u32 {aHj}, {vHalf}, 4, {aHj}
    v_add_u32 {aHj}, {HO}, {aHj}
    s_and_b32 {sT[1]}, {sW}, 1
    s_lshr_b32 {sT[2]}, {sW}, 2
    s_lshl_b32 {sT[0]}, {sT[1]}, 6
    s_mul_i32 {sT[3]}, {sT[2]}, {WH - WE}
    v_xor_b32 {aFj}, {sT[0]}, {vT1}
    v_add_u32 {aFj}, {sT[3]}, {aFj}
    s_lshl_b32 {sT[0]}, s2, 3
    s_add_u32 {sT[0]}, {sT[0]}, {sW}
    s_mul_i32 {sT[0]}, {sT[0]}, 625
    s_add_u32 {sN0}, {sT[0]}, 127
    s_lshr_b32 {sN0}, {sN0}, 7
    s_add_u32 {sNn}, {sT[0]}, {625 + 127}
    s_lshr_b32 {sNn}, {sNn}, 7
    s_sub_u32 {sNn}, {sNn}, {sN0}
    s_movk_i32 {sT[1]}, 120
    s_movk_i32 {sT[3]}, 8192
    """)
    aBw = TM[24]; aBr = TM[25]; aBs = TM[26:28]
    u0, u1 = sS2[0], sS2[1]
    stB = lines(f"""
    s_add_u32 {u0}, {sLb}, {BO - LIST}
    v_mul_u32_u24 {aBw}, 80, {c31}
    v_lshl_add_u32 {aBw}, {vHalf}, 5, {aBw}
    v_add_u32 {aBw}, {u0}, {aBw}
    v_lshrrev_b32 {t0}, 2, {vL}
    v_and_b32 {t1}, 48, {vD}
    v_mul_u32_u24 {aBr}, 80, {t0}
    v_add3_u32 {aBr}, {aBr}, {t1}, {u0}
    s_bfe_u32 {u0}, {sW}, 0x10001
    s_mul_i32 {u0}, {u0}, 20
    s_add_u32 {u0}, {u0}, {sNb}
    v_add_u32 {aBs[0]}, {u0}, {t0}
    s_and_b32 {u0}, {sW}, 1
    s_lshl_b32 {u0}, {u0}, 6
    v_add_u32 {aBs[1]}, {u0}, {t1}
    """)
    stG = lines(f"""
    v_lshrrev_b32 {t1}, 3, v0
    v_and_b32 {t0}, 0x70, {vD}
    v_lshl_add_u32 {aG[0]}, {t1}, 15, {t0}
    s_lshl_b32 {u0}, s2, 7
    v_add_u32 {aG[0]}, {u0}, {aG[0]}
    v_add_u32 {aG[1]}, {64*32768}, {aG[0]}
    v_lshrrev_b32 {t1}, 1, {vL}
    v_and_b32 {t1}, 28, {t1}
    v_and_b32 {aC}, 4, {vL}
    v_lshl_add_u32 {aC}, {aC}, 3, {t1}
    v_lshl_add_u32 {aC}, {sW}, 6, {aC}
    v_and_b32 {t0}, 48, {vD}
    v_mad_u32_u24 {aL}, {aC}, 36, {t0}
    """)
    stL = lines(f"""
    v_add_u32 {aWs}, {WE + 8192}, {vD}
    s_lshl_b32 {u0}, {sW}, 11
    s_add_u32 {u0}, {u0}, {WE}
    s_sub_u32 {u1}, {u0}, 8
    v_lshl_add_u32 {vTtr}, {vHalf}, 8, {vTtr}
    v_add_u32 {vTtr}, {u0}, {vTtr}
    v_lshl_add_u32 {vTrow}, {c31}, 6, {u1}
    v_lshl_add_u32 {aTz}, {vL}, 3, {u0}
    v_lshl_add_u32 {vWb}, {vHalf}, 9, {vWb}
    v_add_u32 {vWb}, {WH + 8192}, {vWb}
    v_xor_b32 {vT2}, 64, {vT1}
    s_lshr_b32 {u0}, {sW}, 2
    s_mul_i32 {u0}, {u0}, {40*272}
    s_and_b32 {u1}, {sW}, 1
    s_lshl_b32 {u1}, {u1}, 7
    s_add_u32 {u0}, {u0}, {u1}
    s_add_u32 {u0}, {u0}, {TB}
    v_mul_u32_u24 {aWj}, 272, {aWj}
    v_lshl_add_u32 {aWj}, {vHalf}, 4, {aWj}
    v_add_u32 {aWj}, {u0}, {aWj}
    s_sub_u32 {u0}, {sN0}, {sNb}
    s_mul_i32 {u1}, {u0}, 272
    s_add_u32 {u1}, {u1}, {TB}
    v_lshl_add_u32 {aA}, {c31}, 2, {u1}
    v_mul_u32_u24 {aZ}, 272, {vHalf}
    v_add_u32 {aZ}, {aZ}, {aA}
    v_lshlrev_b32 {t2}, 1, {c31}
    v_add_u32 {aWD}, {WE + 18432}, {t2}
    v_add_u32 {t2}, {HO}, {t2}
    v_add_u32 {t0}, {u0}, {vHalf}
    s_movk_i32 {u0}, {HST - 1024}
    """)
    for j in range(3):
        stL += [f"v_lshrrev_b32 {t1}, 3, {t0}", f"v_lshl_add_u32 {aHR[j]}, {t0}, 7, {t2}", f"v_mad_u32_u24 {aHR[j]}, {t1}, {u0}, {aHR[j]}"]
        if j < 2: stL.append(f"v_add_u32 {t0}, 2, {t0}")
    slot(3)
    srd(A, SX, pWs, 2 * SEC); srd(A, SY, pWe, 145 * 128); srd(A, SZ, pWh, 16384)
    if "xto" in OPT: A("s_cmp_eq_u32 s2, 5"); A(f"s_cselect_b32 {SX[2]}, 0, {SX[2]}")
    A("\n".join(stG + stL))
    touch_local([1], ["p2"], "L_back3")
    stub("b1", over=True)
    stamp(A, 1)
    BH = W2[0:16]; BF = W2[16:32]; BD = ACC[0:16]; BP = ACC[16:24]; BR = ACC[24:32]
    lab = {"n": 0}
    def old(fn):
        lab["n"] += 1; A(f"s_cmp_ge_u32 {sW}, 4"); A(f"s_cbranch_scc1 L_old{lab['n']}"); fn(); A(f"L_old{lab['n']}:")
    ny = 4 if spos < 4 else 2
    if "f2" in OPT:
        A("s_waitcnt lgkmcnt(0)"); stamp(A, 23); A(f"s_waitcnt vmcnt({ny + 1})"); stamp(A, 24); A("s_waitcnt lgkmcnt(0)"); A(f"s_waitcnt vmcnt({ny})"); stamp(A, 25)
    A(f"s_cmp_ge_u32 {sW}, 5"); A(f"s_waitcnt vmcnt({ny + 1}) lgkmcnt(0)"); A("s_cbranch_scc1 L_b1"); A(f"s_waitcnt vmcnt({ny})"); A("L_b1:"); A("s_barrier")
    stamp(A, 29)
    slot(4)
    A(f"s_and_b32 {sNon}, {sNon}, -8")
    hashc = []
    for q in range(4):
        r = sNq[q]
        hashc.append(lines(f"""
        s_add_u32 {r}, {sNon}, {0x9e3779b8 + q:#x}
        s_mul_i32 {r}, {r}, 0x85ebca6b
        s_lshr_b32 s3, {r}, 15
        s_xor_b32 {r}, {r}, s3
        s_mul_i32 {r}, {r}, 0xc2b2ae35
        s_and_b32 {r}, {r}, -16
        s_or_b32 {r}, {r}, {1 << q}
        """))
    def b_reads():
        for s in range(4):
            A(f"ds_read_b128 {BH[4*s:4*s+4]}, {aHj} offset:{32*s}")
            for half in range(2): A(f"ds_read_b64_tr_b16 {BF[4*s+2*half:4*s+2*half+2]}, {aFj} offset:{8192 + (16*s + 4*half)*128}")
    st2 = lines(f"""
    s_mul_i32 {sStg}, {sW}, 5120
    s_add_u32 {sStg}, {sStg}, {STG}
    s_add_u32 {sEm}, {sStg}, 4096
    s_mul_i32 {sPd}, {sN0}, 6
    s_add_u32 {sPd}, {sPd}, {POS - 6}
    s_mov_b32 {sTo}, 0
    s_mov_b32 {sScan}, 0
    s_mov_b32 {sEarly}, 0
    s_mov_b32 {sOv}, 0
    v_and_b32 {t3}, 31, {vL}
    v_bfe_u32 {t0}, {vL}, 1, 3
    v_xor_b32 {t0}, {t0}, {vHalf}
    v_lshlrev_b32 {t0}, 4, {t0}
    v_lshl_add_u32 {t0}, {t3}, 7, {t0}
    v_add_u32 {HRD[0]}, {sStg}, {t0}
    v_xor_b32 {HRD[1]}, 32, {HRD[0]}
    v_xor_b32 {HRD[2]}, 64, {HRD[0]}
    v_xor_b32 {HRD[3]}, 0x60, {HRD[0]}
    v_bfe_u32 {t0}, {vL}, 3, 1
    v_xor_b32 {t0}, {t0}, {vHalf}
    v_lshlrev_b32 {t0}, 4, {t0}
    v_lshl_add_u32 {t0}, {t3}, 5, {t0}
    v_add_u32 {ERD}, {sEm}, {t0}
    v_lshl_add_u32 {LO[2]}, {t3}, 3, {sLb}
    v_and_b32 {t0}, 56, {vL}
    v_add3_u32 {LO[0]}, {t0}, {sLb}, 4
    v_lshrrev_b32 {t0}, 1, {vL}
    v_lshl_add_u32 {LO[1]}, {t0}, 3, {sLb}
    v_mov_b32 {vAh}, {LO[0]}
    v_mov_b32 {vAe}, {LO[1]}
    v_mov_b32 {HALF[0]}, 0x3f003f00
    v_mov_b32 {HALF[1]}, 0x3f003f00
    v_mov_b32 {v8}, 8
    v_add_u32 {vCB[1]}, {64*CH*64}, {vCB[0]}
    v_add_u32 {vCB[2]}, {128*CH*64}, {vCB[0]}
    v_add_u32 {vCB[3]}, {192*CH*64}, {vCB[0]}
    v_and_b32 {t0}, 15, {vL}
    v_lshlrev_b32 {aCn}, 3, {t0}
    v_mul_u32_u24 {vLim}, {CAP*8}, {t0}
    v_add_u32 {vLim}, {LIST + CAP*8}, {vLim}
    s_mov_b64 {sS2[4:6]}, 0xff
    v_cndmask_b32 {vLim}, 0, {vLim}, {sS2[4:6]}
    """)
    st2 += ["s_mov_b32 exec_lo, 0x80808080", "s_mov_b32 exec_hi, 0x80808080"] + [f"v_mov_b32 {RS[q][1]}, {sNq[q]}" for q in range(4)] + ["s_mov_b64 exec, -1"]
    st3 = lines(f"""
    v_and_b32 {t0}, 48, {vL}
    v_and_b32 {t1}, 0x70, {vD}
    v_xor_b32 {IX[1]}, {t0}, {t1}
    v_xor_b32 {IX[3]}, 64, {IX[1]}
    v_mov_b32 {IX[5]}, {IX[1]}
    v_mov_b32 {IX[7]}, {IX[3]}
    v_and_b32 {IX[9]}, 16, {IX[1]}
    """) + [f"v_mov_b32 {IX[2*i]}, -1" for i in range(5)]
    A(f"s_cmp_ge_u32 {sW}, 4"); A("s_cbranch_scc1 L_y1")
    b_reads()
    A("\n".join(stB))
    for s in range(4):
        A(f"s_waitcnt lgkmcnt({9 - 3*s})"); A(f"{mf} {BD}, {BF[4*s:4*s+4]}, {BH[4*s:4*s+4]}, {BD if s else 0}")
    A("\n".join(x for q in range(2) for x in hashc[q]))
    for k in range(16): A(f"v_mul_f32 {BD[k]}, {NLOG2E:#x}, {BD[k]}")
    for k in range(8): A(f"v_cvt_pk_bf16_f32 {BP[k]}, {BD[2*k]}, {BD[2*k+1]}")
    A("s_mov_b32 exec_lo, 0xfffff"); A("s_mov_b32 exec_hi, 0xfffff")
    for k in range(2): A(f"ds_write_b128 {aBw}, {BP[4*k:4*k+4]} offset:{16*k}")
    A("s_mov_b64 exec, -1")
    for k in range(2): A(f"ds_read_b128 {BR[4*k:4*k+4]}, {aBr} offset:{1280*k}")
    A("\n".join(x for q in range(2, 4) for x in hashc[q]))
    if "xto" in OPT: A("s_cmp_eq_u32 s2, 5"); A(f"s_cselect_b32 {SH[2]}, 0, {SH[2]}")
    A("s_waitcnt lgkmcnt(0)")
    A(f"buffer_store_dwordx4 {BR[0:4]}, {aBs}, {SH}, 0 idxen offen sc1")
    A(f"v_add_u32 {aBs[0]}, 16, {aBs[0]}"); A("s_mov_b64 exec, 0xffff")
    A(f"buffer_store_dwordx4 {BR[4:8]}, {aBs}, {SH}, 0 idxen offen sc1")
    A("s_mov_b64 exec, -1")
    A("s_waitcnt vmcnt(4)")
    A("s_branch L_y2")
    stub("y1")
    A("L_y1:")
    for s in range(4): A(f"ds_read_b128 {BH[4*s:4*s+4]}, {aHj} offset:{32*s}")
    WB = PK[4:8]
    def tables():
        A(f"""
        s_add_u32 m0, {sW10}, {WE}
        s_nop 0
        buffer_load_dwordx4 {vDs}, {SY}, 0 offen lds
        s_add_u32 m0, {sW10}, {WH}
        s_nop 0
        buffer_load_dwordx4 {vDs}, {SZ}, 0 offen lds
        s_add_u32 m0, {sW10}, {WH + 8192}
        s_nop 0
        buffer_load_dwordx4 {vDs}, {SZ}, {sT[3]} offen lds
        """)
    ty = "tlate" not in OPT
    A("\n".join(x for q in range(4) for x in hashc[q]))
    if ty: tables()
    stub("y2", over=True)
    A(f"s_waitcnt vmcnt({5 if ty else 2})")
    A("L_y2:")
    if "xto" in OPT: A(f"s_mov_b32 {SH[2]}, {N}")
    stamp(A, 2)
    for i in range(5):
        if i == 4: A(f"s_mov_b64 exec, {m5}")
        A(f"""
        v_mul_u32_u24 {RC[i]}, 429497, {DS[i]}
        v_lshrrev_b32 {B4[i]}, 22, {RC[i]}
        v_and_b32 {B4[i]}, -4, {B4[i]}
        ds_add_rtn_u32 {RT[i]}, {B4[i]}, {v4} offset:{BCN}
        """)
    A("s_mov_b64 exec, -1")
    for i in range(5):
        A(f"""
        v_lshrrev_b32 {RC[i]}, 21, {RC[i]}
        v_mul_u32_u24 {RC[i]}, 399, {RC[i]}
        v_lshrrev_b32 {RC[i]}, 7, {RC[i]}
        v_add3_u32 {RC[i]}, {RC[i]}, {DS[i]}, 1
        v_and_or_b32 {RC[i]}, {RC[i]}, 63, {LE[i]}
        """)
    A(f"""
    s_xor_b32 {sK}, {sNq[0]}, {sNq[1]}
    s_xor_b32 {sK}, {sK}, {sNq[2]}
    s_xor_b32 {sK}, {sK}, {sNq[3]}
    s_bitcmp1_b32 s2, 6
    s_cselect_b32 {sNon}, {sNq[1]}, {sNq[0]}
    s_cselect_b32 s3, {sNq[3]}, {sNq[2]}
    s_bitcmp1_b32 s2, 7
    s_cselect_b32 {sNon}, s3, {sNon}
    """)
    stamp(A, 3)
    if ty: A(f"s_cmp_ge_u32 {sW}, 4"); A("s_waitcnt vmcnt(3) lgkmcnt(0)"); A("s_cbranch_scc1 L_srcok"); A("s_waitcnt vmcnt(2)"); A("L_srcok:")
    else: A(f"s_cmp_ge_u32 {sW}, 4"); A("s_waitcnt vmcnt(2) lgkmcnt(0)"); A("s_cbranch_scc0 L_srcok"); A("s_waitcnt vmcnt(0)"); A("L_srcok:")
    stamp(A, 4)
    for i in range(5):
        if i == 4: A(f"s_mov_b64 exec, {m5}")
        A(f"v_min_u32 {RT[i]}, 120, {RT[i]}"); A(f"v_lshl_or_b32 {RC[i]}, {SR[i]}, 18, {RC[i]}"); A(f"v_mad_u32_u24 {RT[i]}, {B4[i]}, 36, {RT[i]}")
        A(f"ds_write_b32 {RT[i]}, {RC[i]} offset:{BST + 4}")
    A("s_mov_b64 exec, -1")
    A(f"""
    s_cmp_gt_u32 {sW}, 3
    s_cbranch_scc1 L_odone
    s_cbranch_scc0 L_o0
    L_o3:
    v_lshlrev_b32 {t0}, 1, {vL}
    global_load_ushort {WB[0]}, {t0}, {pWx}
    s_branch L_odone
    L_o1:
    s_mov_b32 {sT[2]}, {129*128 - 1024}
    buffer_load_dwordx4 {WB}, {vDs}, {SY}, {sT[2]} offen
    s_branch L_odone
    L_o0:
    s_cmp_eq_u32 {sW}, 3
    s_cbranch_scc1 L_o3
    s_cmp_lg_u32 {sW}, 0
    s_cbranch_scc1 L_o1
    v_lshlrev_b32 {t0}, 2, {vL}
    s_mov_b32 m0, {WE + 18432}
    s_mov_b32 {sT[2]}, 16384
    s_mov_b32 exec_hi, 0
    buffer_load_dword {t0}, {SY}, {sT[2]} offen lds
    s_mov_b64 exec, -1
    L_odone:
    """.replace("s_cbranch_scc0 L_o0", "s_branch L_o0"))
    if ty: old(tables)
    else: tables()
    stub("p2", page="L_back3")
    srd(A, SZ, pPos, N * 6)
    def poll():
        for q in range(4): A(f"buffer_load_dwordx2 {RP[2*q:2*q+2]}, {vRo}, {SX}, {sS2[q-1] if q else 0} offen {'sc0 sc1' if 'sys' in OPT else 'sc1'}")
    def posdma(k):
        if k < 7:
            A(f"s_add_u32 m0, {sW10}, {POS + 8192*k}"); A(f"s_mov_b32 {sT[0]}, {8192*k}"); A(f"buffer_load_dwordx4 {vD}, {SZ}, {sT[0]} offen lds")
        else:
            A(f"""
            s_cmp_gt_u32 {sW}, 2
            s_cbranch_scc1 L_ptail
            v_add_u32 {vSl}, {8192*7}, {vD}
            s_add_u32 m0, {sW10}, {POS + 8192*7}
            v_cmpx_gt_u32 vcc, 60032, {vSl}
            buffer_load_dwordx4 {vSl}, {SZ}, 0 offen lds
            s_mov_b64 exec, -1
            L_ptail:
            """)
    n0 = geto("pz", 3)
    old(lambda: A("s_waitcnt vmcnt(4)")) if "ackfirst" in OPT else None
    for u in range(n0): posdma(6 - u)
    stamp(A, 22)
    PR = [Y[0:4], Y[4:8]]; SC = [Y[8:12], Y[12:16]]; CN = Y[16:18]; XR = Y[20:24]; ST = Y[24:26]
    A(f"""
    s_mov_b32 {sM[0]}, 0x11111111
    s_mov_b32 {sM[1]}, 0x11111111
    s_mov_b32 {sM[2]}, 0x88888888
    s_mov_b32 {sM[3]}, 0x88888888
    s_and_b32 s3, {sNon}, 15
    s_lshl_b32 s3, s3, 4
    s_xor_b32 s3, s3, {sNon}
    v_mov_b32 {t0}, {sNon}
    v_mov_b32 {t1}, s3
    """)
    old(lambda: A(f"s_waitcnt vmcnt({4 + n0})"))
    A(f"""
    s_waitcnt lgkmcnt(0)
    s_barrier
    """)
    stamp(A, 5)
    for i in range(2): A(f"ds_read_b128 {PR[i]}, {aL} offset:{BST + 18432*i}")
    for i in range(2): A(f"ds_read_b128 {SC[i]}, {aL} offset:{BST + 18432*i + 64}"); A(f"ds_read_b32 {CN[i]}, {aC} offset:{BCN + 512*i}")
    A(f"s_mov_b32 {sT[2]}, {SEC}")
    def xor4(x, r):
        A(f"v_bitop3_b32 {x}, {r[0]}, {r[1]}, {r[2]} bitop3:0x96"); A(f"v_xor_b32 {x}, {x}, {r[3]}")
    A("s_waitcnt lgkmcnt(4)")
    for i in range(2): xor4(XR[i], PR[i])
    A("s_nop 0")
    for i in range(2): A(f"v_xor_b32_dpp {XR[i]}, {XR[i]}, {XR[i]} quad_perm:[1,0,3,2] {dpp}")
    A("s_nop 0")
    for i in range(2): A(f"v_xor_b32_dpp {XR[i]}, {XR[i]}, {XR[i]} quad_perm:[2,3,0,1] {dpp}")
    A(f"s_mov_b64 exec, {sM[0:2]}")
    for i in range(2): A(f"v_xor_b32 {PR[i][0]}, {XR[i]}, {t0}")
    A("s_mov_b64 exec, -1")
    for i in range(2): A(f"buffer_store_dwordx4 {PR[i]}, {aG[i]}, {SX}, 0 offen sc1")
    A("s_waitcnt lgkmcnt(0)")
    for i in range(2): A(f"v_cndmask_b32 {SC[i][3]}, {SC[i][3]}, 0, {sM[2:4]}")
    for i in range(2): xor4(XR[2+i], SC[i])
    for i in range(2):
        A(f"v_cmp_le_u32 {sM[4+2*i:6+2*i]}, 60, {CN[i]}"); A(f"v_cmp_lt_u32 {sM[8+2*i:10+2*i]}, {sT[1]}, {CN[i]}")
    for i in range(2): A(f"v_xor_b32_dpp {XR[2+i]}, {XR[2+i]}, {XR[2+i]} quad_perm:[1,0,3,2] {dpp}")
    for i in range(2): A(f"v_cndmask_b32 {aS[i]}, -2.0, {aG[i]}, {sM[4+2*i:6+2*i]}")
    for i in range(2): A(f"v_xor_b32_dpp {XR[2+i]}, {XR[2+i]}, {XR[2+i]} quad_perm:[2,3,0,1] {dpp}")
    for i in range(2): A(f"v_cndmask_b32 {ST[i]}, {t0}, {t1}, {sM[8+2*i:10+2*i]}")
    A(f"s_mov_b64 exec, {sM[2:4]}")
    for i in range(2): A(f"v_xor_b32 {SC[i][3]}, {XR[2+i]}, {ST[i]}")
    A("s_mov_b64 exec, -1")
    for i in range(2): A(f"buffer_store_dwordx4 {SC[i]}, {aS[i]}, {SX}, {sT[2]} offen sc1")
    stamp(A, 6)
    A(f"s_waitcnt vmcnt({4 + n0})")
    def scale(r):
        for i in range(4):
            A(f"v_lshlrev_b32 {t0}, 16, {r[i]}"); A(f"v_and_b32 {t1}, 0xffff0000, {r[i]}")
            A(f"v_mul_f32 {t0}, {NLOG2E:#x}, {t0}"); A(f"v_mul_f32 {t1}, {NLOG2E:#x}, {t1}"); A(f"v_cvt_pk_bf16_f32 {r[i]}, {t0}, {t1}")
    stub("b3", over=True)
    A("s_setprio 0")
    A("s_barrier")
    stamp(A, 7)
    WD = D
    def frag(dst, base, s, n):
        for half in range(2): A(f"ds_read_b64_tr_b16 {dst[2*half:2*half+2]}, {vT2 if n else vT1} offset:{base + (16*s + 4*half)*128}")
    def frags(dst, base, n):
        for s in range(4): frag(dst[16*n+4*s:16*n+4*s+4], base, s, n)
    NP = 7 - n0; npre = min(NP, geto("npre", 3)); hp = min(NP - npre, geto("npost", 1))
    JF = Y[0:16]; JD = Y[16:32]; PB = W2[0:8]
    B_ = Asm(); srd(B_, SE, pE, E, 32)
    stat = st3 + B_.o + st2 + lines(f"""
        s_and_b32 {sT[0]}, s2, 0xc0
        s_bfe_u32 s3, s2, 0x30003
        s_add_u32 {sT[0]}, {sT[0]}, s3
        s_lshl_b32 s3, {sW}, 3
        s_add_u32 {sT[0]}, {sT[0]}, s3
        s_mul_i32 {sT[0]}, {sT[0]}, 5000
        s_add_u32 {sT[0]}, {sT[0]}, 127
        s_lshr_b32 {sT[0]}, {sT[0]}, 7
        v_add_u32 {W2[15]}, {sT[0]}, {vL}
        """)
    c1 = 17
    r2 = stat[c1:]
    need = r2[0:9] + r2[24:30] + r2[32:36] + r2[42:]
    defer = r2[9:24] + r2[30:32] + [x.replace(str(sS2[4:6]), "vcc").replace("v_cndmask_b32", "v_cndmask_b32_e64") for x in r2[36:42]]
    defer += [f"s_mov_b32 vcc_lo, 0xaaaaaaaa", f"s_mov_b32 vcc_hi, 0xaaaaaaaa", f"v_mov_b32 {t0}, 0x3f80", f"v_cndmask_b32_e64 {t0}, {t0}, 1.0, vcc", f"s_mov_b32 {sNq[2]}, 3", f"s_mov_b32 {sNq[3]}, 0x30000"]
    for r in range(8):
        b = (r >> 2) * 4 + ((r >> 1) & 1) * 8 + (r & 1) * 2
        defer += [f"s_lshl_b64 vcc, {sNq[2:4]}, {b}", f"v_cndmask_b32_e64 {PB[r]}, 0, {t0}, vcc"]
    defer = [x.replace("vcc_lo", str(sT[2])).replace("vcc_hi", str(sT[3])).replace("vcc", str(sT[2:4])) for x in defer]
    BXO = W2[24:32]
    for n in range(2):
        a = H[8*n:8*n+8]
        defer += [f"v_lshlrev_b32 {a[5]}, 16, {a[5]}"] + [f"v_mul_f32 {a[i]}, {NLOG2E:#x}, {a[i]}" for i in range(6)] + [f"v_and_b32 {a[6]}, 0xffff0000, {a[5]}", f"v_sub_f32 {a[7]}, {a[5]}, {a[6]}"]
    bxc = []
    for hf, BB in enumerate((BX, BXO)):
        bxc += [f"s_mov_b32 exec_lo, {0 if hf else -1}", f"s_mov_b32 exec_hi, {-1 if hf else 0}"]
        for n in range(2):
            a = H[8*n:8*n+8]; B = BB[4*n:4*n+4]
            bxc += [f"v_cvt_pk_bf16_f32 {B[0]}, {a[0]}, {a[1]}", f"v_cvt_pk_bf16_f32 {B[1]}, {a[2]}, {a[3]}", f"v_cvt_pk_bf16_f32 {B[2]}, {a[4]}, 0", f"v_cvt_pk_bf16_f32 {B[3]}, {a[6]}, {a[7]}"]
    bxc += ["s_mov_b64 exec, -1"]
    nd = geto("nd", 23)
    pq = list(range(npre))
    def pos(n):
        for _ in range(n):
            if pq: posdma(pq.pop(0))
    for s in range(4):
        for half in range(2): A(f"ds_read_b64_tr_b16 {JF[4*s+2*half:4*s+2*half+2]}, {aFj} offset:{(16*s + 4*half)*128}")
    late = "pearly" not in OPT
    if not late: posdma(7); pos(1)
    A("\n".join(stat[:c1 - 5 * late]))
    for s in range(4):
        A(f"s_waitcnt lgkmcnt({6 - 2*s})")
        A(f"{mf} {JD}, {JF[4*s:4*s+4]}, {BH[4*s:4*s+4]}, {JD if s else 0}")
    if late: A("\n".join(stat[c1-5:c1]))
    else: pos(2)
    A(f"""
    s_lshr_b32 {sT[0]}, s2, 4
    s_lshl_b32 {sT[0]}, {sT[0]}, 3
    s_and_b32 s3, s2, 7
    s_add_u32 {sT[0]}, {sT[0]}, s3
    s_lshl_b32 {sT[0]}, {sT[0]}, 15
    s_and_b32 s3, s2, 8
    s_lshl_b32 s3, s3, 3
    s_add_u32 {sT[0]}, {sT[0]}, s3
    v_and_b32 {t0}, 7, v0
    v_and_b32 {vRo}, 0xffffff80, {vD}
    v_lshl_add_u32 {vRo}, {t0}, 3, {vRo}
    v_add_u32 {vRo}, {sT[0]}, {vRo}
    s_movk_i32 {sS2[0]}, 8192
    s_movk_i32 {sS2[1]}, 16384
    s_movk_i32 {sS2[2]}, 24576
    s_mov_b32 exec_lo, 0xfffff
    s_mov_b32 exec_hi, 0xfffff
    """)
    for i in range(4): A(f"ds_write_b128 {aWj}, {JD[4*i:4*i+4]} offset:{32*i}")
    A("s_mov_b64 exec, -1")
    A(f"s_sub_u32 s3, {sW}, 1"); A("s_cmp_gt_u32 s3, 2"); A("s_cbranch_scc1 L_nowx"); A(f"s_cmp_eq_u32 s3, 2"); A("s_cbranch_scc1 L_wx")
    scale(WB)
    A(f"""
    ds_write_b128 {aWs}, {WB} offset:{8192 - 1024}
    s_branch L_nowx
    """)
    A(f"""
    L_wx:
    v_lshlrev_b32 {WB[0]}, 16, {WB[0]}
    v_lshlrev_b32 {t0}, 2, {vL}
    ds_write_b32 {t0}, {WB[0]} offset:{WX}
    L_nowx:
    """)
    A(zero16(ACC[0:16], ZERO)); A(zero16(ACC[16:32], ZERO)); A(zero16(W2[16:32], ZERO)); A(zero16(R("v", W4.b, 16), ZERO))
    for j in range(3):
        for n in range(2): A(f"ds_read_u16_d16_hi {HR[2*j+n]}, {aHR[j]} offset:{64*n}")
    posdma(7); pos(7)
    A("s_waitcnt lgkmcnt(0)"); A("s_barrier")
    stamp(A, 8)
    poll()
    for n in range(2):
        for k in range(5): A(f"ds_read_b32 {H[8*n+k]}, {aA} offset:{272*k + 128*n}")
        A(f"ds_read_u16 {H[8*n+5]}, {aWD} offset:{64*n}")
    for u in range(hp): posdma(npre + u)
    stub("poll", over=True)
    A("\n".join(need[:19]))
    A("s_waitcnt lgkmcnt(5)")
    frag(W4[0:4], 16384, 0, 0); frag(W4[4:8], 16384, 0, 1)
    for j in range(3):
        for n in range(2): A(f"ds_read_b32 {ZH[2*j+n]}, {aZ} offset:{40*272 + 544*j + 128*n}")
    A("\n".join(need[19:]))
    A("\n".join(defer[:nd])); defer = defer[nd:]
    stamp(A, 9)
    touch_local([0, 1], ["p3", "last"], "L_back2")
    XQ = Y[0]
    def xorall(r):
        A(f"v_bitop3_b32 {XQ}, {r[0]}, {r[1]}, {r[2]} bitop3:0x96"); A(f"v_bitop3_b32 {Y[1]}, {r[3]}, {r[4]}, {r[5]} bitop3:0x96")
        A(f"v_bitop3_b32 {XQ}, {XQ}, {r[6]}, {r[7]} bitop3:0x96"); A(f"v_xor_b32 {XQ}, {XQ}, {Y[1]}")
    PW = Y[8:20]; PA = TM[24:32]
    A(f"s_waitcnt vmcnt({hp}) lgkmcnt(0)")
    A("L_poll:")
    xorall([RP[i] for i in range(8)])
    pre = [x for i in range(3) for x in (f"v_cmp_ne_u32 {sM[2*i:2*i+2]}, 0, {RP[i]}", f"v_and_b32 {PA[i]}, 0x38, {RP[i]}")]
    for k, c in enumerate(("quad_perm:[1,0,3,2]", "quad_perm:[2,3,0,1]", "row_half_mirror")):
        A(pre[2*k]); A(pre[2*k+1]); A(f"v_xor_b32_dpp {XQ}, {XQ}, {XQ} {c} {dpp}")
    A(f"""
    v_cmp_ne_u32 vcc, {sK}, {XQ}
    s_add_u32 {sTo}, {sTo}, 1
    s_cbranch_vccz L_got
    """)
    poll()
    A(f"""
    s_cmp_le_u32 {sTo}, {TIMEOUT}
    s_waitcnt vmcnt(0)
    s_cbranch_scc1 L_poll
    s_mov_b32 {sOv}, 1
    L_got:
    """)
    stamp(A, 10)
    def notag(i, pat):
        A(f"s_and_b32 {sM[2*i]}, {sM[2*i]}, {pat}"); A(f"s_and_b32 {sM[2*i+1]}, {sM[2*i+1]}, {pat}")
    def atomics(idx, between=()):
        idx = list(idx); per = -(-len(between) // len(idx))
        for k, i in enumerate(idx):
            if i % 2 == 0: notag(i, "0xfefefefe")
            A(f"s_mov_b64 exec, {sM[2*i:2*i+2]}"); A(f"ds_add_rtn_u32 {PA[i]}, {PA[i]}, {v8}")
            if between: A("s_mov_b64 exec, -1"); A("\n".join(between[per*k:per*k+per]))
        if not between: A("s_mov_b64 exec, -1")
    def words(r, W, q):
        A(f"v_and_b32 {W[0]}, 0x3ffff, {r}"); A(f"v_lshrrev_b32 {W[1]}, 18, {r}"); A(f"v_add_u32 {W[0]}, {W[0]}, {vCB[q]}")
    def writes(idx, extra=0):
        for k, i in enumerate(idx):
            A(f"s_waitcnt lgkmcnt({len(idx)-1+extra})")
            A(f"s_mov_b64 exec, {sM[2*i:2*i+2]}"); A(f"ds_write_b64 {PA[i]}, {PW[2*k:2*k+2]}")
        A("s_mov_b64 exec, -1")
    def secloads(tag):
        for q in range(4):
            A(f"""
            s_mov_b64 exec, {sS2[2*q:2*q+2]}
            s_cbranch_execz L_{tag}{q}
            s_mov_b32 {sT[0]}, {SEC + 8192*q}
            buffer_load_dwordx2 {RS[q]}, {vRo}, {SX}, {sT[0]} offen sc1
            L_{tag}{q}:
            """)
        A("s_mov_b64 exec, -1")
    def read_idx(off=0):
        for i in range(4): A(f"ds_read_b32 {IX[2*i]}, {vAh} offset:{off + 64*i}")
        A(f"ds_read_b32 {IX[8]}, {vAe} offset:{off}")
    adv_idx = [f"v_add_u32 {vAh}, 512, {vAh}", f"v_add_u32 {vAe}, 512, {vAe}"]
    shift_e = f"v_lshrrev_b32 {IX[8]}, 6, {IX[8]}"
    E0 = Y[6:8]
    def dma_h(rng=range(4)):
        for i in rng:
            A(f"s_add_u32 m0, {sStg}, {1024*i}"); A("s_nop 0"); A(f"buffer_load_dwordx4 {IX[2*i:2*i+2]}, {SH}, 0 idxen offen sc1 lds")
    def dma_e():
        A(f"s_mov_b32 m0, {sEm}"); A("s_nop 0")
        A(f"buffer_load_dwordx4 {IX[8:10]}, {SE}, 0 idxen offen lds")
    read_first = read_idx
    def shift_first(): A(shift_e)
    atomics([0, 1])
    nb = geto("bpf", 16)
    def bpf():
        A(f"s_bfm_b64 exec, {nb}, 0"); A(f"buffer_load_dword {vJ}, {W2[15]}, {SH}, 0 idxen sc1"); A("s_mov_b64 exec, -1")
    if nb and "bfirst" in OPT: bpf()
    for k in range(2): words(RP[k], PW[2*k:2*k+2], 0)
    for i in range(3, 8): A(f"v_cmp_ne_u32 {sM[2*i:2*i+2]}, 0, {RP[i]}"); A(f"v_and_b32 {PA[i]}, 0x38, {RP[i]}")
    A(f"s_mov_b32 {sT[2]}, 0x01010101"); A(f"s_mov_b32 {sT[3]}, 0x01010101")
    for q in range(4):
        A(f"s_lshr_b64 {sS2[2*q:2*q+2]}, {sM[4*q+2:4*q+4]}, 7"); A(f"s_and_b64 {sS2[2*q:2*q+2]}, {sS2[2*q:2*q+2]}, {sT[2:4]}")
        for u in range(2): A(f"s_mulk_i32 {sS2[2*q+u]}, 255")
    writes([0, 1])
    if "prime" in OPT: A(f"s_waitcnt vmcnt({1 if nb and 'bfirst' in OPT else 0})")
    secloads("sl")
    for u in range(npre + hp, NP): posdma(u)
    if nb and "bfirst" not in OPT: bpf()
    stub("w0", over=True)
    A(f"s_cmp_ge_u32 {sW}, 4")
    A("s_waitcnt lgkmcnt(0)"); A("s_barrier")
    stamp(A, 16)
    def try_early(lab):
        shift_first()
        A(f"""
        v_max3_u32 {Y[4]}, {IX[0]}, {IX[2]}, {IX[4]}
        v_max_u32 {Y[4]}, {Y[4]}, {IX[6]}
        v_cmp_le_u32 vcc, {E}, {IX[8]}
        s_mov_b64 {sT[2:4]}, vcc
        v_cmp_le_u32 vcc, {N}, {Y[4]}
        s_or_b64 vcc, vcc, {sT[2:4]}
        s_cbranch_vccnz {lab}
        """)
        dma_e(); dma_h()
        A(f"s_mov_b32 {sEarly}, 1")
    A("s_cbranch_scc1 L_noread"); read_first(); A("L_noread:")
    atomics(range(2, 4))
    A(f"s_cmp_ge_u32 {sW}, 4"); A("s_cbranch_scc1 L_noearly"); A("s_waitcnt lgkmcnt(2)")
    try_early("L_noearly")
    A("L_noearly:")
    stamp(A, 17)
    stub("c", over=True)
    atomics(range(4, 8), defer)
    A("\n".join(bxc))
    for k in range(6): words(RP[2+k], PW[2*k:2*k+2], 1 + k // 2)
    RSf = [RS[q][i] for q in range(4) for i in range(2)]
    A(f"""
    s_cmp_eq_u32 {sEarly}, 0
    s_cbranch_scc1 L_w0
    s_waitcnt vmcnt(5)
    s_branch L_w1
    """)
    stub("p3", page="L_back2", dead=True)
    A(f"""
    L_w0:
    s_waitcnt vmcnt(0)
    L_w1:
    """)
    xorall(RSf)
    for k, c in enumerate(("quad_perm:[1,0,3,2]", "quad_perm:[2,3,0,1]", "row_half_mirror")):
        A("s_nop 1"); A(f"v_xor_b32_dpp {XQ}, {XQ}, {XQ} {c} {dpp}")
    A(f"""
    v_cmp_ne_u32 vcc, {sK}, {XQ}
    s_cbranch_vccnz L_sbad
    L_sgot:
    """)
    with cold():
        A(f"""
        L_sbad:
        v_xor_b32 {XQ}, {sK}, {XQ}
        v_and_b32 {XQ}, 0xffffff0f, {XQ}
        v_cmp_ne_u32 vcc, 0, {XQ}
        s_add_u32 {sTo}, {sTo}, 1
        s_cbranch_vccz L_stimeout
        s_cmp_gt_u32 {sTo}, {TIMEOUT}
        s_cbranch_scc1 L_stimeout
        """)
        secloads("rl")
        A(f"""
        s_branch L_w0
        L_stimeout:
        s_mov_b32 {sOv}, 1
        s_branch L_sgot
        """)
    writes(list(range(2, 8)))
    stamp(A, 18)
    def bp2(n):
        A(f"s_bfm_b64 exec, {n}, {nb}"); A(f"buffer_load_dword {vJ}, {W2[15]}, {SH}, 0 idxen sc1"); A("s_mov_b64 exec, -1")
    if geto("bp2", 0): bp2(geto("bp2", 0))
    if "ymid" in OPT:
        A(f"s_cmp_lt_u32 {sW}, 4"); A("s_cbranch_scc1 L_ym"); read_first(); A("s_waitcnt lgkmcnt(0)"); try_early("L_ym"); A("L_ym:")
    SWd = TM[0:16]; SA = Y[20:28]
    for i in range(8): A(f"v_cmp_ne_u32 {sM[2*i:2*i+2]}, 0, {RSf[i]}")
    for q in range(4):
        A(f"s_mov_b64 exec, {sM[4*q:4*q+2]}"); A(f"s_cbranch_execz L_sa{q}")
        notag(2*q+1, "0x7f7f7f7f")
        A(f"v_and_b32 {SA[2*q]}, 0x38, {RS[q][0]}"); A(f"v_and_b32 {SA[2*q+1]}, 0x38, {RS[q][1]}")
        A(f"ds_add_rtn_u32 {SA[2*q]}, {SA[2*q]}, {v8}")
        for i in range(2): words(RS[q][i], SWd[4*q+2*i:4*q+2*i+2], q)
        A(f"s_mov_b64 exec, {sM[4*q+2:4*q+4]}"); A(f"ds_add_rtn_u32 {SA[2*q+1]}, {SA[2*q+1]}, {v8}")
        A(f"L_sa{q}:")
    A("s_mov_b64 exec, -1")
    A("s_waitcnt lgkmcnt(5)")
    if "ymid" not in OPT: A(f"s_cmp_lt_u32 {sW}, 4"); A("s_cbranch_scc1 L_noread2"); read_first(); A("L_noread2:")
    for i in range(4): A(f"ds_write_b64 {aTz}, {ZERO} offset:{512*i}")
    stub("b5", over=True)
    A("s_waitcnt lgkmcnt(4)")
    for q in range(4):
        A(f"s_mov_b64 exec, {sM[4*q:4*q+2]}"); A(f"s_cbranch_execz L_sb{q}")
        A(f"ds_write_b64 {SA[2*q]}, {SWd[4*q:4*q+2]}")
        A(f"s_mov_b64 exec, {sM[4*q+2:4*q+4]}"); A(f"ds_write_b64 {SA[2*q+1]}, {SWd[4*q+2:4*q+4]}")
        A(f"L_sb{q}:")
    A(f"""
    s_mov_b64 exec, -1
    s_cmp_eq_u32 {sOv}, 0
    s_cbranch_scc1 L_noflag
    ds_write_b32 {ZERO[0]}, {v8} offset:{FLAG}
    L_noflag:
    """)
    stamp(A, 19)
    A(f"s_cmp_lt_u32 {sW}, 4"); A("s_cbranch_scc0 L_yng")
    if geto("bp3", 0): bp2(geto("bp3", 0))
    A("s_branch L_b6")
    A("L_yng:")
    if "ymid" not in OPT: try_early("L_b6")
    A(f"""
    L_b6:
    s_setprio 3
    s_waitcnt lgkmcnt(0)
    s_barrier
    ds_read_b32 {t0}, {aCn}
    """)
    A(f"""
    s_waitcnt lgkmcnt(0)
    v_cmp_gt_u32 vcc, {t0}, {vLim}
    v_readlane_b32 {sCnt}, {t0}, {sW}
    s_and_b32 {sSlow}, vcc_lo, 0x1ff
    s_sub_u32 {sCnt}, {sCnt}, {sLb}
    s_lshr_b32 {sCnt}, {sCnt}, 3
    s_cmp_eq_u32 {sSlow}, 0
    s_cselect_b32 {sCnt}, {sCnt}, 0
    s_cselect_b32 {sEarly}, {sEarly}, 0
    s_cselect_b32 {sScan}, {E}, 0
    """)
    vAz = W2[8]; aPs = W2[9]; aPd = W2[10]; E2 = W2[12:14]
    slot_ops = [f"v_mov_b32 {vAz}, {vAt}", f"v_lshl_add_u32 {vAt}, {vSl}, 3, {vTrow}", f"v_lshlrev_b32 {vAl}, 4, {vSl}"]
    def derive_a(e=EN): return [f"v_mad_u32_u24 {aPs}, {e[1]}, 6, {sNq[1]}", f"v_and_b32 {vSl}, 7, {e[0]}", f"v_mad_u32_u24 {aPd}, {vSl}, 6, {sPd}"]
    def pos_reads():
        for i in range(3): A(f"ds_read_u16_d16_hi {PS[i]}, {aPs} offset:{2*i}")
        for i in range(3): A(f"ds_read_u16_d16_hi {PD[i]}, {aPd} offset:{2*i}")
    lut_read = f"ds_read_b96 {X[0:3]}, {vAl} offset:{LUT}"
    derive_b = lines(f"""
        v_sub_f32 {DT[0]}, {PD[0]}, {PS[0]}
        v_sub_f32 {DT[1]}, {PD[1]}, {PS[1]}
        v_sub_f32 {DT[2]}, {PD[2]}, {PS[2]}
        v_cvt_pk_bf16_f32 {D[0]}, {DT[0]}, {DT[1]}
        v_cvt_pk_bf16_f32 {D[1]}, {DT[2]}, 1.0
        v_lshlrev_b32 {DT[0]}, 16, {D[0]}
        v_and_b32 {DT[1]}, 0xffff0000, {D[0]}
        v_lshlrev_b32 {DT[2]}, 16, {D[1]}
        v_mul_f32 {DT[0]}, {DT[0]}, {DT[0]}
        v_fmac_f32 {DT[0]}, {DT[1]}, {DT[1]}
        v_fmac_f32 {DT[0]}, {DT[2]}, {DT[2]}
        v_cvt_pk_bf16_f32 {X[3]}, {DT[0]}, {DT[0]}
        """)
    read_entry = f"ds_read_b64 {EN}, {vAn}"; sEnd = sNq[0]; adv_n = [f"v_add_u32 {vAn}, 512, {vAn}", f"v_min_u32 {vAn}, {sEnd}, {vAn}"]
    flip_v = f"v_add_u32 {ERD}, {sEx}, {ERD}"
    def flip_s(): A(f"s_add_u32 {sEm}, {sEm}, {sEx}"); A(f"s_sub_u32 {sEx}, 0, {sEx}")
    def read_he():
        for s in range(4): A(f"ds_read_b128 {H[4*s:4*s+4]}, {HRD[s]}")
        A(f"ds_read_b128 {EA}, {ERD}")
    def m1(n, odd=0):
        y = Y[16*n:16*n+16]
        ops = [(X, (BXO if odd else BX)[4*n:4*n+4]), (EA, W4[4*n:4*n+4])] + [(H[8*n+4*s:8*n+4*s+4], PB[4*s:4*s+4]) for s in range(2)]
        return [f"{mf} {y}, {a}, {b}, {y if i else 0}" for i, (a, b) in enumerate(ops)]
    ndef = geto("def", 0)
    A("L_round:")
    A(f"""
    s_add_u32 {sNt}, {sCnt}, 31
    s_lshr_b32 {sNt}, {sNt}, 5
    s_cbranch_scc0 L_round_end
    s_lshl_b32 {sT[0]}, {sNt}, 5
    s_sub_u32 {sT[0]}, {sT[0]}, {sCnt}
    s_lshr_b32 {sEx}, {sT[0]}, 3
    s_lshl_b32 {sT[1]}, {sCnt}, 3
    v_add_u32 {t0}, {sT[1]}, {LO[2]}
    s_bfm_b64 exec, {sT[0]}, 0
    ds_write_b64 {t0}, {INV}
    s_mov_b64 exec, -1
    s_cmp_eq_u32 {sEarly}, 0
    s_cbranch_scc1 L_first
    """)
    with cold():
        A("L_first:"); A(f"v_mov_b32 {vAh}, {LO[0]}"); A(f"v_mov_b32 {vAe}, {LO[1]}")
        read_first(); A("s_waitcnt lgkmcnt(0)"); shift_first(); dma_e(); dma_h()
        A("s_branch L_prime")
    A(f"""
    L_prime:
    s_mov_b32 {sNq[1]}, {POS}
    s_lshl_b32 {sEnd}, {sNt}, 8
    s_add_u32 {sEnd}, {sEnd}, {sLb}
    s_sub_u32 {sEnd}, {sEnd}, 8
    v_lshl_add_u32 {vAn}, {vL}, 3, {sLb}
    v_min_u32 {vAn}, {sEnd}, {vAn}
    ds_read_b64 {D}, {vAn}
    {adv_n[0]}
    {adv_n[1]}
    ds_read_b64 {EN}, {vAn}
    v_mov_b32 {vAh}, {LO[0]}
    v_mov_b32 {vAe}, {LO[1]}
    """)
    read_idx(256); A("\n".join(adv_n))
    A(f"s_mov_b32 {sTi}, 1"); A(f"s_mov_b32 {sEarly}, 0")
    A("s_waitcnt lgkmcnt(5)")
    A("\n".join(derive_a(D))); pos_reads()
    for r in (TM[0:16], TM[16:32], Y[16:32]): A(zero16(r, ZERO))
    A("\n".join(slot_ops[1:] + slot_ops[:1] + derive_a()))
    A("s_waitcnt lgkmcnt(0)")
    A("\n".join(derive_b))
    stamp(A, 13)
    one = lambda r: f"v_mfma_f32_16x16x4_4b_bf16 {r}, {HALF}, {HALF}, {r}"
    PKS = [PK, W2[16:24]]
    def finish(o, part):
        t = TM[16*o:16*o+16]; y = Y[16*o:16*o+16]; pk = PKS[o]
        if part == "mul": return [f"v_mul_f32 {t[i]}, {y[i]}, {t[i]}" for i in range(16)]
        if part == "cvt": return [f"v_cvt_pk_bf16_f32 {pk[i]}, {t[2*i]}, {t[2*i+1]}" for i in range(8)]
        if part == "m2": return [f"{mf} {ACC[16*o:16*o+16]}, {pk[4*u:4*u+4]}, {A2[4*u:4*u+4]}, {ACC[16*o:16*o+16]}" for u in range(2)]
    def mt(k):
        if "loop" in OPT: A(f"s_memtime {sM[2*k:2*k+2]}")
    if "loop" in OPT:
        for k in range(6): A(f"s_mov_b32 {sS2[k]}, 0")
        mt(0)
    A("s_branch L_tile")
    stub("tile")
    m2 = finish(0, "m2") + finish(1, "m2")
    A(f".p2align {geto('al', 3)}")
    A("L_tile:")
    for odd in range(2):
        mt(1)
        for i in range(4): A(f"ds_read_b64_tr_b16 {A2[2*i:2*i+2]}, {vTtr} offset:{512*i}")
        A(f"ds_write_b64 {vAt if odd else vAz}, {ZERO}")
        A(f"s_mov_b32 exec_{'lo' if odd else 'hi'}, 0"); A(f"ds_write_b64 {vAt}, {D}"); A("s_mov_b64 exec, -1")
        if odd: A(read_entry); stub("odd", over=True)
        else: A(lut_read); pos_reads()
        A(f"s_waitcnt vmcnt(0) lgkmcnt({7 if odd else 9})")
        mt(2)
        read_he(); A(shift_e)
        A(f"s_cmp_ge_u32 {sTi}, {sNt}")
        A("s_waitcnt lgkmcnt(0)")
        mt(3)
        a = m1(0, odd); b = m1(1, odd)
        A(a[0]); A(a[1])
        A(f"s_cbranch_scc1 L_last")
        if "xnoh" not in OPT: dma_h()
        if "xnoe" not in OPT: dma_e()
        mt(4)
        read_idx(512 + 256*odd)
        if "loop" in OPT:
            A("s_waitcnt lgkmcnt(0)")
            for k in range(4): A(f"s_sub_u32 s3, {sM[2*k+2]}, {sM[2*k]}"); A(f"s_add_u32 {sS2[k]}, {sS2[k]}, s3")
            A(f"s_mov_b32 {sM[0]}, {sM[8]}")
        A(f"s_add_u32 {sTi}, {sTi}, 1")
        prio(0); A("\n".join(finish(1, "mul"))); prio(1)
        cv = finish(0, "cvt") + finish(1, "cvt")
        if odd: fill = cv + derive_b[3:11] + slot_ops + derive_a()[:2] + adv_n; tail2 = [derive_b[11], derive_a()[2]]; endf = adv_idx
        else: fill = cv + derive_b[:1]; tail2 = derive_b[1:3]; endf = []
        A(a[2]); A("\n".join(fill[:6])); A(a[3]); A("\n".join(fill[6:12])); A(b[0]); A("\n".join(fill[12:]))
        for i in range(16):
            if i in (0, 3, 6): A(b[1 + i // 3])
            if i == 10: A(m2[0])
            A(f"v_exp_f32 {TM[i]}, {Y[i]}")
        A("\n".join(tail2)); A(one(TM[0:16]))
        for i in range(16):
            if i in (4, 8): A(m2[i // 4])
            A(f"v_exp_f32 {TM[16+i]}, {Y[16+i]}")
        for i in range(32):
            if i == 2: A(one(TM[16:32]))
            if i == 6: A(m2[3])
            if i == 8 and "nop2" not in OPT: prio(2)
            if "xnorcp" not in OPT: A(f"v_rcp_f32 {TM[i]}, {TM[i]}")
        A("\n".join(finish(0, "mul") + endf)); prio(3)
    A("s_branch L_tile")
    WXR = [H[0:4], H[4:8], H[8:12], H[12:16], EA, X, A2[0:4], A2[4:8]]
    WF = [W2[0:16], R("v", W4.b, 16)]
    assert BX.b == W4.b + 8
    def epi_reads():
        A(f"v_xor_b32 {DT[3]}, 64, {vWb}"); A(f"v_lshlrev_b32 {vAl}, 4, {vHalf}")
        for n2 in range(2):
            for st in range(4):
                for hf in range(2):
                    A(f"ds_read_b64_tr_b16 {WF[n2][4*st+2*hf:4*st+2*hf+2]}, {DT[3] if n2 else vWb} offset:{(16*st + 8*hf)*128}")
            A("s_waitcnt lgkmcnt(6)")
        for i in range(6): A(f"ds_read_b128 {WXR[i]}, {vAl} offset:{WX + 32*i}")
    epiaddr = lines(f"""
    v_lshrrev_b32 {DT[1]}, 2, {vL}
    v_and_b32 {DT[2]}, 3, {vL}
    v_add_u32 {DT[1]}, {sN0}, {DT[1]}
    v_mul_u32_u24 {DT[1]}, 6, {DT[1]}
    v_lshl_add_u32 {DT[1]}, {DT[2]}, 1, {DT[1]}
    v_add_u32 {DT[0]}, {POS}, {DT[1]}
    ds_read_u16_d16_hi {PS[0]}, {DT[0]}
    v_add_u32 {DT[0]}, {sN0}, {vHalf}
    v_lshlrev_b32 {DT[0]}, 7, {DT[0]}
    v_and_b32 {DT[2]}, 31, {vL}
    v_lshl_add_u32 {DT[0]}, {DT[2]}, 1, {DT[0]}
    v_add_u32 {DT[1]}, {N*128}, {DT[1]}
    """)
    stub("last", page="L_back2", dead=True)
    A("L_last:")
    prio(0); A("\n".join(finish(1, "mul"))); prio(1)
    cv = finish(0, "cvt") + finish(1, "cvt") + epiaddr
    A(f"s_bitcmp1_b32 {sTi}, 0")
    A(a[2]); A("\n".join(cv[:6])); A(a[3]); A("\n".join(cv[6:11]))
    A("s_cbranch_scc1 L_le"); A(m1(1, 1)[0]); A("s_branch L_lo"); A("L_le:"); A(m1(1, 0)[0]); A("L_lo:")
    A("\n".join(cv[11:16])); A(b[1]); A("\n".join(cv[16:22])); A(b[2]); A("\n".join(cv[22:])); A(b[3]); A(m2[0])
    def enter(tag):
        if "notrim" in OPT: return
        for g in (3, 2, 1): A(f"s_cmp_eq_u32 {sEx}, {g}"); A(f"s_cbranch_scc1 L_{tag}{3-g}")
    A(f"s_cmp_lt_u32 {sScan}, {E}"); A("s_cbranch_scc1 L_noer"); epi_reads(); A("L_noer:")
    A("s_nop 4")
    enter("x")
    for g in (3, 2, 1, 0):
        A(f"L_x{g}:")
        for n in range(2):
            for i in range(4):
                if g == 0 and i == 0: A(m2[1 + n])
                A(f"v_exp_f32 {TM[16*n+4*g+i]}, {Y[16*n+4*g+i]}")
    A(m2[3]); A(one(TM[0:16])); A(one(TM[16:32]))
    A("s_waitcnt lgkmcnt(8)")
    for i in range(4): A(f"ds_read_b64_tr_b16 {A2[2*i:2*i+2]}, {vTtr} offset:{512*i}")
    A(f"ds_write_b64 {vAt}, {ZERO}")
    prio(geto("lq", 1)); stub("l2", over=True); A("s_nop 2")
    enter("r")
    for g in (3, 2, 1, 0):
        A(f"L_r{g}:")
        idx = [16*n + 4*g + i for n in range(2) for i in range(4)]
        for i in idx: A(f"v_rcp_f32 {TM[i]}, {TM[i]}")
        for i in idx: A(f"v_mul_f32 {TM[i]}, {Y[i]}, {TM[i]}")
        for n in range(2):
            for i in range(2): A(finish(n, "cvt")[2*g+i])
        if g == 2: A("s_waitcnt lgkmcnt(0)"); A("s_nop 0"); A(m2[1]); A(m2[3])
    A(f"s_cmp_lt_u32 {sScan}, {E}"); A("s_waitcnt lgkmcnt(0)")
    A(m2[0]); A(m2[2])
    prio(geto("lp", 0))
    A("s_cbranch_scc1 L_more")
    kcold = len(A.o)
    A("L_round_end:")
    A(f"s_cmp_lt_u32 {sScan}, {E}"); A("s_cbranch_scc1 L_more")
    epi_reads(); A("\n".join(epiaddr)); A("s_branch L_epi")
    A("L_more:")
    A(f"s_cmp_lg_u32 {sScan}, 0"); A("s_cbranch_scc1 L_havetab")
    srd(A, SZ, pH, N, 128)
    FP = R("v", EA.b, 16)
    A(f"""
    v_lshlrev_b32 {t0}, 4, v0
    v_and_b32 {t1}, 16, {vL}
    v_lshlrev_b32 {t1}, 2, {t1}
    v_xor_b32 {t0}, {t0}, {t1}
    s_add_u32 m0, {sW10}, {STG}
    s_movk_i32 {sT[0]}, 8192
    s_lshl_b32 {sT[1]}, {sW}, 11
    s_add_u32 {sT[1]}, {sT[1]}, {WE}
    v_lshl_add_u32 {t2}, {vL}, 3, {sT[1]}
    s_waitcnt vmcnt(0)
    s_barrier
    ds_write_b64 {t2}, {ZERO}
    ds_write_b64 {t2}, {ZERO} offset:512
    ds_write_b64 {t2}, {ZERO} offset:1024
    ds_write_b64 {t2}, {ZERO} offset:1536
    buffer_load_dwordx4 {t0}, {SY}, {sT[0]} offen lds
    v_subrev_u32 {t0}, {WE - STG}, {vT1}
    v_xor_b32 {t1}, 64, {t0}
    v_and_b32 {EN[0]}, 31, {vL}
    v_lshl_add_u32 {EN[0]}, {sW}, 5, {EN[0]}
    v_lshlrev_b32 {EN[1]}, 4, {vHalf}
    v_lshlrev_b32 {D[1]}, 5, {vHalf}
    s_mov_b32 {sTi}, {sW}
    s_waitcnt vmcnt(0)
    s_barrier
    """)
    for n in range(2):
        for s_ in range(4):
            for half in range(2): A(f"ds_read_b64_tr_b16 {Y[16*n+4*s_+2*half:16*n+4*s_+2*half+2]}, {t1 if n else t0} offset:{(16*s_ + 4*half)*128}")
        A("s_waitcnt lgkmcnt(0)")
    A("L_tab:")
    for s_ in range(4): A(f"buffer_load_dwordx4 {H[4*s_:4*s_+4]}, {EN}, {SZ}, 0 idxen offen offset:{32*s_}")
    A(f"v_mov_b32 {D[0]}, {EN[0]}"); A(f"v_add_u32 {EN[0]}, 256, {EN[0]}")
    A("s_waitcnt vmcnt(0)")
    for n in range(2):
        for s_ in range(4): A(f"{mf} {TM[16*n:16*n+16]}, {Y[16*n+4*s_:16*n+4*s_+4]}, {H[4*s_:4*s_+4]}, {TM[16*n:16*n+16] if s_ else 0}")
    A("s_nop 11")
    for k in range(32): A(f"v_mul_f32 {TM[k]}, {NLOG2E:#x}, {TM[k]}")
    for k in range(16): A(f"v_cvt_pk_bf16_f32 {FP[k]}, {TM[2*k]}, {TM[2*k+1]}")
    for k in range(4): A(f"buffer_store_dwordx4 {FP[4*k:4*k+4]}, {D}, {SH}, 0 idxen offen offset:{64*(k//2) + 16*(k%2)} sc1")
    A(f"""
    s_add_u32 {sTi}, {sTi}, 8
    s_cmp_lt_u32 {sTi}, {(N + 31)//32}
    s_cbranch_scc1 L_tab
    s_waitcnt vmcnt(0)
    s_barrier
    L_havetab:
    """)
    A(f"s_mov_b32 {sCnt}, 0")
    A("L_scan:")
    Dd = H[0:4]; Ss = H[4:8]
    A(f"""
    s_lshl_b32 {sT[0]}, {sScan}, 2
    v_lshl_add_u32 {DT[0]}, {vL}, 4, {sT[0]}
    global_load_dwordx4 {Dd}, {DT[0]}, {pDst}
    global_load_dwordx4 {Ss}, {DT[0]}, {pSrc}
    v_lshlrev_b32 {DT[0]}, 4, {DT[0]}
    s_waitcnt vmcnt(0)
    """)
    for i in range(4):
        A(f"""
        v_subrev_u32 {DT[1]}, {sN0}, {Dd[i]}
        v_cmp_gt_u32 vcc, {sNn}, {DT[1]}
        v_add3_u32 {EN[0]}, {DT[0]}, {DT[1]}, 1
        v_mov_b32 {EN[1]}, {Ss[i]}
        v_mbcnt_lo_u32_b32 {DT[2]}, vcc_lo, 0
        v_mbcnt_hi_u32_b32 {DT[2]}, vcc_hi, {DT[2]}
        v_add_u32 {DT[2]}, {sCnt}, {DT[2]}
        v_lshl_add_u32 {DT[2]}, {DT[2]}, 3, {sLb}
        s_bcnt1_i32_b64 {sT[0]}, vcc
        s_add_u32 {sCnt}, {sCnt}, {sT[0]}
        s_mov_b64 exec, vcc
        ds_write_b64 {DT[2]}, {EN}
        s_mov_b64 exec, -1
        v_add_u32 {DT[0]}, 64, {DT[0]}
        """)
    A(f"""
    s_add_u32 {sScan}, {sScan}, 256
    s_cmp_ge_u32 {sScan}, {E}
    s_cbranch_scc1 L_round
    s_cmp_le_u32 {sCnt}, {CAP - 256}
    s_cbranch_scc1 L_scan
    s_branch L_round
    """)
    COLD.extend(A.o[kcold:]); del A.o[kcold:]
    A("L_epi:")
    stamp(A, 11)
    SO = SY
    srd(A, SO, pOut, N * 134)
    A(f"""
    s_cmp_eq_u32 {sSlow}, 0
    s_cselect_b32 {sT[0]}, s2, 0
    s_or_b32 {sT[0]}, {sT[0]}, {sW}
    s_cbranch_scc1 L_noepo
    v_mov_b32 {DT[2]}, {EPO}
    s_mov_b64 exec, 1
    global_atomic_add {DT[2]}, {v8}, {pWs}
    s_mov_b64 exec, -1
    s_branch L_noepo
    """)
    stub("epi")
    A(f"""
    L_noepo:
    s_waitcnt lgkmcnt(0)
    """)
    for i in (6, 7): A(f"ds_read_b128 {WXR[i]}, {vAl} offset:{WX + 32*i}")
    fm = [f"v_mul_f32 {DT[2]}, {ACC[0]}, {WXR[0][0]}"] + [f"v_fmac_f32 {DT[2]}, {ACC[i]}, {WXR[i//4][i%4]}" for i in range(1, 32)]
    for st in range(4):
        for i in range(8): A(f"v_mul_f32 {ACC[8*st+i]}, {NLN2:#x}, {ACC[8*st+i]}")
        for i in range(4): A(f"v_cvt_pk_bf16_f32 {Y[4*st+i]}, {ACC[8*st+2*i]}, {ACC[8*st+2*i+1]}")
        A(fm[2*st]); A(fm[2*st+1])
        for n2 in range(2): A(f"{mf} {TM[16*n2:16*n2+16]}, {Y[4*st:4*st+4]}, {WF[n2][4*st:4*st+4]}, {TM[16*n2:16*n2+16] if st else 0}")
    A("\n".join(fm[8:24])); A("s_waitcnt lgkmcnt(0)"); A("\n".join(fm[24:]))
    A(f"v_mov_b32 {DT[3]}, {DT[2]}")
    A(f"s_cmp_eq_u32 {sNn}, 5"); A(f"s_mov_b32 {sT[2]}, 0x7777"); A(f"s_cselect_b32 {sT[2]}, 0x77777, {sT[2]}"); A(f"s_mov_b32 {sT[3]}, 0")
    A(f"v_permlane32_swap_b32 {DT[2]}, {DT[3]}")
    TT = PK
    for n in range(2):
        for j in range(3):
            z = ZH[2*j+n]; t = TT[2*j+n]
            A(f"v_add_f32 {z}, {z}, {TM[16*n+4*j+3]}")
            A(f"v_mul_f32 {t}, {NLOG2E:#x}, {z}"); A(f"v_exp_f32 {t}, {t}")
    A(f"v_add_f32 {DT[2]}, {DT[2]}, {DT[3]}")
    for i in range(6): A(f"v_add_f32 {TT[i]}, 1.0, {TT[i]}"); A(f"v_rcp_f32 {TT[i]}, {TT[i]}")
    A(f"v_add_f32 {DT[2]}, {DT[2]}, {PS[0]}")
    for i in range(6):
        A(f"v_fmac_f32 {HR[i]}, {ZH[i]}, {TT[i]}"); A(f"v_cvt_pk_bf16_f32 {HR[i]}, {HR[i]}, {HR[i]}")
        if i < 4: A(f"buffer_store_short {HR[i]}, {DT[0]}, {SO}, 0 offen offset:{256*(i//2) + 64*(i%2)}")
    A(f"""
    v_cvt_pk_bf16_f32 {DT[2]}, {DT[2]}, {DT[2]}
    s_mov_b64 exec, {sT[2:4]}
    buffer_store_short {DT[2]}, {DT[1]}, {SO}, 0 offen
    s_cbranch_scc0 L_fin
    s_mov_b32 exec_lo, -1
    """)
    for n in range(2): A(f"buffer_store_short {HR[4+n]}, {DT[0]}, {SO}, 0 offen offset:{512 + 64*n}")
    A("L_fin:")
    if "stamp" in OPT:
        A("s_waitcnt vmcnt(0)"); A(f"v_writelane_b32 v255, {sTo}, 14"); A(f"v_writelane_b32 v255, {sNt}, 15")
        if "loop" in OPT:
            for k in range(6): A(f"v_writelane_b32 v255, {sS2[k]}, {23+k}")
    stamp(A, 12); stamp_out(A, pWs)
    A("L_done:"); A("s_endpgm")
    A.o.extend(COLD)
    fl = "" if "oplain" in OPT else "sc1"
    A.o = [l + " " + fl if l.startswith("buffer_store_short") else l for l in A.o]
    print("vgprs", nv, "sgprs", S.n, "lds", LDS_MAIN, "instrs", len(A.o), file=sys.stderr)
    return A.text()

if __name__ == "__main__":
    OPT.update(sys.argv[2:])
    if "xto" in OPT: TIMEOUT = 50
    KN = "standalone__cheap_equivariant_egnn__graph_kernel"
    s = assemble([(KN, k_main(), 256)], [(KN, NB, 512, LDS_MAIN)], single=True).replace("next_free_sgpr 96", "next_free_sgpr 102")
    open(sys.argv[1], "w").write(s)
```

```python
import sys, struct
from lib import *
N, E = 10000, 640000
NB, CH = 256, 2500
CAP = 416
NLOG2E = 0xbfb8aa3b
NLN2 = 0xbf317218
STR = 32768 + 128 * int(([a[3:] for a in sys.argv if a.startswith("str")] or [3])[0])
SEC = 128 * STR
EPO = 2 * SEC
BTO = 16 << 20
TIMEOUT = 20000
INV0 = 0xffffffc6
CNT, FLAG, LUT, WX = 0, 64, 128, 256
STG = 512
WE = STG + 8 * 5120
WH = WE + 18560
POS = WH + 16384
LIST = POS + 60032
LDS_MAIN = LIST + 8 * CAP * 8
BST = STG
BCN = BST + 256 * 144
TB = STG
HO = LIST + 512
HST = CAP * 8 + 16
BO = LIST + 1664
assert STG % 128 == 0 and WE % 128 == 0 and WH % 128 == 0 and LDS_MAIN <= 163840
OPT = set()
geto = lambda name, d: int([o for o in OPT if o.startswith(name)][0][len(name):]) if any(o.startswith(name) for o in OPT) else d
PEND = []
def stamp(A, i):
    if "marks" in OPT: A(f"M_{i}:")
    if "stamp" not in OPT: return
    k = len(PEND)
    if k >= 2: A(f"v_writelane_b32 v255, s{96+2*((k-2)%3)}, {PEND[k-2]}")
    A(f"s_memrealtime s[{96+2*(k%3)}:{97+2*(k%3)}]"); PEND.append(i)
def stamp_out(A, wsp):
    if "stamp" not in OPT: return
    A("s_waitcnt lgkmcnt(0)")
    k = len(PEND)
    for u in (k - 2, k - 1): A(f"v_writelane_b32 v255, s{96+2*(u%3)}, {PEND[u]}")
    A("s_mov_b64 exec, -1")
    A(f"v_lshrrev_b32 v1, 6, v0"); A(f"s_lshl_b32 s3, s2, 3"); A("v_add_u32 v1, s3, v1"); A("v_lshlrev_b32 v1, 7, v1"); A(f"v_add_u32 v1, {200<<20}, v1")
    A("v_and_b32 v2, 63, v0"); A("v_lshl_add_u32 v1, v2, 2, v1"); A("s_mov_b32 exec_hi, 0"); A(f"global_store_dword v1, v255, {wsp}")
def lines(s): return [l.strip() for l in s.strip().split("\n") if l.strip()]

def k_main():
    A = Asm(); COLD = []
    class cold:
        def __enter__(self): self.k = len(A.o)
        def __exit__(self, *a): COLD.extend(A.o[self.k:]); del A.o[self.k:]
    notouch = "notouch" in OPT
    def stub(name, over=False, page=None, dead=False):
        if notouch and not page: return
        if (over or page) and not dead: A(f"s_branch L_sk_{name}")
        if page: A(".p2align 12")
        if not notouch:
            A(f"L_st_{name}:"); A("s_branch L_back1")
            if page: A(f"L_lt_{name}:"); A(f"s_branch {page}")
        if (over or page) and not dead: A(f"L_sk_{name}:")
    def touch_local(w, name, back):
        if notouch: return
        for ww, nm in zip(w, name): A(f"s_cmp_eq_u32 {sW}, {ww}"); A(f"s_cbranch_scc1 L_lt_{nm}")
        A(f"{back}:")
    S = Regs("s", 26, 96); V = Regs("v", 1, 255)
    pH, pPos, pE, pSrc, pDst, pWe, pWx, pWh, pOut, pDbg, pWs = [R("s", 4 + 2 * i, 2) for i in range(11)]
    sW = S.alloc("wave"); sN0 = S.alloc("node0")
    SH = S.alloc("SH", 4, 4); SE = S.alloc("SE", 4, 4); SX = S.alloc("SX", 4, 4); SY = S.alloc("SY", 4, 4); SZ = S.alloc("SZ", 4, 4)
    sM = S.alloc("masks", 16, 2); sT = S.alloc("tmp", 4, 2); sS2 = S.alloc("secmask", 8, 2); sNq = S.alloc("nq", 4, 2)
    sStg = S.alloc("stg"); sLb = S.alloc("listbase"); sCnt = S.alloc("cnt"); sNt = S.alloc("nt"); sTi = S.alloc("ti")
    sSlow = S.alloc("slow"); sScan = S.alloc("scan"); sPd = S.alloc("pd"); sNn = S.alloc("nn")
    sNon = S.alloc("nonce"); sK = S.alloc("K"); sTo = S.alloc("to"); sEarly = S.alloc("early"); sW10 = S.alloc("w10"); sNb = S.alloc("nb0")
    sOv = S.alloc("ov"); sEm = pDbg[0]; sEx = pDbg[1]; sAg = pDbg[1]
    vL = V.alloc("lane"); vHalf = V.alloc("half"); vT1 = V.alloc("t1")
    W2 = V.alloc("W2", 32, 4); W4 = V.alloc("W4", 8, 4); BX = V.alloc("BX", 8, 4)
    ACC = V.alloc("ACC", 32, 4); Y = V.alloc("Y", 32, 4); TM = V.alloc("TM", 32, 4)
    H = V.alloc("H", 16, 4); EA = V.alloc("EA", 4, 4); X = V.alloc("X", 4, 4); A2 = V.alloc("A2", 8, 4); PK = V.alloc("PK", 8, 4)
    IX = V.alloc("IX", 10, 2); HRD = V.alloc("HRD", 4); ERD = V.alloc("ERD")
    vAh = V.alloc("Ah"); vAe = V.alloc("Ae"); vAn = V.alloc("An"); vTrow = V.alloc("Trow"); vTtr = V.alloc("Ttr")
    ZB = V.alloc("ZB", 16, 4); ZERO = ZB[0:2]; D = ZB[2:4]; PS = ZB[4:7]; PD = ZB[7:10]; HR = ZB[10:16]
    EN = V.alloc("EN", 2, 2); HALF = V.alloc("HALFC", 2, 2); INV = V.alloc("INV", 2, 2)
    vAt = V.alloc("At"); DT = V.alloc("DT", 4); vSl = V.alloc("Sl"); vAl = V.alloc("Al")
    ZH = V.alloc("ZH", 6); vWb = V.alloc("Wb"); LO = V.alloc("LO", 3)
    vJ = V.alloc("junk"); vCB = V.alloc("CB", 4); v8 = V.alloc("v8")
    nv = V.n
    mf = "v_mfma_f32_32x32x16_bf16"
    dpp = "row_mask:0xf bank_mask:0xf"
    prio = lambda p: A(f"s_setprio {p}") if "noprio" not in OPT else None
    zero16 = lambda r, z: f"v_mfma_f32_16x16x4_4b_bf16 {r}, {z}, {z}, 0"
    EXA = R("v", EA.b, 16)
    assert X.b == EA.b + 4 and A2.b == EA.b + 8
    DS = Y[0:5]; SR = Y[8:13]; RC = Y[16:21]; B4 = Y[21:26]; RT = Y[26:31]
    LE = H[0:5]; Z4 = H[8:12]; v4 = H[12]; c31 = H[13]
    aD4 = TM[0]; aD1 = TM[1]; aL = TM[2]; aC = TM[3]; aG = TM[4:6]; aS = TM[6:8]; vDs = TM[8]; vD = TM[9]; aWs = TM[10]
    aHj = TM[11]; aFj = TM[12]; aWj = TM[13]; aA = TM[14]; aZ = TM[15]; aHR = TM[16:19]; aWD = TM[19]; vT2 = TM[20]; aTz = TM[21]; aCn = TM[22]; vLim = TM[23]
    t0, t1, t2, t3 = DT[0], DT[1], DT[2], DT[3]
    RP = A2; RS = [EA[0:2], EA[2:4], X[0:2], X[2:4]]; vRo = vAt
    m5 = sM[10:12]
    if "stamp" in OPT: A("v_mov_b32 v255, 0")
    if "xskew" in OPT:
        A("s_and_b32 s3, s2, 7"); A("L_xs:"); A("s_cmp_eq_u32 s3, 0"); A("s_cbranch_scc1 L_xe"); A(f"s_sleep {geto('xsl', 2)}"); A("s_sub_u32 s3, s3, 1"); A("s_branch L_xs"); A("L_xe:")
    stamp(A, 0)
    A(f"""
    s_cmp_ge_u32 s2, {NB}
    s_cbranch_scc1 L_done
    s_load_dwordx16 s[4:19], s[0:1], 0
    s_load_dwordx4 s[20:23], s[0:1], 64
    s_load_dwordx2 s[24:25], s[0:1], 80
    v_lshrrev_b32 {vT1}, 6, v0
    v_and_b32 {vL}, 63, v0
    v_readfirstlane_b32 {sW}, {vT1}
    s_setprio 1
    """)
    t7 = "t7" in OPT
    def global_touch():
        if not notouch:
            names = ["sh", "b1", "y1", "y2", "p2", "b3", "poll", "w0", "c", "p3", "b5", "tile", "odd", "last", "l2", "epi"]
            nw = geto("tw", 1)
            if not t7: A(f"s_cmp_lt_u32 {sW}, {8 - nw}"); A("s_cbranch_scc1 L_back1")
            if "p7" in OPT: A("s_setprio 2")
            A(f"s_lshr_b32 s3, s2, 3")
            if nw > 1: A(f"s_mul_i32 s3, s3, {nw}"); A(f"s_add_u32 s3, s3, {sW}")
            A(f"s_and_b32 s3, s3, 15")
            for k, nm in enumerate(names): A(f"s_cmp_eq_u32 s3, {k}"); A(f"s_cbranch_scc1 L_st_{nm}")
            A("L_back1:")
    if not t7: global_touch()
    A(f"""
    s_mul_i32 s3, s2, {CH*4}
    v_lshl_add_u32 {aD4}, v0, 4, s3
    s_add_u32 s3, s3, 8192
    v_lshl_add_u32 {aD1}, v0, 2, s3
    v_cmp_gt_u32 vcc, {CH - 2048}, v0
    v_lshrrev_b32 {vHalf}, 5, {vL}
    s_mul_i32 {sT[0]}, s2, 5000
    s_add_u32 {sNb}, {sT[0]}, 127
    s_lshr_b32 {sNb}, {sNb}, 7
    s_mov_b64 {m5}, vcc
    s_lshl_b32 {sW10}, {sW}, 10
    s_mov_b32 {sT[1]}, {EPO}
    v_mov_b32 {Z4[0]}, 0
    v_mov_b32 {Z4[1]}, 0
    v_mov_b32 {Z4[2]}, 0
    v_mov_b32 {Z4[3]}, 0
    v_lshlrev_b32 {vD}, 4, v0
    v_lshrrev_b32 {EN[0]}, 3, v0
    v_mul_u32_u24 {vCB[0]}, {CH*64}, {EN[0]}
    v_add_u32 {EN[0]}, {sNb}, {EN[0]}
    v_and_b32 {EN[1]}, 0x70, {vD}
    v_and_b32 {c31}, 31, {vL}
    s_mul_i32 {sLb}, {sW}, {CAP*8}
    s_add_u32 {sLb}, {sLb}, {LIST}
    v_and_b32 {t3}, 16, {vL}
    v_lshlrev_b32 {t2}, 2, {t3}
    v_xor_b32 {vDs}, {vD}, {t2}
    s_add_u32 m0, {sW10}, {WE + 8192}
    s_movk_i32 {sT[3]}, 8192
    s_mov_b32 {SY[2]}, {145*128}
    s_mov_b32 {SY[3]}, 0x20000
    s_mov_b32 {SH[2]}, {N}
    s_mov_b32 {SH[3]}, 0x20000
    s_mul_i32 {sT[2]}, {sW}, {HST}
    s_waitcnt lgkmcnt(0)
    s_mov_b64 {SY[0:2]}, {pWe}
    s_mov_b32 {SH[0]}, {pH[0]}
    s_cmp_gt_u32 {sW}, 6
    s_cbranch_scc1 L_w2done
    buffer_load_dwordx4 {vDs}, {SY}, {sT[3]} offen lds
    s_cmp_lt_u32 {sW}, 6
    s_cbranch_scc1 L_w2done
    buffer_load_dwordx4 {vDs}, {SY}, {sT[3]} offen offset:1024 lds
    L_w2done:
    s_add_u32 m0, {sT[2]}, {HO}
    s_and_b32 {SH[1]}, {pH[1]}, 0xffff
    s_or_b32 {SH[1]}, {SH[1]}, 0x800000
    s_load_dword {sNon}, {pWs}, {sT[1]}
    s_cmp_ge_u32 {sW}, 5
    s_cbranch_scc1 L_share
    buffer_load_dwordx4 {EN}, {SH}, 0 idxen offen lds
    s_branch L_share_done
    """)
    stub("sh")
    A(f"""
    L_share:
    s_lshr_b32 {sT[0]}, s2, 3
    """)
    srd(A, SY, pPos, N * 6)
    A(f"s_mov_b32 {sT[2]}, 15")
    for w, (ptr, size, cnt) in ((6, (pWe, 145 * 128, 5)), (7, (pWh, 16384, 4))):
        A(f"""
        s_cmp_eq_u32 {sW}, {w}
        s_cselect_b64 {SY[0:2]}, {ptr}, {SY[0:2]}
        s_cselect_b32 {SY[2]}, {size}, {SY[2]}
        s_cselect_b32 {sT[2]}, {cnt}, {sT[2]}
        """)
    A(f"""
    s_mul_i32 {sT[0]}, {sT[0]}, {sT[2]}
    v_add_lshl_u32 {t2}, {vL}, {sT[0]}, 7
    s_bfm_b64 exec, {sT[2]}, 0
    buffer_load_dword {vJ}, {t2}, {SY}, 0 offen
    s_mov_b64 exec, -1
    L_share_done:
    """)
    for i in range(5): A(f"ds_write_b128 {vD}, {Z4} offset:{BST + 8192*i}")
    def ld(R_, p_):
        A(f"""
        global_load_dwordx4 {R_[0:4]}, {aD4}, {p_}
        s_mov_b64 exec, {m5}
        global_load_dword {R_[4]}, {aD1}, {p_}
        s_mov_b64 exec, -1
        """)
    dpos = geto("dpos", 0); spos = geto("spos", 3)
    def slot(k):
        if dpos == k: ld(DS, pDst)
        if spos == k: ld(SR, pSrc)
    slot(0)
    if "u7" in OPT: A(f"s_cmp_lt_u32 {sW}, 7"); A("s_cbranch_scc1 L_u7"); ld(SR, pSrc); A("L_u7:")
    A(zero16(ZB, Z4[0:2])); A(zero16(EXA, Z4[0:2]))
    A(f"""
    s_add_u32 {SH[0]}, {pWs[0]}, {BTO}
    s_addc_u32 {SH[1]}, {pWs[1]}, 0
    s_and_b32 {SH[1]}, {SH[1]}, 0xffff
    s_or_b32 {SH[1]}, {SH[1]}, 0x800000
    """)
    lo = sum(1 << ((k + 1) * 4 + (k >> 1)) for k in range(5) if k % 2 == 0)
    hi = sum(1 << ((k + 1) * 4 + (k >> 1)) for k in range(5) if k % 2 == 1)
    A(f"""
    v_mov_b32 {INV[0]}, {INV0:#x}
    v_mov_b32 {INV[1]}, {N}
    v_lshl_add_u32 {t0}, {vL}, 3, {sLb}
    ds_write_b64 {t0}, {INV}
    s_cmp_lg_u32 {sW}, 0
    s_cbranch_scc1 L_init_done
    v_lshrrev_b32 {t0}, 1, {vL}
    v_mul_u32_u24 {t0}, {CAP*8}, {t0}
    v_add_u32 {t0}, {LIST}, {t0}
    v_mov_b32 {t1}, 0x3f80
    s_mov_b64 {sT[2:4]}, 0xffff
    v_cndmask_b32 {t0}, 0, {t0}, {sT[2:4]}
    s_mov_b32 {sT[2]}, 0
    s_mov_b32 {sT[3]}, {lo:#x}
    v_cndmask_b32 {t0}, {t0}, {t1}, {sT[2:4]}
    s_mov_b32 {sT[3]}, {hi:#x}
    v_cndmask_b32 {t0}, {t0}, 1.0, {sT[2:4]}
    v_lshlrev_b32 {t1}, 2, {vL}
    ds_write_b32 {t1}, {t0}
    L_init_done:
    """)
    slot(1)
    if t7:
        A(f"s_cmp_lt_u32 {sW}, 7"); A("s_cbranch_scc1 L_n7"); ld(SR, pSrc); global_touch(); A("s_waitcnt lgkmcnt(0)"); A("s_barrier"); A("L_n7:")
    A(f"""
    v_mov_b32 {v4}, 4
    v_lshlrev_b32 {LE[0]}, 8, v0
    v_add_u32 {LE[1]}, 64, {LE[0]}
    v_add_u32 {LE[2]}, 128, {LE[0]}
    v_add_u32 {LE[3]}, 192, {LE[0]}
    v_lshlrev_b32 {LE[4]}, 6, v0
    v_add_u32 {LE[4]}, {2048*64}, {LE[4]}
    v_and_b32 {t0}, 3, {vL}
    v_lshlrev_b32 {t0}, 3, {t0}
    v_lshl_add_u32 {vTtr}, {t3}, 1, {t0}
    v_and_b32 {t1}, 12, {vL}
    v_lshl_add_u32 {t0}, {t1}, 5, {vTtr}
    v_lshl_add_u32 {vTtr}, {t1}, 4, {vTtr}
    v_and_b32 {t1}, 8, {vL}
    v_lshl_add_u32 {vWb}, {t1}, 3, {t0}
    v_lshl_add_u32 {t0}, {vHalf}, 10, {vWb}
    v_add_u32 {vT1}, {WE}, {t0}
    """)
    slot(2)
    A(f"""
    s_bfe_u32 {sT[0]}, {sW}, 0x10001
    s_mul_i32 {sT[0]}, {sT[0]}, 20
    v_add_u32 {aWj}, {sT[0]}, {c31}
    v_lshrrev_b32 {t1}, 3, {aWj}
    v_mul_u32_u24 {t1}, {HST - 1024}, {t1}
    v_lshl_add_u32 {aHj}, {aWj}, 7, {t1}
    v_lshl_add_u32 {aHj}, {vHalf}, 4, {aHj}
    v_add_u32 {aHj}, {HO}, {aHj}
    s_and_b32 {sT[1]}, {sW}, 1
    s_lshr_b32 {sT[2]}, {sW}, 2
    s_lshl_b32 {sT[0]}, {sT[1]}, 6
    s_mul_i32 {sT[3]}, {sT[2]}, {WH - WE}
    v_xor_b32 {aFj}, {sT[0]}, {vT1}
    v_add_u32 {aFj}, {sT[3]}, {aFj}
    s_lshl_b32 {sT[0]}, s2, 3
    s_add_u32 {sT[0]}, {sT[0]}, {sW}
    s_mul_i32 {sT[0]}, {sT[0]}, 625
    s_add_u32 {sN0}, {sT[0]}, 127
    s_lshr_b32 {sN0}, {sN0}, 7
    s_add_u32 {sNn}, {sT[0]}, {625 + 127}
    s_lshr_b32 {sNn}, {sNn}, 7
    s_sub_u32 {sNn}, {sNn}, {sN0}
    s_movk_i32 {sT[1]}, 120
    s_movk_i32 {sT[3]}, 8192
    """)
    aBw = TM[24]; aBr = TM[25]; aBs = TM[26:28]
    u0, u1 = sS2[0], sS2[1]
    stB = lines(f"""
    s_add_u32 {u0}, {sLb}, {BO - LIST}
    v_mul_u32_u24 {aBw}, 80, {c31}
    v_lshl_add_u32 {aBw}, {vHalf}, 5, {aBw}
    v_add_u32 {aBw}, {u0}, {aBw}
    v_lshrrev_b32 {t0}, 2, {vL}
    v_and_b32 {t1}, 48, {vD}
    v_mul_u32_u24 {aBr}, 80, {t0}
    v_add3_u32 {aBr}, {aBr}, {t1}, {u0}
    s_bfe_u32 {u0}, {sW}, 0x10001
    s_mul_i32 {u0}, {u0}, 20
    s_add_u32 {u0}, {u0}, {sNb}
    v_add_u32 {aBs[0]}, {u0}, {t0}
    s_and_b32 {u0}, {sW}, 1
    s_lshl_b32 {u0}, {u0}, 6
    v_add_u32 {aBs[1]}, {u0}, {t1}
    """)
    stG = lines(f"""
    v_lshrrev_b32 {t1}, 3, v0
    v_and_b32 {t0}, 0x70, {vD}
    v_mul_u32_u24 {aG[0]}, {STR}, {t1}
    s_lshl_b32 {u0}, s2, 7
    v_add3_u32 {aG[0]}, {aG[0]}, {t0}, {u0}
    v_add_u32 {aG[1]}, {64*STR}, {aG[0]}
    v_lshrrev_b32 {t1}, 1, {vL}
    v_and_b32 {t1}, 28, {t1}
    v_and_b32 {aC}, 4, {vL}
    v_lshl_add_u32 {aC}, {aC}, 3, {t1}
    v_lshl_add_u32 {aC}, {sW}, 6, {aC}
    v_and_b32 {t0}, 48, {vD}
    v_mad_u32_u24 {aL}, {aC}, 36, {t0}
    """)
    stL = lines(f"""
    v_add_u32 {aWs}, {WE + 8192}, {vD}
    s_lshl_b32 {u0}, {sW}, 11
    s_add_u32 {u0}, {u0}, {WE}
    s_sub_u32 {u1}, {u0}, 8
    v_lshl_add_u32 {vTtr}, {vHalf}, 8, {vTtr}
    v_add_u32 {vTtr}, {u0}, {vTtr}
    v_lshl_add_u32 {vTrow}, {c31}, 6, {u1}
    v_lshl_add_u32 {aTz}, {vL}, 3, {u0}
    v_lshl_add_u32 {vWb}, {vHalf}, 9, {vWb}
    v_add_u32 {vWb}, {WH + 8192}, {vWb}
    v_xor_b32 {vT2}, 64, {vT1}
    s_lshr_b32 {u0}, {sW}, 2
    s_mul_i32 {u0}, {u0}, {40*272}
    s_and_b32 {u1}, {sW}, 1
    s_lshl_b32 {u1}, {u1}, 7
    s_add_u32 {u0}, {u0}, {u1}
    s_add_u32 {u0}, {u0}, {TB}
    v_mul_u32_u24 {aWj}, 272, {aWj}
    v_lshl_add_u32 {aWj}, {vHalf}, 4, {aWj}
    v_add_u32 {aWj}, {u0}, {aWj}
    s_sub_u32 {u0}, {sN0}, {sNb}
    s_mul_i32 {u1}, {u0}, 272
    s_add_u32 {u1}, {u1}, {TB}
    v_lshl_add_u32 {aA}, {c31}, 2, {u1}
    v_mul_u32_u24 {aZ}, 272, {vHalf}
    v_add_u32 {aZ}, {aZ}, {aA}
    v_lshlrev_b32 {t2}, 1, {c31}
    v_add_u32 {aWD}, {WE + 18432}, {t2}
    v_add_u32 {t2}, {HO}, {t2}
    v_add_u32 {t0}, {u0}, {vHalf}
    s_movk_i32 {u0}, {HST - 1024}
    """)
    for j in range(3):
        stL += [f"v_lshrrev_b32 {t1}, 3, {t0}", f"v_lshl_add_u32 {aHR[j]}, {t0}, 7, {t2}", f"v_mad_u32_u24 {aHR[j]}, {t1}, {u0}, {aHR[j]}"]
        if j < 2: stL.append(f"v_add_u32 {t0}, 2, {t0}")
    if t7 or "u7" in OPT: A(f"s_cmp_eq_u32 {sW}, 7"); A("s_cbranch_scc1 L_n7b")
    slot(3)
    if t7 or "u7" in OPT: A("L_n7b:")
    srd(A, SX, pWs, 2 * SEC); srd(A, SY, pWe, 145 * 128); srd(A, SZ, pWh, 16384)
    if "xto" in OPT: A("s_cmp_eq_u32 s2, 5"); A(f"s_cselect_b32 {SX[2]}, 0, {SX[2]}")
    A("\n".join(stG + stL))
    touch_local([1], ["p2"], "L_back3")
    stub("b1", over=True)
    stamp(A, 1)
    BH = W2[0:16]; BF = W2[16:32]; BD = ACC[0:16]; BP = ACC[16:24]; BR = ACC[24:32]
    lab = {"n": 0}
    def old(fn):
        lab["n"] += 1; A(f"s_cmp_ge_u32 {sW}, 4"); A(f"s_cbranch_scc1 L_old{lab['n']}"); fn(); A(f"L_old{lab['n']}:")
    ny = 4 if spos < 4 else 2
    if "f2" in OPT:
        A("s_waitcnt lgkmcnt(0)"); stamp(A, 23); A(f"s_waitcnt vmcnt({ny + 1})"); stamp(A, 24); A("s_waitcnt lgkmcnt(0)"); A(f"s_waitcnt vmcnt({ny})"); stamp(A, 25)
    if t7: A(f"s_cmp_eq_u32 {sW}, 7"); A("s_cbranch_scc1 L_n7c")
    A(f"s_cmp_ge_u32 {sW}, 5"); A(f"s_waitcnt vmcnt({ny + 1}) lgkmcnt(0)"); A("s_cbranch_scc1 L_b1"); A(f"s_waitcnt vmcnt({ny})"); A("L_b1:"); A("s_barrier")
    if t7: A("L_n7c:")
    stamp(A, 29)
    slot(4)
    A(f"s_and_b32 {sNon}, {sNon}, -8")
    hashc = []
    for q in range(4):
        r = sNq[q]
        hashc.append(lines(f"""
        s_add_u32 {r}, {sNon}, {0x9e3779b8 + q:#x}
        s_mul_i32 {r}, {r}, 0x85ebca6b
        s_lshr_b32 s3, {r}, 15
        s_xor_b32 {r}, {r}, s3
        s_mul_i32 {r}, {r}, 0xc2b2ae35
        s_and_b32 {r}, {r}, -16
        s_or_b32 {r}, {r}, {1 << q}
        """))
    def b_reads():
        for s in range(4):
            A(f"ds_read_b128 {BH[4*s:4*s+4]}, {aHj} offset:{32*s}")
            for half in range(2): A(f"ds_read_b64_tr_b16 {BF[4*s+2*half:4*s+2*half+2]}, {aFj} offset:{8192 + (16*s + 4*half)*128}")
    st2 = lines(f"""
    s_mul_i32 {sStg}, {sW}, 5120
    s_add_u32 {sStg}, {sStg}, {STG}
    s_add_u32 {sEm}, {sStg}, 4096
    s_mul_i32 {sPd}, {sN0}, 6
    s_add_u32 {sPd}, {sPd}, {POS - 6}
    s_mov_b32 {sTo}, 0
    s_mov_b32 {sScan}, 0
    s_mov_b32 {sEarly}, 0
    s_mov_b32 {sOv}, 0
    v_and_b32 {t3}, 31, {vL}
    v_bfe_u32 {t0}, {vL}, 1, 3
    v_xor_b32 {t0}, {t0}, {vHalf}
    v_lshlrev_b32 {t0}, 4, {t0}
    v_lshl_add_u32 {t0}, {t3}, 7, {t0}
    v_add_u32 {HRD[0]}, {sStg}, {t0}
    v_xor_b32 {HRD[1]}, 32, {HRD[0]}
    v_xor_b32 {HRD[2]}, 64, {HRD[0]}
    v_xor_b32 {HRD[3]}, 0x60, {HRD[0]}
    v_bfe_u32 {t0}, {vL}, 3, 1
    v_xor_b32 {t0}, {t0}, {vHalf}
    v_lshlrev_b32 {t0}, 4, {t0}
    v_lshl_add_u32 {t0}, {t3}, 5, {t0}
    v_add_u32 {ERD}, {sEm}, {t0}
    v_lshl_add_u32 {LO[2]}, {t3}, 3, {sLb}
    v_and_b32 {t0}, 56, {vL}
    v_add3_u32 {LO[0]}, {t0}, {sLb}, 4
    v_lshrrev_b32 {t0}, 1, {vL}
    v_lshl_add_u32 {LO[1]}, {t0}, 3, {sLb}
    v_mov_b32 {vAh}, {LO[0]}
    v_mov_b32 {vAe}, {LO[1]}
    v_mov_b32 {HALF[0]}, 0x3f003f00
    v_mov_b32 {HALF[1]}, 0x3f003f00
    v_mov_b32 {v8}, 8
    v_add_u32 {vCB[1]}, {64*CH*64}, {vCB[0]}
    v_add_u32 {vCB[2]}, {128*CH*64}, {vCB[0]}
    v_add_u32 {vCB[3]}, {192*CH*64}, {vCB[0]}
    v_and_b32 {t0}, 15, {vL}
    v_lshlrev_b32 {aCn}, 3, {t0}
    v_mul_u32_u24 {vLim}, {CAP*8}, {t0}
    v_add_u32 {vLim}, {LIST + CAP*8}, {vLim}
    s_mov_b64 {sS2[4:6]}, 0xff
    v_cndmask_b32 {vLim}, 0, {vLim}, {sS2[4:6]}
    """)
    st2 += ["s_mov_b32 exec_lo, 0x80808080", "s_mov_b32 exec_hi, 0x80808080"] + [f"v_mov_b32 {RS[q][1]}, {sNq[q]}" for q in range(4)] + ["s_mov_b64 exec, -1"]
    st3 = lines(f"""
    v_and_b32 {t0}, 48, {vL}
    v_and_b32 {t1}, 0x70, {vD}
    v_xor_b32 {IX[1]}, {t0}, {t1}
    v_xor_b32 {IX[3]}, 64, {IX[1]}
    v_mov_b32 {IX[5]}, {IX[1]}
    v_mov_b32 {IX[7]}, {IX[3]}
    v_and_b32 {IX[9]}, 16, {IX[1]}
    """) + [f"v_mov_b32 {IX[2*i]}, -1" for i in range(5)]
    A(f"s_cmp_ge_u32 {sW}, 4"); A("s_cbranch_scc1 L_y1")
    b_reads()
    A("\n".join(stB))
    for s in range(4):
        A(f"s_waitcnt lgkmcnt({9 - 3*s})"); A(f"{mf} {BD}, {BF[4*s:4*s+4]}, {BH[4*s:4*s+4]}, {BD if s else 0}")
    A("\n".join(x for q in range(2) for x in hashc[q]))
    for k in range(16): A(f"v_mul_f32 {BD[k]}, {NLOG2E:#x}, {BD[k]}")
    for k in range(8): A(f"v_cvt_pk_bf16_f32 {BP[k]}, {BD[2*k]}, {BD[2*k+1]}")
    A("s_mov_b32 exec_lo, 0xfffff"); A("s_mov_b32 exec_hi, 0xfffff")
    for k in range(2): A(f"ds_write_b128 {aBw}, {BP[4*k:4*k+4]} offset:{16*k}")
    A("s_mov_b64 exec, -1")
    for k in range(2): A(f"ds_read_b128 {BR[4*k:4*k+4]}, {aBr} offset:{1280*k}")
    A("\n".join(x for q in range(2, 4) for x in hashc[q]))
    if "xto" in OPT: A("s_cmp_eq_u32 s2, 5"); A(f"s_cselect_b32 {SH[2]}, 0, {SH[2]}")
    A("s_waitcnt lgkmcnt(0)")
    A(f"buffer_store_dwordx4 {BR[0:4]}, {aBs}, {SH}, 0 idxen offen sc1")
    A(f"v_add_u32 {aBs[0]}, 16, {aBs[0]}"); A("s_mov_b64 exec, 0xffff")
    A(f"buffer_store_dwordx4 {BR[4:8]}, {aBs}, {SH}, 0 idxen offen sc1")
    A("s_mov_b64 exec, -1")
    A("s_waitcnt vmcnt(4)")
    A("s_branch L_y2")
    stub("y1")
    A("L_y1:")
    for s in range(4): A(f"ds_read_b128 {BH[4*s:4*s+4]}, {aHj} offset:{32*s}")
    WB = PK[4:8]
    def tables():
        A(f"""
        s_add_u32 m0, {sW10}, {WE}
        s_nop 0
        buffer_load_dwordx4 {vDs}, {SY}, 0 offen lds
        s_add_u32 m0, {sW10}, {WH}
        s_nop 0
        buffer_load_dwordx4 {vDs}, {SZ}, 0 offen lds
        s_add_u32 m0, {sW10}, {WH + 8192}
        s_nop 0
        buffer_load_dwordx4 {vDs}, {SZ}, {sT[3]} offen lds
        """)
    ty = "tlate" not in OPT
    A("\n".join(x for q in range(4) for x in hashc[q]))
    if ty: tables()
    stub("y2", over=True)
    A(f"s_waitcnt vmcnt({5 if ty else 2})")
    A("L_y2:")
    if "xto" in OPT: A(f"s_mov_b32 {SH[2]}, {N}")
    stamp(A, 2)
    for i in range(5):
        if i == 4: A(f"s_mov_b64 exec, {m5}")
        A(f"""
        v_mul_u32_u24 {RC[i]}, 429497, {DS[i]}
        v_lshrrev_b32 {B4[i]}, 22, {RC[i]}
        v_and_b32 {B4[i]}, -4, {B4[i]}
        ds_add_rtn_u32 {RT[i]}, {B4[i]}, {v4} offset:{BCN}
        """)
    A("s_mov_b64 exec, -1")
    for i in range(5):
        A(f"""
        v_lshrrev_b32 {RC[i]}, 21, {RC[i]}
        v_mul_u32_u24 {RC[i]}, 399, {RC[i]}
        v_lshrrev_b32 {RC[i]}, 7, {RC[i]}
        v_add3_u32 {RC[i]}, {RC[i]}, {DS[i]}, 1
        v_and_or_b32 {RC[i]}, {RC[i]}, 63, {LE[i]}
        """)
    A(f"""
    s_xor_b32 {sK}, {sNq[0]}, {sNq[1]}
    s_xor_b32 {sK}, {sK}, {sNq[2]}
    s_xor_b32 {sK}, {sK}, {sNq[3]}
    s_bitcmp1_b32 s2, 6
    s_cselect_b32 {sNon}, {sNq[1]}, {sNq[0]}
    s_cselect_b32 s3, {sNq[3]}, {sNq[2]}
    s_bitcmp1_b32 s2, 7
    s_cselect_b32 {sNon}, s3, {sNon}
    """)
    stamp(A, 3)
    if ty: A(f"s_cmp_ge_u32 {sW}, 4"); A("s_waitcnt vmcnt(3) lgkmcnt(0)"); A("s_cbranch_scc1 L_srcok"); A("s_waitcnt vmcnt(2)"); A("L_srcok:")
    else: A(f"s_cmp_ge_u32 {sW}, 4"); A("s_waitcnt vmcnt(2) lgkmcnt(0)"); A("s_cbranch_scc0 L_srcok"); A("s_waitcnt vmcnt(0)"); A("L_srcok:")
    stamp(A, 4)
    for i in range(5):
        if i == 4: A(f"s_mov_b64 exec, {m5}")
        A(f"v_min_u32 {RT[i]}, 120, {RT[i]}"); A(f"v_lshl_or_b32 {RC[i]}, {SR[i]}, 18, {RC[i]}"); A(f"v_mad_u32_u24 {RT[i]}, {B4[i]}, 36, {RT[i]}")
        A(f"ds_write_b32 {RT[i]}, {RC[i]} offset:{BST + 4}")
    A("s_mov_b64 exec, -1")
    A(f"""
    s_cmp_gt_u32 {sW}, 3
    s_cbranch_scc1 L_odone
    s_cbranch_scc0 L_o0
    L_o3:
    v_lshlrev_b32 {t0}, 1, {vL}
    global_load_ushort {WB[0]}, {t0}, {pWx}
    s_branch L_odone
    L_o1:
    s_mov_b32 {sT[2]}, {129*128 - 1024}
    buffer_load_dwordx4 {WB}, {vDs}, {SY}, {sT[2]} offen
    s_branch L_odone
    L_o0:
    s_cmp_eq_u32 {sW}, 3
    s_cbranch_scc1 L_o3
    s_cmp_lg_u32 {sW}, 0
    s_cbranch_scc1 L_o1
    v_lshlrev_b32 {t0}, 2, {vL}
    s_mov_b32 m0, {WE + 18432}
    s_mov_b32 {sT[2]}, 16384
    s_mov_b32 exec_hi, 0
    buffer_load_dword {t0}, {SY}, {sT[2]} offen lds
    s_mov_b64 exec, -1
    L_odone:
    """.replace("s_cbranch_scc0 L_o0", "s_branch L_o0"))
    if ty: old(tables)
    else: tables()
    stub("p2", page="L_back3")
    srd(A, SZ, pPos, N * 6)
    def poll():
        for q in range(4): A(f"buffer_load_dwordx2 {RP[2*q:2*q+2]}, {vRo}, {SX}, {sS2[q-1] if q else 0} offen {'sc0 sc1' if 'sys' in OPT else 'sc1'}")
    def posdma(k):
        if k < 7:
            A(f"s_add_u32 m0, {sW10}, {POS + 8192*k}"); A(f"s_mov_b32 {sT[0]}, {8192*k}"); A(f"buffer_load_dwordx4 {vD}, {SZ}, {sT[0]} offen lds")
        else:
            A(f"""
            s_cmp_gt_u32 {sW}, 2
            s_cbranch_scc1 L_ptail
            v_add_u32 {vSl}, {8192*7}, {vD}
            s_add_u32 m0, {sW10}, {POS + 8192*7}
            v_cmpx_gt_u32 vcc, 60032, {vSl}
            buffer_load_dwordx4 {vSl}, {SZ}, 0 offen lds
            s_mov_b64 exec, -1
            L_ptail:
            """)
    n0 = geto("pz", 3)
    old(lambda: A("s_waitcnt vmcnt(4)")) if "ackfirst" in OPT else None
    for u in range(n0): posdma(6 - u)
    stamp(A, 22)
    PR = [Y[0:4], Y[4:8]]; SC = [Y[8:12], Y[12:16]]; CN = Y[16:18]; XR = Y[20:24]; ST = Y[24:26]
    A(f"""
    s_mov_b32 {sM[0]}, 0x11111111
    s_mov_b32 {sM[1]}, 0x11111111
    s_mov_b32 {sM[2]}, 0x88888888
    s_mov_b32 {sM[3]}, 0x88888888
    s_and_b32 s3, {sNon}, 15
    s_lshl_b32 s3, s3, 4
    s_xor_b32 s3, s3, {sNon}
    v_mov_b32 {t0}, {sNon}
    v_mov_b32 {t1}, s3
    """)
    old(lambda: A(f"s_waitcnt vmcnt({4 + n0})"))
    A(f"""
    s_waitcnt lgkmcnt(0)
    s_barrier
    """)
    stamp(A, 5)
    for i in range(2): A(f"ds_read_b128 {PR[i]}, {aL} offset:{BST + 18432*i}")
    for i in range(2): A(f"ds_read_b128 {SC[i]}, {aL} offset:{BST + 18432*i + 64}"); A(f"ds_read_b32 {CN[i]}, {aC} offset:{BCN + 512*i}")
    A(f"s_mov_b32 {sT[2]}, {SEC}")
    def xor4(x, r):
        A(f"v_bitop3_b32 {x}, {r[0]}, {r[1]}, {r[2]} bitop3:0x96"); A(f"v_xor_b32 {x}, {x}, {r[3]}")
    A("s_waitcnt lgkmcnt(4)")
    for i in range(2): xor4(XR[i], PR[i])
    A("s_nop 0")
    for i in range(2): A(f"v_xor_b32_dpp {XR[i]}, {XR[i]}, {XR[i]} quad_perm:[1,0,3,2] {dpp}")
    A("s_nop 0")
    for i in range(2): A(f"v_xor_b32_dpp {XR[i]}, {XR[i]}, {XR[i]} quad_perm:[2,3,0,1] {dpp}")
    A(f"s_mov_b64 exec, {sM[0:2]}")
    for i in range(2): A(f"v_xor_b32 {PR[i][0]}, {XR[i]}, {t0}")
    A("s_mov_b64 exec, -1")
    for i in range(2): A(f"buffer_store_dwordx4 {PR[i]}, {aG[i]}, {SX}, 0 offen sc1")
    A("s_waitcnt lgkmcnt(0)")
    for i in range(2): A(f"v_cndmask_b32 {SC[i][3]}, {SC[i][3]}, 0, {sM[2:4]}")
    for i in range(2): xor4(XR[2+i], SC[i])
    for i in range(2):
        A(f"v_cmp_le_u32 {sM[4+2*i:6+2*i]}, 60, {CN[i]}"); A(f"v_cmp_lt_u32 {sM[8+2*i:10+2*i]}, {sT[1]}, {CN[i]}")
    for i in range(2): A(f"v_xor_b32_dpp {XR[2+i]}, {XR[2+i]}, {XR[2+i]} quad_perm:[1,0,3,2] {dpp}")
    for i in range(2): A(f"v_cndmask_b32 {aS[i]}, -2.0, {aG[i]}, {sM[4+2*i:6+2*i]}")
    for i in range(2): A(f"v_xor_b32_dpp {XR[2+i]}, {XR[2+i]}, {XR[2+i]} quad_perm:[2,3,0,1] {dpp}")
    for i in range(2): A(f"v_cndmask_b32 {ST[i]}, {t0}, {t1}, {sM[8+2*i:10+2*i]}")
    A(f"s_mov_b64 exec, {sM[2:4]}")
    for i in range(2): A(f"v_xor_b32 {SC[i][3]}, {XR[2+i]}, {ST[i]}")
    if "sfull" in OPT: A("s_mov_b64 exec, -1")
    for i in range(2):
        if "sfull" not in OPT: A(f"s_or_b64 exec, {sM[4+2*i:6+2*i]}, 1")
        A(f"buffer_store_dwordx4 {SC[i]}, {aS[i]}, {SX}, {sT[2]} offen sc1")
    A("s_mov_b64 exec, -1")
    stamp(A, 6)
    A(f"s_waitcnt vmcnt({4 + n0})")
    def scale(r):
        for i in range(4):
            A(f"v_lshlrev_b32 {t0}, 16, {r[i]}"); A(f"v_and_b32 {t1}, 0xffff0000, {r[i]}")
            A(f"v_mul_f32 {t0}, {NLOG2E:#x}, {t0}"); A(f"v_mul_f32 {t1}, {NLOG2E:#x}, {t1}"); A(f"v_cvt_pk_bf16_f32 {r[i]}, {t0}, {t1}")
    stub("b3", over=True)
    A("s_setprio 0")
    A("s_barrier")
    stamp(A, 7)
    WD = D
    def frag(dst, base, s, n):
        for half in range(2): A(f"ds_read_b64_tr_b16 {dst[2*half:2*half+2]}, {vT2 if n else vT1} offset:{base + (16*s + 4*half)*128}")
    def frags(dst, base, n):
        for s in range(4): frag(dst[16*n+4*s:16*n+4*s+4], base, s, n)
    NP = 7 - n0; npre = min(NP, geto("npre", 3)); hp = min(NP - npre, geto("npost", 1))
    JF = Y[0:16]; JD = Y[16:32]; PB = W2[0:8]
    B_ = Asm(); srd(B_, SE, pE, E, 32)
    stat = st3 + B_.o + st2 + lines(f"""
        s_and_b32 {sT[0]}, s2, 0xc0
        s_bfe_u32 s3, s2, 0x30003
        s_add_u32 {sT[0]}, {sT[0]}, s3
        s_lshl_b32 s3, {sW}, 3
        s_add_u32 {sT[0]}, {sT[0]}, s3
        s_mul_i32 {sT[0]}, {sT[0]}, 5000
        s_add_u32 {sT[0]}, {sT[0]}, 127
        s_lshr_b32 {sT[0]}, {sT[0]}, 7
        v_add_u32 {W2[15]}, {sT[0]}, {vL}
        """)
    c1 = 17
    r2 = stat[c1:]
    need = r2[0:9] + r2[24:30] + r2[32:36] + r2[42:]
    defer = r2[9:24] + r2[30:32] + [x.replace(str(sS2[4:6]), "vcc").replace("v_cndmask_b32", "v_cndmask_b32_e64") for x in r2[36:42]]
    defer += [f"s_mov_b32 vcc_lo, 0xaaaaaaaa", f"s_mov_b32 vcc_hi, 0xaaaaaaaa", f"v_mov_b32 {t0}, 0x3f80", f"v_cndmask_b32_e64 {t0}, {t0}, 1.0, vcc", f"s_mov_b32 {sNq[2]}, 3", f"s_mov_b32 {sNq[3]}, 0x30000"]
    for r in range(8):
        b = (r >> 2) * 4 + ((r >> 1) & 1) * 8 + (r & 1) * 2
        defer += [f"s_lshl_b64 vcc, {sNq[2:4]}, {b}", f"v_cndmask_b32_e64 {PB[r]}, 0, {t0}, vcc"]
    defer = [x.replace("vcc_lo", str(sT[2])).replace("vcc_hi", str(sT[3])).replace("vcc", str(sT[2:4])) for x in defer]
    BXO = W2[24:32]
    for n in range(2):
        a = H[8*n:8*n+8]
        defer += [f"v_lshlrev_b32 {a[5]}, 16, {a[5]}"] + [f"v_mul_f32 {a[i]}, {NLOG2E:#x}, {a[i]}" for i in range(6)] + [f"v_and_b32 {a[6]}, 0xffff0000, {a[5]}", f"v_sub_f32 {a[7]}, {a[5]}, {a[6]}"]
    bxc = []
    for hf, BB in enumerate((BX, BXO)):
        bxc += [f"s_mov_b32 exec_lo, {0 if hf else -1}", f"s_mov_b32 exec_hi, {-1 if hf else 0}"]
        for n in range(2):
            a = H[8*n:8*n+8]; B = BB[4*n:4*n+4]
            bxc += [f"v_cvt_pk_bf16_f32 {B[0]}, {a[0]}, {a[1]}", f"v_cvt_pk_bf16_f32 {B[1]}, {a[2]}, {a[3]}", f"v_cvt_pk_bf16_f32 {B[2]}, {a[4]}, 0", f"v_cvt_pk_bf16_f32 {B[3]}, {a[6]}, {a[7]}"]
    bxc += ["s_mov_b64 exec, -1"]
    nd = geto("nd", 23)
    pq = list(range(npre))
    def pos(n):
        for _ in range(n):
            if pq: posdma(pq.pop(0))
    for s in range(4):
        for half in range(2): A(f"ds_read_b64_tr_b16 {JF[4*s+2*half:4*s+2*half+2]}, {aFj} offset:{(16*s + 4*half)*128}")
    late = "pearly" not in OPT
    if not late: posdma(7); pos(1)
    A("\n".join(stat[:c1 - 5 * late]))
    for s in range(4):
        A(f"s_waitcnt lgkmcnt({6 - 2*s})")
        A(f"{mf} {JD}, {JF[4*s:4*s+4]}, {BH[4*s:4*s+4]}, {JD if s else 0}")
    if late: A("\n".join(stat[c1-5:c1]))
    else: pos(2)
    A(f"""
    s_lshr_b32 {sT[0]}, s2, 4
    s_lshl_b32 {sT[0]}, {sT[0]}, 3
    s_and_b32 s3, s2, 7
    s_add_u32 {sT[0]}, {sT[0]}, s3
    s_mul_i32 {sT[0]}, {sT[0]}, {STR}
    s_and_b32 s3, s2, 8
    s_lshl_b32 s3, s3, 3
    s_add_u32 {sT[0]}, {sT[0]}, s3
    v_and_b32 {t0}, 7, v0
    v_and_b32 {vRo}, 0xffffff80, {vD}
    v_lshl_add_u32 {vRo}, {t0}, 3, {vRo}
    v_add_u32 {vRo}, {sT[0]}, {vRo}
    s_movk_i32 {sS2[0]}, 8192
    s_movk_i32 {sS2[1]}, 16384
    s_movk_i32 {sS2[2]}, 24576
    s_mov_b32 exec_lo, 0xfffff
    s_mov_b32 exec_hi, 0xfffff
    """)
    for i in range(4): A(f"ds_write_b128 {aWj}, {JD[4*i:4*i+4]} offset:{32*i}")
    A("s_mov_b64 exec, -1")
    A(f"s_sub_u32 s3, {sW}, 1"); A("s_cmp_gt_u32 s3, 2"); A("s_cbranch_scc1 L_nowx"); A(f"s_cmp_eq_u32 s3, 2"); A("s_cbranch_scc1 L_wx")
    scale(WB)
    A(f"""
    ds_write_b128 {aWs}, {WB} offset:{8192 - 1024}
    s_branch L_nowx
    """)
    A(f"""
    L_wx:
    v_lshlrev_b32 {WB[0]}, 16, {WB[0]}
    v_lshlrev_b32 {t0}, 2, {vL}
    ds_write_b32 {t0}, {WB[0]} offset:{WX}
    L_nowx:
    """)
    A(zero16(ACC[0:16], ZERO)); A(zero16(ACC[16:32], ZERO)); A(zero16(W2[16:32], ZERO)); A(zero16(R("v", W4.b, 16), ZERO))
    for j in range(3):
        for n in range(2): A(f"ds_read_u16_d16_hi {HR[2*j+n]}, {aHR[j]} offset:{64*n}")
    pp = geto("pp", 0)
    posdma(7); pos(7)
    if pp == 1: poll()
    A("s_waitcnt lgkmcnt(0)"); A("s_barrier")
    stamp(A, 8)
    if pp == 0: poll()
    for n in range(2):
        for k in range(5): A(f"ds_read_b32 {H[8*n+k]}, {aA} offset:{272*k + 128*n}")
        A(f"ds_read_u16 {H[8*n+5]}, {aWD} offset:{64*n}")
    for u in range(hp): posdma(npre + u)
    stub("poll", over=True)
    A("\n".join(need[:19]))
    A("s_waitcnt lgkmcnt(5)")
    frag(W4[0:4], 16384, 0, 0); frag(W4[4:8], 16384, 0, 1)
    for j in range(3):
        for n in range(2): A(f"ds_read_b32 {ZH[2*j+n]}, {aZ} offset:{40*272 + 544*j + 128*n}")
    A("\n".join(need[19:]))
    A("\n".join(defer[:nd])); defer = defer[nd:]
    stamp(A, 9)
    touch_local([0, 1], ["p3", "last"], "L_back2")
    XQ = Y[0]
    def xorall(r):
        A(f"v_bitop3_b32 {XQ}, {r[0]}, {r[1]}, {r[2]} bitop3:0x96"); A(f"v_bitop3_b32 {Y[1]}, {r[3]}, {r[4]}, {r[5]} bitop3:0x96")
        A(f"v_bitop3_b32 {XQ}, {XQ}, {r[6]}, {r[7]} bitop3:0x96"); A(f"v_xor_b32 {XQ}, {XQ}, {Y[1]}")
    PW = Y[8:20]; PA = TM[24:32]
    A(f"s_waitcnt vmcnt({hp}) lgkmcnt(0)")
    A("L_poll:")
    xorall([RP[i] for i in range(8)])
    pre = [x for i in range(3) for x in (f"v_cmp_ne_u32 {sM[2*i:2*i+2]}, 0, {RP[i]}", f"v_and_b32 {PA[i]}, 0x38, {RP[i]}")]
    for k, c in enumerate(("quad_perm:[1,0,3,2]", "quad_perm:[2,3,0,1]", "row_half_mirror")):
        A(pre[2*k]); A(pre[2*k+1]); A(f"v_xor_b32_dpp {XQ}, {XQ}, {XQ} {c} {dpp}")
    A(f"""
    v_cmp_ne_u32 vcc, {sK}, {XQ}
    s_add_u32 {sTo}, {sTo}, 1
    s_cbranch_vccz L_got
    """)
    if "fullre" not in OPT: A("s_mov_b64 exec, vcc")
    poll()
    A(f"""
    s_mov_b64 exec, -1
    s_cmp_le_u32 {sTo}, {TIMEOUT}
    s_waitcnt vmcnt(0)
    s_cbranch_scc1 L_poll
    s_mov_b32 {sOv}, 1
    L_got:
    """)
    stamp(A, 10)
    def notag(i, pat):
        A(f"s_and_b32 {sM[2*i]}, {sM[2*i]}, {pat}"); A(f"s_and_b32 {sM[2*i+1]}, {sM[2*i+1]}, {pat}")
    def atomics(idx, between=()):
        idx = list(idx); per = -(-len(between) // len(idx))
        for k, i in enumerate(idx):
            if i % 2 == 0: notag(i, "0xfefefefe")
            A(f"s_mov_b64 exec, {sM[2*i:2*i+2]}"); A(f"ds_add_rtn_u32 {PA[i]}, {PA[i]}, {v8}")
            if between: A("s_mov_b64 exec, -1"); A("\n".join(between[per*k:per*k+per]))
        if not between: A("s_mov_b64 exec, -1")
    def words(r, W, q):
        A(f"v_and_b32 {W[0]}, 0x3ffff, {r}"); A(f"v_lshrrev_b32 {W[1]}, 18, {r}"); A(f"v_add_u32 {W[0]}, {W[0]}, {vCB[q]}")
    def writes(idx, extra=0):
        for k, i in enumerate(idx):
            A(f"s_waitcnt lgkmcnt({len(idx)-1+extra})")
            A(f"s_mov_b64 exec, {sM[2*i:2*i+2]}"); A(f"ds_write_b64 {PA[i]}, {PW[2*k:2*k+2]}")
        A("s_mov_b64 exec, -1")
    def secloads(tag):
        for q in range(4):
            A(f"""
            s_mov_b64 exec, {sS2[2*q:2*q+2]}
            s_cbranch_execz L_{tag}{q}
            s_mov_b32 {sT[0]}, {SEC + 8192*q}
            buffer_load_dwordx2 {RS[q]}, {vRo}, {SX}, {sT[0]} offen sc1
            L_{tag}{q}:
            """)
        A("s_mov_b64 exec, -1")
    def read_idx(off=0):
        for i in range(4): A(f"ds_read_b32 {IX[2*i]}, {vAh} offset:{off + 64*i}")
        A(f"ds_read_b32 {IX[8]}, {vAe} offset:{off}")
    adv_idx = [f"v_add_u32 {vAh}, 512, {vAh}", f"v_add_u32 {vAe}, 512, {vAe}"]
    shift_e = f"v_lshrrev_b32 {IX[8]}, 6, {IX[8]}"
    E0 = Y[6:8]
    def dma_h(rng=range(4)):
        for i in rng:
            A(f"s_add_u32 m0, {sStg}, {1024*i}"); A("s_nop 0"); A(f"buffer_load_dwordx4 {IX[2*i:2*i+2]}, {SH}, 0 idxen offen sc1 lds")
    def dma_e():
        A(f"s_mov_b32 m0, {sEm}"); A("s_nop 0")
        A(f"buffer_load_dwordx4 {IX[8:10]}, {SE}, 0 idxen offen lds")
    read_first = read_idx
    def shift_first(): A(shift_e)
    atomics([0, 1])
    nb = geto("bpf", 16)
    def bpf():
        A(f"s_bfm_b64 exec, {nb}, 0"); A(f"buffer_load_dword {vJ}, {W2[15]}, {SH}, 0 idxen sc1"); A("s_mov_b64 exec, -1")
    if nb and "bfirst" in OPT: bpf()
    for k in range(2): words(RP[k], PW[2*k:2*k+2], 0)
    for i in range(3, 8): A(f"v_cmp_ne_u32 {sM[2*i:2*i+2]}, 0, {RP[i]}"); A(f"v_and_b32 {PA[i]}, 0x38, {RP[i]}")
    A(f"s_mov_b32 {sT[2]}, 0x01010101"); A(f"s_mov_b32 {sT[3]}, 0x01010101")
    for q in range(4):
        A(f"s_lshr_b64 {sS2[2*q:2*q+2]}, {sM[4*q+2:4*q+4]}, 7"); A(f"s_and_b64 {sS2[2*q:2*q+2]}, {sS2[2*q:2*q+2]}, {sT[2:4]}")
        for u in range(2): A(f"s_mulk_i32 {sS2[2*q+u]}, 255")
    writes([0, 1])
    if "prime" in OPT: A(f"s_waitcnt vmcnt({1 if nb and 'bfirst' in OPT else 0})")
    secloads("sl")
    for u in range(npre + hp, NP): posdma(u)
    if nb and "bfirst" not in OPT: bpf()
    stub("w0", over=True)
    A(f"s_cmp_ge_u32 {sW}, 4")
    A("s_waitcnt lgkmcnt(0)"); A("s_barrier")
    stamp(A, 16)
    def try_early(lab):
        shift_first()
        A(f"""
        v_max3_u32 {Y[4]}, {IX[0]}, {IX[2]}, {IX[4]}
        v_max_u32 {Y[4]}, {Y[4]}, {IX[6]}
        v_cmp_le_u32 vcc, {E}, {IX[8]}
        s_mov_b64 {sT[2:4]}, vcc
        v_cmp_le_u32 vcc, {N}, {Y[4]}
        s_or_b64 vcc, vcc, {sT[2:4]}
        s_cbranch_vccnz {lab}
        """)
        dma_e(); dma_h()
        A(f"s_mov_b32 {sEarly}, 1")
    A("s_cbranch_scc1 L_noread"); read_first(); A("L_noread:")
    atomics(range(2, 4))
    A(f"s_cmp_ge_u32 {sW}, 4"); A("s_cbranch_scc1 L_noearly"); A("s_waitcnt lgkmcnt(2)")
    try_early("L_noearly")
    A("L_noearly:")
    stamp(A, 17)
    stub("c", over=True)
    atomics(range(4, 8), defer)
    A("\n".join(bxc))
    for k in range(6): words(RP[2+k], PW[2*k:2*k+2], 1 + k // 2)
    RSf = [RS[q][i] for q in range(4) for i in range(2)]
    A(f"""
    s_cmp_eq_u32 {sEarly}, 0
    s_cbranch_scc1 L_w0
    s_waitcnt vmcnt(5)
    s_branch L_w1
    """)
    stub("p3", page="L_back2", dead=True)
    A(f"""
    L_w0:
    s_waitcnt vmcnt(0)
    L_w1:
    """)
    xorall(RSf)
    for k, c in enumerate(("quad_perm:[1,0,3,2]", "quad_perm:[2,3,0,1]", "row_half_mirror")):
        A("s_nop 1"); A(f"v_xor_b32_dpp {XQ}, {XQ}, {XQ} {c} {dpp}")
    A(f"""
    v_cmp_ne_u32 vcc, {sK}, {XQ}
    s_cbranch_vccnz L_sbad
    L_sgot:
    """)
    with cold():
        A(f"""
        L_sbad:
        v_xor_b32 {XQ}, {sK}, {XQ}
        v_and_b32 {XQ}, 0xffffff0f, {XQ}
        v_cmp_ne_u32 vcc, 0, {XQ}
        s_add_u32 {sTo}, {sTo}, 1
        s_cbranch_vccz L_stimeout
        s_cmp_gt_u32 {sTo}, {TIMEOUT}
        s_cbranch_scc1 L_stimeout
        """)
        secloads("rl")
        A(f"""
        s_branch L_w0
        L_stimeout:
        s_mov_b32 {sOv}, 1
        s_branch L_sgot
        """)
    writes(list(range(2, 8)))
    stamp(A, 18)
    def bp2(n):
        A(f"s_bfm_b64 exec, {n}, {nb}"); A(f"buffer_load_dword {vJ}, {W2[15]}, {SH}, 0 idxen sc1"); A("s_mov_b64 exec, -1")
    if geto("bp2", 0): bp2(geto("bp2", 0))
    if "ymid" in OPT:
        A(f"s_cmp_lt_u32 {sW}, 4"); A("s_cbranch_scc1 L_ym"); read_first(); A("s_waitcnt lgkmcnt(0)"); try_early("L_ym"); A("L_ym:")
    SWd = TM[0:16]; SA = Y[20:28]
    for i in range(8): A(f"v_cmp_ne_u32 {sM[2*i:2*i+2]}, 0, {RSf[i]}")
    for q in range(4):
        A(f"s_mov_b64 exec, {sM[4*q:4*q+2]}"); A(f"s_cbranch_execz L_sa{q}")
        notag(2*q+1, "0x7f7f7f7f")
        A(f"v_and_b32 {SA[2*q]}, 0x38, {RS[q][0]}"); A(f"v_and_b32 {SA[2*q+1]}, 0x38, {RS[q][1]}")
        A(f"ds_add_rtn_u32 {SA[2*q]}, {SA[2*q]}, {v8}")
        for i in range(2): words(RS[q][i], SWd[4*q+2*i:4*q+2*i+2], q)
        A(f"s_mov_b64 exec, {sM[4*q+2:4*q+4]}"); A(f"ds_add_rtn_u32 {SA[2*q+1]}, {SA[2*q+1]}, {v8}")
        A(f"L_sa{q}:")
    A("s_mov_b64 exec, -1")
    A("s_waitcnt lgkmcnt(5)")
    if "ymid" not in OPT: A(f"s_cmp_lt_u32 {sW}, 4"); A("s_cbranch_scc1 L_noread2"); read_first(); A("L_noread2:")
    for i in range(4): A(f"ds_write_b64 {aTz}, {ZERO} offset:{512*i}")
    stub("b5", over=True)
    A("s_waitcnt lgkmcnt(4)")
    for q in range(4):
        A(f"s_mov_b64 exec, {sM[4*q:4*q+2]}"); A(f"s_cbranch_execz L_sb{q}")
        A(f"ds_write_b64 {SA[2*q]}, {SWd[4*q:4*q+2]}")
        A(f"s_mov_b64 exec, {sM[4*q+2:4*q+4]}"); A(f"ds_write_b64 {SA[2*q+1]}, {SWd[4*q+2:4*q+4]}")
        A(f"L_sb{q}:")
    A(f"""
    s_mov_b64 exec, -1
    s_cmp_eq_u32 {sOv}, 0
    s_cbranch_scc1 L_noflag
    ds_write_b32 {ZERO[0]}, {v8} offset:{FLAG}
    L_noflag:
    """)
    stamp(A, 19)
    A(f"s_cmp_lt_u32 {sW}, 4"); A("s_cbranch_scc0 L_yng")
    if geto("bp3", 0): bp2(geto("bp3", 0))
    A("s_branch L_b6")
    A("L_yng:")
    if "ymid" not in OPT: try_early("L_b6")
    A(f"""
    L_b6:
    s_setprio 3
    s_waitcnt lgkmcnt(0)
    s_barrier
    ds_read_b32 {t0}, {aCn}
    """)
    A(f"""
    s_waitcnt lgkmcnt(0)
    v_cmp_gt_u32 vcc, {t0}, {vLim}
    v_readlane_b32 {sCnt}, {t0}, {sW}
    s_and_b32 {sSlow}, vcc_lo, 0x1ff
    s_sub_u32 {sCnt}, {sCnt}, {sLb}
    s_lshr_b32 {sCnt}, {sCnt}, 3
    s_cmp_eq_u32 {sSlow}, 0
    s_cselect_b32 {sCnt}, {sCnt}, 0
    s_cselect_b32 {sEarly}, {sEarly}, 0
    s_cselect_b32 {sScan}, {E}, 0
    s_cselect_b32 {sT[0]}, s2, 0
    s_or_b32 {sT[0]}, {sT[0]}, {sW}
    s_cbranch_scc0 L_epoch
    """)
    with cold():
        A(f"""
        L_epoch:
        v_mov_b32 {t0}, {EPO}
        s_mov_b64 exec, 1
        global_atomic_add {t0}, {v8}, {pWs}
        s_mov_b64 exec, -1
        s_branch L_round
        """)
    vAz = W2[8]; aPs = W2[9]; aPd = W2[10]; E2 = W2[12:14]
    slot_ops = [f"v_mov_b32 {vAz}, {vAt}", f"v_lshl_add_u32 {vAt}, {vSl}, 3, {vTrow}", f"v_lshlrev_b32 {vAl}, 4, {vSl}"]
    def derive_a(e=EN): return [f"v_mad_u32_u24 {aPs}, {e[1]}, 6, {sNq[1]}", f"v_and_b32 {vSl}, 7, {e[0]}", f"v_mad_u32_u24 {aPd}, {vSl}, 6, {sPd}"]
    def pos_reads():
        for i in range(3): A(f"ds_read_u16_d16_hi {PS[i]}, {aPs} offset:{2*i}")
        for i in range(3): A(f"ds_read_u16_d16_hi {PD[i]}, {aPd} offset:{2*i}")
    lut_read = f"ds_read_b96 {X[0:3]}, {vAl} offset:{LUT}"
    derive_b = lines(f"""
        v_sub_f32 {DT[0]}, {PD[0]}, {PS[0]}
        v_sub_f32 {DT[1]}, {PD[1]}, {PS[1]}
        v_sub_f32 {DT[2]}, {PD[2]}, {PS[2]}
        v_cvt_pk_bf16_f32 {D[0]}, {DT[0]}, {DT[1]}
        v_cvt_pk_bf16_f32 {D[1]}, {DT[2]}, 1.0
        v_lshlrev_b32 {DT[0]}, 16, {D[0]}
        v_and_b32 {DT[1]}, 0xffff0000, {D[0]}
        v_lshlrev_b32 {DT[2]}, 16, {D[1]}
        v_mul_f32 {DT[0]}, {DT[0]}, {DT[0]}
        v_fmac_f32 {DT[0]}, {DT[1]}, {DT[1]}
        v_fmac_f32 {DT[0]}, {DT[2]}, {DT[2]}
        v_cvt_pk_bf16_f32 {X[3]}, {DT[0]}, {DT[0]}
        """)
    read_entry = f"ds_read_b64 {EN}, {vAn}"; sEnd = sNq[0]; adv_n = [f"v_add_u32 {vAn}, 512, {vAn}", f"v_min_u32 {vAn}, {sEnd}, {vAn}"]
    flip_v = f"v_add_u32 {ERD}, {sEx}, {ERD}"
    def flip_s(): A(f"s_add_u32 {sEm}, {sEm}, {sEx}"); A(f"s_sub_u32 {sEx}, 0, {sEx}")
    def read_he():
        for s in range(4): A(f"ds_read_b128 {H[4*s:4*s+4]}, {HRD[s]}")
        A(f"ds_read_b128 {EA}, {ERD}")
    def m1(n, odd=0):
        y = Y[16*n:16*n+16]
        ops = [(X, (BXO if odd else BX)[4*n:4*n+4]), (EA, W4[4*n:4*n+4])] + [(H[8*n+4*s:8*n+4*s+4], PB[4*s:4*s+4]) for s in range(2)]
        return [f"{mf} {y}, {a}, {b}, {y if i else 0}" for i, (a, b) in enumerate(ops)]
    ndef = geto("def", 0)
    A("L_round:")
    A(f"""
    s_add_u32 {sNt}, {sCnt}, 31
    s_lshr_b32 {sNt}, {sNt}, 5
    s_cbranch_scc0 L_round_end
    s_lshl_b32 {sT[0]}, {sNt}, 5
    s_sub_u32 {sT[0]}, {sT[0]}, {sCnt}
    s_lshr_b32 {sEx}, {sT[0]}, 3
    s_lshl_b32 {sT[1]}, {sCnt}, 3
    v_add_u32 {t0}, {sT[1]}, {LO[2]}
    s_bfm_b64 exec, {sT[0]}, 0
    ds_write_b64 {t0}, {INV}
    s_mov_b64 exec, -1
    s_cmp_eq_u32 {sEarly}, 0
    s_cbranch_scc1 L_first
    """)
    with cold():
        A("L_first:"); A(f"v_mov_b32 {vAh}, {LO[0]}"); A(f"v_mov_b32 {vAe}, {LO[1]}")
        read_first(); A("s_waitcnt lgkmcnt(0)"); shift_first(); dma_e(); dma_h()
        A("s_branch L_prime")
    A(f"""
    L_prime:
    s_mov_b32 {sNq[1]}, {POS}
    s_lshl_b32 {sEnd}, {sNt}, 8
    s_add_u32 {sEnd}, {sEnd}, {sLb}
    s_sub_u32 {sEnd}, {sEnd}, 8
    v_lshl_add_u32 {vAn}, {vL}, 3, {sLb}
    v_min_u32 {vAn}, {sEnd}, {vAn}
    ds_read_b64 {D}, {vAn}
    {adv_n[0]}
    {adv_n[1]}
    ds_read_b64 {EN}, {vAn}
    v_mov_b32 {vAh}, {LO[0]}
    v_mov_b32 {vAe}, {LO[1]}
    """)
    read_idx(256); A("\n".join(adv_n))
    A(f"s_mov_b32 {sTi}, 1"); A(f"s_mov_b32 {sEarly}, 0")
    A("s_waitcnt lgkmcnt(5)")
    A("\n".join(derive_a(D))); pos_reads()
    for r in (TM[0:16], TM[16:32], Y[16:32]): A(zero16(r, ZERO))
    A("\n".join(slot_ops[1:] + slot_ops[:1] + derive_a()))
    A("s_waitcnt lgkmcnt(0)")
    A("\n".join(derive_b))
    stamp(A, 13)
    one = lambda r: f"v_mfma_f32_16x16x4_4b_bf16 {r}, {HALF}, {HALF}, {r}"
    PKS = [PK, W2[16:24]]
    def finish(o, part):
        t = TM[16*o:16*o+16]; y = Y[16*o:16*o+16]; pk = PKS[o]
        if part == "mul": return [f"v_mul_f32 {t[i]}, {y[i]}, {t[i]}" for i in range(16)]
        if part == "cvt": return [f"v_cvt_pk_bf16_f32 {pk[i]}, {t[2*i]}, {t[2*i+1]}" for i in range(8)]
        if part == "m2": return [f"{mf} {ACC[16*o:16*o+16]}, {pk[4*u:4*u+4]}, {A2[4*u:4*u+4]}, {ACC[16*o:16*o+16]}" for u in range(2)]
    def mt(k):
        if "loop" in OPT: A(f"s_memtime {sM[2*k:2*k+2]}")
    if "loop" in OPT:
        for k in range(6): A(f"s_mov_b32 {sS2[k]}, 0")
        mt(0)
    A("s_branch L_tile")
    stub("tile")
    m2 = finish(0, "m2") + finish(1, "m2")
    A(f".p2align {geto('al', 6)}")
    A("L_tile:")
    for odd in range(2):
        mt(1)
        for i in range(4): A(f"ds_read_b64_tr_b16 {A2[2*i:2*i+2]}, {vTtr} offset:{512*i}")
        A(f"ds_write_b64 {vAt if odd else vAz}, {ZERO}")
        A(f"s_mov_b32 exec_{'lo' if odd else 'hi'}, 0"); A(f"ds_write_b64 {vAt}, {D}"); A("s_mov_b64 exec, -1")
        if odd: A(read_entry); stub("odd", over=True)
        else: A(lut_read); pos_reads()
        A(f"s_waitcnt vmcnt(0) lgkmcnt({7 if odd else 9})")
        mt(2)
        read_he(); A(shift_e)
        a = m1(0, odd); b = m1(1, odd)
        tight = "loose" not in OPT
        if tight: A(f"s_mov_b32 m0, {sStg}")
        A(f"s_cmp_ge_u32 {sTi}, {sNt}")
        if tight: A("s_waitcnt lgkmcnt(5)"); A(a[0])
        A("s_waitcnt lgkmcnt(0)")
        mt(3)
        if tight:
            A(f"s_cbranch_scc1 L_last0")
            dm = lambda i: f"buffer_load_dwordx4 {IX[2*i:2*i+2]}, {SH if i < 4 else SE}, 0 idxen offen {'sc1 ' if i < 4 else ''}lds"
            gap = [a[1], f"s_add_u32 {sTi}, {sTi}, 1", f"ds_read_b32 {IX[0]}, {vAh} offset:{512 + 256*odd}", f"ds_read_b32 {IX[2]}, {vAh} offset:{512 + 256*odd + 64}"]
            for i in range(5):
                A(dm(i))
                if i < 4: A("s_add_u32 m0, m0, 1024"); A(gap[i])
            for i in (2, 3): A(f"ds_read_b32 {IX[2*i]}, {vAh} offset:{512 + 256*odd + 64*i}")
            A(f"ds_read_b32 {IX[8]}, {vAe} offset:{512 + 256*odd}")
        else:
            A(a[0]); A(a[1])
            A(f"s_cbranch_scc1 L_last")
            if "xnoh" not in OPT: dma_h()
            if "xnoe" not in OPT: dma_e()
        mt(4)
        if not tight: read_idx(512 + 256*odd)
        if "loop" in OPT:
            A("s_waitcnt lgkmcnt(0)")
            for k in range(4): A(f"s_sub_u32 s3, {sM[2*k+2]}, {sM[2*k]}"); A(f"s_add_u32 {sS2[k]}, {sS2[k]}, s3")
            A(f"s_mov_b32 {sM[0]}, {sM[8]}")
        if not tight: A(f"s_add_u32 {sTi}, {sTi}, 1")
        prio(0); A("\n".join(finish(1, "mul"))); prio(1)
        cv = finish(0, "cvt") + finish(1, "cvt")
        if odd: fill = cv + derive_b[3:11] + slot_ops + derive_a()[:2] + adv_n; tail2 = [derive_b[11], derive_a()[2]]; endf = adv_idx
        else: fill = cv + derive_b[:1]; tail2 = derive_b[1:3]; endf = []
        A(a[2]); A("\n".join(fill[:6])); A(a[3]); A("\n".join(fill[6:12])); A(b[0]); A("\n".join(fill[12:]))
        for i in range(16):
            if i in (0, 3, 6): A(b[1 + i // 3])
            if i == 10: A(m2[0])
            A(f"v_exp_f32 {TM[i]}, {Y[i]}")
        A("\n".join(tail2)); A(one(TM[0:16]))
        for i in range(16):
            if i in (4, 8): A(m2[i // 4])
            A(f"v_exp_f32 {TM[16+i]}, {Y[16+i]}")
        for i in range(32):
            if i == 2: A(one(TM[16:32]))
            if i == 6: A(m2[3])
            if i == 8 and "nop2" not in OPT: prio(2)
            if "xnorcp" not in OPT: A(f"v_rcp_f32 {TM[i]}, {TM[i]}")
        A("\n".join(finish(0, "mul") + endf)); prio(3)
    A("s_branch L_tile")
    WXR = [H[0:4], H[4:8], H[8:12], H[12:16], EA, X, A2[0:4], A2[4:8]]
    WF = [W2[0:16], R("v", W4.b, 16)]
    assert BX.b == W4.b + 8
    er = [f"ds_read_b64_tr_b16 {WF[n2][4*st+2*hf:4*st+2*hf+2]}, {DT[3] if n2 else vWb} offset:{(16*st + 8*hf)*128}" for n2 in range(2) for st in range(4) for hf in range(2)]
    er += [f"ds_read_b128 {WXR[i]}, {vAl} offset:{WX + 32*i}" for i in range(6)]
    SO = SY; B_ = Asm(); srd(B_, SO, pOut, N * 134)
    episc = B_.o + [f"s_lshl_b32 {sT[2]}, {sNn}, 2", f"s_bfm_b64 {sT[2:4]}, {sT[2]}, 0", f"s_and_b32 {sT[2]}, {sT[2]}, 0x77777"]
    epiaddr = lines(f"""
    v_lshrrev_b32 {DT[1]}, 2, {vL}
    v_and_b32 {DT[2]}, 3, {vL}
    v_add_u32 {DT[1]}, {sN0}, {DT[1]}
    v_mul_u32_u24 {DT[1]}, 6, {DT[1]}
    v_lshl_add_u32 {DT[1]}, {DT[2]}, 1, {DT[1]}
    v_add_u32 {DT[0]}, {POS}, {DT[1]}
    ds_read_u16_d16_hi {PS[0]}, {DT[0]}
    v_add_u32 {DT[0]}, {sN0}, {vHalf}
    v_lshlrev_b32 {DT[0]}, 7, {DT[0]}
    v_and_b32 {DT[2]}, 31, {vL}
    v_lshl_add_u32 {DT[0]}, {DT[2]}, 1, {DT[0]}
    v_add_u32 {DT[1]}, {N*128}, {DT[1]}
    v_xor_b32 {DT[3]}, 64, {vWb}
    v_lshlrev_b32 {vAl}, 4, {vHalf}
    """)
    stub("last", page="L_back2", dead=True)
    if tight: A("L_last0:"); A(a[1])
    A("L_last:")
    prio(0); A("\n".join(finish(1, "mul"))); prio(1)
    cv = finish(0, "cvt") + finish(1, "cvt") + epiaddr
    A(f"s_bitcmp1_b32 {sTi}, 0")
    A(a[2]); A("\n".join(cv[:6])); A(a[3]); A("\n".join(cv[6:11]))
    A("s_cbranch_scc1 L_le"); A(m1(1, 1)[0]); A("s_branch L_lo"); A("L_le:"); A(m1(1, 0)[0]); A("L_lo:")
    A("\n".join(cv[11:16])); A(b[1]); A("\n".join(cv[16:22])); A(b[2]); A("\n".join(cv[22:28])); A(b[3]); A("\n".join(cv[28:]))
    def enter(tag):
        if "notrim" in OPT: return
        for g in (3, 2, 1): A(f"s_cmp_eq_u32 {sEx}, {g}"); A(f"s_cbranch_scc1 L_{tag}{3-g}")
    A(f"s_cmp_lt_u32 {sScan}, {E}"); A("s_cbranch_scc1 L_nf1")
    A("\n".join(er[4:6])); A(m2[0]); A("\n".join(er[6:14]))
    A("L_nf1b:")
    with cold(): A("L_nf1:"); A(m2[0]); A("s_nop 4"); A("s_branch L_nf1b")
    enter("x")
    for g in (3, 2, 1, 0):
        A(f"L_x{g}:")
        for n in range(2):
            for i in range(4):
                if g == 0 and i == 0: A(m2[1 + n])
                A(f"v_exp_f32 {TM[16*n+4*g+i]}, {Y[16*n+4*g+i]}")
    A(f"s_cmp_lt_u32 {sScan}, {E}"); A(m2[3]); A("s_cbranch_scc1 L_nf2")
    A("s_waitcnt lgkmcnt(3)"); A("\n".join(er[0:4] + er[14:15])); A(one(TM[0:16])); A("\n".join(er[15:22])); A(one(TM[16:32]))
    A("L_nf2b:")
    with cold(): A("L_nf2:"); A(one(TM[0:16])); A(one(TM[16:32])); A("s_nop 3"); A("s_branch L_nf2b")
    A("s_waitcnt lgkmcnt(8)")
    for i in range(4): A(f"ds_read_b64_tr_b16 {A2[2*i:2*i+2]}, {vTtr} offset:{512*i}")
    A(f"ds_write_b64 {vAt}, {ZERO}")
    prio(geto("lq", 1)); stub("l2", over=True)
    enter("r")
    for g in (3, 2, 1, 0):
        A(f"L_r{g}:")
        idx = [16*n + 4*g + i for n in range(2) for i in range(4)]
        for i in idx: A(f"v_rcp_f32 {TM[i]}, {TM[i]}")
        for i in idx: A(f"v_mul_f32 {TM[i]}, {Y[i]}, {TM[i]}")
        for n in range(2):
            for i in range(2): A(finish(n, "cvt")[2*g+i])
        if g == 2: A("s_waitcnt lgkmcnt(0)"); A("s_nop 0"); A(m2[1]); A(m2[3])
    A(f"s_cmp_lt_u32 {sScan}, {E}"); A("s_waitcnt lgkmcnt(0)")
    A(m2[0]); A("s_cbranch_scc1 L_nf3"); A("\n".join(episc[:5])); A(m2[2])
    with cold(): A("L_nf3:"); A(m2[2]); A("s_branch L_more")
    prio(geto("lp", 0)); A("\n".join(episc[5:]))
    stub("epi", over=True)
    kcold = len(A.o)
    A("L_round_end:")
    A(f"s_cmp_lt_u32 {sScan}, {E}"); A("s_cbranch_scc1 L_more")
    A("\n".join(epiaddr + er[:11] + ["s_waitcnt lgkmcnt(0)"] + er[11:] + episc + ["s_waitcnt lgkmcnt(0)"])); A("s_branch L_epi")
    A("L_more:")
    A(f"s_cmp_lg_u32 {sScan}, 0"); A("s_cbranch_scc1 L_havetab")
    srd(A, SZ, pH, N, 128)
    FP = R("v", EA.b, 16)
    A(f"""
    v_lshlrev_b32 {t0}, 4, v0
    v_and_b32 {t1}, 16, {vL}
    v_lshlrev_b32 {t1}, 2, {t1}
    v_xor_b32 {t0}, {t0}, {t1}
    s_add_u32 m0, {sW10}, {STG}
    s_movk_i32 {sT[0]}, 8192
    s_lshl_b32 {sT[1]}, {sW}, 11
    s_add_u32 {sT[1]}, {sT[1]}, {WE}
    v_lshl_add_u32 {t2}, {vL}, 3, {sT[1]}
    s_waitcnt vmcnt(0)
    s_barrier
    ds_write_b64 {t2}, {ZERO}
    ds_write_b64 {t2}, {ZERO} offset:512
    ds_write_b64 {t2}, {ZERO} offset:1024
    ds_write_b64 {t2}, {ZERO} offset:1536
    buffer_load_dwordx4 {t0}, {SY}, {sT[0]} offen lds
    v_subrev_u32 {t0}, {WE - STG}, {vT1}
    v_xor_b32 {t1}, 64, {t0}
    v_and_b32 {EN[0]}, 31, {vL}
    v_lshl_add_u32 {EN[0]}, {sW}, 5, {EN[0]}
    v_lshlrev_b32 {EN[1]}, 4, {vHalf}
    v_lshlrev_b32 {D[1]}, 5, {vHalf}
    s_mov_b32 {sTi}, {sW}
    s_waitcnt vmcnt(0)
    s_barrier
    """)
    for n in range(2):
        for s_ in range(4):
            for half in range(2): A(f"ds_read_b64_tr_b16 {Y[16*n+4*s_+2*half:16*n+4*s_+2*half+2]}, {t1 if n else t0} offset:{(16*s_ + 4*half)*128}")
        A("s_waitcnt lgkmcnt(0)")
    A("L_tab:")
    for s_ in range(4): A(f"buffer_load_dwordx4 {H[4*s_:4*s_+4]}, {EN}, {SZ}, 0 idxen offen offset:{32*s_}")
    A(f"v_mov_b32 {D[0]}, {EN[0]}"); A(f"v_add_u32 {EN[0]}, 256, {EN[0]}")
    A("s_waitcnt vmcnt(0)")
    for n in range(2):
        for s_ in range(4): A(f"{mf} {TM[16*n:16*n+16]}, {Y[16*n+4*s_:16*n+4*s_+4]}, {H[4*s_:4*s_+4]}, {TM[16*n:16*n+16] if s_ else 0}")
    A("s_nop 11")
    for k in range(32): A(f"v_mul_f32 {TM[k]}, {NLOG2E:#x}, {TM[k]}")
    for k in range(16): A(f"v_cvt_pk_bf16_f32 {FP[k]}, {TM[2*k]}, {TM[2*k+1]}")
    for k in range(4): A(f"buffer_store_dwordx4 {FP[4*k:4*k+4]}, {D}, {SH}, 0 idxen offen offset:{64*(k//2) + 16*(k%2)} sc1")
    A(f"""
    s_add_u32 {sTi}, {sTi}, 8
    s_cmp_lt_u32 {sTi}, {(N + 31)//32}
    s_cbranch_scc1 L_tab
    s_waitcnt vmcnt(0)
    s_barrier
    L_havetab:
    """)
    A(f"s_mov_b32 {sCnt}, 0")
    A("L_scan:")
    Dd = H[0:4]; Ss = H[4:8]
    A(f"""
    s_lshl_b32 {sT[0]}, {sScan}, 2
    v_lshl_add_u32 {DT[0]}, {vL}, 4, {sT[0]}
    global_load_dwordx4 {Dd}, {DT[0]}, {pDst}
    global_load_dwordx4 {Ss}, {DT[0]}, {pSrc}
    v_lshlrev_b32 {DT[0]}, 4, {DT[0]}
    s_waitcnt vmcnt(0)
    """)
    for i in range(4):
        A(f"""
        v_subrev_u32 {DT[1]}, {sN0}, {Dd[i]}
        v_cmp_gt_u32 vcc, {sNn}, {DT[1]}
        v_add3_u32 {EN[0]}, {DT[0]}, {DT[1]}, 1
        v_mov_b32 {EN[1]}, {Ss[i]}
        v_mbcnt_lo_u32_b32 {DT[2]}, vcc_lo, 0
        v_mbcnt_hi_u32_b32 {DT[2]}, vcc_hi, {DT[2]}
        v_add_u32 {DT[2]}, {sCnt}, {DT[2]}
        v_lshl_add_u32 {DT[2]}, {DT[2]}, 3, {sLb}
        s_bcnt1_i32_b64 {sT[0]}, vcc
        s_add_u32 {sCnt}, {sCnt}, {sT[0]}
        s_mov_b64 exec, vcc
        ds_write_b64 {DT[2]}, {EN}
        s_mov_b64 exec, -1
        v_add_u32 {DT[0]}, 64, {DT[0]}
        """)
    A(f"""
    s_add_u32 {sScan}, {sScan}, 256
    s_cmp_ge_u32 {sScan}, {E}
    s_cbranch_scc1 L_round
    s_cmp_le_u32 {sCnt}, {CAP - 256}
    s_cbranch_scc1 L_scan
    s_branch L_round
    """)
    COLD.extend(A.o[kcold:]); del A.o[kcold:]
    A("L_epi:")
    stamp(A, 11)
    for i in (6, 7): A(f"ds_read_b128 {WXR[i]}, {vAl} offset:{WX + 32*i}")
    fm = [f"v_mul_f32 {DT[2]}, {ACC[0]}, {WXR[0][0]}"] + [f"v_fmac_f32 {DT[2]}, {ACC[i]}, {WXR[i//4][i%4]}" for i in range(1, 32)]
    zm = lambda st, n2: f"{mf} {TM[16*n2:16*n2+16]}, {Y[4*st:4*st+4]}, {WF[n2][4*st:4*st+4]}, {TM[16*n2:16*n2+16] if st else 0}"
    for st in range(4):
        v = [f"v_mul_f32 {ACC[8*st+i]}, {NLN2:#x}, {ACC[8*st+i]}" for i in range(8)] + [f"v_cvt_pk_bf16_f32 {Y[4*st+i]}, {ACC[8*st+2*i]}, {ACC[8*st+2*i+1]}" for i in range(4)]
        if st == 0: A("\n".join(v))
        else: A("\n".join(v[:2])); A(zm(st-1, 0)); A("\n".join(v[2:8])); A(zm(st-1, 1)); A("\n".join(v[8:]))
    A("\n".join(fm[:2])); A(zm(3, 0)); A("\n".join(fm[2:8])); A(zm(3, 1))
    A("\n".join(fm[8:24])); A("s_waitcnt lgkmcnt(0)"); A("\n".join(fm[24:]))
    A(f"v_mov_b32 {DT[3]}, {DT[2]}")
    TT = PK
    for n in range(2):
        for j in range(3):
            z = ZH[2*j+n]; t = TT[2*j+n]
            A(f"v_add_f32 {z}, {z}, {TM[16*n+4*j+3]}")
            A(f"v_mul_f32 {t}, {NLOG2E:#x}, {z}"); A(f"v_exp_f32 {t}, {t}")
            if n == 0 and j == 0: A(f"v_permlane32_swap_b32 {DT[2]}, {DT[3]}")
    A(f"v_add_f32 {DT[2]}, {DT[2]}, {DT[3]}"); A(f"v_add_f32 {DT[2]}, {DT[2]}, {PS[0]}"); A(f"v_cvt_pk_bf16_f32 {DT[2]}, {DT[2]}, {DT[2]}")
    A(f"s_mov_b64 exec, {sT[2:4]}"); A(f"buffer_store_short {DT[2]}, {DT[1]}, {SO}, 0 offen"); A("s_mov_b64 exec, -1")
    for i in range(6): A(f"v_add_f32 {TT[i]}, 1.0, {TT[i]}"); A(f"v_rcp_f32 {TT[i]}, {TT[i]}")
    A(f"s_cmp_eq_u32 {sNn}, 5")
    for j in range(3):
        if j == 2: A("s_cbranch_scc0 L_fin"); A("s_mov_b32 exec_hi, 0")
        for n in range(2): A(f"v_fmac_f32 {HR[2*j+n]}, {ZH[2*j+n]}, {TT[2*j+n]}")
        A(f"v_cvt_pk_bf16_f32 {HR[2*j]}, {HR[2*j]}, {HR[2*j+1]}")
        A(f"buffer_store_short {HR[2*j]}, {DT[0]}, {SO}, 0 offen offset:{256*j}")
        A(f"buffer_store_short_d16_hi {HR[2*j]}, {DT[0]}, {SO}, 0 offen offset:{256*j + 64}")
    A("L_fin:")
    if "stamp" in OPT:
        A("s_waitcnt vmcnt(0)"); A(f"v_writelane_b32 v255, {sTo}, 14"); A(f"v_writelane_b32 v255, {sNt}, 15")
        if "loop" in OPT:
            for k in range(6): A(f"v_writelane_b32 v255, {sS2[k]}, {23+k}")
    stamp(A, 12); stamp_out(A, pWs)
    A("L_done:"); A("s_endpgm")
    k = COLD.index("L_epoch:"); COLD[:] = COLD[k:k+6] + COLD[:k] + COLD[k+6:]
    A.o.extend(COLD)
    fl = "" if "oplain" in OPT else "sc1"
    A.o = [l + " " + fl if l.startswith("buffer_store_short") else l for l in A.o]
    print("vgprs", nv, "sgprs", S.n, "lds", LDS_MAIN, "instrs", len(A.o), file=sys.stderr)
    return A.text()

if __name__ == "__main__":
    OPT.update(sys.argv[2:])
    if "xto" in OPT: TIMEOUT = 50
    KN = "standalone__cheap_equivariant_egnn__graph_kernel"
    s = assemble([(KN, k_main(), 256)], [(KN, NB, 512, LDS_MAIN)], single=True).replace("next_free_sgpr 96", "next_free_sgpr 102")
    open(sys.argv[1], "w").write(s)
```

```python
from naive import *
TS = 200 << 20
def k_first():
    o = []; A = o.append
    A("s_memrealtime s[40:41]"); A("s_cmp_ge_u32 s2, 1"); A("s_cbranch_scc1 L_f_done")
    A("s_load_dwordx2 s[6:7], s[0:1], 80"); A("s_waitcnt lgkmcnt(0)")
    A("v_mov_b32 v2, s40"); A(f"v_mov_b32 v3, {TS}"); A("s_mov_b64 exec, 1"); A("global_store_dword v3, v2, s[6:7]")
    A("L_f_done:"); A("s_endpgm"); return fmt(o)
def k_lastk(n):
    o = []; A = o.append
    A(f"s_cmp_ge_u32 s2, {n}"); A("s_cbranch_scc1 L_l_done")
    A("s_load_dwordx2 s[6:7], s[0:1], 80"); A("s_waitcnt lgkmcnt(0)"); A(f"s_mov_b32 s8, {TS}"); A("s_load_dword s40, s[6:7], s8"); A("s_waitcnt lgkmcnt(0)")
    A("L_l_spin:"); A("s_memrealtime s[42:43]"); A("s_waitcnt lgkmcnt(0)"); A("s_sub_u32 s11, s42, s40"); A("s_cmp_lt_u32 s11, 100000"); A("s_cbranch_scc1 L_l_spin")
    A("L_l_done:"); A("s_endpgm"); return fmt(o)
small = (1, 64, 0, 16); big = (256, 512, 163072, 256); mid = (256, 512, 0, 32); one = (256, 64, 0, 16)
for name, f, l in (("v1", small, small), ("v2", big, small), ("v3", small, big), ("v4", mid, mid), ("v5", one, one), ("v6", big, big)):
    ks = [("first_kernel", k_first(), f[3]), ("zero_kernel", k_zero(), 16), ("edge_kernel", k_edge(), 168), ("node_kernel", k_node(), 168), ("last_kernel", k_lastk(l[0]), l[3])]
    ls = [("first_kernel", f[0], f[1], f[2]), ("zero_kernel", 665, 256, 0), ("edge_kernel", 2000, 256, 0), ("node_kernel", 500, 256, 0), ("last_kernel", l[0], l[1], l[2])]
    open(f"ov_{name}.s", "w").write(assemble(ks, ls))
```

```python
import sys, struct
from lib import *
N, E = 10000, 640000
NB, CH = 256, 2500
CAP = 416
NLOG2E = 0xbfb8aa3b
NLN2 = 0xbf317218
STR = 32768 + 128 * int(([a[3:] for a in sys.argv if a.startswith("str")] or [3])[0])
SEC = 128 * STR
EPO = 2 * SEC
BTO = 16 << 20
TIMEOUT = 20000
INV0 = 0xffffffc6
CNT, FLAG, LUT, WX = 0, 64, 128, 256
STG = 512
WE = STG + 8 * 5120
WH = WE + 18560
POS = WH + 16384
LIST = POS + 60032
LDS_MAIN = LIST + 8 * CAP * 8
BST = STG
BCN = BST + 256 * 144
TB = STG
HO = LIST + 512
HST = CAP * 8 + 16
BO = LIST + 1664
assert STG % 128 == 0 and WE % 128 == 0 and WH % 128 == 0 and LDS_MAIN <= 163840
OPT = set()
geto = lambda name, d: int([o for o in OPT if o.startswith(name)][0][len(name):]) if any(o.startswith(name) for o in OPT) else d
PEND = []
def stamp(A, i):
    if "marks" in OPT: A(f"M_{i}:")
    if "stamp" not in OPT: return
    k = len(PEND)
    if k >= 2: A(f"v_writelane_b32 v255, s{96+2*((k-2)%3)}, {PEND[k-2]}")
    A(f"s_memrealtime s[{96+2*(k%3)}:{97+2*(k%3)}]"); PEND.append(i)
def stamp_out(A, wsp):
    if "stamp" not in OPT: return
    A("s_waitcnt lgkmcnt(0)")
    k = len(PEND)
    for u in (k - 2, k - 1): A(f"v_writelane_b32 v255, s{96+2*(u%3)}, {PEND[u]}")
    A("s_mov_b64 exec, -1")
    A(f"v_lshrrev_b32 v1, 6, v0"); A(f"s_lshl_b32 s3, s2, 3"); A("v_add_u32 v1, s3, v1"); A("v_lshlrev_b32 v1, 7, v1"); A(f"v_add_u32 v1, {200<<20}, v1")
    A("v_and_b32 v2, 63, v0"); A("v_lshl_add_u32 v1, v2, 2, v1"); A("s_mov_b32 exec_hi, 0"); A(f"global_store_dword v1, v255, {wsp}")
    if "tl" in OPT: A("v_add_u32 v1, 0x100000, v1"); A(f"global_store_dword v1, v254, {wsp}")
def lines(s): return [l.strip() for l in s.strip().split("\n") if l.strip()]

def k_main():
    A = Asm(); COLD = []
    class cold:
        def __enter__(self): self.k = len(A.o)
        def __exit__(self, *a): COLD.extend(A.o[self.k:]); del A.o[self.k:]
    notouch = "notouch" in OPT
    def stub(name, over=False, page=None, dead=False):
        if notouch and not page: return
        if (over or page) and not dead: A(f"s_branch L_sk_{name}")
        if page: A(".p2align 12")
        if not notouch:
            A(f"L_st_{name}:"); A("s_branch L_back1")
            if page: A(f"L_lt_{name}:"); A(f"s_branch {page}")
        if (over or page) and not dead: A(f"L_sk_{name}:")
    def touch_local(w, name, back):
        if notouch: return
        for ww, nm in zip(w, name): A(f"s_cmp_eq_u32 {sW}, {ww}"); A(f"s_cbranch_scc1 L_lt_{nm}")
        A(f"{back}:")
    S = Regs("s", 26, 96); V = Regs("v", 1, 255)
    pH, pPos, pE, pSrc, pDst, pWe, pWx, pWh, pOut, pDbg, pWs = [R("s", 4 + 2 * i, 2) for i in range(11)]
    sW = S.alloc("wave"); sN0 = S.alloc("node0")
    SH = S.alloc("SH", 4, 4); SE = S.alloc("SE", 4, 4); SX = S.alloc("SX", 4, 4); SY = S.alloc("SY", 4, 4); SZ = S.alloc("SZ", 4, 4)
    sM = S.alloc("masks", 16, 2); sT = S.alloc("tmp", 4, 2); sS2 = S.alloc("secmask", 8, 2); sNq = S.alloc("nq", 4, 2)
    sStg = S.alloc("stg"); sLb = S.alloc("listbase"); sCnt = S.alloc("cnt"); sNt = S.alloc("nt"); sTi = S.alloc("ti")
    sSlow = S.alloc("slow"); sScan = S.alloc("scan"); sPd = S.alloc("pd"); sNn = S.alloc("nn")
    sNon = S.alloc("nonce"); sK = S.alloc("K"); sTo = S.alloc("to"); sEarly = S.alloc("early"); sW10 = S.alloc("w10"); sNb = S.alloc("nb0")
    sOv = S.alloc("ov"); sEm = pDbg[0]; sEx = pDbg[1]; sAg = pDbg[1]
    vL = V.alloc("lane"); vHalf = V.alloc("half"); vT1 = V.alloc("t1")
    W2 = V.alloc("W2", 32, 4); W4 = V.alloc("W4", 8, 4); BX = V.alloc("BX", 8, 4)
    ACC = V.alloc("ACC", 32, 4); Y = V.alloc("Y", 32, 4); TM = V.alloc("TM", 32, 4)
    H = V.alloc("H", 16, 4); EA = V.alloc("EA", 4, 4); X = V.alloc("X", 4, 4); A2 = V.alloc("A2", 8, 4); PK = V.alloc("PK", 8, 4)
    IX = V.alloc("IX", 10, 2); HRD = V.alloc("HRD", 4); ERD = V.alloc("ERD")
    vAh = V.alloc("Ah"); vAe = V.alloc("Ae"); vAn = V.alloc("An"); vTrow = V.alloc("Trow"); vTtr = V.alloc("Ttr")
    ZB = V.alloc("ZB", 16, 4); ZERO = ZB[0:2]; D = ZB[2:4]; PS = ZB[4:7]; PD = ZB[7:10]; HR = ZB[10:16]
    EN = V.alloc("EN", 2, 2); HALF = V.alloc("HALFC", 2, 2); INV = V.alloc("INV", 2, 2)
    vAt = V.alloc("At"); DT = V.alloc("DT", 4); vSl = V.alloc("Sl"); vAl = V.alloc("Al")
    ZH = V.alloc("ZH", 6); vWb = V.alloc("Wb"); LO = V.alloc("LO", 3)
    vJ = V.alloc("junk"); vCB = V.alloc("CB", 4); v8 = V.alloc("v8")
    nv = V.n
    mf = "v_mfma_f32_32x32x16_bf16"
    dpp = "row_mask:0xf bank_mask:0xf"
    prio = lambda p: A(f"s_setprio {p}") if "noprio" not in OPT else None
    zero16 = lambda r, z: f"v_mfma_f32_16x16x4_4b_bf16 {r}, {z}, {z}, 0"
    EXA = R("v", EA.b, 16)
    assert X.b == EA.b + 4 and A2.b == EA.b + 8
    DS = Y[0:5]; SR = Y[8:13]; RC = Y[16:21]; B4 = Y[21:26]; RT = Y[26:31]
    LE = H[0:5]; Z4 = H[8:12]; v4 = H[12]; c31 = H[13]
    aD4 = TM[0]; aD1 = TM[1]; aL = TM[2]; aC = TM[3]; aG = TM[4:6]; aS = TM[6:8]; vDs = TM[8]; vD = TM[9]; aWs = TM[10]
    aHj = TM[11]; aFj = TM[12]; aWj = TM[13]; aA = TM[14]; aZ = TM[15]; aHR = TM[16:19]; aWD = TM[19]; vT2 = TM[20]; aTz = TM[21]; aCn = TM[22]; vLim = TM[23]
    t0, t1, t2, t3 = DT[0], DT[1], DT[2], DT[3]
    RP = A2; RS = [EA[0:2], EA[2:4], X[0:2], X[2:4]]; vRo = vAt
    m5 = sM[10:12]
    if "stamp" in OPT: A("v_mov_b32 v255, 0")
    if "xskew" in OPT:
        A("s_and_b32 s3, s2, 7"); A("L_xs:"); A("s_cmp_eq_u32 s3, 0"); A("s_cbranch_scc1 L_xe"); A(f"s_sleep {geto('xsl', 2)}"); A("s_sub_u32 s3, s3, 1"); A("s_branch L_xs"); A("L_xe:")
    stamp(A, 0)
    A(f"""
    s_cmp_ge_u32 s2, {NB}
    s_cbranch_scc1 L_done
    s_load_dwordx16 s[4:19], s[0:1], 0
    s_load_dwordx4 s[20:23], s[0:1], 64
    s_load_dwordx2 s[24:25], s[0:1], 80
    v_lshrrev_b32 {vT1}, 6, v0
    v_and_b32 {vL}, 63, v0
    v_readfirstlane_b32 {sW}, {vT1}
    s_setprio 1
    """)
    t7 = "t7" in OPT
    def global_touch():
        if not notouch:
            names = ["sh", "b1", "y1", "y2", "p2", "b3", "poll", "w0", "c", "p3", "b5", "tile", "odd", "last", "l2", "epi"]
            nw = geto("tw", 1)
            if not t7: A(f"s_cmp_lt_u32 {sW}, {8 - nw}"); A("s_cbranch_scc1 L_back1")
            if "p7" in OPT: A("s_setprio 2")
            A(f"s_lshr_b32 s3, s2, 3")
            if nw > 1: A(f"s_mul_i32 s3, s3, {nw}"); A(f"s_add_u32 s3, s3, {sW}")
            A(f"s_and_b32 s3, s3, 15")
            for k, nm in enumerate(names): A(f"s_cmp_eq_u32 s3, {k}"); A(f"s_cbranch_scc1 L_st_{nm}")
            A("L_back1:")
    if not t7: global_touch()
    A(f"""
    s_mul_i32 s3, s2, {CH*4}
    v_lshl_add_u32 {aD4}, v0, 4, s3
    s_add_u32 s3, s3, 8192
    v_lshl_add_u32 {aD1}, v0, 2, s3
    v_cmp_gt_u32 vcc, {CH - 2048}, v0
    v_lshrrev_b32 {vHalf}, 5, {vL}
    s_mul_i32 {sT[0]}, s2, 5000
    s_add_u32 {sNb}, {sT[0]}, 127
    s_lshr_b32 {sNb}, {sNb}, 7
    s_mov_b64 {m5}, vcc
    s_lshl_b32 {sW10}, {sW}, 10
    s_mov_b32 {sT[1]}, {EPO}
    v_mov_b32 {Z4[0]}, 0
    v_mov_b32 {Z4[1]}, 0
    v_mov_b32 {Z4[2]}, 0
    v_mov_b32 {Z4[3]}, 0
    v_lshlrev_b32 {vD}, 4, v0
    v_lshrrev_b32 {EN[0]}, 3, v0
    v_mul_u32_u24 {vCB[0]}, {CH*64}, {EN[0]}
    v_add_u32 {EN[0]}, {sNb}, {EN[0]}
    v_and_b32 {EN[1]}, 0x70, {vD}
    v_and_b32 {c31}, 31, {vL}
    s_mul_i32 {sLb}, {sW}, {CAP*8}
    s_add_u32 {sLb}, {sLb}, {LIST}
    v_and_b32 {t3}, 16, {vL}
    v_lshlrev_b32 {t2}, 2, {t3}
    v_xor_b32 {vDs}, {vD}, {t2}
    s_add_u32 m0, {sW10}, {WE + 8192}
    s_movk_i32 {sT[3]}, 8192
    s_mov_b32 {SY[2]}, {145*128}
    s_mov_b32 {SY[3]}, 0x20000
    s_mov_b32 {SH[2]}, {N}
    s_mov_b32 {SH[3]}, 0x20000
    s_mul_i32 {sT[2]}, {sW}, {HST}
    s_waitcnt lgkmcnt(0)
    s_mov_b64 {SY[0:2]}, {pWe}
    s_mov_b32 {SH[0]}, {pH[0]}
    s_cmp_gt_u32 {sW}, 6
    s_cbranch_scc1 L_w2done
    buffer_load_dwordx4 {vDs}, {SY}, {sT[3]} offen lds
    s_cmp_lt_u32 {sW}, 6
    s_cbranch_scc1 L_w2done
    buffer_load_dwordx4 {vDs}, {SY}, {sT[3]} offen offset:1024 lds
    L_w2done:
    s_add_u32 m0, {sT[2]}, {HO}
    s_and_b32 {SH[1]}, {pH[1]}, 0xffff
    s_or_b32 {SH[1]}, {SH[1]}, 0x800000
    s_load_dword {sNon}, {pWs}, {sT[1]}
    s_cmp_ge_u32 {sW}, 5
    s_cbranch_scc1 L_share
    buffer_load_dwordx4 {EN}, {SH}, 0 idxen offen lds
    s_branch L_share_done
    """)
    stub("sh")
    A(f"""
    L_share:
    s_lshr_b32 {sT[0]}, s2, 3
    """)
    srd(A, SY, pPos, N * 6)
    A(f"s_mov_b32 {sT[2]}, 15")
    for w, (ptr, size, cnt) in ((6, (pWe, 145 * 128, 5)), (7, (pWh, 16384, 4))):
        A(f"""
        s_cmp_eq_u32 {sW}, {w}
        s_cselect_b64 {SY[0:2]}, {ptr}, {SY[0:2]}
        s_cselect_b32 {SY[2]}, {size}, {SY[2]}
        s_cselect_b32 {sT[2]}, {cnt}, {sT[2]}
        """)
    A(f"""
    s_mul_i32 {sT[0]}, {sT[0]}, {sT[2]}
    v_add_lshl_u32 {t2}, {vL}, {sT[0]}, 7
    s_bfm_b64 exec, {sT[2]}, 0
    buffer_load_dword {vJ}, {t2}, {SY}, 0 offen
    s_mov_b64 exec, -1
    L_share_done:
    """)
    for i in range(5): A(f"ds_write_b128 {vD}, {Z4} offset:{BST + 8192*i}")
    def ld(R_, p_):
        A(f"""
        global_load_dwordx4 {R_[0:4]}, {aD4}, {p_}
        s_mov_b64 exec, {m5}
        global_load_dword {R_[4]}, {aD1}, {p_}
        s_mov_b64 exec, -1
        """)
    dpos = geto("dpos", 0); spos = geto("spos", 3)
    def slot(k):
        if dpos == k: ld(DS, pDst)
        if spos == k: ld(SR, pSrc)
    slot(0)
    if "u7" in OPT: A(f"s_cmp_lt_u32 {sW}, 7"); A("s_cbranch_scc1 L_u7"); ld(SR, pSrc); A("L_u7:")
    A(zero16(ZB, Z4[0:2])); A(zero16(EXA, Z4[0:2]))
    A(f"""
    s_add_u32 {SH[0]}, {pWs[0]}, {BTO}
    s_addc_u32 {SH[1]}, {pWs[1]}, 0
    s_and_b32 {SH[1]}, {SH[1]}, 0xffff
    s_or_b32 {SH[1]}, {SH[1]}, 0x800000
    """)
    lo = sum(1 << ((k + 1) * 4 + (k >> 1)) for k in range(5) if k % 2 == 0)
    hi = sum(1 << ((k + 1) * 4 + (k >> 1)) for k in range(5) if k % 2 == 1)
    A(f"""
    v_mov_b32 {INV[0]}, {INV0:#x}
    v_mov_b32 {INV[1]}, {N}
    v_lshl_add_u32 {t0}, {vL}, 3, {sLb}
    ds_write_b64 {t0}, {INV}
    s_cmp_lg_u32 {sW}, 0
    s_cbranch_scc1 L_init_done
    v_lshrrev_b32 {t0}, 1, {vL}
    v_mul_u32_u24 {t0}, {CAP*8}, {t0}
    v_add_u32 {t0}, {LIST}, {t0}
    v_mov_b32 {t1}, 0x3f80
    s_mov_b64 {sT[2:4]}, 0xffff
    v_cndmask_b32 {t0}, 0, {t0}, {sT[2:4]}
    s_mov_b32 {sT[2]}, 0
    s_mov_b32 {sT[3]}, {lo:#x}
    v_cndmask_b32 {t0}, {t0}, {t1}, {sT[2:4]}
    s_mov_b32 {sT[3]}, {hi:#x}
    v_cndmask_b32 {t0}, {t0}, 1.0, {sT[2:4]}
    v_lshlrev_b32 {t1}, 2, {vL}
    ds_write_b32 {t1}, {t0}
    L_init_done:
    """)
    slot(1)
    if t7:
        A(f"s_cmp_lt_u32 {sW}, 7"); A("s_cbranch_scc1 L_n7"); ld(SR, pSrc); global_touch(); A("s_waitcnt lgkmcnt(0)"); A("s_barrier"); A("L_n7:")
    A(f"""
    v_mov_b32 {v4}, 4
    v_lshlrev_b32 {LE[0]}, 8, v0
    v_add_u32 {LE[1]}, 64, {LE[0]}
    v_add_u32 {LE[2]}, 128, {LE[0]}
    v_add_u32 {LE[3]}, 192, {LE[0]}
    v_lshlrev_b32 {LE[4]}, 6, v0
    v_add_u32 {LE[4]}, {2048*64}, {LE[4]}
    v_and_b32 {t0}, 3, {vL}
    v_lshlrev_b32 {t0}, 3, {t0}
    v_lshl_add_u32 {vTtr}, {t3}, 1, {t0}
    v_and_b32 {t1}, 12, {vL}
    v_lshl_add_u32 {t0}, {t1}, 5, {vTtr}
    v_lshl_add_u32 {vTtr}, {t1}, 4, {vTtr}
    v_and_b32 {t1}, 8, {vL}
    v_lshl_add_u32 {vWb}, {t1}, 3, {t0}
    v_lshl_add_u32 {t0}, {vHalf}, 10, {vWb}
    v_add_u32 {vT1}, {WE}, {t0}
    """)
    slot(2)
    A(f"""
    s_bfe_u32 {sT[0]}, {sW}, 0x10001
    s_mul_i32 {sT[0]}, {sT[0]}, 20
    v_add_u32 {aWj}, {sT[0]}, {c31}
    v_lshrrev_b32 {t1}, 3, {aWj}
    v_mul_u32_u24 {t1}, {HST - 1024}, {t1}
    v_lshl_add_u32 {aHj}, {aWj}, 7, {t1}
    v_lshl_add_u32 {aHj}, {vHalf}, 4, {aHj}
    v_add_u32 {aHj}, {HO}, {aHj}
    s_and_b32 {sT[1]}, {sW}, 1
    s_lshr_b32 {sT[2]}, {sW}, 2
    s_lshl_b32 {sT[0]}, {sT[1]}, 6
    s_mul_i32 {sT[3]}, {sT[2]}, {WH - WE}
    v_xor_b32 {aFj}, {sT[0]}, {vT1}
    v_add_u32 {aFj}, {sT[3]}, {aFj}
    s_lshl_b32 {sT[0]}, s2, 3
    s_add_u32 {sT[0]}, {sT[0]}, {sW}
    s_mul_i32 {sT[0]}, {sT[0]}, 625
    s_add_u32 {sN0}, {sT[0]}, 127
    s_lshr_b32 {sN0}, {sN0}, 7
    s_add_u32 {sNn}, {sT[0]}, {625 + 127}
    s_lshr_b32 {sNn}, {sNn}, 7
    s_sub_u32 {sNn}, {sNn}, {sN0}
    s_movk_i32 {sT[1]}, 120
    s_movk_i32 {sT[3]}, 8192
    """)
    aBw = TM[24]; aBr = TM[25]; aBs = TM[26:28]
    u0, u1 = sS2[0], sS2[1]
    stB = lines(f"""
    s_add_u32 {u0}, {sLb}, {BO - LIST}
    v_mul_u32_u24 {aBw}, 80, {c31}
    v_lshl_add_u32 {aBw}, {vHalf}, 5, {aBw}
    v_add_u32 {aBw}, {u0}, {aBw}
    v_lshrrev_b32 {t0}, 2, {vL}
    v_and_b32 {t1}, 48, {vD}
    v_mul_u32_u24 {aBr}, 80, {t0}
    v_add3_u32 {aBr}, {aBr}, {t1}, {u0}
    s_bfe_u32 {u0}, {sW}, 0x10001
    s_mul_i32 {u0}, {u0}, 20
    s_add_u32 {u0}, {u0}, {sNb}
    v_add_u32 {aBs[0]}, {u0}, {t0}
    s_and_b32 {u0}, {sW}, 1
    s_lshl_b32 {u0}, {u0}, 6
    v_add_u32 {aBs[1]}, {u0}, {t1}
    """)
    stG = lines(f"""
    v_lshrrev_b32 {t1}, 3, v0
    v_and_b32 {t0}, 0x70, {vD}
    v_mul_u32_u24 {aG[0]}, {STR}, {t1}
    s_lshl_b32 {u0}, s2, 7
    v_add3_u32 {aG[0]}, {aG[0]}, {t0}, {u0}
    v_add_u32 {aG[1]}, {64*STR}, {aG[0]}
    v_lshrrev_b32 {t1}, 1, {vL}
    v_and_b32 {t1}, 28, {t1}
    v_and_b32 {aC}, 4, {vL}
    v_lshl_add_u32 {aC}, {aC}, 3, {t1}
    v_lshl_add_u32 {aC}, {sW}, 6, {aC}
    v_and_b32 {t0}, 48, {vD}
    v_mad_u32_u24 {aL}, {aC}, 36, {t0}
    """)
    stL = lines(f"""
    v_add_u32 {aWs}, {WE + 8192}, {vD}
    s_lshl_b32 {u0}, {sW}, 11
    s_add_u32 {u0}, {u0}, {WE}
    s_sub_u32 {u1}, {u0}, 8
    v_lshl_add_u32 {vTtr}, {vHalf}, 8, {vTtr}
    v_add_u32 {vTtr}, {u0}, {vTtr}
    v_lshl_add_u32 {vTrow}, {c31}, 6, {u1}
    v_lshl_add_u32 {aTz}, {vL}, 3, {u0}
    v_lshl_add_u32 {vWb}, {vHalf}, 9, {vWb}
    v_add_u32 {vWb}, {WH + 8192}, {vWb}
    v_xor_b32 {vT2}, 64, {vT1}
    s_lshr_b32 {u0}, {sW}, 2
    s_mul_i32 {u0}, {u0}, {40*272}
    s_and_b32 {u1}, {sW}, 1
    s_lshl_b32 {u1}, {u1}, 7
    s_add_u32 {u0}, {u0}, {u1}
    s_add_u32 {u0}, {u0}, {TB}
    v_mul_u32_u24 {aWj}, 272, {aWj}
    v_lshl_add_u32 {aWj}, {vHalf}, 4, {aWj}
    v_add_u32 {aWj}, {u0}, {aWj}
    s_sub_u32 {u0}, {sN0}, {sNb}
    s_mul_i32 {u1}, {u0}, 272
    s_add_u32 {u1}, {u1}, {TB}
    v_lshl_add_u32 {aA}, {c31}, 2, {u1}
    v_mul_u32_u24 {aZ}, 272, {vHalf}
    v_add_u32 {aZ}, {aZ}, {aA}
    v_lshlrev_b32 {t2}, 1, {c31}
    v_add_u32 {aWD}, {WE + 18432}, {t2}
    v_add_u32 {t2}, {HO}, {t2}
    v_add_u32 {t0}, {u0}, {vHalf}
    s_movk_i32 {u0}, {HST - 1024}
    """)
    for j in range(3):
        stL += [f"v_lshrrev_b32 {t1}, 3, {t0}", f"v_lshl_add_u32 {aHR[j]}, {t0}, 7, {t2}", f"v_mad_u32_u24 {aHR[j]}, {t1}, {u0}, {aHR[j]}"]
        if j < 2: stL.append(f"v_add_u32 {t0}, 2, {t0}")
    if t7 or "u7" in OPT: A(f"s_cmp_eq_u32 {sW}, 7"); A("s_cbranch_scc1 L_n7b")
    slot(3)
    if t7 or "u7" in OPT: A("L_n7b:")
    srd(A, SX, pWs, 2 * SEC); srd(A, SY, pWe, 145 * 128); srd(A, SZ, pWh, 16384)
    if "xto" in OPT: A("s_cmp_eq_u32 s2, 5"); A(f"s_cselect_b32 {SX[2]}, 0, {SX[2]}")
    A("\n".join(stG + stL))
    touch_local([1], ["p2"], "L_back3")
    stub("b1", over=True)
    stamp(A, 1)
    BH = W2[0:16]; BF = W2[16:32]; BD = ACC[0:16]; BP = ACC[16:24]; BR = ACC[24:32]
    lab = {"n": 0}
    def old(fn):
        lab["n"] += 1; A(f"s_cmp_ge_u32 {sW}, 4"); A(f"s_cbranch_scc1 L_old{lab['n']}"); fn(); A(f"L_old{lab['n']}:")
    ny = 4 if spos < 4 else 2
    if "f2" in OPT:
        A("s_waitcnt lgkmcnt(0)"); stamp(A, 23); A(f"s_waitcnt vmcnt({ny + 1})"); stamp(A, 24); A("s_waitcnt lgkmcnt(0)"); A(f"s_waitcnt vmcnt({ny})"); stamp(A, 25)
    if t7: A(f"s_cmp_eq_u32 {sW}, 7"); A("s_cbranch_scc1 L_n7c")
    A(f"s_cmp_ge_u32 {sW}, 5"); A(f"s_waitcnt vmcnt({ny + 1}) lgkmcnt(0)"); A("s_cbranch_scc1 L_b1"); A(f"s_waitcnt vmcnt({ny})"); A("L_b1:"); A("s_barrier")
    if t7: A("L_n7c:")
    stamp(A, 29)
    slot(4)
    A(f"s_and_b32 {sNon}, {sNon}, -8")
    hashc = []
    for q in range(4):
        r = sNq[q]
        hashc.append(lines(f"""
        s_add_u32 {r}, {sNon}, {0x9e3779b8 + q:#x}
        s_mul_i32 {r}, {r}, 0x85ebca6b
        s_lshr_b32 s3, {r}, 15
        s_xor_b32 {r}, {r}, s3
        s_mul_i32 {r}, {r}, 0xc2b2ae35
        s_and_b32 {r}, {r}, -16
        s_or_b32 {r}, {r}, {1 << q}
        """))
    def b_reads():
        for s in range(4):
            A(f"ds_read_b128 {BH[4*s:4*s+4]}, {aHj} offset:{32*s}")
            for half in range(2): A(f"ds_read_b64_tr_b16 {BF[4*s+2*half:4*s+2*half+2]}, {aFj} offset:{8192 + (16*s + 4*half)*128}")
    st2 = lines(f"""
    s_mul_i32 {sStg}, {sW}, 5120
    s_add_u32 {sStg}, {sStg}, {STG}
    s_add_u32 {sEm}, {sStg}, 4096
    s_mul_i32 {sPd}, {sN0}, 6
    s_add_u32 {sPd}, {sPd}, {POS - 6}
    s_mov_b32 {sTo}, 0
    s_mov_b32 {sScan}, 0
    s_mov_b32 {sEarly}, 0
    s_mov_b32 {sOv}, 0
    v_and_b32 {t3}, 31, {vL}
    v_bfe_u32 {t0}, {vL}, 1, 3
    v_xor_b32 {t0}, {t0}, {vHalf}
    v_lshlrev_b32 {t0}, 4, {t0}
    v_lshl_add_u32 {t0}, {t3}, 7, {t0}
    v_add_u32 {HRD[0]}, {sStg}, {t0}
    v_xor_b32 {HRD[1]}, 32, {HRD[0]}
    v_xor_b32 {HRD[2]}, 64, {HRD[0]}
    v_xor_b32 {HRD[3]}, 0x60, {HRD[0]}
    v_bfe_u32 {t0}, {vL}, 3, 1
    v_xor_b32 {t0}, {t0}, {vHalf}
    v_lshlrev_b32 {t0}, 4, {t0}
    v_lshl_add_u32 {t0}, {t3}, 5, {t0}
    v_add_u32 {ERD}, {sEm}, {t0}
    v_lshl_add_u32 {LO[2]}, {t3}, 3, {sLb}
    v_and_b32 {t0}, 56, {vL}
    v_add3_u32 {LO[0]}, {t0}, {sLb}, 4
    v_lshrrev_b32 {t0}, 1, {vL}
    v_lshl_add_u32 {LO[1]}, {t0}, 3, {sLb}
    v_mov_b32 {vAh}, {LO[0]}
    v_mov_b32 {vAe}, {LO[1]}
    v_mov_b32 {HALF[0]}, 0x3f003f00
    v_mov_b32 {HALF[1]}, 0x3f003f00
    v_mov_b32 {v8}, 8
    v_add_u32 {vCB[1]}, {64*CH*64}, {vCB[0]}
    v_add_u32 {vCB[2]}, {128*CH*64}, {vCB[0]}
    v_add_u32 {vCB[3]}, {192*CH*64}, {vCB[0]}
    v_and_b32 {t0}, 15, {vL}
    v_lshlrev_b32 {aCn}, 3, {t0}
    v_mul_u32_u24 {vLim}, {CAP*8}, {t0}
    v_add_u32 {vLim}, {LIST + CAP*8}, {vLim}
    s_mov_b64 {sS2[4:6]}, 0xff
    v_cndmask_b32 {vLim}, 0, {vLim}, {sS2[4:6]}
    """)
    st2 += ["s_mov_b32 exec_lo, 0x80808080", "s_mov_b32 exec_hi, 0x80808080"] + [f"v_mov_b32 {RS[q][1]}, {sNq[q]}" for q in range(4)] + ["s_mov_b64 exec, -1"]
    st3 = lines(f"""
    v_and_b32 {t0}, 48, {vL}
    v_and_b32 {t1}, 0x70, {vD}
    v_xor_b32 {IX[1]}, {t0}, {t1}
    v_xor_b32 {IX[3]}, 64, {IX[1]}
    v_mov_b32 {IX[5]}, {IX[1]}
    v_mov_b32 {IX[7]}, {IX[3]}
    v_and_b32 {IX[9]}, 16, {IX[1]}
    """) + [f"v_mov_b32 {IX[2*i]}, -1" for i in range(5)]
    A(f"s_cmp_ge_u32 {sW}, 4"); A("s_cbranch_scc1 L_y1")
    b_reads()
    A("\n".join(stB))
    for s in range(4):
        A(f"s_waitcnt lgkmcnt({9 - 3*s})"); A(f"{mf} {BD}, {BF[4*s:4*s+4]}, {BH[4*s:4*s+4]}, {BD if s else 0}")
    A("\n".join(x for q in range(2) for x in hashc[q]))
    for k in range(16): A(f"v_mul_f32 {BD[k]}, {NLOG2E:#x}, {BD[k]}")
    for k in range(8): A(f"v_cvt_pk_bf16_f32 {BP[k]}, {BD[2*k]}, {BD[2*k+1]}")
    A("s_mov_b32 exec_lo, 0xfffff"); A("s_mov_b32 exec_hi, 0xfffff")
    for k in range(2): A(f"ds_write_b128 {aBw}, {BP[4*k:4*k+4]} offset:{16*k}")
    A("s_mov_b64 exec, -1")
    for k in range(2): A(f"ds_read_b128 {BR[4*k:4*k+4]}, {aBr} offset:{1280*k}")
    A("\n".join(x for q in range(2, 4) for x in hashc[q]))
    if "xto" in OPT: A("s_cmp_eq_u32 s2, 5"); A(f"s_cselect_b32 {SH[2]}, 0, {SH[2]}")
    A("s_waitcnt lgkmcnt(0)")
    A(f"buffer_store_dwordx4 {BR[0:4]}, {aBs}, {SH}, 0 idxen offen sc1")
    A(f"v_add_u32 {aBs[0]}, 16, {aBs[0]}"); A("s_mov_b64 exec, 0xffff")
    A(f"buffer_store_dwordx4 {BR[4:8]}, {aBs}, {SH}, 0 idxen offen sc1")
    A("s_mov_b64 exec, -1")
    A("s_waitcnt vmcnt(4)")
    A("s_branch L_y2")
    stub("y1")
    A("L_y1:")
    for s in range(4): A(f"ds_read_b128 {BH[4*s:4*s+4]}, {aHj} offset:{32*s}")
    WB = PK[4:8]
    def tables():
        A(f"""
        s_add_u32 m0, {sW10}, {WE}
        s_nop 0
        buffer_load_dwordx4 {vDs}, {SY}, 0 offen lds
        s_add_u32 m0, {sW10}, {WH}
        s_nop 0
        buffer_load_dwordx4 {vDs}, {SZ}, 0 offen lds
        s_add_u32 m0, {sW10}, {WH + 8192}
        s_nop 0
        buffer_load_dwordx4 {vDs}, {SZ}, {sT[3]} offen lds
        """)
    ty = "tlate" not in OPT
    A("\n".join(x for q in range(4) for x in hashc[q]))
    if ty: tables()
    stub("y2", over=True)
    A(f"s_waitcnt vmcnt({5 if ty else 2})")
    if "yp1" in OPT: A("s_setprio 2")
    A("L_y2:")
    if "xto" in OPT: A(f"s_mov_b32 {SH[2]}, {N}")
    stamp(A, 2)
    for i in range(5):
        if i == 4: A(f"s_mov_b64 exec, {m5}")
        A(f"""
        v_mul_u32_u24 {RC[i]}, 429497, {DS[i]}
        v_lshrrev_b32 {B4[i]}, 22, {RC[i]}
        v_and_b32 {B4[i]}, -4, {B4[i]}
        ds_add_rtn_u32 {RT[i]}, {B4[i]}, {v4} offset:{BCN}
        """)
    A("s_mov_b64 exec, -1")
    for i in range(5):
        A(f"""
        v_lshrrev_b32 {RC[i]}, 21, {RC[i]}
        v_mul_u32_u24 {RC[i]}, 399, {RC[i]}
        v_lshrrev_b32 {RC[i]}, 7, {RC[i]}
        v_add3_u32 {RC[i]}, {RC[i]}, {DS[i]}, 1
        v_and_or_b32 {RC[i]}, {RC[i]}, 63, {LE[i]}
        """)
    A(f"""
    s_xor_b32 {sK}, {sNq[0]}, {sNq[1]}
    s_xor_b32 {sK}, {sK}, {sNq[2]}
    s_xor_b32 {sK}, {sK}, {sNq[3]}
    s_bitcmp1_b32 s2, 6
    s_cselect_b32 {sNon}, {sNq[1]}, {sNq[0]}
    s_cselect_b32 s3, {sNq[3]}, {sNq[2]}
    s_bitcmp1_b32 s2, 7
    s_cselect_b32 {sNon}, s3, {sNon}
    """)
    stamp(A, 3)
    if ty: A(f"s_cmp_ge_u32 {sW}, 4"); A("s_waitcnt vmcnt(3) lgkmcnt(0)"); A("s_cbranch_scc1 L_srcok"); A("s_waitcnt vmcnt(2)"); A("L_srcok:")
    else: A(f"s_cmp_ge_u32 {sW}, 4"); A("s_waitcnt vmcnt(2) lgkmcnt(0)"); A("s_cbranch_scc0 L_srcok"); A("s_waitcnt vmcnt(0)"); A("L_srcok:")
    stamp(A, 4)
    for i in range(5):
        if i == 4: A(f"s_mov_b64 exec, {m5}")
        A(f"v_min_u32 {RT[i]}, 120, {RT[i]}"); A(f"v_lshl_or_b32 {RC[i]}, {SR[i]}, 18, {RC[i]}"); A(f"v_mad_u32_u24 {RT[i]}, {B4[i]}, 36, {RT[i]}")
        A(f"ds_write_b32 {RT[i]}, {RC[i]} offset:{BST + 4}")
    A("s_mov_b64 exec, -1")
    A(f"""
    s_cmp_gt_u32 {sW}, 3
    s_cbranch_scc1 L_odone
    s_cbranch_scc0 L_o0
    L_o3:
    v_lshlrev_b32 {t0}, 1, {vL}
    global_load_ushort {WB[0]}, {t0}, {pWx}
    s_branch L_odone
    L_o1:
    s_mov_b32 {sT[2]}, {129*128 - 1024}
    buffer_load_dwordx4 {WB}, {vDs}, {SY}, {sT[2]} offen
    s_branch L_odone
    L_o0:
    s_cmp_eq_u32 {sW}, 3
    s_cbranch_scc1 L_o3
    s_cmp_lg_u32 {sW}, 0
    s_cbranch_scc1 L_o1
    v_lshlrev_b32 {t0}, 2, {vL}
    s_mov_b32 m0, {WE + 18432}
    s_mov_b32 {sT[2]}, 16384
    s_mov_b32 exec_hi, 0
    buffer_load_dword {t0}, {SY}, {sT[2]} offen lds
    s_mov_b64 exec, -1
    L_odone:
    """.replace("s_cbranch_scc0 L_o0", "s_branch L_o0"))
    if ty: old(tables)
    else: tables()
    stub("p2", page="L_back3")
    srd(A, SZ, pPos, N * 6)
    def poll():
        for q in range(4): A(f"buffer_load_dwordx2 {RP[2*q:2*q+2]}, {vRo}, {SX}, {sS2[q-1] if q else 0} offen {'sc0 sc1' if 'sys' in OPT else 'sc1'}")
    def posdma(k):
        if k < 7:
            A(f"s_add_u32 m0, {sW10}, {POS + 8192*k}"); A(f"s_mov_b32 {sT[0]}, {8192*k}"); A(f"buffer_load_dwordx4 {vD}, {SZ}, {sT[0]} offen lds")
        else:
            A(f"""
            s_cmp_gt_u32 {sW}, 2
            s_cbranch_scc1 L_ptail
            v_add_u32 {vSl}, {8192*7}, {vD}
            s_add_u32 m0, {sW10}, {POS + 8192*7}
            v_cmpx_gt_u32 vcc, 60032, {vSl}
            buffer_load_dwordx4 {vSl}, {SZ}, 0 offen lds
            s_mov_b64 exec, -1
            L_ptail:
            """)
    n0 = geto("pz", 3)
    old(lambda: A("s_waitcnt vmcnt(4)")) if "ackfirst" in OPT else None
    for u in range(n0): posdma(6 - u)
    stamp(A, 22)
    PR = [Y[0:4], Y[4:8]]; SC = [Y[8:12], Y[12:16]]; CN = Y[16:18]; XR = Y[20:24]; ST = Y[24:26]
    A(f"""
    s_mov_b32 {sM[0]}, 0x11111111
    s_mov_b32 {sM[1]}, 0x11111111
    s_mov_b32 {sM[2]}, 0x88888888
    s_mov_b32 {sM[3]}, 0x88888888
    s_and_b32 s3, {sNon}, 15
    s_lshl_b32 s3, s3, 4
    s_xor_b32 s3, s3, {sNon}
    v_mov_b32 {t0}, {sNon}
    v_mov_b32 {t1}, s3
    """)
    old(lambda: A(f"s_waitcnt vmcnt({4 + n0})"))
    A(f"""
    s_waitcnt lgkmcnt(0)
    s_barrier
    """)
    stamp(A, 5)
    for i in range(2): A(f"ds_read_b128 {PR[i]}, {aL} offset:{BST + 18432*i}")
    for i in range(2): A(f"ds_read_b128 {SC[i]}, {aL} offset:{BST + 18432*i + 64}"); A(f"ds_read_b32 {CN[i]}, {aC} offset:{BCN + 512*i}")
    A(f"s_mov_b32 {sT[2]}, {SEC}")
    def xor4(x, r):
        A(f"v_bitop3_b32 {x}, {r[0]}, {r[1]}, {r[2]} bitop3:0x96"); A(f"v_xor_b32 {x}, {x}, {r[3]}")
    A("s_waitcnt lgkmcnt(4)")
    for i in range(2): xor4(XR[i], PR[i])
    A("s_nop 0")
    for i in range(2): A(f"v_xor_b32_dpp {XR[i]}, {XR[i]}, {XR[i]} quad_perm:[1,0,3,2] {dpp}")
    A("s_nop 0")
    for i in range(2): A(f"v_xor_b32_dpp {XR[i]}, {XR[i]}, {XR[i]} quad_perm:[2,3,0,1] {dpp}")
    A(f"s_mov_b64 exec, {sM[0:2]}")
    for i in range(2): A(f"v_xor_b32 {PR[i][0]}, {XR[i]}, {t0}")
    A("s_mov_b64 exec, -1")
    for i in range(2): A(f"buffer_store_dwordx4 {PR[i]}, {aG[i]}, {SX}, 0 offen sc1")
    A("s_waitcnt lgkmcnt(0)")
    for i in range(2): A(f"v_cndmask_b32 {SC[i][3]}, {SC[i][3]}, 0, {sM[2:4]}")
    for i in range(2): xor4(XR[2+i], SC[i])
    for i in range(2):
        A(f"v_cmp_le_u32 {sM[4+2*i:6+2*i]}, 60, {CN[i]}"); A(f"v_cmp_lt_u32 {sM[8+2*i:10+2*i]}, {sT[1]}, {CN[i]}")
    for i in range(2): A(f"v_xor_b32_dpp {XR[2+i]}, {XR[2+i]}, {XR[2+i]} quad_perm:[1,0,3,2] {dpp}")
    for i in range(2): A(f"v_cndmask_b32 {aS[i]}, -2.0, {aG[i]}, {sM[4+2*i:6+2*i]}")
    for i in range(2): A(f"v_xor_b32_dpp {XR[2+i]}, {XR[2+i]}, {XR[2+i]} quad_perm:[2,3,0,1] {dpp}")
    for i in range(2): A(f"v_cndmask_b32 {ST[i]}, {t0}, {t1}, {sM[8+2*i:10+2*i]}")
    A(f"s_mov_b64 exec, {sM[2:4]}")
    for i in range(2): A(f"v_xor_b32 {SC[i][3]}, {XR[2+i]}, {ST[i]}")
    if "sfull" in OPT: A("s_mov_b64 exec, -1")
    for i in range(2):
        if "sfull" not in OPT: A(f"s_or_b64 exec, {sM[4+2*i:6+2*i]}, 1")
        A(f"buffer_store_dwordx4 {SC[i]}, {aS[i]}, {SX}, {sT[2]} offen sc1")
    A("s_mov_b64 exec, -1")
    stamp(A, 6)
    A(f"s_waitcnt vmcnt({4 + n0})")
    def scale(r):
        for i in range(4):
            A(f"v_lshlrev_b32 {t0}, 16, {r[i]}"); A(f"v_and_b32 {t1}, 0xffff0000, {r[i]}")
            A(f"v_mul_f32 {t0}, {NLOG2E:#x}, {t0}"); A(f"v_mul_f32 {t1}, {NLOG2E:#x}, {t1}"); A(f"v_cvt_pk_bf16_f32 {r[i]}, {t0}, {t1}")
    stub("b3", over=True)
    if "yp2" in OPT: old(lambda: A("s_setprio 0"))
    else: A("s_setprio 0")
    A("s_barrier")
    stamp(A, 7)
    WD = D
    def frag(dst, base, s, n):
        for half in range(2): A(f"ds_read_b64_tr_b16 {dst[2*half:2*half+2]}, {vT2 if n else vT1} offset:{base + (16*s + 4*half)*128}")
    def frags(dst, base, n):
        for s in range(4): frag(dst[16*n+4*s:16*n+4*s+4], base, s, n)
    NP = 7 - n0; npre = min(NP, geto("npre", 3)); hp = min(NP - npre, geto("npost", 1))
    JF = Y[0:16]; JD = Y[16:32]; PB = W2[0:8]
    B_ = Asm(); srd(B_, SE, pE, E, 32)
    stat = st3 + B_.o + st2 + lines(f"""
        s_and_b32 {sT[0]}, s2, 0xc0
        s_bfe_u32 s3, s2, 0x30003
        s_add_u32 {sT[0]}, {sT[0]}, s3
        s_lshl_b32 s3, {sW}, 3
        s_add_u32 {sT[0]}, {sT[0]}, s3
        s_mul_i32 {sT[0]}, {sT[0]}, 5000
        s_add_u32 {sT[0]}, {sT[0]}, 127
        s_lshr_b32 {sT[0]}, {sT[0]}, 7
        v_add_u32 {W2[15]}, {sT[0]}, {vL}
        """)
    c1 = 17
    r2 = stat[c1:]
    need = r2[0:9] + r2[24:30] + r2[32:36] + r2[42:]
    defer = r2[9:24] + r2[30:32] + [x.replace(str(sS2[4:6]), "vcc").replace("v_cndmask_b32", "v_cndmask_b32_e64") for x in r2[36:42]]
    defer += [f"s_mov_b32 vcc_lo, 0xaaaaaaaa", f"s_mov_b32 vcc_hi, 0xaaaaaaaa", f"v_mov_b32 {t0}, 0x3f80", f"v_cndmask_b32_e64 {t0}, {t0}, 1.0, vcc", f"s_mov_b32 {sNq[2]}, 3", f"s_mov_b32 {sNq[3]}, 0x30000"]
    for r in range(8):
        b = (r >> 2) * 4 + ((r >> 1) & 1) * 8 + (r & 1) * 2
        defer += [f"s_lshl_b64 vcc, {sNq[2:4]}, {b}", f"v_cndmask_b32_e64 {PB[r]}, 0, {t0}, vcc"]
    defer = [x.replace("vcc_lo", str(sT[2])).replace("vcc_hi", str(sT[3])).replace("vcc", str(sT[2:4])) for x in defer]
    BXO = W2[24:32]
    for n in range(2):
        a = H[8*n:8*n+8]
        defer += [f"v_lshlrev_b32 {a[5]}, 16, {a[5]}"] + [f"v_mul_f32 {a[i]}, {NLOG2E:#x}, {a[i]}" for i in range(6)] + [f"v_and_b32 {a[6]}, 0xffff0000, {a[5]}", f"v_sub_f32 {a[7]}, {a[5]}, {a[6]}"]
    bxc = []
    for hf, BB in enumerate((BX, BXO)):
        bxc += [f"s_mov_b32 exec_lo, {0 if hf else -1}", f"s_mov_b32 exec_hi, {-1 if hf else 0}"]
        for n in range(2):
            a = H[8*n:8*n+8]; B = BB[4*n:4*n+4]
            bxc += [f"v_cvt_pk_bf16_f32 {B[0]}, {a[0]}, {a[1]}", f"v_cvt_pk_bf16_f32 {B[1]}, {a[2]}, {a[3]}", f"v_cvt_pk_bf16_f32 {B[2]}, {a[4]}, 0", f"v_cvt_pk_bf16_f32 {B[3]}, {a[6]}, {a[7]}"]
    bxc += ["s_mov_b64 exec, -1"]
    nd = geto("nd", 23)
    pq = list(range(npre))
    def pos(n):
        for _ in range(n):
            if pq: posdma(pq.pop(0))
    for s in range(4):
        for half in range(2): A(f"ds_read_b64_tr_b16 {JF[4*s+2*half:4*s+2*half+2]}, {aFj} offset:{(16*s + 4*half)*128}")
    late = "pearly" not in OPT
    if not late: posdma(7); pos(1)
    A("\n".join(stat[:c1 - 5 * late]))
    for s in range(4):
        A(f"s_waitcnt lgkmcnt({6 - 2*s})")
        A(f"{mf} {JD}, {JF[4*s:4*s+4]}, {BH[4*s:4*s+4]}, {JD if s else 0}")
    if late: A("\n".join(stat[c1-5:c1]))
    else: pos(2)
    A(f"""
    s_lshr_b32 {sT[0]}, s2, 4
    s_lshl_b32 {sT[0]}, {sT[0]}, 3
    s_and_b32 s3, s2, 7
    s_add_u32 {sT[0]}, {sT[0]}, s3
    s_mul_i32 {sT[0]}, {sT[0]}, {STR}
    s_and_b32 s3, s2, 8
    s_lshl_b32 s3, s3, 3
    s_add_u32 {sT[0]}, {sT[0]}, s3
    v_and_b32 {t0}, 7, v0
    v_and_b32 {vRo}, 0xffffff80, {vD}
    v_lshl_add_u32 {vRo}, {t0}, 3, {vRo}
    v_add_u32 {vRo}, {sT[0]}, {vRo}
    s_movk_i32 {sS2[0]}, 8192
    s_movk_i32 {sS2[1]}, 16384
    s_movk_i32 {sS2[2]}, 24576
    s_mov_b32 exec_lo, 0xfffff
    s_mov_b32 exec_hi, 0xfffff
    """)
    for i in range(4): A(f"ds_write_b128 {aWj}, {JD[4*i:4*i+4]} offset:{32*i}")
    A("s_mov_b64 exec, -1")
    A(f"s_sub_u32 s3, {sW}, 1"); A("s_cmp_gt_u32 s3, 2"); A("s_cbranch_scc1 L_nowx"); A(f"s_cmp_eq_u32 s3, 2"); A("s_cbranch_scc1 L_wx")
    scale(WB)
    A(f"""
    ds_write_b128 {aWs}, {WB} offset:{8192 - 1024}
    s_branch L_nowx
    """)
    A(f"""
    L_wx:
    v_lshlrev_b32 {WB[0]}, 16, {WB[0]}
    v_lshlrev_b32 {t0}, 2, {vL}
    ds_write_b32 {t0}, {WB[0]} offset:{WX}
    L_nowx:
    """)
    A(zero16(ACC[0:16], ZERO)); A(zero16(ACC[16:32], ZERO)); A(zero16(W2[16:32], ZERO)); A(zero16(R("v", W4.b, 16), ZERO))
    for j in range(3):
        for n in range(2): A(f"ds_read_u16_d16_hi {HR[2*j+n]}, {aHR[j]} offset:{64*n}")
    pp = geto("pp", 0)
    posdma(7); pos(7)
    if pp == 1: poll()
    A("s_waitcnt lgkmcnt(0)"); A("s_barrier")
    stamp(A, 8)
    if pp == 0: poll()
    for n in range(2):
        for k in range(5): A(f"ds_read_b32 {H[8*n+k]}, {aA} offset:{272*k + 128*n}")
        A(f"ds_read_u16 {H[8*n+5]}, {aWD} offset:{64*n}")
    for u in range(hp): posdma(npre + u)
    stub("poll", over=True)
    A("\n".join(need[:19]))
    A("s_waitcnt lgkmcnt(5)")
    frag(W4[0:4], 16384, 0, 0); frag(W4[4:8], 16384, 0, 1)
    for j in range(3):
        for n in range(2): A(f"ds_read_b32 {ZH[2*j+n]}, {aZ} offset:{40*272 + 544*j + 128*n}")
    A("\n".join(need[19:]))
    A("\n".join(defer[:nd])); defer = defer[nd:]
    stamp(A, 9)
    touch_local([0, 1], ["p3", "last"], "L_back2")
    XQ = Y[0]
    def xorall(r):
        A(f"v_bitop3_b32 {XQ}, {r[0]}, {r[1]}, {r[2]} bitop3:0x96"); A(f"v_bitop3_b32 {Y[1]}, {r[3]}, {r[4]}, {r[5]} bitop3:0x96")
        A(f"v_bitop3_b32 {XQ}, {XQ}, {r[6]}, {r[7]} bitop3:0x96"); A(f"v_xor_b32 {XQ}, {XQ}, {Y[1]}")
    PW = Y[8:20]; PA = TM[24:32]
    A(f"s_waitcnt vmcnt({hp}) lgkmcnt(0)")
    A("L_poll:")
    xorall([RP[i] for i in range(8)])
    pre = [x for i in range(3) for x in (f"v_cmp_ne_u32 {sM[2*i:2*i+2]}, 0, {RP[i]}", f"v_and_b32 {PA[i]}, 0x38, {RP[i]}")]
    for k, c in enumerate(("quad_perm:[1,0,3,2]", "quad_perm:[2,3,0,1]", "row_half_mirror")):
        A(pre[2*k]); A(pre[2*k+1]); A(f"v_xor_b32_dpp {XQ}, {XQ}, {XQ} {c} {dpp}")
    A(f"""
    v_cmp_ne_u32 vcc, {sK}, {XQ}
    s_add_u32 {sTo}, {sTo}, 1
    s_cbranch_vccz L_got
    """)
    if "fullre" not in OPT: A("s_mov_b64 exec, vcc")
    poll()
    A(f"""
    s_mov_b64 exec, -1
    s_cmp_le_u32 {sTo}, {TIMEOUT}
    s_waitcnt vmcnt(0)
    s_cbranch_scc1 L_poll
    s_mov_b32 {sOv}, 1
    L_got:
    """)
    stamp(A, 10)
    if "yp3" in OPT: A("s_setprio 0")
    def notag(i, pat):
        A(f"s_and_b32 {sM[2*i]}, {sM[2*i]}, {pat}"); A(f"s_and_b32 {sM[2*i+1]}, {sM[2*i+1]}, {pat}")
    def atomics(idx, between=()):
        idx = list(idx); per = -(-len(between) // len(idx))
        for k, i in enumerate(idx):
            if i % 2 == 0: notag(i, "0xfefefefe")
            A(f"s_mov_b64 exec, {sM[2*i:2*i+2]}"); A(f"ds_add_rtn_u32 {PA[i]}, {PA[i]}, {v8}")
            if between: A("s_mov_b64 exec, -1"); A("\n".join(between[per*k:per*k+per]))
        if not between: A("s_mov_b64 exec, -1")
    def words(r, W, q):
        A(f"v_and_b32 {W[0]}, 0x3ffff, {r}"); A(f"v_lshrrev_b32 {W[1]}, 18, {r}"); A(f"v_add_u32 {W[0]}, {W[0]}, {vCB[q]}")
    def writes(idx, extra=0):
        for k, i in enumerate(idx):
            A(f"s_waitcnt lgkmcnt({len(idx)-1+extra})")
            A(f"s_mov_b64 exec, {sM[2*i:2*i+2]}"); A(f"ds_write_b64 {PA[i]}, {PW[2*k:2*k+2]}")
        A("s_mov_b64 exec, -1")
    def secloads(tag):
        for q in range(4):
            A(f"""
            s_mov_b64 exec, {sS2[2*q:2*q+2]}
            s_cbranch_execz L_{tag}{q}
            s_mov_b32 {sT[0]}, {SEC + 8192*q}
            buffer_load_dwordx2 {RS[q]}, {vRo}, {SX}, {sT[0]} offen sc1
            L_{tag}{q}:
            """)
        A("s_mov_b64 exec, -1")
    def read_idx(off=0):
        for i in range(4): A(f"ds_read_b32 {IX[2*i]}, {vAh} offset:{off + 64*i}")
        A(f"ds_read_b32 {IX[8]}, {vAe} offset:{off}")
    adv_idx = [f"v_add_u32 {vAh}, 512, {vAh}", f"v_add_u32 {vAe}, 512, {vAe}"]
    shift_e = f"v_lshrrev_b32 {IX[8]}, 6, {IX[8]}"
    E0 = Y[6:8]
    def dma_h(rng=range(4)):
        for i in rng:
            A(f"s_add_u32 m0, {sStg}, {1024*i}"); A("s_nop 0"); A(f"buffer_load_dwordx4 {IX[2*i:2*i+2]}, {SH}, 0 idxen offen sc1 lds")
    def dma_e():
        A(f"s_mov_b32 m0, {sEm}"); A("s_nop 0")
        A(f"buffer_load_dwordx4 {IX[8:10]}, {SE}, 0 idxen offen lds")
    read_first = read_idx
    def shift_first(): A(shift_e)
    atomics([0, 1])
    nb = geto("bpf", 16)
    def bpf():
        A(f"s_bfm_b64 exec, {nb}, 0"); A(f"buffer_load_dword {vJ}, {W2[15]}, {SH}, 0 idxen sc1"); A("s_mov_b64 exec, -1")
    if nb and "bfirst" in OPT: bpf()
    for k in range(2): words(RP[k], PW[2*k:2*k+2], 0)
    for i in range(3, 8): A(f"v_cmp_ne_u32 {sM[2*i:2*i+2]}, 0, {RP[i]}"); A(f"v_and_b32 {PA[i]}, 0x38, {RP[i]}")
    A(f"s_mov_b32 {sT[2]}, 0x01010101"); A(f"s_mov_b32 {sT[3]}, 0x01010101")
    for q in range(4):
        A(f"s_lshr_b64 {sS2[2*q:2*q+2]}, {sM[4*q+2:4*q+4]}, 7"); A(f"s_and_b64 {sS2[2*q:2*q+2]}, {sS2[2*q:2*q+2]}, {sT[2:4]}")
        for u in range(2): A(f"s_mulk_i32 {sS2[2*q+u]}, 255")
    writes([0, 1])
    if "prime" in OPT: A(f"s_waitcnt vmcnt({1 if nb and 'bfirst' in OPT else 0})")
    secloads("sl")
    for u in range(npre + hp, NP): posdma(u)
    if nb and "bfirst" not in OPT: bpf()
    ex = geto("ex", 0)
    if ex:
        pat = ex * 0x01010101
        A(f"v_lshrrev_b32 {vJ}, 6, {PW[0]}"); A(f"s_and_b32 exec_lo, {sM[0]}, {pat:#x}"); A(f"s_and_b32 exec_hi, {sM[1]}, {pat:#x}")
        A(f"s_cbranch_execz L_nex"); A(f"buffer_load_dword {vJ}, {vJ}, {SE}, 0 idxen"); A("L_nex:"); A("s_mov_b64 exec, -1")
    stub("w0", over=True)
    A(f"s_cmp_ge_u32 {sW}, 4")
    A("s_waitcnt lgkmcnt(0)"); A("s_barrier")
    stamp(A, 16)
    def try_early(lab):
        shift_first()
        A(f"""
        v_max3_u32 {Y[4]}, {IX[0]}, {IX[2]}, {IX[4]}
        v_max_u32 {Y[4]}, {Y[4]}, {IX[6]}
        v_cmp_le_u32 vcc, {E}, {IX[8]}
        s_mov_b64 {sT[2:4]}, vcc
        v_cmp_le_u32 vcc, {N}, {Y[4]}
        s_or_b64 vcc, vcc, {sT[2:4]}
        s_cbranch_vccnz {lab}
        """)
        dma_e(); dma_h()
        A(f"s_mov_b32 {sEarly}, 1")
    A("s_cbranch_scc1 L_noread"); read_first(); A("L_noread:")
    na = geto("na", 4)
    atomics(range(2, na))
    A(f"s_cmp_ge_u32 {sW}, 4"); A("s_cbranch_scc1 L_noearly"); A(f"s_waitcnt lgkmcnt({na - 2})")
    try_early("L_noearly")
    A("L_noearly:")
    stamp(A, 17)
    stub("c", over=True)
    if na < 8: atomics(range(na, 8), defer)
    else: A("\n".join(defer))
    A("\n".join(bxc))
    for k in range(6): words(RP[2+k], PW[2*k:2*k+2], 1 + k // 2)
    RSf = [RS[q][i] for q in range(4) for i in range(2)]
    A(f"""
    s_cmp_eq_u32 {sEarly}, 0
    s_cbranch_scc1 L_w0
    s_waitcnt vmcnt({6 if nb and "wold" not in OPT else 5})
    s_branch L_w1
    """)
    stub("p3", page="L_back2", dead=True)
    A(f"""
    L_w0:
    s_waitcnt vmcnt({1 if nb and "wold" not in OPT else 0})
    L_w1:
    """)
    xorall(RSf)
    for k, c in enumerate(("quad_perm:[1,0,3,2]", "quad_perm:[2,3,0,1]", "row_half_mirror")):
        A("s_nop 1"); A(f"v_xor_b32_dpp {XQ}, {XQ}, {XQ} {c} {dpp}")
    A(f"""
    v_cmp_ne_u32 vcc, {sK}, {XQ}
    s_cbranch_vccnz L_sbad
    L_sgot:
    """)
    with cold():
        A(f"""
        L_sbad:
        v_xor_b32 {XQ}, {sK}, {XQ}
        v_and_b32 {XQ}, 0xffffff0f, {XQ}
        v_cmp_ne_u32 vcc, 0, {XQ}
        s_add_u32 {sTo}, {sTo}, 1
        s_cbranch_vccz L_stimeout
        s_cmp_gt_u32 {sTo}, {TIMEOUT}
        s_cbranch_scc1 L_stimeout
        """)
        secloads("rl")
        A(f"""
        s_waitcnt vmcnt(0)
        s_branch L_w1
        L_stimeout:
        s_mov_b32 {sOv}, 1
        s_branch L_sgot
        """)
    writes(list(range(2, 8)))
    stamp(A, 18)
    def bp2(n):
        A(f"s_bfm_b64 exec, {n}, {nb}"); A(f"buffer_load_dword {vJ}, {W2[15]}, {SH}, 0 idxen sc1"); A("s_mov_b64 exec, -1")
    if geto("bp2", 0): bp2(geto("bp2", 0))
    if "ymid" in OPT:
        A(f"s_cmp_lt_u32 {sW}, 4"); A("s_cbranch_scc1 L_ym"); read_first(); A("s_waitcnt lgkmcnt(0)"); try_early("L_ym"); A("L_ym:")
    SWd = TM[0:16]; SA = Y[20:28]
    for i in range(8): A(f"v_cmp_ne_u32 {sM[2*i:2*i+2]}, 0, {RSf[i]}")
    for q in range(4):
        A(f"s_mov_b64 exec, {sM[4*q:4*q+2]}"); A(f"s_cbranch_execz L_sa{q}")
        notag(2*q+1, "0x7f7f7f7f")
        A(f"v_and_b32 {SA[2*q]}, 0x38, {RS[q][0]}"); A(f"v_and_b32 {SA[2*q+1]}, 0x38, {RS[q][1]}")
        A(f"ds_add_rtn_u32 {SA[2*q]}, {SA[2*q]}, {v8}")
        for i in range(2): words(RS[q][i], SWd[4*q+2*i:4*q+2*i+2], q)
        A(f"s_mov_b64 exec, {sM[4*q+2:4*q+4]}"); A(f"ds_add_rtn_u32 {SA[2*q+1]}, {SA[2*q+1]}, {v8}")
        A(f"L_sa{q}:")
    A("s_mov_b64 exec, -1")
    A("s_waitcnt lgkmcnt(5)")
    if "ymid" not in OPT: A(f"s_cmp_lt_u32 {sW}, 4"); A("s_cbranch_scc1 L_noread2"); read_first(); A("L_noread2:")
    for i in range(4): A(f"ds_write_b64 {aTz}, {ZERO} offset:{512*i}")
    stub("b5", over=True)
    A("s_waitcnt lgkmcnt(4)")
    for q in range(4):
        A(f"s_mov_b64 exec, {sM[4*q:4*q+2]}"); A(f"s_cbranch_execz L_sb{q}")
        A(f"ds_write_b64 {SA[2*q]}, {SWd[4*q:4*q+2]}")
        A(f"s_mov_b64 exec, {sM[4*q+2:4*q+4]}"); A(f"ds_write_b64 {SA[2*q+1]}, {SWd[4*q+2:4*q+4]}")
        A(f"L_sb{q}:")
    A(f"""
    s_mov_b64 exec, -1
    s_cmp_eq_u32 {sOv}, 0
    s_cbranch_scc1 L_noflag
    ds_write_b32 {ZERO[0]}, {v8} offset:{FLAG}
    L_noflag:
    """)
    stamp(A, 19)
    def young():
        A(f"s_cmp_lt_u32 {sW}, 4"); A("s_cbranch_scc1 L_yd"); try_early("L_yd"); A("L_yd:")
    if "yafter" not in OPT: young()
    A(f"""
    s_setprio 3
    s_waitcnt lgkmcnt(0)
    s_barrier
    ds_read_b32 {t0}, {aCn}
    """)
    if "yafter" in OPT: young()
    A(f"""
    s_waitcnt lgkmcnt(0)
    v_cmp_gt_u32 vcc, {t0}, {vLim}
    v_readlane_b32 {sCnt}, {t0}, {sW}
    s_and_b32 {sSlow}, vcc_lo, 0x1ff
    s_sub_u32 {sCnt}, {sCnt}, {sLb}
    s_lshr_b32 {sCnt}, {sCnt}, 3
    s_cmp_eq_u32 {sSlow}, 0
    s_cselect_b32 {sCnt}, {sCnt}, 0
    s_cselect_b32 {sEarly}, {sEarly}, 0
    s_cselect_b32 {sScan}, {E}, 0
    s_cselect_b32 {sT[0]}, s2, 0
    s_or_b32 {sT[0]}, {sT[0]}, {sW}
    s_cbranch_scc0 L_epoch
    """)
    with cold():
        A(f"""
        L_epoch:
        v_mov_b32 {t0}, {EPO}
        s_mov_b64 exec, 1
        global_atomic_add {t0}, {v8}, {pWs}
        s_mov_b64 exec, -1
        s_branch L_round
        """)
    vAz = W2[8]; aPs = W2[9]; aPd = W2[10]; E2 = W2[12:14]
    slot_ops = [f"v_mov_b32 {vAz}, {vAt}", f"v_lshl_add_u32 {vAt}, {vSl}, 3, {vTrow}", f"v_lshlrev_b32 {vAl}, 4, {vSl}"]
    def derive_a(e=EN): return [f"v_mad_u32_u24 {aPs}, {e[1]}, 6, {sNq[1]}", f"v_and_b32 {vSl}, 7, {e[0]}", f"v_mad_u32_u24 {aPd}, {vSl}, 6, {sPd}"]
    def pos_reads():
        for i in range(3): A(f"ds_read_u16_d16_hi {PS[i]}, {aPs} offset:{2*i}")
        for i in range(3): A(f"ds_read_u16_d16_hi {PD[i]}, {aPd} offset:{2*i}")
    lut_read = f"ds_read_b96 {X[0:3]}, {vAl} offset:{LUT}"
    derive_b = lines(f"""
        v_sub_f32 {DT[0]}, {PD[0]}, {PS[0]}
        v_sub_f32 {DT[1]}, {PD[1]}, {PS[1]}
        v_sub_f32 {DT[2]}, {PD[2]}, {PS[2]}
        v_cvt_pk_bf16_f32 {D[0]}, {DT[0]}, {DT[1]}
        v_cvt_pk_bf16_f32 {D[1]}, {DT[2]}, 1.0
        v_lshlrev_b32 {DT[0]}, 16, {D[0]}
        v_and_b32 {DT[1]}, 0xffff0000, {D[0]}
        v_lshlrev_b32 {DT[2]}, 16, {D[1]}
        v_mul_f32 {DT[0]}, {DT[0]}, {DT[0]}
        v_fmac_f32 {DT[0]}, {DT[1]}, {DT[1]}
        v_fmac_f32 {DT[0]}, {DT[2]}, {DT[2]}
        v_cvt_pk_bf16_f32 {X[3]}, {DT[0]}, {DT[0]}
        """)
    read_entry = f"ds_read_b64 {EN}, {vAn}"; sEnd = sNq[0]; adv_n = [f"v_add_u32 {vAn}, 512, {vAn}", f"v_min_u32 {vAn}, {sEnd}, {vAn}"]
    flip_v = f"v_add_u32 {ERD}, {sEx}, {ERD}"
    def flip_s(): A(f"s_add_u32 {sEm}, {sEm}, {sEx}"); A(f"s_sub_u32 {sEx}, 0, {sEx}")
    def read_he():
        for s in range(4): A(f"ds_read_b128 {H[4*s:4*s+4]}, {HRD[s]}")
        A(f"ds_read_b128 {EA}, {ERD}")
    def m1(n, odd=0):
        y = Y[16*n:16*n+16]
        ops = [(X, (BXO if odd else BX)[4*n:4*n+4]), (EA, W4[4*n:4*n+4])] + [(H[8*n+4*s:8*n+4*s+4], PB[4*s:4*s+4]) for s in range(2)]
        return [f"{mf} {y}, {a}, {b}, {y if i else 0}" for i, (a, b) in enumerate(ops)]
    ndef = geto("def", 0)
    A('; ---- one round over the list: pad, prime the derive pipeline')
    A("L_round:")
    A(f"""
    s_add_u32 {sNt}, {sCnt}, 31
    s_lshr_b32 {sNt}, {sNt}, 5
    s_cbranch_scc0 L_round_end
    s_lshl_b32 {sT[0]}, {sNt}, 5
    s_sub_u32 {sT[0]}, {sT[0]}, {sCnt}
    s_lshr_b32 {sEx}, {sT[0]}, 3
    s_lshl_b32 {sT[1]}, {sCnt}, 3
    v_add_u32 {t0}, {sT[1]}, {LO[2]}
    s_bfm_b64 exec, {sT[0]}, 0
    ds_write_b64 {t0}, {INV}
    s_mov_b64 exec, -1
    s_cmp_eq_u32 {sEarly}, 0
    s_cbranch_scc1 L_first
    """)
    with cold():
        A("L_first:"); A(f"v_mov_b32 {vAh}, {LO[0]}"); A(f"v_mov_b32 {vAe}, {LO[1]}")
        read_first(); A("s_waitcnt lgkmcnt(0)"); shift_first(); dma_e(); dma_h()
        A("s_branch L_prime")
    A(f"""
    L_prime:
    s_mov_b32 {sNq[1]}, {POS}
    s_lshl_b32 {sEnd}, {sNt}, 8
    s_add_u32 {sEnd}, {sEnd}, {sLb}
    s_sub_u32 {sEnd}, {sEnd}, 8
    v_lshl_add_u32 {vAn}, {vL}, 3, {sLb}
    v_min_u32 {vAn}, {sEnd}, {vAn}
    ds_read_b64 {D}, {vAn}
    {adv_n[0]}
    {adv_n[1]}
    ds_read_b64 {EN}, {vAn}
    v_mov_b32 {vAh}, {LO[0]}
    v_mov_b32 {vAe}, {LO[1]}
    """)
    read_idx(256); A("\n".join(adv_n))
    A(f"s_mov_b32 {sTi}, 1"); A(f"s_mov_b32 {sEarly}, 0")
    A("s_waitcnt lgkmcnt(5)")
    A("\n".join(derive_a(D))); pos_reads()
    for r in (TM[0:16], TM[16:32], Y[16:32]): A(zero16(r, ZERO))
    A("\n".join(slot_ops[1:] + slot_ops[:1] + derive_a()))
    A("s_waitcnt lgkmcnt(0)")
    A("\n".join(derive_b))
    stamp(A, 13)
    one = lambda r: f"v_mfma_f32_16x16x4_4b_bf16 {r}, {HALF}, {HALF}, {r}"
    PKS = [PK, W2[16:24]]
    def finish(o, part):
        t = TM[16*o:16*o+16]; y = Y[16*o:16*o+16]; pk = PKS[o]
        if part == "mul": return [f"v_mul_f32 {t[i]}, {y[i]}, {t[i]}" for i in range(16)]
        if part == "cvt": return [f"v_cvt_pk_bf16_f32 {pk[i]}, {t[2*i]}, {t[2*i+1]}" for i in range(8)]
        if part == "m2": return [f"{mf} {ACC[16*o:16*o+16]}, {pk[4*u:4*u+4]}, {A2[4*u:4*u+4]}, {ACC[16*o:16*o+16]}" for u in range(2)]
    def mt(k):
        if "loop" in OPT: A(f"s_memtime {sM[2*k:2*k+2]}")
    if "loop" in OPT:
        for k in range(6): A(f"s_mov_b32 {sS2[k]}, 0")
        mt(0)
    A("s_branch L_tile")
    stub("tile")
    A('; ---- tile loop (two tiles per trip): prep = LDS reads + gathers of the next tile, block = MFMA / silu of this tile')
    m2 = finish(0, "m2") + finish(1, "m2")
    A(f".p2align {geto('al', 6)}")
    A("L_tile:")
    for odd in range(2):
        mt(1)
        for i in range(4): A(f"ds_read_b64_tr_b16 {A2[2*i:2*i+2]}, {vTtr} offset:{512*i}")
        A(f"ds_write_b64 {vAt if odd else vAz}, {ZERO}")
        A(f"s_mov_b32 exec_{'lo' if odd else 'hi'}, 0"); A(f"ds_write_b64 {vAt}, {D}"); A("s_mov_b64 exec, -1")
        if odd: A(read_entry); stub("odd", over=True)
        else: A(lut_read); pos_reads()
        A(f"s_waitcnt vmcnt(0) lgkmcnt({7 if odd else 9})")
        mt(2)
        if "tl" in OPT: A(f"s_memrealtime {sM[0:2]}")
        read_he(); A(shift_e)
        a = m1(0, odd); b = m1(1, odd)
        tight = "loose" not in OPT
        if tight: A(f"s_mov_b32 m0, {sStg}")
        A(f"s_cmp_ge_u32 {sTi}, {sNt}")
        if tight: A("s_waitcnt lgkmcnt(5)"); A(a[0])
        A("s_waitcnt lgkmcnt(0)")
        mt(3)
        if "tl" in OPT: A(f"s_mov_b32 m0, {sTi}"); A(f"v_writelane_b32 v254, {sM[0]}, m0"); A(f"s_mov_b32 m0, {sStg}")
        if tight:
            A(f"s_cbranch_scc1 L_last0")
            dm = lambda i: f"buffer_load_dwordx4 {IX[2*i:2*i+2]}, {SH if i < 4 else SE}, 0 idxen offen {'sc1 ' if i < 4 else ''}lds"
            gap = [a[1], f"s_add_u32 {sTi}, {sTi}, 1", f"ds_read_b32 {IX[0]}, {vAh} offset:{512 + 256*odd}", f"ds_read_b32 {IX[2]}, {vAh} offset:{512 + 256*odd + 64}"]
            for i in range(5):
                A(dm(i))
                if i < 4: A("s_add_u32 m0, m0, 1024"); A(gap[i])
            for i in (2, 3): A(f"ds_read_b32 {IX[2*i]}, {vAh} offset:{512 + 256*odd + 64*i}")
            A(f"ds_read_b32 {IX[8]}, {vAe} offset:{512 + 256*odd}")
        else:
            A(a[0]); A(a[1])
            A(f"s_cbranch_scc1 L_last")
            if "xnoh" not in OPT: dma_h()
            if "xnoe" not in OPT: dma_e()
        mt(4)
        if not tight: read_idx(512 + 256*odd)
        if "loop" in OPT:
            A("s_waitcnt lgkmcnt(0)")
            for k in range(4): A(f"s_sub_u32 s3, {sM[2*k+2]}, {sM[2*k]}"); A(f"s_add_u32 {sS2[k]}, {sS2[k]}, s3")
            A(f"s_mov_b32 {sM[0]}, {sM[8]}")
        if not tight: A(f"s_add_u32 {sTi}, {sTi}, 1")
        prio(0); A("\n".join(finish(1, "mul"))); prio(1)
        cv = finish(0, "cvt") + finish(1, "cvt")
        if odd: fill = cv + derive_b[3:11] + slot_ops + derive_a()[:2] + adv_n; tail2 = [derive_b[11], derive_a()[2]]; endf = adv_idx
        else: fill = cv + derive_b[:1]; tail2 = derive_b[1:3]; endf = []
        A(a[2]); A("\n".join(fill[:6])); A(a[3]); A("\n".join(fill[6:12])); A(b[0]); A("\n".join(fill[12:]))
        for i in range(16):
            if i in (0, 3, 6): A(b[1 + i // 3])
            if i == 10: A(m2[0])
            A(f"v_exp_f32 {TM[i]}, {Y[i]}")
        A("\n".join(tail2)); A(one(TM[0:16]))
        for i in range(16):
            if i in (4, 8): A(m2[i // 4])
            A(f"v_exp_f32 {TM[16+i]}, {Y[16+i]}")
        for i in range(32):
            if i == 2: A(one(TM[16:32]))
            if i == 6: A(m2[3])
            if i == 8 and "nop2" not in OPT: prio(2)
            if "xnorcp" not in OPT: A(f"v_rcp_f32 {TM[i]}, {TM[i]}")
        A("\n".join(finish(0, "mul") + endf)); prio(3)
    A("s_branch L_tile")
    WXR = [H[0:4], H[4:8], H[8:12], H[12:16], EA, X, A2[0:4], A2[4:8]]
    WF = [W2[0:16], R("v", W4.b, 16)]
    assert BX.b == W4.b + 8
    er = [f"ds_read_b64_tr_b16 {WF[n2][4*st+2*hf:4*st+2*hf+2]}, {DT[3] if n2 else vWb} offset:{(16*st + 8*hf)*128}" for n2 in range(2) for st in range(4) for hf in range(2)]
    er += [f"ds_read_b128 {WXR[i]}, {vAl} offset:{WX + 32*i}" for i in range(6)]
    SO = SY; B_ = Asm(); srd(B_, SO, pOut, N * 134)
    episc = B_.o + [f"s_lshl_b32 {sT[2]}, {sNn}, 2", f"s_bfm_b64 {sT[2:4]}, {sT[2]}, 0", f"s_and_b32 {sT[2]}, {sT[2]}, 0x77777"]
    epiaddr = lines(f"""
    v_lshrrev_b32 {DT[1]}, 2, {vL}
    v_and_b32 {DT[2]}, 3, {vL}
    v_add_u32 {DT[1]}, {sN0}, {DT[1]}
    v_mul_u32_u24 {DT[1]}, 6, {DT[1]}
    v_lshl_add_u32 {DT[1]}, {DT[2]}, 1, {DT[1]}
    v_add_u32 {DT[0]}, {POS}, {DT[1]}
    ds_read_u16_d16_hi {PS[0]}, {DT[0]}
    v_add_u32 {DT[0]}, {sN0}, {vHalf}
    v_lshlrev_b32 {DT[0]}, 7, {DT[0]}
    v_and_b32 {DT[2]}, 31, {vL}
    v_lshl_add_u32 {DT[0]}, {DT[2]}, 1, {DT[0]}
    v_add_u32 {DT[1]}, {N*128}, {DT[1]}
    v_xor_b32 {DT[3]}, 64, {vWb}
    v_lshlrev_b32 {vAl}, 4, {vHalf}
    """)
    stub("last", page="L_back2", dead=True)
    if tight: A("L_last0:"); A(a[1])
    A("L_last:")
    prio(0); A("\n".join(finish(1, "mul"))); prio(1)
    cv = finish(0, "cvt") + finish(1, "cvt") + epiaddr
    A(f"s_bitcmp1_b32 {sTi}, 0")
    A(a[2]); A("\n".join(cv[:6])); A(a[3]); A("\n".join(cv[6:11]))
    A("s_cbranch_scc1 L_le"); A(m1(1, 1)[0]); A("s_branch L_lo"); A("L_le:"); A(m1(1, 0)[0]); A("L_lo:")
    A("\n".join(cv[11:16])); A(b[1]); A("\n".join(cv[16:22])); A(b[2]); A("\n".join(cv[22:28])); A(b[3]); A("\n".join(cv[28:]))
    def enter(tag):
        if "notrim" in OPT: return
        for g in (3, 2, 1): A(f"s_cmp_eq_u32 {sEx}, {g}"); A(f"s_cbranch_scc1 L_{tag}{3-g}")
    A(f"s_cmp_lt_u32 {sScan}, {E}"); A("s_cbranch_scc1 L_nf1")
    A("\n".join(er[4:6])); A(m2[0]); A("\n".join(er[6:14]))
    A("L_nf1b:")
    with cold(): A("L_nf1:"); A(m2[0]); A("s_nop 4"); A("s_branch L_nf1b")
    enter("x")
    for g in (3, 2, 1, 0):
        A(f"L_x{g}:")
        for n in range(2):
            for i in range(4):
                if g == 0 and i == 0: A(m2[1 + n])
                A(f"v_exp_f32 {TM[16*n+4*g+i]}, {Y[16*n+4*g+i]}")
    A(f"s_cmp_lt_u32 {sScan}, {E}"); A(m2[3]); A("s_cbranch_scc1 L_nf2")
    A("s_waitcnt lgkmcnt(3)"); A("\n".join(er[0:4] + er[14:15])); A(one(TM[0:16])); A("\n".join(er[15:22])); A(one(TM[16:32]))
    A("L_nf2b:")
    with cold(): A("L_nf2:"); A(one(TM[0:16])); A(one(TM[16:32])); A("s_nop 3"); A("s_branch L_nf2b")
    A("s_waitcnt lgkmcnt(8)")
    for i in range(4): A(f"ds_read_b64_tr_b16 {A2[2*i:2*i+2]}, {vTtr} offset:{512*i}")
    A(f"ds_write_b64 {vAt}, {ZERO}")
    prio(geto("lq", 1)); stub("l2", over=True)
    enter("r")
    for g in (3, 2, 1, 0):
        A(f"L_r{g}:")
        idx = [16*n + 4*g + i for n in range(2) for i in range(4)]
        for i in idx: A(f"v_rcp_f32 {TM[i]}, {TM[i]}")
        for i in idx: A(f"v_mul_f32 {TM[i]}, {Y[i]}, {TM[i]}")
        for n in range(2):
            for i in range(2): A(finish(n, "cvt")[2*g+i])
        if g == 2: A("s_waitcnt lgkmcnt(0)"); A("s_nop 0"); A(m2[1]); A(m2[3])
    A(f"s_cmp_lt_u32 {sScan}, {E}"); A("s_waitcnt lgkmcnt(0)")
    A(m2[0]); A("s_cbranch_scc1 L_nf3"); A("\n".join(episc[:5])); A(m2[2])
    with cold(): A("L_nf3:"); A(m2[2]); A("s_branch L_more")
    prio(geto("lp", 0)); A("\n".join(episc[5:]))
    stub("epi", over=True)
    kcold = len(A.o)
    A("L_round_end:")
    A(f"s_cmp_lt_u32 {sScan}, {E}"); A("s_cbranch_scc1 L_more")
    A("\n".join(epiaddr + er[:11] + ["s_waitcnt lgkmcnt(0)"] + er[11:] + episc + ["s_waitcnt lgkmcnt(0)"])); A("s_branch L_epi")
    A("L_more:")
    A(f"s_cmp_lg_u32 {sScan}, 0"); A("s_cbranch_scc1 L_havetab")
    srd(A, SZ, pH, N, 128)
    FP = R("v", EA.b, 16)
    A(f"""
    v_lshlrev_b32 {t0}, 4, v0
    v_and_b32 {t1}, 16, {vL}
    v_lshlrev_b32 {t1}, 2, {t1}
    v_xor_b32 {t0}, {t0}, {t1}
    s_add_u32 m0, {sW10}, {STG}
    s_movk_i32 {sT[0]}, 8192
    s_lshl_b32 {sT[1]}, {sW}, 11
    s_add_u32 {sT[1]}, {sT[1]}, {WE}
    v_lshl_add_u32 {t2}, {vL}, 3, {sT[1]}
    s_waitcnt vmcnt(0)
    s_barrier
    ds_write_b64 {t2}, {ZERO}
    ds_write_b64 {t2}, {ZERO} offset:512
    ds_write_b64 {t2}, {ZERO} offset:1024
    ds_write_b64 {t2}, {ZERO} offset:1536
    buffer_load_dwordx4 {t0}, {SY}, {sT[0]} offen lds
    v_subrev_u32 {t0}, {WE - STG}, {vT1}
    v_xor_b32 {t1}, 64, {t0}
    v_and_b32 {EN[0]}, 31, {vL}
    v_lshl_add_u32 {EN[0]}, {sW}, 5, {EN[0]}
    v_lshlrev_b32 {EN[1]}, 4, {vHalf}
    v_lshlrev_b32 {D[1]}, 5, {vHalf}
    s_mov_b32 {sTi}, {sW}
    s_waitcnt vmcnt(0)
    s_barrier
    """)
    for n in range(2):
        for s_ in range(4):
            for half in range(2): A(f"ds_read_b64_tr_b16 {Y[16*n+4*s_+2*half:16*n+4*s_+2*half+2]}, {t1 if n else t0} offset:{(16*s_ + 4*half)*128}")
        A("s_waitcnt lgkmcnt(0)")
    A("L_tab:")
    for s_ in range(4): A(f"buffer_load_dwordx4 {H[4*s_:4*s_+4]}, {EN}, {SZ}, 0 idxen offen offset:{32*s_}")
    A(f"v_mov_b32 {D[0]}, {EN[0]}"); A(f"v_add_u32 {EN[0]}, 256, {EN[0]}")
    A("s_waitcnt vmcnt(0)")
    for n in range(2):
        for s_ in range(4): A(f"{mf} {TM[16*n:16*n+16]}, {Y[16*n+4*s_:16*n+4*s_+4]}, {H[4*s_:4*s_+4]}, {TM[16*n:16*n+16] if s_ else 0}")
    A("s_nop 11")
    for k in range(32): A(f"v_mul_f32 {TM[k]}, {NLOG2E:#x}, {TM[k]}")
    for k in range(16): A(f"v_cvt_pk_bf16_f32 {FP[k]}, {TM[2*k]}, {TM[2*k+1]}")
    for k in range(4): A(f"buffer_store_dwordx4 {FP[4*k:4*k+4]}, {D}, {SH}, 0 idxen offen offset:{64*(k//2) + 16*(k%2)} sc1")
    A(f"""
    s_add_u32 {sTi}, {sTi}, 8
    s_cmp_lt_u32 {sTi}, {(N + 31)//32}
    s_cbranch_scc1 L_tab
    s_waitcnt vmcnt(0)
    s_barrier
    L_havetab:
    """)
    A(f"s_mov_b32 {sCnt}, 0")
    A("L_scan:")
    Dd = H[0:4]; Ss = H[4:8]
    A(f"""
    s_lshl_b32 {sT[0]}, {sScan}, 2
    v_lshl_add_u32 {DT[0]}, {vL}, 4, {sT[0]}
    global_load_dwordx4 {Dd}, {DT[0]}, {pDst}
    global_load_dwordx4 {Ss}, {DT[0]}, {pSrc}
    v_lshlrev_b32 {DT[0]}, 4, {DT[0]}
    s_waitcnt vmcnt(0)
    """)
    for i in range(4):
        A(f"""
        v_subrev_u32 {DT[1]}, {sN0}, {Dd[i]}
        v_cmp_gt_u32 vcc, {sNn}, {DT[1]}
        v_add3_u32 {EN[0]}, {DT[0]}, {DT[1]}, 1
        v_mov_b32 {EN[1]}, {Ss[i]}
        v_mbcnt_lo_u32_b32 {DT[2]}, vcc_lo, 0
        v_mbcnt_hi_u32_b32 {DT[2]}, vcc_hi, {DT[2]}
        v_add_u32 {DT[2]}, {sCnt}, {DT[2]}
        v_lshl_add_u32 {DT[2]}, {DT[2]}, 3, {sLb}
        s_bcnt1_i32_b64 {sT[0]}, vcc
        s_add_u32 {sCnt}, {sCnt}, {sT[0]}
        s_mov_b64 exec, vcc
        ds_write_b64 {DT[2]}, {EN}
        s_mov_b64 exec, -1
        v_add_u32 {DT[0]}, 64, {DT[0]}
        """)
    A(f"""
    s_add_u32 {sScan}, {sScan}, 256
    s_cmp_ge_u32 {sScan}, {E}
    s_cbranch_scc1 L_round
    s_cmp_le_u32 {sCnt}, {CAP - 256}
    s_cbranch_scc1 L_scan
    s_branch L_round
    """)
    COLD.extend(A.o[kcold:]); del A.o[kcold:]
    A("L_epi:")
    stamp(A, 11)
    for i in (6, 7): A(f"ds_read_b128 {WXR[i]}, {vAl} offset:{WX + 32*i}")
    fm = [f"v_mul_f32 {DT[2]}, {ACC[0]}, {WXR[0][0]}"] + [f"v_fmac_f32 {DT[2]}, {ACC[i]}, {WXR[i//4][i%4]}" for i in range(1, 32)]
    zm = lambda st, n2: f"{mf} {TM[16*n2:16*n2+16]}, {Y[4*st:4*st+4]}, {WF[n2][4*st:4*st+4]}, {TM[16*n2:16*n2+16] if st else 0}"
    for st in range(4):
        v = [f"v_mul_f32 {ACC[8*st+i]}, {NLN2:#x}, {ACC[8*st+i]}" for i in range(8)] + [f"v_cvt_pk_bf16_f32 {Y[4*st+i]}, {ACC[8*st+2*i]}, {ACC[8*st+2*i+1]}" for i in range(4)]
        if st == 0: A("\n".join(v))
        else: A("\n".join(v[:2])); A(zm(st-1, 0)); A("\n".join(v[2:8])); A(zm(st-1, 1)); A("\n".join(v[8:]))
    A("\n".join(fm[:2])); A(zm(3, 0)); A("\n".join(fm[2:8])); A(zm(3, 1))
    A("\n".join(fm[8:24])); A("s_waitcnt lgkmcnt(0)"); A("\n".join(fm[24:]))
    A(f"v_mov_b32 {DT[3]}, {DT[2]}")
    TT = PK
    for n in range(2):
        for j in range(3):
            z = ZH[2*j+n]; t = TT[2*j+n]
            A(f"v_add_f32 {z}, {z}, {TM[16*n+4*j+3]}")
            A(f"v_mul_f32 {t}, {NLOG2E:#x}, {z}"); A(f"v_exp_f32 {t}, {t}")
            if n == 0 and j == 0: A(f"v_permlane32_swap_b32 {DT[2]}, {DT[3]}")
    A(f"v_add_f32 {DT[2]}, {DT[2]}, {DT[3]}"); A(f"v_add_f32 {DT[2]}, {DT[2]}, {PS[0]}"); A(f"v_cvt_pk_bf16_f32 {DT[2]}, {DT[2]}, {DT[2]}")
    A(f"s_mov_b64 exec, {sT[2:4]}"); A(f"buffer_store_short {DT[2]}, {DT[1]}, {SO}, 0 offen"); A("s_mov_b64 exec, -1")
    for i in range(6): A(f"v_add_f32 {TT[i]}, 1.0, {TT[i]}"); A(f"v_rcp_f32 {TT[i]}, {TT[i]}")
    A(f"s_cmp_eq_u32 {sNn}, 5")
    for j in range(3):
        if j == 2: A("s_cbranch_scc0 L_fin"); A("s_mov_b32 exec_hi, 0")
        for n in range(2): A(f"v_fmac_f32 {HR[2*j+n]}, {ZH[2*j+n]}, {TT[2*j+n]}")
        A(f"v_cvt_pk_bf16_f32 {HR[2*j]}, {HR[2*j]}, {HR[2*j+1]}")
        A(f"buffer_store_short {HR[2*j]}, {DT[0]}, {SO}, 0 offen offset:{256*j}")
        A(f"buffer_store_short_d16_hi {HR[2*j]}, {DT[0]}, {SO}, 0 offen offset:{256*j + 64}")
    A("L_fin:")
    if "stamp" in OPT:
        A("s_waitcnt vmcnt(0)"); A(f"v_writelane_b32 v255, {sTo}, 14"); A(f"v_writelane_b32 v255, {sNt}, 15")
        if "loop" in OPT:
            for k in range(6): A(f"v_writelane_b32 v255, {sS2[k]}, {23+k}")
    stamp(A, 12); stamp_out(A, pWs)
    A("L_done:"); A("s_endpgm")
    k = COLD.index("L_epoch:"); COLD[:] = COLD[k:k+6] + COLD[:k] + COLD[k+6:]
    A("; ---- out-of-line code: epoch update, retries, exact fallback (rebuild the row table, scan dst directly)")
    A.o.extend(COLD)
    fl = "" if "oplain" in OPT else "sc1"
    A.o = [l + " " + fl if l.startswith("buffer_store_short") else l for l in A.o]
    print("vgprs", nv, "sgprs", S.n, "lds", LDS_MAIN, "instrs", len(A.o), file=sys.stderr)
    return A.text()

if __name__ == "__main__":
    OPT.update(sys.argv[2:])
    if "xto" in OPT: TIMEOUT = 50
    KN = "standalone__cheap_equivariant_egnn__graph_kernel"
    s = assemble([(KN, k_main(), 256)], [(KN, NB, 512, LDS_MAIN)], single=True).replace("next_free_sgpr 96", "next_free_sgpr 102")
    doc = """; One persistent workgroup per CU owns 39-40 destination nodes (4-5 per wave) and a chunk of 2500 edges.
; L_st_* / L_lt_* are landing pads that branch straight back: they pull code into the instruction caches early.
"""
    s = s.replace("; @launch", doc + "; @launch", 1)
    open(sys.argv[1], "w").write(s)
```

```python
import sys, struct
from lib import *
N, E = 10000, 640000
NB, CH = 256, 2500
CAP = 416
NLOG2E = 0xbfb8aa3b
NLN2 = 0xbf317218
STR = 32768 + 128 * int(([a[3:] for a in sys.argv if a.startswith("str")] or [3])[0])
SEC = 128 * STR
EPO = 2 * SEC
BTO = 16 << 20
TIMEOUT = 20000
INV0 = 0xffffffc6
CNT, FLAG, LUT, WX = 0, 64, 128, 256
STG = 512
WE = STG + 8 * 5120
WH = WE + 18560
POS = WH + 16384
LIST = POS + 60032
LDS_MAIN = LIST + 8 * CAP * 8
BST = STG
BCN = BST + 256 * 144
TB = STG
HO = LIST + 512
HST = CAP * 8 + 16
BO = LIST + 1664
assert STG % 128 == 0 and WE % 128 == 0 and WH % 128 == 0 and LDS_MAIN <= 163840
OPT = set()
geto = lambda name, d: int([o for o in OPT if o.startswith(name)][0][len(name):]) if any(o.startswith(name) for o in OPT) else d
PEND = []
def stamp(A, i):
    if "marks" in OPT: A(f"M_{i}:")
    if "stamp" not in OPT: return
    k = len(PEND)
    if k >= 2: A(f"v_writelane_b32 v255, s{96+2*((k-2)%3)}, {PEND[k-2]}")
    A(f"s_memrealtime s[{96+2*(k%3)}:{97+2*(k%3)}]"); PEND.append(i)
def stamp_out(A, wsp):
    if "stamp" not in OPT: return
    A("s_waitcnt lgkmcnt(0)")
    k = len(PEND)
    for u in (k - 2, k - 1): A(f"v_writelane_b32 v255, s{96+2*(u%3)}, {PEND[u]}")
    A("s_mov_b64 exec, -1")
    A(f"v_lshrrev_b32 v1, 6, v0"); A(f"s_lshl_b32 s3, s2, 3"); A("v_add_u32 v1, s3, v1"); A("v_lshlrev_b32 v1, 7, v1"); A(f"v_add_u32 v1, {200<<20}, v1")
    A("v_and_b32 v2, 63, v0"); A("v_lshl_add_u32 v1, v2, 2, v1"); A("s_mov_b32 exec_hi, 0"); A(f"global_store_dword v1, v255, {wsp}")
    if "tl" in OPT: A("v_add_u32 v1, 0x100000, v1"); A(f"global_store_dword v1, v254, {wsp}")
def lines(s): return [l.strip() for l in s.strip().split("\n") if l.strip()]

def k_main():
    A = Asm(); COLD = []
    class cold:
        def __enter__(self): self.k = len(A.o)
        def __exit__(self, *a): COLD.extend(A.o[self.k:]); del A.o[self.k:]
    notouch = "notouch" in OPT
    def stub(name, over=False, page=None, dead=False):
        if notouch and not page: return
        if (over or page) and not dead: A(f"s_branch L_sk_{name}")
        if page: A(".p2align 12")
        if not notouch:
            A(f"L_st_{name}:"); A("s_branch L_back1")
            if page: A(f"L_lt_{name}:"); A(f"s_branch {page}")
        if (over or page) and not dead: A(f"L_sk_{name}:")
    def touch_local(w, name, back):
        if notouch: return
        for ww, nm in zip(w, name): A(f"s_cmp_eq_u32 {sW}, {ww}"); A(f"s_cbranch_scc1 L_lt_{nm}")
        A(f"{back}:")
    S = Regs("s", 26, 96); V = Regs("v", 1, 255)
    pH, pPos, pE, pSrc, pDst, pWe, pWx, pWh, pOut, pDbg, pWs = [R("s", 4 + 2 * i, 2) for i in range(11)]
    sW = S.alloc("wave"); sN0 = S.alloc("node0")
    SH = S.alloc("SH", 4, 4); SE = S.alloc("SE", 4, 4); SX = S.alloc("SX", 4, 4); SY = S.alloc("SY", 4, 4); SZ = S.alloc("SZ", 4, 4)
    sM = S.alloc("masks", 16, 2); sT = S.alloc("tmp", 4, 2); sS2 = S.alloc("secmask", 8, 2); sNq = S.alloc("nq", 4, 2)
    sStg = S.alloc("stg"); sLb = S.alloc("listbase"); sCnt = S.alloc("cnt"); sNt = S.alloc("nt"); sTi = S.alloc("ti")
    sSlow = S.alloc("slow"); sScan = S.alloc("scan"); sPd = S.alloc("pd"); sNn = S.alloc("nn")
    sNon = S.alloc("nonce"); sK = S.alloc("K"); sTo = S.alloc("to"); sEarly = S.alloc("early"); sW10 = S.alloc("w10"); sNb = S.alloc("nb0")
    sOv = S.alloc("ov"); sEm = pDbg[0]; sEx = pDbg[1]; sAg = pDbg[1]
    vL = V.alloc("lane"); vHalf = V.alloc("half"); vT1 = V.alloc("t1")
    W2 = V.alloc("W2", 32, 4); W4 = V.alloc("W4", 8, 4); BX = V.alloc("BX", 8, 4)
    ACC = V.alloc("ACC", 32, 4); Y = V.alloc("Y", 32, 4); TM = V.alloc("TM", 32, 4)
    H = V.alloc("H", 16, 4); EA = V.alloc("EA", 4, 4); X = V.alloc("X", 4, 4); A2 = V.alloc("A2", 8, 4); PK = V.alloc("PK", 8, 4)
    IX = V.alloc("IX", 10, 2); HRD = V.alloc("HRD", 4); ERD = V.alloc("ERD")
    vAh = V.alloc("Ah"); vAe = V.alloc("Ae"); vAn = V.alloc("An"); vTrow = V.alloc("Trow"); vTtr = V.alloc("Ttr")
    ZB = V.alloc("ZB", 16, 4); ZERO = ZB[0:2]; D = ZB[2:4]; PS = ZB[4:7]; PD = ZB[7:10]; HR = ZB[10:16]
    EN = V.alloc("EN", 2, 2); HALF = V.alloc("HALFC", 2, 2); INV = V.alloc("INV", 2, 2)
    vAt = V.alloc("At"); DT = V.alloc("DT", 4); vSl = V.alloc("Sl"); vAl = V.alloc("Al")
    ZH = V.alloc("ZH", 6); vWb = V.alloc("Wb"); LO = V.alloc("LO", 3)
    vJ = V.alloc("junk"); vCB = V.alloc("CB", 4); v8 = V.alloc("v8")
    nv = V.n
    mf = "v_mfma_f32_32x32x16_bf16"
    dpp = "row_mask:0xf bank_mask:0xf"
    prio = lambda p: A(f"s_setprio {p}") if "noprio" not in OPT else None
    zero16 = lambda r, z: f"v_mfma_f32_16x16x4_4b_bf16 {r}, {z}, {z}, 0"
    EXA = R("v", EA.b, 16)
    assert X.b == EA.b + 4 and A2.b == EA.b + 8
    DS = Y[0:5]; SR = Y[8:13]; RC = Y[16:21]; B4 = Y[21:26]; RT = Y[26:31]
    LE = H[0:5]; Z4 = H[8:12]; v4 = H[12]; c31 = H[13]
    aD4 = TM[0]; aD1 = TM[1]; aL = TM[2]; aC = TM[3]; aG = TM[4:6]; aS = TM[6:8]; vDs = TM[8]; vD = TM[9]; aWs = TM[10]
    aHj = TM[11]; aFj = TM[12]; aWj = TM[13]; aA = TM[14]; aZ = TM[15]; aHR = TM[16:19]; aWD = TM[19]; vT2 = TM[20]; aTz = TM[21]; aCn = TM[22]; vLim = TM[23]
    t0, t1, t2, t3 = DT[0], DT[1], DT[2], DT[3]
    RP = A2; RS = [EA[0:2], EA[2:4], X[0:2], X[2:4]]; vRo = vAt
    m5 = sM[10:12]
    if "stamp" in OPT: A("v_mov_b32 v255, 0")
    if "xskew" in OPT:
        A("s_and_b32 s3, s2, 7"); A("L_xs:"); A("s_cmp_eq_u32 s3, 0"); A("s_cbranch_scc1 L_xe"); A(f"s_sleep {geto('xsl', 2)}"); A("s_sub_u32 s3, s3, 1"); A("s_branch L_xs"); A("L_xe:")
    stamp(A, 0)
    A(f"""
    s_cmp_ge_u32 s2, {NB}
    s_cbranch_scc1 L_done
    s_load_dwordx16 s[4:19], s[0:1], 0
    s_load_dwordx4 s[20:23], s[0:1], 64
    s_load_dwordx2 s[24:25], s[0:1], 80
    v_lshrrev_b32 {vT1}, 6, v0
    v_and_b32 {vL}, 63, v0
    v_readfirstlane_b32 {sW}, {vT1}
    s_setprio 1
    """)
    t7 = "t7" in OPT
    def global_touch():
        if not notouch:
            names = ["sh", "b1", "y1", "y2", "p2", "b3", "poll", "w0", "c", "p3", "b5", "tile", "odd", "last", "l2", "epi"]
            nw = geto("tw", 1)
            if not t7: A(f"s_cmp_lt_u32 {sW}, {8 - nw}"); A("s_cbranch_scc1 L_back1")
            if "p7" in OPT: A("s_setprio 2")
            A(f"s_lshr_b32 s3, s2, 3")
            if nw > 1: A(f"s_mul_i32 s3, s3, {nw}"); A(f"s_add_u32 s3, s3, {sW}")
            A(f"s_and_b32 s3, s3, 15")
            for k, nm in enumerate(names): A(f"s_cmp_eq_u32 s3, {k}"); A(f"s_cbranch_scc1 L_st_{nm}")
            A("L_back1:")
    if not t7: global_touch()
    A(f"""
    s_mul_i32 s3, s2, {CH*4}
    v_lshl_add_u32 {aD4}, v0, 4, s3
    s_add_u32 s3, s3, 8192
    v_lshl_add_u32 {aD1}, v0, 2, s3
    v_cmp_gt_u32 vcc, {CH - 2048}, v0
    v_lshrrev_b32 {vHalf}, 5, {vL}
    s_mul_i32 {sT[0]}, s2, 5000
    s_add_u32 {sNb}, {sT[0]}, 127
    s_lshr_b32 {sNb}, {sNb}, 7
    s_mov_b64 {m5}, vcc
    s_lshl_b32 {sW10}, {sW}, 10
    s_mov_b32 {sT[1]}, {EPO}
    v_mov_b32 {Z4[0]}, 0
    v_mov_b32 {Z4[1]}, 0
    v_mov_b32 {Z4[2]}, 0
    v_mov_b32 {Z4[3]}, 0
    v_lshlrev_b32 {vD}, 4, v0
    v_lshrrev_b32 {EN[0]}, 3, v0
    v_mul_u32_u24 {vCB[0]}, {CH*64}, {EN[0]}
    v_add_u32 {EN[0]}, {sNb}, {EN[0]}
    v_and_b32 {EN[1]}, 0x70, {vD}
    v_and_b32 {c31}, 31, {vL}
    s_mul_i32 {sLb}, {sW}, {CAP*8}
    s_add_u32 {sLb}, {sLb}, {LIST}
    v_and_b32 {t3}, 16, {vL}
    v_lshlrev_b32 {t2}, 2, {t3}
    v_xor_b32 {vDs}, {vD}, {t2}
    s_add_u32 m0, {sW10}, {WE + 8192}
    s_movk_i32 {sT[3]}, 8192
    s_mov_b32 {SY[2]}, {145*128}
    s_mov_b32 {SY[3]}, 0x20000
    s_mov_b32 {SH[2]}, {N}
    s_mov_b32 {SH[3]}, 0x20000
    s_mul_i32 {sT[2]}, {sW}, {HST}
    s_waitcnt lgkmcnt(0)
    s_mov_b64 {SY[0:2]}, {pWe}
    s_mov_b32 {SH[0]}, {pH[0]}
    s_cmp_gt_u32 {sW}, 6
    s_cbranch_scc1 L_w2done
    buffer_load_dwordx4 {vDs}, {SY}, {sT[3]} offen lds
    s_cmp_lt_u32 {sW}, 6
    s_cbranch_scc1 L_w2done
    buffer_load_dwordx4 {vDs}, {SY}, {sT[3]} offen offset:1024 lds
    L_w2done:
    s_add_u32 m0, {sT[2]}, {HO}
    s_and_b32 {SH[1]}, {pH[1]}, 0xffff
    s_or_b32 {SH[1]}, {SH[1]}, 0x800000
    s_load_dword {sNon}, {pWs}, {sT[1]}
    s_cmp_ge_u32 {sW}, 5
    s_cbranch_scc1 L_share
    buffer_load_dwordx4 {EN}, {SH}, 0 idxen offen lds
    s_branch L_share_done
    """)
    stub("sh")
    A(f"""
    L_share:
    s_lshr_b32 {sT[0]}, s2, 3
    """)
    srd(A, SY, pPos, N * 6)
    A(f"s_mov_b32 {sT[2]}, 15")
    for w, (ptr, size, cnt) in ((6, (pWe, 145 * 128, 5)), (7, (pWh, 16384, 4))):
        A(f"""
        s_cmp_eq_u32 {sW}, {w}
        s_cselect_b64 {SY[0:2]}, {ptr}, {SY[0:2]}
        s_cselect_b32 {SY[2]}, {size}, {SY[2]}
        s_cselect_b32 {sT[2]}, {cnt}, {sT[2]}
        """)
    A(f"""
    s_mul_i32 {sT[0]}, {sT[0]}, {sT[2]}
    v_add_lshl_u32 {t2}, {vL}, {sT[0]}, 7
    s_bfm_b64 exec, {sT[2]}, 0
    buffer_load_dword {vJ}, {t2}, {SY}, 0 offen
    s_mov_b64 exec, -1
    L_share_done:
    """)
    for i in range(5): A(f"ds_write_b128 {vD}, {Z4} offset:{BST + 8192*i}")
    def ld(R_, p_):
        A(f"""
        global_load_dwordx4 {R_[0:4]}, {aD4}, {p_}
        s_mov_b64 exec, {m5}
        global_load_dword {R_[4]}, {aD1}, {p_}
        s_mov_b64 exec, -1
        """)
    dpos = geto("dpos", 0); spos = geto("spos", 3)
    def slot(k):
        if dpos == k: ld(DS, pDst)
        if spos == k: ld(SR, pSrc)
    slot(0)
    if "u7" in OPT: A(f"s_cmp_lt_u32 {sW}, 7"); A("s_cbranch_scc1 L_u7"); ld(SR, pSrc); A("L_u7:")
    A(zero16(ZB, Z4[0:2])); A(zero16(EXA, Z4[0:2]))
    A(f"""
    s_add_u32 {SH[0]}, {pWs[0]}, {BTO}
    s_addc_u32 {SH[1]}, {pWs[1]}, 0
    s_and_b32 {SH[1]}, {SH[1]}, 0xffff
    s_or_b32 {SH[1]}, {SH[1]}, 0x800000
    """)
    lo = sum(1 << ((k + 1) * 4 + (k >> 1)) for k in range(5) if k % 2 == 0)
    hi = sum(1 << ((k + 1) * 4 + (k >> 1)) for k in range(5) if k % 2 == 1)
    A(f"""
    v_mov_b32 {INV[0]}, {INV0:#x}
    v_mov_b32 {INV[1]}, {N}
    v_lshl_add_u32 {t0}, {vL}, 3, {sLb}
    ds_write_b64 {t0}, {INV}
    s_cmp_lg_u32 {sW}, 0
    s_cbranch_scc1 L_init_done
    v_lshrrev_b32 {t0}, 1, {vL}
    v_mul_u32_u24 {t0}, {CAP*8}, {t0}
    v_add_u32 {t0}, {LIST}, {t0}
    v_mov_b32 {t1}, 0x3f80
    s_mov_b64 {sT[2:4]}, 0xffff
    v_cndmask_b32 {t0}, 0, {t0}, {sT[2:4]}
    s_mov_b32 {sT[2]}, 0
    s_mov_b32 {sT[3]}, {lo:#x}
    v_cndmask_b32 {t0}, {t0}, {t1}, {sT[2:4]}
    s_mov_b32 {sT[3]}, {hi:#x}
    v_cndmask_b32 {t0}, {t0}, 1.0, {sT[2:4]}
    v_lshlrev_b32 {t1}, 2, {vL}
    ds_write_b32 {t1}, {t0}
    L_init_done:
    """)
    slot(1)
    if t7:
        A(f"s_cmp_lt_u32 {sW}, 7"); A("s_cbranch_scc1 L_n7"); ld(SR, pSrc); global_touch(); A("s_waitcnt lgkmcnt(0)"); A("s_barrier"); A("L_n7:")
    A(f"""
    v_mov_b32 {v4}, 4
    v_lshlrev_b32 {LE[0]}, 8, v0
    v_add_u32 {LE[1]}, 64, {LE[0]}
    v_add_u32 {LE[2]}, 128, {LE[0]}
    v_add_u32 {LE[3]}, 192, {LE[0]}
    v_lshlrev_b32 {LE[4]}, 6, v0
    v_add_u32 {LE[4]}, {2048*64}, {LE[4]}
    v_and_b32 {t0}, 3, {vL}
    v_lshlrev_b32 {t0}, 3, {t0}
    v_lshl_add_u32 {vTtr}, {t3}, 1, {t0}
    v_and_b32 {t1}, 12, {vL}
    v_lshl_add_u32 {t0}, {t1}, 5, {vTtr}
    v_lshl_add_u32 {vTtr}, {t1}, 4, {vTtr}
    v_and_b32 {t1}, 8, {vL}
    v_lshl_add_u32 {vWb}, {t1}, 3, {t0}
    v_lshl_add_u32 {t0}, {vHalf}, 10, {vWb}
    v_add_u32 {vT1}, {WE}, {t0}
    """)
    slot(2)
    A(f"""
    s_bfe_u32 {sT[0]}, {sW}, 0x10001
    s_mul_i32 {sT[0]}, {sT[0]}, 20
    v_add_u32 {aWj}, {sT[0]}, {c31}
    v_lshrrev_b32 {t1}, 3, {aWj}
    v_mul_u32_u24 {t1}, {HST - 1024}, {t1}
    v_lshl_add_u32 {aHj}, {aWj}, 7, {t1}
    v_lshl_add_u32 {aHj}, {vHalf}, 4, {aHj}
    v_add_u32 {aHj}, {HO}, {aHj}
    s_and_b32 {sT[1]}, {sW}, 1
    s_lshr_b32 {sT[2]}, {sW}, 2
    s_lshl_b32 {sT[0]}, {sT[1]}, 6
    s_mul_i32 {sT[3]}, {sT[2]}, {WH - WE}
    v_xor_b32 {aFj}, {sT[0]}, {vT1}
    v_add_u32 {aFj}, {sT[3]}, {aFj}
    s_lshl_b32 {sT[0]}, s2, 3
    s_add_u32 {sT[0]}, {sT[0]}, {sW}
    s_mul_i32 {sT[0]}, {sT[0]}, 625
    s_add_u32 {sN0}, {sT[0]}, 127
    s_lshr_b32 {sN0}, {sN0}, 7
    s_add_u32 {sNn}, {sT[0]}, {625 + 127}
    s_lshr_b32 {sNn}, {sNn}, 7
    s_sub_u32 {sNn}, {sNn}, {sN0}
    s_movk_i32 {sT[1]}, 120
    s_movk_i32 {sT[3]}, 8192
    """)
    aBw = TM[24]; aBr = TM[25]; aBs = TM[26:28]
    u0, u1 = sS2[0], sS2[1]
    stB = lines(f"""
    s_add_u32 {u0}, {sLb}, {BO - LIST}
    v_mul_u32_u24 {aBw}, 80, {c31}
    v_lshl_add_u32 {aBw}, {vHalf}, 5, {aBw}
    v_add_u32 {aBw}, {u0}, {aBw}
    v_lshrrev_b32 {t0}, 2, {vL}
    v_and_b32 {t1}, 48, {vD}
    v_mul_u32_u24 {aBr}, 80, {t0}
    v_add3_u32 {aBr}, {aBr}, {t1}, {u0}
    s_bfe_u32 {u0}, {sW}, 0x10001
    s_mul_i32 {u0}, {u0}, 20
    s_add_u32 {u0}, {u0}, {sNb}
    v_add_u32 {aBs[0]}, {u0}, {t0}
    s_and_b32 {u0}, {sW}, 1
    s_lshl_b32 {u0}, {u0}, 6
    v_add_u32 {aBs[1]}, {u0}, {t1}
    """)
    stG = lines(f"""
    v_lshrrev_b32 {t1}, 3, v0
    v_and_b32 {t0}, 0x70, {vD}
    v_mul_u32_u24 {aG[0]}, {STR}, {t1}
    s_lshl_b32 {u0}, s2, 7
    v_add3_u32 {aG[0]}, {aG[0]}, {t0}, {u0}
    v_add_u32 {aG[1]}, {64*STR}, {aG[0]}
    v_lshrrev_b32 {t1}, 1, {vL}
    v_and_b32 {t1}, 28, {t1}
    v_and_b32 {aC}, 4, {vL}
    v_lshl_add_u32 {aC}, {aC}, 3, {t1}
    v_lshl_add_u32 {aC}, {sW}, 6, {aC}
    v_and_b32 {t0}, 48, {vD}
    v_mad_u32_u24 {aL}, {aC}, 36, {t0}
    """)
    stL = lines(f"""
    v_add_u32 {aWs}, {WE + 8192}, {vD}
    s_lshl_b32 {u0}, {sW}, 11
    s_add_u32 {u0}, {u0}, {WE}
    s_sub_u32 {u1}, {u0}, 8
    v_lshl_add_u32 {vTtr}, {vHalf}, 8, {vTtr}
    v_add_u32 {vTtr}, {u0}, {vTtr}
    v_lshl_add_u32 {vTrow}, {c31}, 6, {u1}
    v_lshl_add_u32 {aTz}, {vL}, 3, {u0}
    v_lshl_add_u32 {vWb}, {vHalf}, 9, {vWb}
    v_add_u32 {vWb}, {WH + 8192}, {vWb}
    v_xor_b32 {vT2}, 64, {vT1}
    s_lshr_b32 {u0}, {sW}, 2
    s_mul_i32 {u0}, {u0}, {40*272}
    s_and_b32 {u1}, {sW}, 1
    s_lshl_b32 {u1}, {u1}, 7
    s_add_u32 {u0}, {u0}, {u1}
    s_add_u32 {u0}, {u0}, {TB}
    v_mul_u32_u24 {aWj}, 272, {aWj}
    v_lshl_add_u32 {aWj}, {vHalf}, 4, {aWj}
    v_add_u32 {aWj}, {u0}, {aWj}
    s_sub_u32 {u0}, {sN0}, {sNb}
    s_mul_i32 {u1}, {u0}, 272
    s_add_u32 {u1}, {u1}, {TB}
    v_lshl_add_u32 {aA}, {c31}, 2, {u1}
    v_mul_u32_u24 {aZ}, 272, {vHalf}
    v_add_u32 {aZ}, {aZ}, {aA}
    v_lshlrev_b32 {t2}, 1, {c31}
    v_add_u32 {aWD}, {WE + 18432}, {t2}
    v_add_u32 {t2}, {HO}, {t2}
    v_add_u32 {t0}, {u0}, {vHalf}
    s_movk_i32 {u0}, {HST - 1024}
    """)
    for j in range(3):
        stL += [f"v_lshrrev_b32 {t1}, 3, {t0}", f"v_lshl_add_u32 {aHR[j]}, {t0}, 7, {t2}", f"v_mad_u32_u24 {aHR[j]}, {t1}, {u0}, {aHR[j]}"]
        if j < 2: stL.append(f"v_add_u32 {t0}, 2, {t0}")
    if t7 or "u7" in OPT: A(f"s_cmp_eq_u32 {sW}, 7"); A("s_cbranch_scc1 L_n7b")
    slot(3)
    if t7 or "u7" in OPT: A("L_n7b:")
    srd(A, SX, pWs, 2 * SEC); srd(A, SY, pWe, 145 * 128); srd(A, SZ, pWh, 16384)
    if "xto" in OPT: A("s_cmp_eq_u32 s2, 5"); A(f"s_cselect_b32 {SX[2]}, 0, {SX[2]}")
    A("\n".join(stG + stL))
    touch_local([1], ["p2"], "L_back3")
    stub("b1", over=True)
    stamp(A, 1)
    BH = W2[0:16]; BF = W2[16:32]; BD = ACC[0:16]; BP = ACC[16:24]; BR = ACC[24:32]
    lab = {"n": 0}
    def old(fn):
        lab["n"] += 1; A(f"s_cmp_ge_u32 {sW}, 4"); A(f"s_cbranch_scc1 L_old{lab['n']}"); fn(); A(f"L_old{lab['n']}:")
    ny = 4 if spos < 4 else 2
    if "f2" in OPT:
        A("s_waitcnt lgkmcnt(0)"); stamp(A, 23); A(f"s_waitcnt vmcnt({ny + 1})"); stamp(A, 24); A("s_waitcnt lgkmcnt(0)"); A(f"s_waitcnt vmcnt({ny})"); stamp(A, 25)
    if t7: A(f"s_cmp_eq_u32 {sW}, 7"); A("s_cbranch_scc1 L_n7c")
    A(f"s_cmp_ge_u32 {sW}, 5"); A(f"s_waitcnt vmcnt({ny + 1}) lgkmcnt(0)"); A("s_cbranch_scc1 L_b1"); A(f"s_waitcnt vmcnt({ny})"); A("L_b1:"); A("s_barrier")
    if t7: A("L_n7c:")
    stamp(A, 29)
    slot(4)
    A(f"s_and_b32 {sNon}, {sNon}, -8")
    hashc = []
    for q in range(4):
        r = sNq[q]
        hashc.append(lines(f"""
        s_add_u32 {r}, {sNon}, {0x9e3779b8 + q:#x}
        s_mul_i32 {r}, {r}, 0x85ebca6b
        s_lshr_b32 s3, {r}, 15
        s_xor_b32 {r}, {r}, s3
        s_mul_i32 {r}, {r}, 0xc2b2ae35
        s_and_b32 {r}, {r}, -16
        s_or_b32 {r}, {r}, {1 << q}
        """))
    def b_reads():
        for s in range(4):
            A(f"ds_read_b128 {BH[4*s:4*s+4]}, {aHj} offset:{32*s}")
            for half in range(2): A(f"ds_read_b64_tr_b16 {BF[4*s+2*half:4*s+2*half+2]}, {aFj} offset:{8192 + (16*s + 4*half)*128}")
    st2 = lines(f"""
    s_mul_i32 {sStg}, {sW}, 5120
    s_add_u32 {sStg}, {sStg}, {STG}
    s_add_u32 {sEm}, {sStg}, 4096
    s_mul_i32 {sPd}, {sN0}, 6
    s_add_u32 {sPd}, {sPd}, {POS - 6}
    s_mov_b32 {sTo}, 0
    s_mov_b32 {sScan}, 0
    s_mov_b32 {sEarly}, 0
    s_mov_b32 {sOv}, 0
    v_and_b32 {t3}, 31, {vL}
    v_bfe_u32 {t0}, {vL}, 1, 3
    v_xor_b32 {t0}, {t0}, {vHalf}
    v_lshlrev_b32 {t0}, 4, {t0}
    v_lshl_add_u32 {t0}, {t3}, 7, {t0}
    v_add_u32 {HRD[0]}, {sStg}, {t0}
    v_xor_b32 {HRD[1]}, 32, {HRD[0]}
    v_xor_b32 {HRD[2]}, 64, {HRD[0]}
    v_xor_b32 {HRD[3]}, 0x60, {HRD[0]}
    v_bfe_u32 {t0}, {vL}, 3, 1
    v_xor_b32 {t0}, {t0}, {vHalf}
    v_lshlrev_b32 {t0}, 4, {t0}
    v_lshl_add_u32 {t0}, {t3}, 5, {t0}
    v_add_u32 {ERD}, {sEm}, {t0}
    v_lshl_add_u32 {LO[2]}, {t3}, 3, {sLb}
    v_and_b32 {t0}, 56, {vL}
    v_add3_u32 {LO[0]}, {t0}, {sLb}, 4
    v_lshrrev_b32 {t0}, 1, {vL}
    v_lshl_add_u32 {LO[1]}, {t0}, 3, {sLb}
    v_mov_b32 {vAh}, {LO[0]}
    v_mov_b32 {vAe}, {LO[1]}
    v_mov_b32 {HALF[0]}, 0x3f003f00
    v_mov_b32 {HALF[1]}, 0x3f003f00
    v_mov_b32 {v8}, 8
    v_add_u32 {vCB[1]}, {64*CH*64}, {vCB[0]}
    v_add_u32 {vCB[2]}, {128*CH*64}, {vCB[0]}
    v_add_u32 {vCB[3]}, {192*CH*64}, {vCB[0]}
    v_and_b32 {t0}, 15, {vL}
    v_lshlrev_b32 {aCn}, 3, {t0}
    v_mul_u32_u24 {vLim}, {CAP*8}, {t0}
    v_add_u32 {vLim}, {LIST + CAP*8}, {vLim}
    s_mov_b64 {sS2[4:6]}, 0xff
    v_cndmask_b32 {vLim}, 0, {vLim}, {sS2[4:6]}
    """)
    st2 += ["s_mov_b32 exec_lo, 0x80808080", "s_mov_b32 exec_hi, 0x80808080"] + [f"v_mov_b32 {RS[q][1]}, {sNq[q]}" for q in range(4)] + ["s_mov_b64 exec, -1"]
    st3 = lines(f"""
    v_and_b32 {t0}, 48, {vL}
    v_and_b32 {t1}, 0x70, {vD}
    v_xor_b32 {IX[1]}, {t0}, {t1}
    v_xor_b32 {IX[3]}, 64, {IX[1]}
    v_mov_b32 {IX[5]}, {IX[1]}
    v_mov_b32 {IX[7]}, {IX[3]}
    v_and_b32 {IX[9]}, 16, {IX[1]}
    """) + [f"v_mov_b32 {IX[2*i]}, -1" for i in range(5)]
    A(f"s_cmp_ge_u32 {sW}, 4"); A("s_cbranch_scc1 L_y1")
    b_reads()
    A("\n".join(stB))
    for s in range(4):
        A(f"s_waitcnt lgkmcnt({9 - 3*s})"); A(f"{mf} {BD}, {BF[4*s:4*s+4]}, {BH[4*s:4*s+4]}, {BD if s else 0}")
    A("\n".join(x for q in range(2) for x in hashc[q]))
    for k in range(16): A(f"v_mul_f32 {BD[k]}, {NLOG2E:#x}, {BD[k]}")
    for k in range(8): A(f"v_cvt_pk_bf16_f32 {BP[k]}, {BD[2*k]}, {BD[2*k+1]}")
    A("s_mov_b32 exec_lo, 0xfffff"); A("s_mov_b32 exec_hi, 0xfffff")
    for k in range(2): A(f"ds_write_b128 {aBw}, {BP[4*k:4*k+4]} offset:{16*k}")
    A("s_mov_b64 exec, -1")
    for k in range(2): A(f"ds_read_b128 {BR[4*k:4*k+4]}, {aBr} offset:{1280*k}")
    A("\n".join(x for q in range(2, 4) for x in hashc[q]))
    if "xto" in OPT: A("s_cmp_eq_u32 s2, 5"); A(f"s_cselect_b32 {SH[2]}, 0, {SH[2]}")
    A("s_waitcnt lgkmcnt(0)")
    A(f"buffer_store_dwordx4 {BR[0:4]}, {aBs}, {SH}, 0 idxen offen sc1")
    A(f"v_add_u32 {aBs[0]}, 16, {aBs[0]}"); A("s_mov_b64 exec, 0xffff")
    A(f"buffer_store_dwordx4 {BR[4:8]}, {aBs}, {SH}, 0 idxen offen sc1")
    A("s_mov_b64 exec, -1")
    A("s_waitcnt vmcnt(4)")
    A("s_branch L_y2")
    stub("y1")
    A("L_y1:")
    for s in range(4): A(f"ds_read_b128 {BH[4*s:4*s+4]}, {aHj} offset:{32*s}")
    WB = PK[4:8]
    def tables():
        A(f"""
        s_add_u32 m0, {sW10}, {WE}
        s_nop 0
        buffer_load_dwordx4 {vDs}, {SY}, 0 offen lds
        s_add_u32 m0, {sW10}, {WH}
        s_nop 0
        buffer_load_dwordx4 {vDs}, {SZ}, 0 offen lds
        s_add_u32 m0, {sW10}, {WH + 8192}
        s_nop 0
        buffer_load_dwordx4 {vDs}, {SZ}, {sT[3]} offen lds
        """)
    ty = "tlate" not in OPT
    A("\n".join(x for q in range(4) for x in hashc[q]))
    if ty: tables()
    stub("y2", over=True)
    A(f"s_waitcnt vmcnt({5 if ty else 2})")
    if "yp1" in OPT: A("s_setprio 2")
    A("L_y2:")
    if "xto" in OPT: A(f"s_mov_b32 {SH[2]}, {N}")
    stamp(A, 2)
    for i in range(5):
        if i == 4: A(f"s_mov_b64 exec, {m5}")
        A(f"""
        v_mul_u32_u24 {RC[i]}, 429497, {DS[i]}
        v_lshrrev_b32 {B4[i]}, 22, {RC[i]}
        v_and_b32 {B4[i]}, -4, {B4[i]}
        ds_add_rtn_u32 {RT[i]}, {B4[i]}, {v4} offset:{BCN}
        """)
    A("s_mov_b64 exec, -1")
    for i in range(5):
        A(f"""
        v_lshrrev_b32 {RC[i]}, 21, {RC[i]}
        v_mul_u32_u24 {RC[i]}, 399, {RC[i]}
        v_lshrrev_b32 {RC[i]}, 7, {RC[i]}
        v_add3_u32 {RC[i]}, {RC[i]}, {DS[i]}, 1
        v_and_or_b32 {RC[i]}, {RC[i]}, 63, {LE[i]}
        """)
    A(f"""
    s_xor_b32 {sK}, {sNq[0]}, {sNq[1]}
    s_xor_b32 {sK}, {sK}, {sNq[2]}
    s_xor_b32 {sK}, {sK}, {sNq[3]}
    s_bitcmp1_b32 s2, 6
    s_cselect_b32 {sNon}, {sNq[1]}, {sNq[0]}
    s_cselect_b32 s3, {sNq[3]}, {sNq[2]}
    s_bitcmp1_b32 s2, 7
    s_cselect_b32 {sNon}, s3, {sNon}
    """)
    stamp(A, 3)
    if ty: A(f"s_cmp_ge_u32 {sW}, 4"); A("s_waitcnt vmcnt(3) lgkmcnt(0)"); A("s_cbranch_scc1 L_srcok"); A("s_waitcnt vmcnt(2)"); A("L_srcok:")
    else: A(f"s_cmp_ge_u32 {sW}, 4"); A("s_waitcnt vmcnt(2) lgkmcnt(0)"); A("s_cbranch_scc0 L_srcok"); A("s_waitcnt vmcnt(0)"); A("L_srcok:")
    stamp(A, 4)
    for i in range(5):
        if i == 4: A(f"s_mov_b64 exec, {m5}")
        A(f"v_min_u32 {RT[i]}, 120, {RT[i]}"); A(f"v_lshl_or_b32 {RC[i]}, {SR[i]}, 18, {RC[i]}"); A(f"v_mad_u32_u24 {RT[i]}, {B4[i]}, 36, {RT[i]}")
        A(f"ds_write_b32 {RT[i]}, {RC[i]} offset:{BST + 4}")
    A("s_mov_b64 exec, -1")
    A(f"""
    s_cmp_gt_u32 {sW}, 3
    s_cbranch_scc1 L_odone
    s_cbranch_scc0 L_o0
    L_o3:
    v_lshlrev_b32 {t0}, 1, {vL}
    global_load_ushort {WB[0]}, {t0}, {pWx}
    s_branch L_odone
    L_o1:
    s_mov_b32 {sT[2]}, {129*128 - 1024}
    buffer_load_dwordx4 {WB}, {vDs}, {SY}, {sT[2]} offen
    s_branch L_odone
    L_o0:
    s_cmp_eq_u32 {sW}, 3
    s_cbranch_scc1 L_o3
    s_cmp_lg_u32 {sW}, 0
    s_cbranch_scc1 L_o1
    v_lshlrev_b32 {t0}, 2, {vL}
    s_mov_b32 m0, {WE + 18432}
    s_mov_b32 {sT[2]}, 16384
    s_mov_b32 exec_hi, 0
    buffer_load_dword {t0}, {SY}, {sT[2]} offen lds
    s_mov_b64 exec, -1
    L_odone:
    """.replace("s_cbranch_scc0 L_o0", "s_branch L_o0"))
    if ty: old(tables)
    else: tables()
    stub("p2", page="L_back3")
    srd(A, SZ, pPos, N * 6)
    def poll():
        for q in range(4): A(f"buffer_load_dwordx2 {RP[2*q:2*q+2]}, {vRo}, {SX}, {sS2[q-1] if q else 0} offen {'sc0 sc1' if 'sys' in OPT else 'sc1'}")
    def posdma(k):
        if k < 7:
            A(f"s_add_u32 m0, {sW10}, {POS + 8192*k}"); A(f"s_mov_b32 {sT[0]}, {8192*k}"); A(f"buffer_load_dwordx4 {vD}, {SZ}, {sT[0]} offen lds")
        else:
            A(f"""
            s_cmp_gt_u32 {sW}, 2
            s_cbranch_scc1 L_ptail
            v_add_u32 {vSl}, {8192*7}, {vD}
            s_add_u32 m0, {sW10}, {POS + 8192*7}
            v_cmpx_gt_u32 vcc, 60032, {vSl}
            buffer_load_dwordx4 {vSl}, {SZ}, 0 offen lds
            s_mov_b64 exec, -1
            L_ptail:
            """)
    n0 = geto("pz", 2)
    old(lambda: A("s_waitcnt vmcnt(4)")) if "ackfirst" in OPT else None
    for u in range(n0): posdma(6 - u)
    stamp(A, 22)
    PR = [Y[0:4], Y[4:8]]; SC = [Y[8:12], Y[12:16]]; CN = Y[16:18]; XR = Y[20:24]; ST = Y[24:26]
    A(f"""
    s_mov_b32 {sM[0]}, 0x11111111
    s_mov_b32 {sM[1]}, 0x11111111
    s_mov_b32 {sM[2]}, 0x88888888
    s_mov_b32 {sM[3]}, 0x88888888
    s_and_b32 s3, {sNon}, 15
    s_lshl_b32 s3, s3, 4
    s_xor_b32 s3, s3, {sNon}
    v_mov_b32 {t0}, {sNon}
    v_mov_b32 {t1}, s3
    """)
    old(lambda: A(f"s_waitcnt vmcnt({4 + n0})"))
    A(f"""
    s_waitcnt lgkmcnt(0)
    s_barrier
    """)
    stamp(A, 5)
    for i in range(2): A(f"ds_read_b128 {PR[i]}, {aL} offset:{BST + 18432*i}")
    for i in range(2): A(f"ds_read_b128 {SC[i]}, {aL} offset:{BST + 18432*i + 64}"); A(f"ds_read_b32 {CN[i]}, {aC} offset:{BCN + 512*i}")
    A(f"s_mov_b32 {sT[2]}, {SEC}")
    def xor4(x, r):
        A(f"v_bitop3_b32 {x}, {r[0]}, {r[1]}, {r[2]} bitop3:0x96"); A(f"v_xor_b32 {x}, {x}, {r[3]}")
    A("s_waitcnt lgkmcnt(4)")
    for i in range(2): xor4(XR[i], PR[i])
    A("s_nop 0")
    for i in range(2): A(f"v_xor_b32_dpp {XR[i]}, {XR[i]}, {XR[i]} quad_perm:[1,0,3,2] {dpp}")
    A("s_nop 0")
    for i in range(2): A(f"v_xor_b32_dpp {XR[i]}, {XR[i]}, {XR[i]} quad_perm:[2,3,0,1] {dpp}")
    A(f"s_mov_b64 exec, {sM[0:2]}")
    for i in range(2): A(f"v_xor_b32 {PR[i][0]}, {XR[i]}, {t0}")
    A("s_mov_b64 exec, -1")
    for i in range(2): A(f"buffer_store_dwordx4 {PR[i]}, {aG[i]}, {SX}, 0 offen sc1")
    A("s_waitcnt lgkmcnt(0)")
    for i in range(2): A(f"v_cndmask_b32 {SC[i][3]}, {SC[i][3]}, 0, {sM[2:4]}")
    for i in range(2): xor4(XR[2+i], SC[i])
    for i in range(2):
        A(f"v_cmp_le_u32 {sM[4+2*i:6+2*i]}, 60, {CN[i]}"); A(f"v_cmp_lt_u32 {sM[8+2*i:10+2*i]}, {sT[1]}, {CN[i]}")
    for i in range(2): A(f"v_xor_b32_dpp {XR[2+i]}, {XR[2+i]}, {XR[2+i]} quad_perm:[1,0,3,2] {dpp}")
    for i in range(2): A(f"v_cndmask_b32 {aS[i]}, -2.0, {aG[i]}, {sM[4+2*i:6+2*i]}")
    for i in range(2): A(f"v_xor_b32_dpp {XR[2+i]}, {XR[2+i]}, {XR[2+i]} quad_perm:[2,3,0,1] {dpp}")
    for i in range(2): A(f"v_cndmask_b32 {ST[i]}, {t0}, {t1}, {sM[8+2*i:10+2*i]}")
    A(f"s_mov_b64 exec, {sM[2:4]}")
    for i in range(2): A(f"v_xor_b32 {SC[i][3]}, {XR[2+i]}, {ST[i]}")
    if "sfull" in OPT: A("s_mov_b64 exec, -1")
    for i in range(2):
        if "sfull" not in OPT: A(f"s_or_b64 exec, {sM[4+2*i:6+2*i]}, 1")
        A(f"buffer_store_dwordx4 {SC[i]}, {aS[i]}, {SX}, {sT[2]} offen sc1")
    A("s_mov_b64 exec, -1")
    stamp(A, 6)
    A(f"s_waitcnt vmcnt({4 + n0})")
    def scale(r):
        for i in range(4):
            A(f"v_lshlrev_b32 {t0}, 16, {r[i]}"); A(f"v_and_b32 {t1}, 0xffff0000, {r[i]}")
            A(f"v_mul_f32 {t0}, {NLOG2E:#x}, {t0}"); A(f"v_mul_f32 {t1}, {NLOG2E:#x}, {t1}"); A(f"v_cvt_pk_bf16_f32 {r[i]}, {t0}, {t1}")
    stub("b3", over=True)
    if "yp2" in OPT: old(lambda: A("s_setprio 0"))
    else: A("s_setprio 0")
    A("s_barrier")
    stamp(A, 7)
    WD = D
    def frag(dst, base, s, n):
        for half in range(2): A(f"ds_read_b64_tr_b16 {dst[2*half:2*half+2]}, {vT2 if n else vT1} offset:{base + (16*s + 4*half)*128}")
    def frags(dst, base, n):
        for s in range(4): frag(dst[16*n+4*s:16*n+4*s+4], base, s, n)
    NP = 7 - n0; npre = min(NP, geto("npre", 5)); hp = min(NP - npre, geto("npost", 1))
    JF = Y[0:16]; JD = Y[16:32]; PB = W2[0:8]
    B_ = Asm(); srd(B_, SE, pE, E, 32)
    stat = st3 + B_.o + st2 + lines(f"""
        s_and_b32 {sT[0]}, s2, 0xc0
        s_bfe_u32 s3, s2, 0x30003
        s_add_u32 {sT[0]}, {sT[0]}, s3
        s_lshl_b32 s3, {sW}, 3
        s_add_u32 {sT[0]}, {sT[0]}, s3
        s_mul_i32 {sT[0]}, {sT[0]}, 5000
        s_add_u32 {sT[0]}, {sT[0]}, 127
        s_lshr_b32 {sT[0]}, {sT[0]}, 7
        v_add_u32 {W2[15]}, {sT[0]}, {vL}
        """)
    c1 = 17
    r2 = stat[c1:]
    need = r2[0:9] + r2[24:30] + r2[32:36] + r2[42:]
    defer = r2[9:24] + r2[30:32] + [x.replace(str(sS2[4:6]), "vcc").replace("v_cndmask_b32", "v_cndmask_b32_e64") for x in r2[36:42]]
    defer += [f"s_mov_b32 vcc_lo, 0xaaaaaaaa", f"s_mov_b32 vcc_hi, 0xaaaaaaaa", f"v_mov_b32 {t0}, 0x3f80", f"v_cndmask_b32_e64 {t0}, {t0}, 1.0, vcc", f"s_mov_b32 {sNq[2]}, 3", f"s_mov_b32 {sNq[3]}, 0x30000"]
    for r in range(8):
        b = (r >> 2) * 4 + ((r >> 1) & 1) * 8 + (r & 1) * 2
        defer += [f"s_lshl_b64 vcc, {sNq[2:4]}, {b}", f"v_cndmask_b32_e64 {PB[r]}, 0, {t0}, vcc"]
    defer = [x.replace("vcc_lo", str(sT[2])).replace("vcc_hi", str(sT[3])).replace("vcc", str(sT[2:4])) for x in defer]
    BXO = W2[24:32]
    for n in range(2):
        a = H[8*n:8*n+8]
        defer += [f"v_lshlrev_b32 {a[5]}, 16, {a[5]}"] + [f"v_mul_f32 {a[i]}, {NLOG2E:#x}, {a[i]}" for i in range(6)] + [f"v_and_b32 {a[6]}, 0xffff0000, {a[5]}", f"v_sub_f32 {a[7]}, {a[5]}, {a[6]}"]
    bxc = []
    for hf, BB in enumerate((BX, BXO)):
        bxc += [f"s_mov_b32 exec_lo, {0 if hf else -1}", f"s_mov_b32 exec_hi, {-1 if hf else 0}"]
        for n in range(2):
            a = H[8*n:8*n+8]; B = BB[4*n:4*n+4]
            bxc += [f"v_cvt_pk_bf16_f32 {B[0]}, {a[0]}, {a[1]}", f"v_cvt_pk_bf16_f32 {B[1]}, {a[2]}, {a[3]}", f"v_cvt_pk_bf16_f32 {B[2]}, {a[4]}, 0", f"v_cvt_pk_bf16_f32 {B[3]}, {a[6]}, {a[7]}"]
    bxc += ["s_mov_b64 exec, -1"]
    nd = geto("nd", 23)
    pq = list(range(npre))
    def pos(n):
        for _ in range(n):
            if pq: posdma(pq.pop(0))
    for s in range(4):
        for half in range(2): A(f"ds_read_b64_tr_b16 {JF[4*s+2*half:4*s+2*half+2]}, {aFj} offset:{(16*s + 4*half)*128}")
    late = "pearly" not in OPT
    if not late: posdma(7); pos(1)
    A("\n".join(stat[:c1 - 5 * late]))
    for s in range(4):
        A(f"s_waitcnt lgkmcnt({6 - 2*s})")
        A(f"{mf} {JD}, {JF[4*s:4*s+4]}, {BH[4*s:4*s+4]}, {JD if s else 0}")
    if late: A("\n".join(stat[c1-5:c1]))
    else: pos(2)
    A(f"""
    s_lshr_b32 {sT[0]}, s2, 4
    s_lshl_b32 {sT[0]}, {sT[0]}, 3
    s_and_b32 s3, s2, 7
    s_add_u32 {sT[0]}, {sT[0]}, s3
    s_mul_i32 {sT[0]}, {sT[0]}, {STR}
    s_and_b32 s3, s2, 8
    s_lshl_b32 s3, s3, 3
    s_add_u32 {sT[0]}, {sT[0]}, s3
    v_and_b32 {t0}, 7, v0
    v_and_b32 {vRo}, 0xffffff80, {vD}
    v_lshl_add_u32 {vRo}, {t0}, 3, {vRo}
    v_add_u32 {vRo}, {sT[0]}, {vRo}
    s_movk_i32 {sS2[0]}, 8192
    s_movk_i32 {sS2[1]}, 16384
    s_movk_i32 {sS2[2]}, 24576
    """)
    if geto("pp", 0) == 2: poll()
    A(f"""
    s_mov_b32 exec_lo, 0xfffff
    s_mov_b32 exec_hi, 0xfffff
    """)
    for i in range(4): A(f"ds_write_b128 {aWj}, {JD[4*i:4*i+4]} offset:{32*i}")
    A("s_mov_b64 exec, -1")
    A(f"s_sub_u32 s3, {sW}, 1"); A("s_cmp_gt_u32 s3, 2"); A("s_cbranch_scc1 L_nowx"); A(f"s_cmp_eq_u32 s3, 2"); A("s_cbranch_scc1 L_wx")
    scale(WB)
    A(f"""
    ds_write_b128 {aWs}, {WB} offset:{8192 - 1024}
    s_branch L_nowx
    """)
    A(f"""
    L_wx:
    v_lshlrev_b32 {WB[0]}, 16, {WB[0]}
    v_lshlrev_b32 {t0}, 2, {vL}
    ds_write_b32 {t0}, {WB[0]} offset:{WX}
    L_nowx:
    """)
    A(zero16(ACC[0:16], ZERO)); A(zero16(ACC[16:32], ZERO)); A(zero16(W2[16:32], ZERO)); A(zero16(R("v", W4.b, 16), ZERO))
    for j in range(3):
        for n in range(2): A(f"ds_read_u16_d16_hi {HR[2*j+n]}, {aHR[j]} offset:{64*n}")
    pp = geto("pp", 0)
    posdma(7); pos(7)
    if pp == 1: poll()
    A("s_waitcnt lgkmcnt(0)"); A("s_barrier")
    stamp(A, 8)
    if pp == 0: poll()
    for n in range(2):
        for k in range(5): A(f"ds_read_b32 {H[8*n+k]}, {aA} offset:{272*k + 128*n}")
        A(f"ds_read_u16 {H[8*n+5]}, {aWD} offset:{64*n}")
    for u in range(hp): posdma(npre + u)
    stub("poll", over=True)
    A("\n".join(need[:19]))
    A("s_waitcnt lgkmcnt(5)")
    frag(W4[0:4], 16384, 0, 0); frag(W4[4:8], 16384, 0, 1)
    for j in range(3):
        for n in range(2): A(f"ds_read_b32 {ZH[2*j+n]}, {aZ} offset:{40*272 + 544*j + 128*n}")
    A("\n".join(need[19:]))
    A("\n".join(defer[:nd])); defer = defer[nd:]
    stamp(A, 9)
    touch_local([0, 1], ["p3", "last"], "L_back2")
    A('; ---- inbox: verify tags, append records to the eight per-wave lists, start the first gathers')
    XQ = Y[0]
    def xorall(r):
        A(f"v_bitop3_b32 {XQ}, {r[0]}, {r[1]}, {r[2]} bitop3:0x96"); A(f"v_bitop3_b32 {Y[1]}, {r[3]}, {r[4]}, {r[5]} bitop3:0x96")
        A(f"v_bitop3_b32 {XQ}, {XQ}, {r[6]}, {r[7]} bitop3:0x96"); A(f"v_xor_b32 {XQ}, {XQ}, {Y[1]}")
    PW = Y[8:20]; PA = TM[24:32]
    A(f"s_waitcnt vmcnt({hp + (npre if pp == 2 else 0)}) lgkmcnt(0)")
    A("L_poll:")
    xorall([RP[i] for i in range(8)])
    pre = [x for i in range(3) for x in (f"v_cmp_ne_u32 {sM[2*i:2*i+2]}, 0, {RP[i]}", f"v_and_b32 {PA[i]}, 0x38, {RP[i]}")]
    for k, c in enumerate(("quad_perm:[1,0,3,2]", "quad_perm:[2,3,0,1]", "row_half_mirror")):
        A(pre[2*k]); A(pre[2*k+1]); A(f"v_xor_b32_dpp {XQ}, {XQ}, {XQ} {c} {dpp}")
    A(f"""
    v_cmp_ne_u32 vcc, {sK}, {XQ}
    s_add_u32 {sTo}, {sTo}, 1
    s_cbranch_vccz L_got
    """)
    if "fullre" not in OPT: A("s_mov_b64 exec, vcc")
    poll()
    A(f"""
    s_mov_b64 exec, -1
    s_cmp_le_u32 {sTo}, {TIMEOUT}
    s_waitcnt vmcnt(0)
    s_cbranch_scc1 L_poll
    s_mov_b32 {sOv}, 1
    L_got:
    """)
    stamp(A, 10)
    if "yp3" in OPT: A("s_setprio 0")
    def notag(i, pat):
        A(f"s_and_b32 {sM[2*i]}, {sM[2*i]}, {pat}"); A(f"s_and_b32 {sM[2*i+1]}, {sM[2*i+1]}, {pat}")
    def atomics(idx, between=()):
        idx = list(idx); per = -(-len(between) // len(idx))
        for k, i in enumerate(idx):
            if i % 2 == 0: notag(i, "0xfefefefe")
            A(f"s_mov_b64 exec, {sM[2*i:2*i+2]}"); A(f"ds_add_rtn_u32 {PA[i]}, {PA[i]}, {v8}")
            if between: A("s_mov_b64 exec, -1"); A("\n".join(between[per*k:per*k+per]))
        if not between: A("s_mov_b64 exec, -1")
    def words(r, W, q):
        A(f"v_and_b32 {W[0]}, 0x3ffff, {r}"); A(f"v_lshrrev_b32 {W[1]}, 18, {r}"); A(f"v_add_u32 {W[0]}, {W[0]}, {vCB[q]}")
    def writes(idx, extra=0):
        for k, i in enumerate(idx):
            A(f"s_waitcnt lgkmcnt({len(idx)-1+extra})")
            A(f"s_mov_b64 exec, {sM[2*i:2*i+2]}"); A(f"ds_write_b64 {PA[i]}, {PW[2*k:2*k+2]}")
        A("s_mov_b64 exec, -1")
    def secloads(tag):
        for q in range(4):
            A(f"""
            s_mov_b64 exec, {sS2[2*q:2*q+2]}
            s_cbranch_execz L_{tag}{q}
            s_mov_b32 {sT[0]}, {SEC + 8192*q}
            buffer_load_dwordx2 {RS[q]}, {vRo}, {SX}, {sT[0]} offen sc1
            L_{tag}{q}:
            """)
        A("s_mov_b64 exec, -1")
    def read_idx(off=0):
        for i in range(4): A(f"ds_read_b32 {IX[2*i]}, {vAh} offset:{off + 64*i}")
        A(f"ds_read_b32 {IX[8]}, {vAe} offset:{off}")
    adv_idx = [f"v_add_u32 {vAh}, 512, {vAh}", f"v_add_u32 {vAe}, 512, {vAe}"]
    shift_e = f"v_lshrrev_b32 {IX[8]}, 6, {IX[8]}"
    E0 = Y[6:8]
    def dma_h(rng=range(4)):
        for i in rng:
            A(f"s_add_u32 m0, {sStg}, {1024*i}"); A("s_nop 0"); A(f"buffer_load_dwordx4 {IX[2*i:2*i+2]}, {SH}, 0 idxen offen sc1 lds")
    def dma_e():
        A(f"s_mov_b32 m0, {sEm}"); A("s_nop 0")
        A(f"buffer_load_dwordx4 {IX[8:10]}, {SE}, 0 idxen offen lds")
    read_first = read_idx
    def shift_first(): A(shift_e)
    atomics([0, 1])
    nb = geto("bpf", 16)
    def bpf():
        A(f"s_bfm_b64 exec, {nb}, 0"); A(f"buffer_load_dword {vJ}, {W2[15]}, {SH}, 0 idxen sc1"); A("s_mov_b64 exec, -1")
    if nb and "bfirst" in OPT: bpf()
    for k in range(2): words(RP[k], PW[2*k:2*k+2], 0)
    for i in range(3, 8): A(f"v_cmp_ne_u32 {sM[2*i:2*i+2]}, 0, {RP[i]}"); A(f"v_and_b32 {PA[i]}, 0x38, {RP[i]}")
    A(f"s_mov_b32 {sT[2]}, 0x01010101"); A(f"s_mov_b32 {sT[3]}, 0x01010101")
    for q in range(4):
        A(f"s_lshr_b64 {sS2[2*q:2*q+2]}, {sM[4*q+2:4*q+4]}, 7"); A(f"s_and_b64 {sS2[2*q:2*q+2]}, {sS2[2*q:2*q+2]}, {sT[2:4]}")
        for u in range(2): A(f"s_mulk_i32 {sS2[2*q+u]}, 255")
    writes([0, 1])
    if "prime" in OPT: A(f"s_waitcnt vmcnt({1 if nb and 'bfirst' in OPT else 0})")
    secloads("sl")
    for u in range(npre + hp, NP): posdma(u)
    if nb and "bfirst" not in OPT: bpf()
    ex = geto("ex", 0)
    if ex:
        pat = ex * 0x01010101
        A(f"v_lshrrev_b32 {vJ}, 6, {PW[0]}"); A(f"s_and_b32 exec_lo, {sM[0]}, {pat:#x}"); A(f"s_and_b32 exec_hi, {sM[1]}, {pat:#x}")
        A(f"s_cbranch_execz L_nex"); A(f"buffer_load_dword {vJ}, {vJ}, {SE}, 0 idxen"); A("L_nex:"); A("s_mov_b64 exec, -1")
    stub("w0", over=True)
    A(f"s_cmp_ge_u32 {sW}, 4")
    A("s_waitcnt lgkmcnt(0)"); A("s_barrier")
    stamp(A, 16)
    def try_early(lab):
        shift_first()
        A(f"""
        v_max3_u32 {Y[4]}, {IX[0]}, {IX[2]}, {IX[4]}
        v_max_u32 {Y[4]}, {Y[4]}, {IX[6]}
        v_cmp_le_u32 vcc, {E}, {IX[8]}
        s_mov_b64 {sT[2:4]}, vcc
        v_cmp_le_u32 vcc, {N}, {Y[4]}
        s_or_b64 vcc, vcc, {sT[2:4]}
        s_cbranch_vccnz {lab}
        """)
        dma_e(); dma_h()
        A(f"s_mov_b32 {sEarly}, 1")
    A("s_cbranch_scc1 L_noread"); read_first(); A("L_noread:")
    na = geto("na", 4)
    atomics(range(2, na))
    A(f"s_cmp_ge_u32 {sW}, 4"); A("s_cbranch_scc1 L_noearly"); A(f"s_waitcnt lgkmcnt({na - 2})")
    try_early("L_noearly")
    A("L_noearly:")
    stamp(A, 17)
    stub("c", over=True)
    if na < 8: atomics(range(na, 8), defer)
    else: A("\n".join(defer))
    A("\n".join(bxc))
    for k in range(6): words(RP[2+k], PW[2*k:2*k+2], 1 + k // 2)
    RSf = [RS[q][i] for q in range(4) for i in range(2)]
    A(f"""
    s_cmp_eq_u32 {sEarly}, 0
    s_cbranch_scc1 L_w0
    s_waitcnt vmcnt({6 if nb and "wold" not in OPT else 5})
    s_branch L_w1
    """)
    stub("p3", page="L_back2", dead=True)
    A(f"""
    L_w0:
    s_waitcnt vmcnt({1 if nb and "wold" not in OPT else 0})
    L_w1:
    """)
    xorall(RSf)
    for k, c in enumerate(("quad_perm:[1,0,3,2]", "quad_perm:[2,3,0,1]", "row_half_mirror")):
        A("s_nop 1"); A(f"v_xor_b32_dpp {XQ}, {XQ}, {XQ} {c} {dpp}")
    A(f"""
    v_cmp_ne_u32 vcc, {sK}, {XQ}
    s_cbranch_vccnz L_sbad
    L_sgot:
    """)
    with cold():
        A(f"""
        L_sbad:
        v_xor_b32 {XQ}, {sK}, {XQ}
        v_and_b32 {XQ}, 0xffffff0f, {XQ}
        v_cmp_ne_u32 vcc, 0, {XQ}
        s_add_u32 {sTo}, {sTo}, 1
        s_cbranch_vccz L_stimeout
        s_cmp_gt_u32 {sTo}, {TIMEOUT}
        s_cbranch_scc1 L_stimeout
        """)
        secloads("rl")
        A(f"""
        s_waitcnt vmcnt(0)
        s_branch L_w1
        L_stimeout:
        s_mov_b32 {sOv}, 1
        s_branch L_sgot
        """)
    writes(list(range(2, 8)))
    stamp(A, 18)
    def bp2(n):
        A(f"s_bfm_b64 exec, {n}, {nb}"); A(f"buffer_load_dword {vJ}, {W2[15]}, {SH}, 0 idxen sc1"); A("s_mov_b64 exec, -1")
    if geto("bp2", 0): bp2(geto("bp2", 0))
    if "ymid" in OPT:
        A(f"s_cmp_lt_u32 {sW}, 4"); A("s_cbranch_scc1 L_ym"); read_first(); A("s_waitcnt lgkmcnt(0)"); try_early("L_ym"); A("L_ym:")
    SWd = TM[0:16]; SA = Y[20:28]
    for i in range(8): A(f"v_cmp_ne_u32 {sM[2*i:2*i+2]}, 0, {RSf[i]}")
    for q in range(4):
        A(f"s_mov_b64 exec, {sM[4*q:4*q+2]}"); A(f"s_cbranch_execz L_sa{q}")
        notag(2*q+1, "0x7f7f7f7f")
        A(f"v_and_b32 {SA[2*q]}, 0x38, {RS[q][0]}"); A(f"v_and_b32 {SA[2*q+1]}, 0x38, {RS[q][1]}")
        A(f"ds_add_rtn_u32 {SA[2*q]}, {SA[2*q]}, {v8}")
        for i in range(2): words(RS[q][i], SWd[4*q+2*i:4*q+2*i+2], q)
        A(f"s_mov_b64 exec, {sM[4*q+2:4*q+4]}"); A(f"ds_add_rtn_u32 {SA[2*q+1]}, {SA[2*q+1]}, {v8}")
        A(f"L_sa{q}:")
    A("s_mov_b64 exec, -1")
    A("s_waitcnt lgkmcnt(5)")
    if "ymid" not in OPT: A(f"s_cmp_lt_u32 {sW}, 4"); A("s_cbranch_scc1 L_noread2"); read_first(); A("L_noread2:")
    for i in range(4): A(f"ds_write_b64 {aTz}, {ZERO} offset:{512*i}")
    stub("b5", over=True)
    A("s_waitcnt lgkmcnt(4)")
    for q in range(4):
        A(f"s_mov_b64 exec, {sM[4*q:4*q+2]}"); A(f"s_cbranch_execz L_sb{q}")
        A(f"ds_write_b64 {SA[2*q]}, {SWd[4*q:4*q+2]}")
        A(f"s_mov_b64 exec, {sM[4*q+2:4*q+4]}"); A(f"ds_write_b64 {SA[2*q+1]}, {SWd[4*q+2:4*q+4]}")
        A(f"L_sb{q}:")
    A(f"""
    s_mov_b64 exec, -1
    s_cmp_eq_u32 {sOv}, 0
    s_cbranch_scc1 L_noflag
    ds_write_b32 {ZERO[0]}, {v8} offset:{FLAG}
    L_noflag:
    """)
    stamp(A, 19)
    def young():
        A(f"s_cmp_lt_u32 {sW}, 4"); A("s_cbranch_scc1 L_yd"); try_early("L_yd"); A("L_yd:")
    if "yafter" not in OPT: young()
    A(f"""
    s_setprio 3
    s_waitcnt lgkmcnt(0)
    s_barrier
    ds_read_b32 {t0}, {aCn}
    """)
    if "yafter" in OPT: young()
    A(f"""
    s_waitcnt lgkmcnt(0)
    v_cmp_gt_u32 vcc, {t0}, {vLim}
    v_readlane_b32 {sCnt}, {t0}, {sW}
    s_and_b32 {sSlow}, vcc_lo, 0x1ff
    s_sub_u32 {sCnt}, {sCnt}, {sLb}
    s_lshr_b32 {sCnt}, {sCnt}, 3
    s_cmp_eq_u32 {sSlow}, 0
    s_cselect_b32 {sCnt}, {sCnt}, 0
    s_cselect_b32 {sEarly}, {sEarly}, 0
    s_cselect_b32 {sScan}, {E}, 0
    s_cselect_b32 {sT[0]}, s2, 0
    s_or_b32 {sT[0]}, {sT[0]}, {sW}
    s_cbranch_scc0 L_epoch
    """)
    with cold():
        A(f"""
        L_epoch:
        v_mov_b32 {t0}, {EPO}
        s_mov_b64 exec, 1
        global_atomic_add {t0}, {v8}, {pWs}
        s_mov_b64 exec, -1
        s_branch L_round
        """)
    vAz = W2[8]; aPs = W2[9]; aPd = W2[10]; E2 = W2[12:14]
    slot_ops = [f"v_mov_b32 {vAz}, {vAt}", f"v_lshl_add_u32 {vAt}, {vSl}, 3, {vTrow}", f"v_lshlrev_b32 {vAl}, 4, {vSl}"]
    def derive_a(e=EN): return [f"v_mad_u32_u24 {aPs}, {e[1]}, 6, {sNq[1]}", f"v_and_b32 {vSl}, 7, {e[0]}", f"v_mad_u32_u24 {aPd}, {vSl}, 6, {sPd}"]
    def pos_reads():
        for i in range(3): A(f"ds_read_u16_d16_hi {PS[i]}, {aPs} offset:{2*i}")
        for i in range(3): A(f"ds_read_u16_d16_hi {PD[i]}, {aPd} offset:{2*i}")
    lut_read = f"ds_read_b96 {X[0:3]}, {vAl} offset:{LUT}"
    derive_b = lines(f"""
        v_sub_f32 {DT[0]}, {PD[0]}, {PS[0]}
        v_sub_f32 {DT[1]}, {PD[1]}, {PS[1]}
        v_sub_f32 {DT[2]}, {PD[2]}, {PS[2]}
        v_cvt_pk_bf16_f32 {D[0]}, {DT[0]}, {DT[1]}
        v_cvt_pk_bf16_f32 {D[1]}, {DT[2]}, 1.0
        v_lshlrev_b32 {DT[0]}, 16, {D[0]}
        v_and_b32 {DT[1]}, 0xffff0000, {D[0]}
        v_lshlrev_b32 {DT[2]}, 16, {D[1]}
        v_mul_f32 {DT[0]}, {DT[0]}, {DT[0]}
        v_fmac_f32 {DT[0]}, {DT[1]}, {DT[1]}
        v_fmac_f32 {DT[0]}, {DT[2]}, {DT[2]}
        v_cvt_pk_bf16_f32 {X[3]}, {DT[0]}, {DT[0]}
        """)
    read_entry = f"ds_read_b64 {EN}, {vAn}"; sEnd = sNq[0]; adv_n = [f"v_add_u32 {vAn}, 512, {vAn}", f"v_min_u32 {vAn}, {sEnd}, {vAn}"]
    flip_v = f"v_add_u32 {ERD}, {sEx}, {ERD}"
    def flip_s(): A(f"s_add_u32 {sEm}, {sEm}, {sEx}"); A(f"s_sub_u32 {sEx}, 0, {sEx}")
    e2 = "e2" in OPT; I2 = W2[12:14]; ERO = W2[14]; sE1 = sNq[2]
    def read_he(odd=0):
        for s in range(4): A(f"ds_read_b128 {H[4*s:4*s+4]}, {HRD[s]}")
        A(f"ds_read_b128 {EA}, {ERO if odd and e2 else ERD}")
    def m1(n, odd=0):
        y = Y[16*n:16*n+16]
        ops = [(X, (BXO if odd else BX)[4*n:4*n+4]), (EA, W4[4*n:4*n+4])] + [(H[8*n+4*s:8*n+4*s+4], PB[4*s:4*s+4]) for s in range(2)]
        return [f"{mf} {y}, {a}, {b}, {y if i else 0}" for i, (a, b) in enumerate(ops)]
    ndef = geto("def", 0)
    A('; ---- one round over the list: pad, prime the derive pipeline')
    A("L_round:")
    A(f"""
    s_add_u32 {sNt}, {sCnt}, 31
    s_lshr_b32 {sNt}, {sNt}, 5
    s_cbranch_scc0 L_round_end
    s_lshl_b32 {sT[0]}, {sNt}, 5
    s_sub_u32 {sT[0]}, {sT[0]}, {sCnt}
    s_lshr_b32 {sEx}, {sT[0]}, 3
    s_lshl_b32 {sT[1]}, {sCnt}, 3
    v_add_u32 {t0}, {sT[1]}, {LO[2]}
    s_bfm_b64 exec, {sT[0]}, 0
    ds_write_b64 {t0}, {INV}
    s_mov_b64 exec, -1
    s_cmp_eq_u32 {sEarly}, 0
    s_cbranch_scc1 L_first
    """)
    with cold():
        A("L_first:"); A(f"v_mov_b32 {vAh}, {LO[0]}"); A(f"v_mov_b32 {vAe}, {LO[1]}")
        read_first(); A("s_waitcnt lgkmcnt(0)"); shift_first(); dma_e(); dma_h()
        A("s_branch L_prime")
    A(f"""
    L_prime:
    s_mov_b32 {sNq[1]}, {POS}
    s_lshl_b32 {sEnd}, {sNt}, 8
    s_add_u32 {sEnd}, {sEnd}, {sLb}
    s_sub_u32 {sEnd}, {sEnd}, 8
    v_lshl_add_u32 {vAn}, {vL}, 3, {sLb}
    v_min_u32 {vAn}, {sEnd}, {vAn}
    ds_read_b64 {D}, {vAn}
    {adv_n[0]}
    {adv_n[1]}
    ds_read_b64 {EN}, {vAn}
    v_mov_b32 {vAh}, {LO[0]}
    v_mov_b32 {vAe}, {LO[1]}
    """)
    if e2:
        A(f"ds_read_b32 {I2[0]}, {vAe} offset:512"); A(f"v_mov_b32 {I2[1]}, {IX[9]}")
        A(f"s_add_u32 {sE1}, {sW10}, {WH}"); A(f"s_sub_u32 s3, {sE1}, {sEm}"); A(f"v_add_u32 {ERO}, s3, {ERD}")
    read_idx(256); A("\n".join(adv_n))
    A(f"s_mov_b32 {sTi}, 1"); A(f"s_mov_b32 {sEarly}, 0")
    A("s_waitcnt lgkmcnt(5)")
    A("\n".join(derive_a(D))); pos_reads()
    for r in (TM[0:16], TM[16:32], Y[16:32]): A(zero16(r, ZERO))
    A("\n".join(slot_ops[1:] + slot_ops[:1] + derive_a()))
    A("s_waitcnt lgkmcnt(0)")
    A("\n".join(derive_b))
    stamp(A, 13)
    one = lambda r: f"v_mfma_f32_16x16x4_4b_bf16 {r}, {HALF}, {HALF}, {r}"
    PKS = [PK, W2[16:24]]
    def finish(o, part):
        t = TM[16*o:16*o+16]; y = Y[16*o:16*o+16]; pk = PKS[o]
        if part == "mul": return [f"v_mul_f32 {t[i]}, {y[i]}, {t[i]}" for i in range(16)]
        if part == "cvt": return [f"v_cvt_pk_bf16_f32 {pk[i]}, {t[2*i]}, {t[2*i+1]}" for i in range(8)]
        if part == "m2": return [f"{mf} {ACC[16*o:16*o+16]}, {pk[4*u:4*u+4]}, {A2[4*u:4*u+4]}, {ACC[16*o:16*o+16]}" for u in range(2)]
    def mt(k):
        if "loop" in OPT: A(f"s_memtime {sM[2*k:2*k+2]}")
    if "loop" in OPT:
        for k in range(6): A(f"s_mov_b32 {sS2[k]}, 0")
        mt(0)
    A("s_branch L_tile")
    stub("tile")
    A('; ---- tile loop (two tiles per trip): prep = LDS reads + gathers of the next tile, block = MFMA / silu of this tile')
    m2 = finish(0, "m2") + finish(1, "m2")
    A(f".p2align {geto('al', 6)}")
    A("L_tile:")
    for odd in range(2):
        mt(1)
        for i in range(4): A(f"ds_read_b64_tr_b16 {A2[2*i:2*i+2]}, {vTtr} offset:{512*i}")
        A(f"ds_write_b64 {vAt if odd else vAz}, {ZERO}")
        A(f"s_mov_b32 exec_{'lo' if odd else 'hi'}, 0"); A(f"ds_write_b64 {vAt}, {D}"); A("s_mov_b64 exec, -1")
        if odd: A(read_entry); stub("odd", over=True)
        else: A(lut_read); pos_reads()
        if e2 and odd and "e2w" in OPT:
            A(f"s_cmp_lt_u32 {sTi}, {sNt}"); A("s_waitcnt vmcnt(1) lgkmcnt(7)"); A("s_cbranch_scc1 L_e2w"); A("s_waitcnt vmcnt(0)"); A("L_e2w:")
        else: A(f"s_waitcnt vmcnt(0) lgkmcnt({7 if odd else 9})")
        mt(2)
        if "tl" in OPT: A(f"s_memrealtime {sM[0:2]}")
        read_he(odd)
        if not (e2 and odd): A(shift_e)
        if e2 and not odd: A(f"v_lshrrev_b32 {I2[0]}, 6, {I2[0]}")
        a = m1(0, odd); b = m1(1, odd)
        tight = "loose" not in OPT
        if tight: A(f"s_mov_b32 m0, {sStg}")
        A(f"s_cmp_ge_u32 {sTi}, {sNt}")
        if tight: A("s_waitcnt lgkmcnt(5)"); A(a[0])
        A("s_waitcnt lgkmcnt(0)")
        mt(3)
        if "tl" in OPT: A(f"s_mov_b32 m0, {sTi}"); A(f"v_writelane_b32 v254, {sM[0]}, m0"); A(f"s_mov_b32 m0, {sStg}")
        if tight:
            A(f"s_cbranch_scc1 L_last0")
            dm = lambda i: f"buffer_load_dwordx4 {IX[2*i:2*i+2]}, {SH if i < 4 else SE}, 0 idxen offen {'sc1 ' if i < 4 else ''}lds"
            gap = [a[1], f"s_add_u32 {sTi}, {sTi}, 1", f"ds_read_b32 {IX[0]}, {vAh} offset:{512 + 256*odd}", f"ds_read_b32 {IX[2]}, {vAh} offset:{512 + 256*odd + 64}"]
            for i in range(5):
                if i == 4 and e2 and odd: break
                A(dm(i))
                if i < 4: A(f"s_mov_b32 m0, {sE1}" if e2 and i == 3 else "s_add_u32 m0, m0, 1024"); A(gap[i])
            if e2 and not odd:
                A(f"s_mov_b32 m0, {sEm}"); A(f"s_cmp_ge_u32 {sTi}, {sNt}"); A("s_cbranch_scc1 L_noe2")
                A(f"buffer_load_dwordx4 {I2}, {SE}, 0 idxen offen lds"); A("L_noe2:")
            for i in (2, 3): A(f"ds_read_b32 {IX[2*i]}, {vAh} offset:{512 + 256*odd + 64*i}")
            if not e2: A(f"ds_read_b32 {IX[8]}, {vAe} offset:{512 + 256*odd}")
            elif odd: A(f"ds_read_b32 {IX[8]}, {vAe} offset:768"); A(f"ds_read_b32 {I2[0]}, {vAe} offset:1024")
        else:
            A(a[0]); A(a[1])
            A(f"s_cbranch_scc1 L_last")
            if "xnoh" not in OPT: dma_h()
            if "xnoe" not in OPT: dma_e()
        mt(4)
        if not tight: read_idx(512 + 256*odd)
        if "loop" in OPT:
            A("s_waitcnt lgkmcnt(0)")
            for k in range(4): A(f"s_sub_u32 s3, {sM[2*k+2]}, {sM[2*k]}"); A(f"s_add_u32 {sS2[k]}, {sS2[k]}, s3")
            A(f"s_mov_b32 {sM[0]}, {sM[8]}")
        if not tight: A(f"s_add_u32 {sTi}, {sTi}, 1")
        prio(0); A("\n".join(finish(1, "mul"))); prio(1)
        cv = finish(0, "cvt") + finish(1, "cvt")
        if odd: fill = cv + derive_b[3:11] + slot_ops + derive_a()[:2] + adv_n; tail2 = [derive_b[11], derive_a()[2]]; endf = adv_idx
        else: fill = cv + derive_b[:1]; tail2 = derive_b[1:3]; endf = []
        A(a[2]); A("\n".join(fill[:6])); A(a[3]); A("\n".join(fill[6:12])); A(b[0]); A("\n".join(fill[12:]))
        for i in range(16):
            if i in (0, 3, 6): A(b[1 + i // 3])
            if i == 10: A(m2[0])
            A(f"v_exp_f32 {TM[i]}, {Y[i]}")
        A("\n".join(tail2)); A(one(TM[0:16]))
        for i in range(16):
            if i in (4, 8): A(m2[i // 4])
            A(f"v_exp_f32 {TM[16+i]}, {Y[16+i]}")
        for i in range(32):
            if i == 2: A(one(TM[16:32]))
            if i == 6: A(m2[3])
            if i == 8 and "nop2" not in OPT: prio(2)
            if "xnorcp" not in OPT: A(f"v_rcp_f32 {TM[i]}, {TM[i]}")
        A("\n".join(finish(0, "mul") + endf)); prio(3)
    A("s_branch L_tile")
    WXR = [H[0:4], H[4:8], H[8:12], H[12:16], EA, X, A2[0:4], A2[4:8]]
    WF = [W2[0:16], R("v", W4.b, 16)]
    assert BX.b == W4.b + 8
    er = [f"ds_read_b64_tr_b16 {WF[n2][4*st+2*hf:4*st+2*hf+2]}, {DT[3] if n2 else vWb} offset:{(16*st + 8*hf)*128}" for n2 in range(2) for st in range(4) for hf in range(2)]
    er += [f"ds_read_b128 {WXR[i]}, {vAl} offset:{WX + 32*i}" for i in range(6)]
    SO = SY; B_ = Asm(); srd(B_, SO, pOut, N * 134)
    episc = B_.o + [f"s_lshl_b32 {sT[2]}, {sNn}, 2", f"s_bfm_b64 {sT[2:4]}, {sT[2]}, 0", f"s_and_b32 {sT[2]}, {sT[2]}, 0x77777"]
    epiaddr = lines(f"""
    v_lshrrev_b32 {DT[1]}, 2, {vL}
    v_and_b32 {DT[2]}, 3, {vL}
    v_add_u32 {DT[1]}, {sN0}, {DT[1]}
    v_mul_u32_u24 {DT[1]}, 6, {DT[1]}
    v_lshl_add_u32 {DT[1]}, {DT[2]}, 1, {DT[1]}
    v_add_u32 {DT[0]}, {POS}, {DT[1]}
    ds_read_u16_d16_hi {PS[0]}, {DT[0]}
    v_add_u32 {DT[0]}, {sN0}, {vHalf}
    v_lshlrev_b32 {DT[0]}, 7, {DT[0]}
    v_and_b32 {DT[2]}, 31, {vL}
    v_lshl_add_u32 {DT[0]}, {DT[2]}, 1, {DT[0]}
    v_add_u32 {DT[1]}, {N*128}, {DT[1]}
    v_xor_b32 {DT[3]}, 64, {vWb}
    v_lshlrev_b32 {vAl}, 4, {vHalf}
    """)
    stub("last", page="L_back2", dead=True)
    A('; ---- last tile of a round (groups of eight padding rows are skipped)')
    if tight: A("L_last0:"); A(a[1])
    A("L_last:")
    prio(0); A("\n".join(finish(1, "mul"))); prio(1)
    cv = finish(0, "cvt") + finish(1, "cvt") + epiaddr
    A(f"s_bitcmp1_b32 {sTi}, 0")
    A(a[2]); A("\n".join(cv[:6])); A(a[3]); A("\n".join(cv[6:11]))
    A("s_cbranch_scc1 L_le"); A(m1(1, 1)[0]); A("s_branch L_lo"); A("L_le:"); A(m1(1, 0)[0]); A("L_lo:")
    A("\n".join(cv[11:16])); A(b[1]); A("\n".join(cv[16:22])); A(b[2]); A("\n".join(cv[22:28])); A(b[3]); A("\n".join(cv[28:]))
    def enter(tag):
        if "notrim" in OPT: return
        for g in (3, 2, 1): A(f"s_cmp_eq_u32 {sEx}, {g}"); A(f"s_cbranch_scc1 L_{tag}{3-g}")
    A(f"s_cmp_lt_u32 {sScan}, {E}"); A("s_cbranch_scc1 L_nf1")
    A("\n".join(er[4:6])); A(m2[0]); A("\n".join(er[6:14]))
    A("L_nf1b:")
    with cold(): A("L_nf1:"); A(m2[0]); A("s_nop 4"); A("s_branch L_nf1b")
    enter("x")
    for g in (3, 2, 1, 0):
        A(f"L_x{g}:")
        for n in range(2):
            for i in range(4):
                if g == 0 and i == 0: A(m2[1 + n])
                A(f"v_exp_f32 {TM[16*n+4*g+i]}, {Y[16*n+4*g+i]}")
    A(f"s_cmp_lt_u32 {sScan}, {E}"); A(m2[3]); A("s_cbranch_scc1 L_nf2")
    A("s_waitcnt lgkmcnt(3)"); A("\n".join(er[0:4] + er[14:15])); A(one(TM[0:16])); A("\n".join(er[15:22])); A(one(TM[16:32]))
    A("L_nf2b:")
    with cold(): A("L_nf2:"); A(one(TM[0:16])); A(one(TM[16:32])); A("s_nop 3"); A("s_branch L_nf2b")
    A("s_waitcnt lgkmcnt(8)")
    for i in range(4): A(f"ds_read_b64_tr_b16 {A2[2*i:2*i+2]}, {vTtr} offset:{512*i}")
    A(f"ds_write_b64 {vAt}, {ZERO}")
    prio(geto("lq", 1)); stub("l2", over=True)
    enter("r")
    for g in (3, 2, 1, 0):
        A(f"L_r{g}:")
        idx = [16*n + 4*g + i for n in range(2) for i in range(4)]
        for i in idx: A(f"v_rcp_f32 {TM[i]}, {TM[i]}")
        for i in idx: A(f"v_mul_f32 {TM[i]}, {Y[i]}, {TM[i]}")
        for n in range(2):
            for i in range(2): A(finish(n, "cvt")[2*g+i])
        if g == 2: A("s_waitcnt lgkmcnt(0)"); A("s_nop 0"); A(m2[1]); A(m2[3])
    A(f"s_cmp_lt_u32 {sScan}, {E}"); A("s_waitcnt lgkmcnt(0)")
    A(m2[0]); A("s_cbranch_scc1 L_nf3"); A("\n".join(episc[:5])); A(m2[2])
    with cold(): A("L_nf3:"); A(m2[2]); A("s_branch L_more")
    prio(geto("lp", 0)); A("\n".join(episc[5:]))
    stub("epi", over=True)
    kcold = len(A.o)
    A("L_round_end:")
    A(f"s_cmp_lt_u32 {sScan}, {E}"); A("s_cbranch_scc1 L_more")
    A("\n".join(epiaddr + er[:11] + ["s_waitcnt lgkmcnt(0)"] + er[11:] + episc + ["s_waitcnt lgkmcnt(0)"])); A("s_branch L_epi")
    A("L_more:")
    A(f"s_cmp_lg_u32 {sScan}, 0"); A("s_cbranch_scc1 L_havetab")
    srd(A, SZ, pH, N, 128)
    FP = R("v", EA.b, 16)
    A(f"""
    v_lshlrev_b32 {t0}, 4, v0
    v_and_b32 {t1}, 16, {vL}
    v_lshlrev_b32 {t1}, 2, {t1}
    v_xor_b32 {t0}, {t0}, {t1}
    s_add_u32 m0, {sW10}, {STG}
    s_movk_i32 {sT[0]}, 8192
    s_lshl_b32 {sT[1]}, {sW}, 11
    s_add_u32 {sT[1]}, {sT[1]}, {WE}
    v_lshl_add_u32 {t2}, {vL}, 3, {sT[1]}
    s_waitcnt vmcnt(0)
    s_barrier
    ds_write_b64 {t2}, {ZERO}
    ds_write_b64 {t2}, {ZERO} offset:512
    ds_write_b64 {t2}, {ZERO} offset:1024
    ds_write_b64 {t2}, {ZERO} offset:1536
    buffer_load_dwordx4 {t0}, {SY}, {sT[0]} offen lds
    v_subrev_u32 {t0}, {WE - STG}, {vT1}
    v_xor_b32 {t1}, 64, {t0}
    v_and_b32 {EN[0]}, 31, {vL}
    v_lshl_add_u32 {EN[0]}, {sW}, 5, {EN[0]}
    v_lshlrev_b32 {EN[1]}, 4, {vHalf}
    v_lshlrev_b32 {D[1]}, 5, {vHalf}
    s_mov_b32 {sTi}, {sW}
    s_waitcnt vmcnt(0)
    s_barrier
    """)
    for n in range(2):
        for s_ in range(4):
            for half in range(2): A(f"ds_read_b64_tr_b16 {Y[16*n+4*s_+2*half:16*n+4*s_+2*half+2]}, {t1 if n else t0} offset:{(16*s_ + 4*half)*128}")
        A("s_waitcnt lgkmcnt(0)")
    A("L_tab:")
    for s_ in range(4): A(f"buffer_load_dwordx4 {H[4*s_:4*s_+4]}, {EN}, {SZ}, 0 idxen offen offset:{32*s_}")
    A(f"v_mov_b32 {D[0]}, {EN[0]}"); A(f"v_add_u32 {EN[0]}, 256, {EN[0]}")
    A("s_waitcnt vmcnt(0)")
    for n in range(2):
        for s_ in range(4): A(f"{mf} {TM[16*n:16*n+16]}, {Y[16*n+4*s_:16*n+4*s_+4]}, {H[4*s_:4*s_+4]}, {TM[16*n:16*n+16] if s_ else 0}")
    A("s_nop 11")
    for k in range(32): A(f"v_mul_f32 {TM[k]}, {NLOG2E:#x}, {TM[k]}")
    for k in range(16): A(f"v_cvt_pk_bf16_f32 {FP[k]}, {TM[2*k]}, {TM[2*k+1]}")
    for k in range(4): A(f"buffer_store_dwordx4 {FP[4*k:4*k+4]}, {D}, {SH}, 0 idxen offen offset:{64*(k//2) + 16*(k%2)} sc1")
    A(f"""
    s_add_u32 {sTi}, {sTi}, 8
    s_cmp_lt_u32 {sTi}, {(N + 31)//32}
    s_cbranch_scc1 L_tab
    s_waitcnt vmcnt(0)
    s_barrier
    L_havetab:
    """)
    A(f"s_mov_b32 {sCnt}, 0")
    A("L_scan:")
    Dd = H[0:4]; Ss = H[4:8]
    A(f"""
    s_lshl_b32 {sT[0]}, {sScan}, 2
    v_lshl_add_u32 {DT[0]}, {vL}, 4, {sT[0]}
    global_load_dwordx4 {Dd}, {DT[0]}, {pDst}
    global_load_dwordx4 {Ss}, {DT[0]}, {pSrc}
    v_lshlrev_b32 {DT[0]}, 4, {DT[0]}
    s_waitcnt vmcnt(0)
    """)
    for i in range(4):
        A(f"""
        v_subrev_u32 {DT[1]}, {sN0}, {Dd[i]}
        v_cmp_gt_u32 vcc, {sNn}, {DT[1]}
        v_add3_u32 {EN[0]}, {DT[0]}, {DT[1]}, 1
        v_mov_b32 {EN[1]}, {Ss[i]}
        v_mbcnt_lo_u32_b32 {DT[2]}, vcc_lo, 0
        v_mbcnt_hi_u32_b32 {DT[2]}, vcc_hi, {DT[2]}
        v_add_u32 {DT[2]}, {sCnt}, {DT[2]}
        v_lshl_add_u32 {DT[2]}, {DT[2]}, 3, {sLb}
        s_bcnt1_i32_b64 {sT[0]}, vcc
        s_add_u32 {sCnt}, {sCnt}, {sT[0]}
        s_mov_b64 exec, vcc
        ds_write_b64 {DT[2]}, {EN}
        s_mov_b64 exec, -1
        v_add_u32 {DT[0]}, 64, {DT[0]}
        """)
    A(f"""
    s_add_u32 {sScan}, {sScan}, 256
    s_cmp_ge_u32 {sScan}, {E}
    s_cbranch_scc1 L_round
    s_cmp_le_u32 {sCnt}, {CAP - 256}
    s_cbranch_scc1 L_scan
    s_branch L_round
    """)
    COLD.extend(A.o[kcold:]); del A.o[kcold:]
    A("L_epi:")
    stamp(A, 11)
    for i in (6, 7): A(f"ds_read_b128 {WXR[i]}, {vAl} offset:{WX + 32*i}")
    fm = [f"v_mul_f32 {DT[2]}, {ACC[0]}, {WXR[0][0]}"] + [f"v_fmac_f32 {DT[2]}, {ACC[i]}, {WXR[i//4][i%4]}" for i in range(1, 32)]
    zm = lambda st, n2: f"{mf} {TM[16*n2:16*n2+16]}, {Y[4*st:4*st+4]}, {WF[n2][4*st:4*st+4]}, {TM[16*n2:16*n2+16] if st else 0}"
    for st in range(4):
        v = [f"v_mul_f32 {ACC[8*st+i]}, {NLN2:#x}, {ACC[8*st+i]}" for i in range(8)] + [f"v_cvt_pk_bf16_f32 {Y[4*st+i]}, {ACC[8*st+2*i]}, {ACC[8*st+2*i+1]}" for i in range(4)]
        if st == 0: A("\n".join(v))
        else: A("\n".join(v[:2])); A(zm(st-1, 0)); A("\n".join(v[2:8])); A(zm(st-1, 1)); A("\n".join(v[8:]))
    A("\n".join(fm[:2])); A(zm(3, 0)); A("\n".join(fm[2:8])); A(zm(3, 1))
    A("\n".join(fm[8:24])); A("s_waitcnt lgkmcnt(0)"); A("\n".join(fm[24:]))
    A(f"v_mov_b32 {DT[3]}, {DT[2]}")
    TT = PK
    for n in range(2):
        for j in range(3):
            z = ZH[2*j+n]; t = TT[2*j+n]
            A(f"v_add_f32 {z}, {z}, {TM[16*n+4*j+3]}")
            A(f"v_mul_f32 {t}, {NLOG2E:#x}, {z}"); A(f"v_exp_f32 {t}, {t}")
            if n == 0 and j == 0: A(f"v_permlane32_swap_b32 {DT[2]}, {DT[3]}")
    A(f"v_add_f32 {DT[2]}, {DT[2]}, {DT[3]}"); A(f"v_add_f32 {DT[2]}, {DT[2]}, {PS[0]}"); A(f"v_cvt_pk_bf16_f32 {DT[2]}, {DT[2]}, {DT[2]}")
    A(f"s_mov_b64 exec, {sT[2:4]}"); A(f"buffer_store_short {DT[2]}, {DT[1]}, {SO}, 0 offen"); A("s_mov_b64 exec, -1")
    for i in range(6): A(f"v_add_f32 {TT[i]}, 1.0, {TT[i]}"); A(f"v_rcp_f32 {TT[i]}, {TT[i]}")
    A(f"s_cmp_eq_u32 {sNn}, 5")
    for j in range(3):
        if j == 2: A("s_cbranch_scc0 L_fin"); A("s_mov_b32 exec_hi, 0")
        for n in range(2): A(f"v_fmac_f32 {HR[2*j+n]}, {ZH[2*j+n]}, {TT[2*j+n]}")
        A(f"v_cvt_pk_bf16_f32 {HR[2*j]}, {HR[2*j]}, {HR[2*j+1]}")
        A(f"buffer_store_short {HR[2*j]}, {DT[0]}, {SO}, 0 offen offset:{256*j}")
        A(f"buffer_store_short_d16_hi {HR[2*j]}, {DT[0]}, {SO}, 0 offen offset:{256*j + 64}")
    A("L_fin:")
    if "stamp" in OPT:
        A("s_waitcnt vmcnt(0)"); A(f"v_writelane_b32 v255, {sTo}, 14"); A(f"v_writelane_b32 v255, {sNt}, 15")
        if "loop" in OPT:
            for k in range(6): A(f"v_writelane_b32 v255, {sS2[k]}, {23+k}")
    stamp(A, 12); stamp_out(A, pWs)
    A("L_done:"); A("s_endpgm")
    k = COLD.index("L_epoch:"); COLD[:] = COLD[k:k+6] + COLD[:k] + COLD[k+6:]
    A("; ---- out-of-line code: epoch update, retries, exact fallback (rebuild the row table, scan dst directly)")
    A.o.extend(COLD)
    fl = "" if "oplain" in OPT else "sc1"
    A.o = [l + " " + fl if l.startswith("buffer_store_short") else l for l in A.o]
    print("vgprs", nv, "sgprs", S.n, "lds", LDS_MAIN, "instrs", len(A.o), file=sys.stderr)
    return A.text()

if __name__ == "__main__":
    OPT.update(sys.argv[2:])
    if "xto" in OPT: TIMEOUT = 50
    KN = "standalone__cheap_equivariant_egnn__graph_kernel"
    s = assemble([(KN, k_main(), 256)], [(KN, NB, 512, LDS_MAIN)], single=True).replace("next_free_sgpr 96", "next_free_sgpr 102")
    doc = """; One persistent workgroup per CU owns 39-40 destination nodes (4-5 per wave) and a chunk of 2500 edges.
;     applies silu, and a second MFMA with [diff | 1] selection columns does both segment sums.
; L_st_* / L_lt_* are landing pads that branch straight back: they pull code into the instruction caches early.
"""
    s = s.replace("; @launch", doc + "; @launch", 1)
    open(sys.argv[1], "w").write(s)
```
